```python
import torch

def _softmax(x, axis=-1):
    return torch.softmax(x, dim=axis)
def _gelu(x):
    return torch.nn.functional.gelu(x, approximate="tanh")
def _silu(x):
    return torch.nn.functional.silu(x)
def _sigmoid(x):
    return torch.sigmoid(x)
def _layernorm(x, axis=-1, eps=1e-5):
    m = x.mean(dim=axis, keepdim=True)
    v = x.var(dim=axis, keepdim=True, unbiased=False)
    return (x - m) / torch.sqrt(v + eps)
def _scatter_add(tgt, idx, src, axis=0):
    return tgt.clone().index_add_(axis, idx, src)
def _segment_sum(src, seg, n):
    out = torch.zeros((n,) + src.shape[1:], dtype=src.dtype)
    return out.index_add_(0, seg, src)
def _pad(x, pw):
    flat = tuple(v for pair in reversed(pw) for v in pair)
    return torch.nn.functional.pad(x, flat)

kernel_name = 'gather_scatter__edge_featured_mpnn_gatedgcn__graph'

def setup_inputs():

    _w = (lambda a: (lambda t: t.to(torch.bfloat16) if t.is_floating_point() else t)(torch.as_tensor(a)))
    N, deg, D, De = 12500, 32, 128, max(16, 1)
    E = N * deg
    return {
        "x": _w((lambda *s: torch.randn(*s, dtype=torch.bfloat16) * 0.4)(N, D)),
        "e_attr": _w((lambda *s: torch.randn(*s, dtype=torch.bfloat16) * 0.8)(E, De)),
        "src": _w((lambda lo, hi, *s: torch.randint(lo, hi, s))(0, N, E).to(torch.int64)),
        "dst": _w((lambda lo, hi, *s: torch.randint(lo, hi, s))(0, N, E).to(torch.int64)),
        "w_a": _w((lambda *s: torch.randn(*s, dtype=torch.bfloat16) * 0.4)(D, D)),
        "w_b": _w((lambda *s: torch.randn(*s, dtype=torch.bfloat16) * 0.4)(D, D)),
        "w_c": _w((lambda *s: torch.randn(*s, dtype=torch.bfloat16) * 0.8)(De, D)),
        "w_u": _w((lambda *s: torch.randn(*s, dtype=torch.bfloat16) * 0.05)(D, D)),
        "w_v": _w((lambda *s: torch.randn(*s, dtype=torch.bfloat16) * 0.05)(D, D)),
    }

def reference(x, e_attr, src, dst, w_a, w_b, w_c, w_u, w_v):
    N, D = x.shape
    hv = x @ w_v
    g = x[dst] @ w_a + x[src] @ w_b + e_attr @ w_c
    eta = _sigmoid(g)
    denom = _segment_sum(eta, dst, N) + 1e-6
    eta_n = eta / denom[dst]
    agg = _segment_sum(eta_n * hv[src], dst, N)
    z = x @ w_u + agg
    relu_z = torch.where(z > 0, z, 0 * z)
    return x + relu_z
```

```python
import sys, struct

NAME = "gather_scatter__edge_featured_mpnn_gatedgcn__graph"
N, E = 12500, 400000
SB = 49
CH = 3128
P = 128
NG = 196
DUMMY = 4095
WS_REC = 0x800000
WS_OFF = 0xA00000
SHIFT = 48
LOG2E = 1.4426950408889634

def f32(x):
    return struct.unpack("<I", struct.pack("<f", x))[0]

class Asm:
    def __init__(self):
        self.l = []
    def __call__(self, s):
        for x in s.strip("\n").split("\n"):
            x = x.strip()
            if not x:
                continue
            self.l.append(x if x.endswith(":") else "  " + x)
    def text(self):
        return "\n".join(self.l) + "\n"

def vr(b, n=1):
    return f"v{b}" if n == 1 else f"v[{b}:{b+n-1}]"
def ar(b, n=1):
    return f"a{b}" if n == 1 else f"a[{b}:{b+n-1}]"
def sr(b, n=1):
    return f"s{b}" if n == 1 else f"s[{b}:{b+n-1}]"

def srd(a, d, base, nbytes, stride=0, add=None):
    if add is None:
        a(f"s_mov_b32 s{d}, s{base}")
        a(f"s_and_b32 s{d+1}, s{base+1}, 0xffff")
    else:
        a(f"s_add_u32 s{d}, s{base}, {add}")
        a(f"s_addc_u32 s{d+1}, s{base+1}, 0")
        a(f"s_and_b32 s{d+1}, s{d+1}, 0xffff")
    if stride:
        a(f"s_or_b32 s{d+1}, s{d+1}, {hex(stride << 16)}")
    a(f"s_mov_b32 s{d+2}, {nbytes}")
    a(f"s_mov_b32 s{d+3}, 0x20000")

def scan64(a, regs):
    steps = [("row_shr:1", ""), ("row_shr:2", ""), ("row_shr:4", ""), ("row_shr:8", ""),
             ("row_bcast:15", " row_mask:0xa"), ("row_bcast:31", " row_mask:0xc")]
    for ctl, mask in steps:
        a(f"s_nop {1 if len(regs) == 1 else 0}")
        for r in regs:
            rm = mask if mask else " row_mask:0xf"
            a(f"v_add_u32_dpp v{r}, v{r}, v{r} {ctl}{rm} bank_mask:0xf")

def onehot(a, d, dst, t0, t1):
    a(f"v_and_b32 v{t0}, 1, v{d}")
    a(f"v_lshlrev_b32 v{t0}, 4, v{t0}")
    a(f"v_mov_b32 v{t1}, 0x3f80")
    a(f"v_lshlrev_b32 v{t0}, v{t0}, v{t1}")
    a(f"v_ashrrev_i32 v{t1}, 1, v{d}")
    for j in range(4):
        a(f"v_cmp_eq_u32 vcc, {j}, v{t1}")
        a("s_nop 1")
        a(f"v_cndmask_b32 v{dst+j}, 0, v{t0}, vcc")

def desc(name, vgpr, sgpr, accum):
    return f""".section .rodata,"a"
.p2align 6
.amdhsa_kernel {name}
  .amdhsa_next_free_vgpr {vgpr}
  .amdhsa_next_free_sgpr {sgpr}
  .amdhsa_accum_offset {accum}
  .amdhsa_group_segment_fixed_size 0
  .amdhsa_kernarg_size 96
  .amdhsa_user_sgpr_count 2
  .amdhsa_user_sgpr_kernarg_segment_ptr 1
  .amdhsa_system_sgpr_workgroup_id_x 1
.end_amdhsa_kernel
.text
"""

def head(a, name):
    a.l += [f".globl {name}", ".p2align 8", f".type {name},@function", f"{name}:"]

MF = "v_mfma_f32_32x32x16_bf16"

K1_LDS = 81920

def gen_k1(a, opt):
    name = "prep_kernel"
    head(a, name)
    a(f"""
    s_cmp_ge_u32 s2, {NG + P}
    s_cbranch_scc1 K1_end
    s_load_dwordx2 s[4:5], s[0:1], 88
    s_cmp_ge_u32 s2, {NG}
    s_cbranch_scc1 K1_sort
    """)
    a("""
    s_load_dwordx2 s[6:7], s[0:1], 0
    s_load_dwordx2 s[8:9], s[0:1], 40
    s_load_dwordx2 s[10:11], s[0:1], 64
    v_lshrrev_b32 v1, 6, v0
    v_and_b32 v2, 63, v0
    v_readfirstlane_b32 s3, v1
    v_lshrrev_b32 v3, 4, v2
    v_and_b32 v4, 15, v2
    v_lshlrev_b32 v5, 2, v3
    v_xor_b32 v5, v5, v4
    v_lshlrev_b32 v5, 4, v5
    v_lshl_add_u32 v5, v3, 8, v5
    s_and_b32 s24, s3, 3
    s_lshr_b32 s25, s3, 2
    s_lshl_b32 s26, s24, 2
    v_add_u32 v6, s26, v3
    v_xor_b32 v6, v6, v4
    v_lshlrev_b32 v6, 4, v6
    v_lshl_add_u32 v6, v3, 8, v6
    s_waitcnt lgkmcnt(0)
    """)
    srd(a, 12, 6, N * 256)
    a("""
    s_cmp_eq_u32 s25, 0
    s_cselect_b32 s28, s8, s10
    s_cselect_b32 s29, s9, s11
    """)
    srd(a, 16, 28, 32768)
    a("""
    s_lshl_b32 s27, s2, 14
    s_lshl_b32 s30, s3, 10
    s_add_u32 s27, s27, s30
    s_add_u32 m0, s30, 65536
    s_add_u32 s31, s27, 8192
    buffer_load_dwordx4 v6, s[12:15], s27 offen lds
    s_add_u32 m0, s30, 73728
    s_lshl_b32 s32, s24, 13
    buffer_load_dwordx4 v6, s[12:15], s31 offen lds
    s_lshl_b32 s33, s3, 13
    s_mov_b32 m0, s33
    s_add_u32 s34, s32, 4096
    """)
    for i in range(4):
        a(f"buffer_load_dwordx4 v5, s[16:19], s32 offen offset:{1024*i} lds")
    a("s_add_u32 m0, s33, 4096\ns_nop 0")
    for i in range(4):
        a(f"buffer_load_dwordx4 v5, s[16:19], s34 offen offset:{1024*i} lds")
    a("""
    v_lshrrev_b32 v10, 5, v2
    v_lshrrev_b32 v11, 2, v4
    v_lshl_add_u32 v12, v10, 3, v11
    v_lshlrev_b32 v7, 8, v12
    v_xor_b32 v12, s24, v11
    v_lshl_add_u32 v7, v12, 6, v7
    v_and_b32 v12, 1, v3
    v_lshl_add_u32 v7, v12, 5, v7
    v_and_b32 v12, 3, v2
    v_lshl_add_u32 v7, v12, 3, v7
    s_lshl_b32 s35, s25, 15
    v_add_u32 v7, s35, v7
    v_and_b32 v13, 31, v2
    v_xor_b32 v12, v10, v4
    v_lshlrev_b32 v12, 4, v12
    v_lshl_add_u32 v8, v13, 8, v12
    v_add_u32 v8, 0x10000, v8
    s_lshl_b32 s35, s24, 3
    s_lshl_b32 s36, s25, 2
    s_add_u32 s35, s35, s36
    v_and_b32 v12, 7, v2
    v_xor_b32 v12, s35, v12
    v_lshlrev_b32 v12, 4, v12
    v_lshl_add_u32 v9, v13, 9, v12
    v_lshl_add_u32 v9, v10, 3, v9
    """)
    a(f"""
    s_mov_b32 s36, {hex(f32(-LOG2E))}
    s_cmp_eq_u32 s25, 0
    s_cselect_b32 s36, s36, 1.0
    s_mul_i32 s37, s2, 1338
    s_lshr_b32 s37, s37, 16
    s_mul_i32 s37, s37, {(4096 - 3136) * 512}
    s_lshl_b32 s38, s2, 15
    s_add_u32 s37, s37, s38
    """)
    srd(a, 20, 4, 32768, add="s37")
    a("s_waitcnt vmcnt(0)\ns_barrier")
    WF, XF, D = 16, 48, 112
    for q in range(8):
        for z in range(2):
            a(f"ds_read_b64_tr_b16 {vr(WF+4*q+2*z, 2)}, v7 offset:{4096*q+1024*z}")
    for q in range(8):
        if q:
            a(f"v_xor_b32 v14, {32*q}, v8")
        ad = "v14" if q else "v8"
        a(f"ds_read_b128 {vr(XF+8*q, 4)}, {ad}")
        a(f"ds_read_b128 {vr(XF+8*q+4, 4)}, {ad} offset:8192")
    for q in range(8):
        a(f"s_waitcnt lgkmcnt({min(15, 14-2*q)})")
        for rt in range(2):
            c = "0" if q == 0 else vr(D+16*rt, 16)
            a(f"{MF} {vr(D+16*rt,16)}, {vr(WF+4*q,4)}, {vr(XF+8*q+4*rt,4)}, {c}")
    a("s_barrier")
    a("""
    v_lshrrev_b32 v12, 5, v0
    v_and_b32 v13, 7, v12
    v_and_b32 v14, 31, v0
    v_xor_b32 v13, v13, v14
    v_lshlrev_b32 v13, 4, v13
    v_lshl_add_u32 v10, v12, 9, v13
    v_lshlrev_b32 v11, 4, v0
    s_nop 4
    """)
    for rt in range(2):
        for j in range(4):
            b = D + 16*rt + 4*j
            for i in range(4):
                a(f"v_mul_f32 v{b+i}, s36, v{b+i}")
            a(f"v_cvt_pk_bf16_f32 v{b}, v{b}, v{b+1}")
            a(f"v_cvt_pk_bf16_f32 v{b+1}, v{b+2}, v{b+3}")
            if j:
                a(f"v_xor_b32 v14, {16*j}, v9")
            ad = "v14" if j else "v9"
            a(f"ds_write_b64 {ad}, {vr(b,2)} offset:{16384*rt}")
    a("s_waitcnt lgkmcnt(0)\ns_barrier")
    for i in range(4):
        a(f"ds_read_b128 {vr(16+4*i,4)}, v10 offset:{8192*i}")
    a("s_mov_b32 s38, 8192\ns_mov_b32 s39, 16384\ns_mov_b32 s40, 24576")
    for i, so in enumerate(["0", "s38", "s39", "s40"]):
        a(f"s_waitcnt lgkmcnt({3-i})")
        a(f"buffer_store_dwordx4 {vr(16+4*i,4)}, v11, s[20:23], {so} offen {opt.get('k1st','')}")
    a("s_endpgm")
    a(f"""
    K1_sort:
    s_load_dwordx4 s[8:11], s[0:1], 16
    s_sub_u32 s3, s2, {NG}
    s_mul_i32 s24, s3, {CH*4}
    s_sub_u32 s25, {E*4}, s24
    s_min_u32 s25, s25, {CH*4}
    v_lshlrev_b32 v1, 4, v0
    v_lshlrev_b32 v2, 2, v0
    v_mov_b32 v3, 0
    ds_write_b32 v2, v3
    s_waitcnt lgkmcnt(0)
    """)
    srd(a, 12, 10, "s25", add="s24")
    srd(a, 16, 8, "s25", add="s24")
    a("""
    s_mov_b32 s26, 8192
    buffer_load_dwordx4 v[8:11], v1, s[12:15], 0 offen
    buffer_load_dwordx4 v[12:15], v1, s[12:15], s26 offen
    buffer_load_dwordx4 v[16:19], v1, s[16:19], 0 offen
    buffer_load_dwordx4 v[20:23], v1, s[16:19], s26 offen
    """)
    a(f"s_add_u32 s27, s24, {WS_REC}")
    srd(a, 20, 4, "s25", add="s27")
    a(f"""
    s_lshl_b32 s27, s3, 10
    s_add_u32 s27, s27, {WS_OFF}
    """)
    srd(a, 28, 4, 1024, add="s27")
    a(f"""
    v_add_u32 v4, 8192, v1
    v_cmp_gt_u32 s[32:33], s25, v4
    s_mov_b32 s34, {-SB & 0xffffffff}
    s_mov_b32 s35, {4096 - 3136}
    v_mov_b32 v6, 4
    v_lshlrev_b32 v7, 22, v0
    s_barrier
    s_waitcnt vmcnt(2)
    """)
    for g in range(2):
        for j in range(4):
            d = 8 + 4*g + j
            t = 24 + 4*g + j
            a(f"v_mul_u32_u24 v{t}, 21400, v{d}")
            a(f"v_lshrrev_b32 v{t}, 20, v{t}")
            a(f"v_mad_i32_i24 v{d}, v{t}, s34, v{d}")
            a(f"v_lshlrev_b32 v{t}, 2, v{t}")
        if g:
            a("s_mov_b64 exec, s[32:33]")
        for j in range(4):
            a(f"ds_add_rtn_u32 v{32+4*g+j}, v{24+4*g+j}, v6")
    a("s_mov_b64 exec, -1\ns_waitcnt vmcnt(0)")
    for g in range(2):
        for j in range(4):
            s = 16 + 4*g + j
            d = 8 + 4*g + j
            a(f"v_mul_u32_u24 v4, 21400, v{s}")
            a(f"v_lshrrev_b32 v4, 26, v4")
            a(f"v_mad_u32_u24 v{s}, v4, s35, v{s}")
            a(f"v_lshl_or_b32 v{s}, v{d}, 14, v{s}")
            a(f"v_add_u32 v4, {hex(((2048*g + j) << 20) & 0xffffffff)}, v7")
            a(f"v_or_b32 v{s}, v4, v{s}")
    a("""
    v_and_b32 v5, 63, v0
    v_lshlrev_b32 v5, 4, v5
    s_waitcnt lgkmcnt(0)
    s_barrier
    ds_read_b128 v[8:11], v5
    s_waitcnt lgkmcnt(0)
    v_add_u32 v13, v8, v9
    v_add_u32 v14, v13, v10
    v_add_u32 v15, v14, v11
    v_mov_b32 v4, v15
    """)
    scan64(a, [4])
    a("""
    v_sub_u32 v40, v4, v15
    v_add_u32 v41, v40, v8
    v_add_u32 v42, v40, v13
    v_add_u32 v43, v40, v14
    ds_write_b128 v5, v[40:43] offset:2048
    """)
    for j in range(4):
        a(f"v_lshl_or_b32 v{44+j}, v{8+j}, 16, v{40+j}")
    a("""
    buffer_store_dwordx4 v[44:47], v1, s[28:31], 0 offen
    s_waitcnt lgkmcnt(0)
    """)
    for k in range(8):
        a(f"ds_read_b32 v{24+k}, v{24+k} offset:2048")
    a("s_waitcnt lgkmcnt(0)")
    for k in range(8):
        if k == 4:
            a("s_mov_b64 exec, s[32:33]")
        a(f"v_add_u32 v{24+k}, v{24+k}, v{32+k}")
        a(f"ds_write_b32 v{24+k}, v{16+k} offset:4096")
    a("""
    s_mov_b64 exec, -1
    s_waitcnt lgkmcnt(0)
    s_barrier
    ds_read_b128 v[8:11], v1 offset:4096
    ds_read_b128 v[12:15], v1 offset:12288
    s_waitcnt lgkmcnt(1)
    buffer_store_dwordx4 v[8:11], v1, s[20:23], 0 offen
    s_waitcnt lgkmcnt(0)
    buffer_store_dwordx4 v[12:15], v1, s[20:23], s26 offen
    s_cmp_lg_u32 s3, 0
    s_cbranch_scc1 K1_end
    """)
    srd(a, 36, 4, 512, add=DUMMY * 512)
    a("""
    v_and_b32 v4, 4, v0
    v_cmp_eq_u32 vcc, 0, v4
    v_mov_b32 v5, 0x71807180
    s_nop 0
    v_cndmask_b32 v16, 0, v5, vcc
    v_mov_b32 v17, v16
    v_mov_b32 v18, v16
    v_mov_b32 v19, v16
    buffer_store_dwordx4 v[16:19], v1, s[36:39], 0 offen
    K1_end:
    s_endpgm
    """)
    return desc(name, 144, 48, 144)

RING = 0
ERING = 65536
ATAB = 81920
AST = 576
LIST = ATAB + 50 * AST
CAPS = 2560
LSET = CAPS * 8
CNT = LIST + 2 * LSET
BASE = CNT + 2048
FLAG = BASE + 2048
K2_LDS = FLAG + 64
LIMIT = 2272 * 8

def gen_k2(a, opt):
    name = NAME + "_kernel"
    R = opt.get("R", 4)
    cmask = {4: 0x7F8, 2: 0x7F0, 1: 0x7E0}[R]
    head(a, name)
    SEL0, SEL1, PIND, WC, CI = 0+4, 8, 12, 16, 20
    G = [36, 52]; H = 68
    OE, OB0, OB1, OH0, OH1, OA = 84, 88, 92, 96, 100, 104
    IND = [108, 112, 116, 120]
    SS, MM, BD, BN = 124, 132, 140, 144
    DP = [148, 150, 152, 154]; EP = 156
    RA = [158, 159, 160, 161]
    EA, LI, LE, LP, TA0, TA1, TC = 162, 163, 164, 165, 166, 167, 168
    PN = 170
    XR = 172
    SEG, SLEN, SIDX, PB = 180, 181, 182, 183
    NV = 184
    ACD, ACN, AU = 0, 16, 32
    sW, sSET, sTILE, sBIN = 3, 36, 37, 38
    sRING, sEM0, sS, sK, sVS, sSTART, sWIDTH, sMAXL = 39, 40, 41, 42, 43, 44, 45, 46
    sCC = 48
    sM = 64
    a(f"""
    s_cmp_ge_u32 s2, 256
    s_cbranch_scc1 K2_end
    s_load_dwordx4 s[52:55], s[0:1], 0
    s_load_dwordx2 s[4:5], s[0:1], 88
    s_load_dwordx2 s[56:57], s[0:1], 32
    s_load_dwordx4 s[60:63], s[0:1], 48
    s_load_dwordx2 s[10:11], s[0:1], 72
    v_lshrrev_b32 v1, 6, v0
    v_and_b32 v2, 63, v0
    v_readfirstlane_b32 s{sW}, v1
    s_and_b32 s50, s2, 7
    s_lshl_b32 s50, s50, 5
    s_lshr_b32 s51, s2, 3
    s_add_u32 s{sBIN}, s50, s51
    s_lshr_b32 s{sSET}, s{sW}, 2
    s_and_b32 s{sTILE}, s{sW}, 3
    v_lshrrev_b32 v{SEG}, 2, v0
    v_lshlrev_b32 v3, 10, v{SEG}
    s_lshl_b32 s50, s{sBIN}, 2
    v_add_u32 v3, s50, v3
    s_waitcnt lgkmcnt(0)
    """)
    srd(a, 28, 4, P * 1024, add=WS_OFF)
    a(f"buffer_load_dword v{SLEN}, v3, s[28:31], 0 offen")
    srd(a, 20, 52, N * 256)
    a(f"""
    s_cmp_eq_u32 s{sSET}, 0
    s_cselect_b32 s58, s56, s62
    s_cselect_b32 s59, s57, s63
    """)
    srd(a, 24, 58, 32768)
    a(f"""
    v_lshrrev_b32 v36, 4, v2
    v_and_b32 v37, 15, v2
    v_lshlrev_b32 v38, 2, v36
    v_xor_b32 v38, v38, v37
    v_lshlrev_b32 v38, 4, v38
    v_lshl_add_u32 v38, v36, 8, v38
    s_lshl_b32 s50, s{sTILE}, 2
    v_add_u32 v39, s50, v36
    v_xor_b32 v39, v39, v37
    v_lshlrev_b32 v39, 4, v39
    v_lshl_add_u32 v39, v36, 8, v39
    s_mul_i32 s47, s{sBIN}, {SB*256}
    s_lshl_b32 s50, s{sW}, 10
    s_add_u32 s51, s47, s50
    s_add_u32 m0, s50, {ERING}
    s_add_u32 s58, s51, 8192
    buffer_load_dwordx4 v39, s[20:23], s51 offen lds
    s_add_u32 m0, s50, {ERING + 8192}
    s_lshl_b32 s59, s{sTILE}, 13
    buffer_load_dwordx4 v39, s[20:23], s58 offen lds
    s_lshl_b32 s{sRING}, s{sW}, 13
    s_mov_b32 m0, s{sRING}
    s_add_u32 s58, s59, 4096
    """)
    for i in range(4):
        a(f"buffer_load_dwordx4 v38, s[24:27], s59 offen offset:{1024*i} lds")
    a(f"s_add_u32 m0, s{sRING}, 4096\ns_nop 0")
    for i in range(4):
        a(f"buffer_load_dwordx4 v38, s[24:27], s58 offen offset:{1024*i} lds")
    srd(a, 32, 60, 4096)
    a(f"""
    v_lshrrev_b32 v40, 5, v2
    v_and_b32 v41, 31, v2
    v_lshlrev_b32 v42, 11, v40
    v_lshl_add_u32 v42, v41, 1, v42
    s_lshl_b32 s50, s{sTILE}, 6
    """)
    for j in range(8):
        a(f"buffer_load_ushort v{H+j}, v42, s[32:35], s50 offen offset:{256*j}")
    a(f"""
    v_lshlrev_b32 v43, 4, v0
    s_add_u32 s50, s47, 8192
    buffer_load_dwordx4 {vr(XR,4)}, v43, s[20:23], s47 offen
    buffer_load_dwordx4 {vr(XR+4,4)}, v43, s[20:23], s50 offen
    """)
    a(f"""
    v_and_b32 v44, 31, v{SEG}
    v_and_b32 v45, 3, v0
    v_lshlrev_b32 v46, 3, v45
    v_sub_u32 v44, v44, v46
    v_cmp_eq_u32 vcc, {SB}, v{SEG}
    v_mov_b32 v46, 64
    s_nop 0
    v_cndmask_b32 v44, v44, v46, vcc
    """)
    onehot(a, 44, 48, 46, 47)
    a(f"""
    v_mul_u32_u24 v46, {AST}, v{SEG}
    v_lshl_add_u32 v46, v45, 4, v46
    v_add_u32 v46, {ATAB}, v46
    v_cmp_ge_u32 vcc, {SB}, v{SEG}
    s_mov_b64 exec, vcc
    """)
    for t in range(4):
        a(f"ds_write_b128 v46, v[48:51] offset:{128*t+64}")
    a(f"""
    v_cmp_eq_u32 vcc, {SB}, v{SEG}
    s_mov_b64 exec, vcc
    """)
    for t in range(4):
        a(f"ds_write_b128 v46, v[48:51] offset:{128*t}")
    a(f"""
    s_mov_b64 exec, -1
    v_lshlrev_b32 v46, 3, v40
    v_sub_u32 v44, v41, v46
    """)
    onehot(a, 44, SEL0, 45, 47)
    a("v_add_u32 v44, -16, v44")
    onehot(a, 44, SEL1, 45, 47)
    a(f"""
    v_lshrrev_b32 v44, 3, v41
    v_lshlrev_b32 v44, 1, v44
    v_and_b32 v45, 1, v41
    v_add_u32 v44, v44, v45
    v_and_b32 v45, 4, v41
    v_lshl_add_u32 v44, v45, 1, v44
    v_sub_u32 v44, v44, v46
    """)
    onehot(a, 44, PIND, 45, 47)
    for i in range(16):
        a(f"v_mov_b32 v{CI+i}, {hex(f32(-float(SHIFT)))}")
    for i in range(32):
        a(f"v_accvgpr_write_b32 a{i}, 0")
    a(f"""
    s_mov_b32 s{sCC}, {hex(f32(2.0**-SHIFT))}
    s_mov_b32 s{sCC+1}, {hex(f32(2.0**-SHIFT))}
    """)
    a(f"""
    v_lshrrev_b32 v44, 1, v41
    v_and_b32 v44, 7, v44
    v_xor_b32 v44, v44, v40
    v_lshlrev_b32 v44, 4, v44
    v_lshl_add_u32 v44, v41, 7, v44
    v_add_u32 v{RA[0]}, s{sRING}, v44
    v_xor_b32 v{RA[1]}, 32, v{RA[0]}
    v_xor_b32 v{RA[2]}, 64, v{RA[0]}
    v_xor_b32 v{RA[3]}, 0x60, v{RA[0]}
    v_and_b32 v44, 7, v2
    v_xor_b32 v44, v44, v36
    v_lshlrev_b32 v44, 4, v44
    s_lshl_b32 s50, s{sTILE}, 7
    v_add_u32 v{DP[0]+1}, s50, v44
    v_xor_b32 v{DP[1]+1}, 64, v{DP[0]+1}
    v_mov_b32 v{DP[2]+1}, v{DP[0]+1}
    v_mov_b32 v{DP[3]+1}, v{DP[1]+1}
    v_xor_b32 v44, v2, v40
    v_and_b32 v44, 1, v44
    v_lshlrev_b32 v{EP+1}, 4, v44
    v_and_b32 v44, 1, v36
    v_lshlrev_b32 v44, 5, v44
    v_and_b32 v45, 3, v2
    v_lshl_add_u32 v44, v45, 3, v44
    s_add_u32 s50, s50, {ATAB}
    v_add_u32 v{TC}, s50, v44
    s_mul_i32 s51, s{sBIN}, {SB*256}
    s_sub_u32 s50, {N*256}, s51
    s_min_u32 s50, s50, {SB*256}
    s_mov_b32 s{sSTART}, 0
    s_mov_b32 s{sWIDTH}, 128
    v_mul_u32_u24 v{PB}, {CH}, v{SEG}
    v_and_b32 v{SIDX}, 3, v0
    v_lshlrev_b32 v{SIDX}, 4, v{SIDX}
    """)
    srd(a, 32, 10, "s50", add="s51")
    srd(a, 12, 4, 16384, stride=512)
    srd(a, 16, 54, E, stride=32)
    srd(a, 28, 4, E * 4, add=WS_REC)
    a(f"""
    s_waitcnt vmcnt(20)
    v_and_b32 v44, 0xffff, v{SLEN}
    v_lshrrev_b32 v{SLEN}, 16, v{SLEN}
    v_lshl_add_u32 v{SEG}, v{PB}, 2, v44
    v_add_u32 v{SEG}, v{SEG}, v{SIDX}
    s_mov_b32 s{sVS}, 0
    K2_round:
    """)
    REC, CA, RK = 124, 132, 140
    a(f"""
    buffer_load_dwordx4 {vr(REC,4)}, v{SEG}, s[28:31], s{sSTART} offen
    buffer_load_dwordx4 {vr(REC+4,4)}, v{SEG}, s[28:31], s{sSTART} offen offset:64
    v_mov_b32 v48, {hex(DUMMY | (SB*AST) << 16)}
    v_mov_b32 v49, -1
    v_mov_b32 v50, v48
    v_mov_b32 v51, -1
    v_lshlrev_b32 v46, 4, v0
    v_add_u32 v46, {LIST}, v46
    """)
    for i in range(5):
        a(f"ds_write_b128 v46, v[48:51] offset:{8192*i}")
    a(f"""
    K2_rehist:
    v_lshlrev_b32 v46, 2, v0
    v_add_u32 v46, {CNT}, v46
    v_mov_b32 v47, 0
    ds_write_b32 v46, v47
    v_mov_b32 v46, {FLAG}
    ds_write_b32 v46, v47
    s_add_u32 s50, s{sSTART}, s{sWIDTH}
    v_cmp_lt_u32 s[56:57], s50, v{SLEN}
    v_min_u32 v44, s50, v{SLEN}
    v_subrev_u32 v44, s{sSTART}, v44
    v_sub_u32 v44, v44, v{SIDX}
    """)
    for k in range(8):
        off = 64*(k//4) + 4*(k % 4)
        if off > 64:
            a(f"s_mov_b32 s50, {off}")
            a(f"v_cmp_lt_i32 {sr(sM+2*k,2)}, s50, v44")
        else:
            a(f"v_cmp_lt_i32 {sr(sM+2*k,2)}, {off}, v44")
    a(f"""
    v_mov_b32 v45, 8
    s_mov_b32 s50, {hex(cmask)}
    s_waitcnt vmcnt(0) lgkmcnt(0)
    s_barrier
    s_mov_b64 exec, s[56:57]
    ds_write_b32 v46, v45
    s_mov_b64 exec, -1
    """)
    for k in range(8):
        a(f"v_lshrrev_b32 v{CA+k}, 9, v{REC+k}")
        a(f"v_and_b32 v{CA+k}, s50, v{CA+k}")
        a(f"v_add_u32 v{CA+k}, {CNT}, v{CA+k}")
    for k in range(8):
        a(f"s_mov_b64 exec, {sr(sM+2*k,2)}")
        a(f"ds_add_rtn_u32 v{RK+k}, v{CA+k}, v45")
    a(f"""
    s_mov_b64 exec, -1
    s_cmp_lg_u32 s{sVS}, 0
    s_cbranch_scc1 K2_nogemm
    """)
    WF, XF = 76, 108
    DA = 52
    a(f"""
    v_lshrrev_b32 v44, 2, v37
    v_lshl_add_u32 v45, v40, 3, v44
    v_lshlrev_b32 v46, 8, v45
    v_xor_b32 v45, s{sTILE}, v44
    v_lshl_add_u32 v46, v45, 6, v46
    v_and_b32 v45, 0x38, v{TC}
    v_add_u32 v46, v46, v45
    v_add_u32 v44, 32, v41
    s_mul_i32 s50, s{sSET}, 17
    v_cmp_gt_u32 vcc, s50, v41
    v_xor_b32 v45, v40, v37
    v_lshlrev_b32 v45, 4, v45
    v_cndmask_b32 v44, v41, v44, vcc
    v_lshl_add_u32 v47, v44, 8, v45
    v_add_u32 v47, {ERING}, v47
    v_mul_u32_u24 v44, {AST}, v44
    v_lshl_add_u32 v44, v40, 3, v44
    s_lshl_b32 s50, s{sTILE}, 7
    s_add_u32 s50, s50, {ATAB}
    v_add_u32 v48, s50, v44
    """)
    for half in range(2):
        for qq in range(4):
            q = 4*half + qq
            a(f"v_xor_b32 v45, {32*q}, v47")
            a(f"ds_read_b128 {vr(XF+4*qq,4)}, v45")
            for m_ in range(2):
                for z in range(2):
                    a(f"ds_read_b64_tr_b16 {vr(WF+8*qq+4*m_+2*z,2)}, v46 offset:{32768*m_+4096*q+1024*z}")
        for qq in range(4):
            q = 4*half + qq
            a(f"s_waitcnt lgkmcnt({15-5*qq})")
            a(f"{MF} {vr(DA,16)}, {vr(WF+8*qq,4)}, {vr(XF+4*qq,4)}, {'0' if q == 0 else vr(DA,16)}")
            a(f"{MF} {ar(AU,16)}, {vr(XF+4*qq,4)}, {vr(WF+8*qq+4,4)}, {'0' if q == 0 else ar(AU,16)}")
    a(f"s_mov_b32 s50, {hex(f32(-LOG2E))}")
    for j in range(8):
        a(f"v_lshlrev_b32 v{H+j}, 16, v{H+j}")
        a(f"v_mul_f32 v{H+j}, s50, v{H+j}")
    for j in range(4):
        a(f"v_cvt_pk_bf16_f32 v{WC+j}, v{H+2*j}, v{H+2*j+1}")
    for j in range(4):
        b = DA + 4*j
        for i in range(4):
            a(f"v_mul_f32 v{b+i}, s50, v{b+i}")
        a(f"v_cvt_pk_bf16_f32 v{b}, v{b}, v{b+1}")
        a(f"v_cvt_pk_bf16_f32 v{b+1}, v{b+2}, v{b+3}")
        a(f"ds_write_b64 v48, {vr(b,2)} offset:{16*j}")
    a(f"""
    K2_nogemm:
    v_and_b32 v2, 63, v0
    v_lshlrev_b32 v44, 5, v2
    v_add_u32 v44, {CNT}, v44
    v_mov_b32 v46, {FLAG}
    s_waitcnt lgkmcnt(0)
    s_barrier
    ds_read_b128 v[48:51], v44
    ds_read_b128 v[52:55], v44 offset:16
    ds_read_b32 v47, v46
    s_waitcnt lgkmcnt(0)
    v_lshl_or_b32 v48, v50, 16, v48
    v_lshl_or_b32 v52, v54, 16, v52
    v_add_u32 v48, 0x00080008, v48
    v_add_u32 v52, 0x00080008, v52
    v_and_b32 v48, 0xfff0fff0, v48
    v_and_b32 v52, 0xfff0fff0, v52
    v_readfirstlane_b32 s{sMAXL}, v47
    v_mov_b32 v49, v48
    v_mov_b32 v53, v52
    """)
    scan64(a, [49, 53])
    a(f"""
    v_sub_u32 v50, v49, v48
    v_sub_u32 v54, v53, v52
    v_readlane_b32 s56, v49, 63
    v_readlane_b32 s57, v53, 63
    s_cmp_lg_u32 s{sVS}, 0
    s_cbranch_scc1 K2_havesplit
    v_add_u32 v45, v49, v53
    v_add_u32 v46, v50, v54
    v_lshrrev_b32 v47, 16, v45
    v_and_b32 v45, 0xffff, v45
    v_add_u32 v45, v45, v47
    v_lshrrev_b32 v47, 16, v46
    v_and_b32 v46, 0xffff, v46
    v_add3_u32 v46, v45, v46, v47
    v_readlane_b32 s50, v45, 63
    s_nop 1
    v_cmp_ge_u32 vcc, s50, v46
    s_bcnt1_i32_b64 s50, vcc
    s_max_u32 s50, s50, 17
    s_min_u32 s{sVS}, s50, 32
    K2_havesplit:
    s_nop 0
    v_readlane_b32 s58, v50, s{sVS}
    v_readlane_b32 s59, v54, s{sVS}
    v_cmp_gt_u32 vcc, s{sVS}, v2
    s_nop 0
    s_sub_u32 s56, s56, s58
    s_sub_u32 s57, s57, s59
    s_and_b32 s80, s58, 0xffff
    s_lshr_b32 s81, s58, 16
    s_and_b32 s82, s59, 0xffff
    s_lshr_b32 s83, s59, 16
    s_and_b32 s84, s56, 0xffff
    s_lshr_b32 s85, s56, 16
    s_and_b32 s86, s57, 0xffff
    s_lshr_b32 s87, s57, 16
    s_mov_b32 s88, {LIST}
    s_add_u32 s89, s88, s80
    s_add_u32 s90, s89, s81
    s_add_u32 s91, s90, s82
    s_add_u32 s50, s91, s83
    s_mov_b32 s92, {LIST + LSET}
    s_add_u32 s93, s92, s84
    s_add_u32 s94, s93, s85
    s_add_u32 s95, s94, s86
    s_add_u32 s51, s95, s87
    s_sub_u32 s51, s51, {LSET}
    s_max_u32 s50, s50, s51
    s_sub_u32 s50, s50, {LIST}
    s_cmp_le_u32 s50, {LIMIT}
    s_cbranch_scc1 K2_fits
    s_mov_b32 s{sWIDTH}, 64
    s_barrier
    s_branch K2_rehist
    K2_fits:
    s_add_u32 s50, s50, 255
    s_lshr_b32 s50, s50, 8
    s_max_u32 s{sS}, s50, 1
    s_sub_u32 s92, s92, s80
    s_sub_u32 s93, s93, s81
    s_sub_u32 s94, s94, s82
    s_sub_u32 s95, s95, s83
    """)
    for r in range(4):
        a(f"v_mov_b32 v45, s{92+r}")
        a(f"v_mov_b32 v46, s{88+r}")
        a(f"v_cndmask_b32 v45, v45, v46, vcc")
        src = 50 if r < 2 else 54
        sel = "WORD_0" if r % 2 == 0 else "WORD_1"
        a(f"v_add_u32_sdwa v{56+2*r}, v{src}, v45 dst_sel:DWORD dst_unused:UNUSED_PAD src0_sel:{sel} src1_sel:DWORD")
    a(f"""
    v_mul_u32_u24 v57, {AST}, v2
    v_lshlrev_b32 v57, 16, v57
    v_mov_b32 v59, v57
    v_mov_b32 v61, v57
    v_mov_b32 v63, v57
    ds_write_b128 v44, v[56:59] offset:2048
    ds_write_b128 v44, v[60:63] offset:2064
    s_mov_b32 s50, 0x3fff
    s_waitcnt lgkmcnt(0)
    """)
    BB = 84
    for k in range(8):
        a(f"ds_read_b64 {vr(BB+2*k,2)}, v{CA+k} offset:2048")
    for k in range(8):
        a(f"v_lshrrev_b32 v{CA+k}, 20, v{REC+k}")
    a("s_waitcnt lgkmcnt(0)")
    for k in range(8):
        a(f"v_add_u32 v{RK+k}, v{RK+k}, v{BB+2*k}")
        a(f"v_and_or_b32 v{BB+2*k}, v{REC+k}, s50, v{BB+2*k+1}")
        a(f"v_add_u32 v{BB+2*k+1}, v{CA+k}, v{PB}")
        a(f"s_mov_b64 exec, {sr(sM+2*k,2)}")
        a(f"ds_write_b64 v{RK+k}, {vr(BB+2*k,2)}")
        a("s_mov_b64 exec, -1")
    a(f"""
    s_mul_i32 s50, s{sSET}, {LSET}
    s_add_u32 s50, s50, {LIST}
    v_lshrrev_b32 v40, 5, v2
    v_bfe_u32 v44, v2, 3, 1
    v_bfe_u32 v45, v2, 4, 1
    v_lshl_add_u32 v44, v44, 2, v45
    v_lshl_add_u32 v44, v40, 4, v44
    v_lshl_add_u32 v{LI}, v44, 3, s50
    v_bfe_u32 v44, v2, 2, 2
    v_lshlrev_b32 v44, 2, v44
    v_lshl_add_u32 v44, v40, 4, v44
    v_lshl_add_u32 v{LP}, v44, 3, s50
    v_bfe_u32 v44, v2, 3, 1
    v_lshlrev_b32 v44, 4, v44
    v_bfe_u32 v46, v2, 1, 1
    v_lshl_add_u32 v44, v46, 2, v44
    v_bfe_u32 v46, v2, 2, 1
    v_add_u32 v44, v44, v46
    v_lshl_add_u32 v44, v45, 3, v44
    v_lshl_add_u32 v44, v40, 1, v44
    s_lshl_b32 s51, s{sTILE}, 8
    s_add_u32 s50, s50, s51
    v_lshl_add_u32 v{LE}, v44, 3, s50
    v_and_b32 v41, 31, v2
    v_xor_b32 v44, v45, v40
    v_lshlrev_b32 v44, 4, v44
    v_lshl_add_u32 v44, v41, 5, v44
    s_lshl_b32 s50, s{sSET}, 13
    s_add_u32 s50, s50, {ERING}
    v_add_u32 v{EA}, s50, v44
    s_lshl_b32 s51, s{sTILE}, 10
    s_add_u32 s{sEM0}, s50, s51
    """)
    for i in range(16):
        a(f"v_mov_b32 v{SS+i}, 0")
    for i in range(4):
        a(f"v_mov_b32 v{IND[3]+i}, 0")
    a("s_waitcnt lgkmcnt(0)\ns_barrier")

    def idx_reads(step):
        return [f"ds_read_u16 v{DP[t]}, v{LI} offset:{256*step + 8*(8*(t % 2) + 2*(t//2))}" for t in range(4)]
    def dma(slot):
        o = []
        for t in range(4):
            o.append(f"s_add_u32 m0, s{sRING}, {4096*slot + 1024*t}")
            o.append("s_nop 0")
            o.append(f"buffer_load_dwordx4 {vr(DP[t],2)}, s[12:15], 0 idxen offen lds")
        return o
    def edma():
        return [f"s_mov_b32 m0, s{sEM0}", f"s_xor_b32 s{sEM0}, s{sEM0}, 4096",
                f"buffer_load_dwordx4 {vr(EP,2)}, s[16:19], 0 idxen offen {opt.get('eflag','')} lds"]
    def eid_read(blk):
        return [f"ds_read_b32 v{EP}, v{LE} offset:{1024*blk + 4}"]
    def pn_read(step):
        return [f"ds_read2_b32 {vr(PN,2)}, v{LP} offset0:{64*step} offset1:{64*step+4}"]
    ta = [f"v_add_u32_sdwa v{TA0}, v{PN}, v{TC} dst_sel:DWORD dst_unused:UNUSED_PAD src0_sel:WORD_1 src1_sel:DWORD",
          f"v_add_u32_sdwa v{TA1}, v{PN+1}, v{TC} dst_sel:DWORD dst_unused:UNUSED_PAD src0_sel:WORD_1 src1_sel:DWORD"]
    def reads_g(step):
        s = step % 2
        return [f"ds_read_b128 {vr(OE,4)}, v{EA} offset:{1024*(step % 4)}",
                f"ds_read_b128 {vr(OB0,4)}, v{RA[0]} offset:{4096*s}",
                f"ds_read_b128 {vr(OB1,4)}, v{RA[1]} offset:{4096*s}",
                f"ds_read_b64_tr_b16 {vr(OA,2)}, v{TA0}",
                f"ds_read_b64_tr_b16 {vr(OA+2,2)}, v{TA1}",
                f"ds_read_b64_tr_b16 {vr(IND[step % 4],2)}, v{TA0} offset:64",
                f"ds_read_b64_tr_b16 {vr(IND[step % 4]+2,2)}, v{TA1} offset:64"]
    def reads_h(step):
        s = step % 2
        return [f"ds_read_b128 {vr(OH0,4)}, v{RA[2]} offset:{4096*s}",
                f"ds_read_b128 {vr(OH1,4)}, v{RA[3]} offset:{4096*s}"]
    def mf_g(g):
        d = vr(g, 16)
        return [f"{MF} {d}, {vr(OE,4)}, {vr(WC,4)}, {vr(CI,16)}",
                f"{MF} {d}, {vr(OB0,4)}, {vr(SEL0,4)}, {d}",
                f"{MF} {d}, {vr(OB1,4)}, {vr(SEL1,4)}, {d}",
                f"{MF} {d}, {vr(PIND,4)}, {vr(OA,4)}, {d}"]
    mf_h = [f"{MF} {vr(H,16)}, {vr(OH0,4)}, {vr(SEL0,4)}, 0",
            f"{MF} {vr(H,16)}, {vr(OH1,4)}, {vr(SEL1,4)}, {vr(H,16)}"]
    def mf_red(i):
        return [f"{MF} {ar(ACD,16)}, {vr(IND[i],4)}, {vr(BD,4)}, {ar(ACD,16)}",
                f"{MF} {ar(ACN,16)}, {vr(IND[i],4)}, {vr(BN,4)}, {ar(ACN,16)}"]
    cvts = [f"v_cvt_pk_bf16_f32 v{BD+j}, v{SS+2*j}, v{SS+2*j+1}" for j in range(4)] + \
           [f"v_cvt_pk_bf16_f32 v{BN+j}, v{MM+2*j}, v{MM+2*j+1}" for j in range(4)]
    def pk(op, d, *s):
        return f"v_pk_{op}_f32 {vr(d,2)}, " + ", ".join(x if isinstance(x, str) else vr(x, 2) for x in s)
    def emit(lst):
        for x in lst:
            a(x)
    def weave(main, side):
        o, k = [], 0
        for i, x in enumerate(main):
            o.append(x)
            while k < len(side) and (k + 1) * len(main) <= (i + 1) * len(side):
                o.append(side[k]); k += 1
        return o + side[k:]

    emit(eid_read(0) + idx_reads(0) + pn_read(0))
    a("s_waitcnt lgkmcnt(0)")
    emit(edma() + dma(0) + ta)
    emit(idx_reads(1) + eid_read(1))
    a("s_waitcnt lgkmcnt(0)")
    emit(dma(1))
    a("s_waitcnt vmcnt(4)\ns_barrier")
    emit(edma() + reads_g(0) + reads_h(0) + idx_reads(2) + pn_read(1))
    a("s_waitcnt lgkmcnt(0)")
    emit(dma(0) + ta + mf_g(G[0]) + mf_h)
    a("s_waitcnt vmcnt(5)")
    emit(reads_g(1) + reads_h(1) + idx_reads(3) + pn_read(2))
    a(f"v_add_u32 v{LP}, 0x300, v{LP}")
    a(f"s_mov_b32 s{sK}, 0")
    a.l.append(".p2align 6")
    a("K2_loop:")
    for u in range(4):
        g, gn = G[u % 2], G[(u + 1) % 2]
        ex = [f"v_exp_f32 v{g+r}, v{g+r} clamp" for r in range(16)]
        mg, mr = mf_g(gn), mf_red((u - 1) % 4)
        a("s_waitcnt lgkmcnt(0)")
        d = dma((u + 1) % 2)
        c1 = [mg[0]] + cvts[:6] + [mg[1]] + cvts[6:] + ex[:2] + [mg[2]] + ta + ex[2:4] + [mg[3]] + ex[4:7] + \
             [mr[0]] + ex[7:10] + [mr[1]] + ex[10:]
        dd = [d[0]], [d[2], d[3]], [d[5], d[6]], [d[8], d[9]], [d[11]]
        o = []
        pos = [0, 2, 4, 6, 8]
        for i, x in enumerate(c1):
            if i in pos:
                o += dd[pos.index(i)]
            o.append(x)
        emit(o)
        p1 = []
        for j in range(4):
            b = g + 4*j
            p1 += [pk("add", b, b, sr(sCC, 2)), pk("add", b+2, b+2, sr(sCC, 2))]
        for j in range(4):
            b, hh = g + 4*j, H + 4*j
            p1 += [pk("mul", MM+2*j, hh, b+2), pk("add", SS+2*j, b, b+2), pk("fma", MM+2*j, hh+2, b, MM+2*j), pk("mul", b, b, b+2)]
        pre = [f"s_waitcnt vmcnt({5 if u == 3 else 4})"]
        if u == 2:
            pre += ["s_barrier", f"v_xor_b32 v{EA}, 0x1000, v{EA}"] + edma()
        side = reads_g(u + 2) + idx_reads(u + 4) + pn_read(u)
        if u == 1:
            side += eid_read(2)
        emit(p1[:8] + pre + weave(p1[8:], side))
        rc = [f"v_rcp_f32 v{g+4*j+i}, v{g+4*j+i}" for j in range(4) for i in range(2)]
        emit([mf_h[0]] + rc[:3] + [mf_h[1]] + rc[3:5] + reads_h(u + 2) + rc[5:])
        if u == 3:
            emit([f"v_add_u32 v{LI}, 0x400, v{LI}", f"v_add_u32 v{LP}, 0x400, v{LP}", f"v_add_u32 v{LE}, 0x400, v{LE}"])
        a(f"s_add_u32 s{sK}, s{sK}, 1")
        a(f"s_cmp_ge_u32 s{sK}, s{sS}")
        for j in range(4):
            b = g + 4*j
            emit([pk("mul", SS+2*j, SS+2*j, b), pk("mul", MM+2*j, MM+2*j, b)])
        if u < 3:
            a(f"s_cbranch_scc1 K2_drain{u}")
        else:
            a("s_cbranch_scc0 K2_loop")
    for u in (3, 0, 1, 2):
        a(f"K2_drain{u}:")
        emit(cvts + ["s_nop 1"] + mf_red(u))
        if u != 2:
            a("s_branch K2_done")
    a(f"""
    K2_done:
    s_add_u32 s{sSTART}, s{sSTART}, s{sWIDTH}
    s_waitcnt vmcnt(0) lgkmcnt(0)
    s_barrier
    s_cmp_lg_u32 s{sMAXL}, 0
    s_cbranch_scc1 K2_round
    """)
    a(f"""
    v_and_b32 v2, 63, v0
    v_lshrrev_b32 v40, 5, v2
    v_and_b32 v41, 31, v2
    v_lshlrev_b32 v42, 2, v41
    v_lshl_add_u32 v42, v40, 11, v42
    s_lshl_b32 s50, s{sSET}, 14
    s_lshl_b32 s51, s{sTILE}, 7
    s_add_u32 s50, s50, s51
    v_add_u32 v42, s50, v42
    s_mov_b32 s50, {hex(f32(1e-6 * 2.0**SHIFT))}
    s_nop 2
    """)
    for r in range(16):
        a(f"v_accvgpr_read_b32 v{48+r}, a{ACD+r}")
    for r in range(16):
        a(f"v_add_f32 v{48+r}, s50, v{48+r}")
    for r in range(16):
        a(f"v_rcp_f32 v{48+r}, v{48+r}")
        a(f"v_accvgpr_read_b32 v{64+r}, a{ACN+r}")
        a(f"v_accvgpr_read_b32 v{80+r}, a{AU+r}")
    for r in range(16):
        a(f"v_fma_f32 v{48+r}, v{48+r}, v{64+r}, v{80+r}")
        a(f"v_max_f32 v{48+r}, 0, v{48+r}")
        a(f"ds_write_b32 v42, v{48+r} offset:{512*(8*(r//4) + r % 4)}")
    a(f"""
    v_lshrrev_b32 v44, 4, v0
    v_and_b32 v45, 15, v0
    v_lshlrev_b32 v45, 5, v45
    v_lshl_add_u32 v45, v44, 9, v45
    v_add_u32 v46, 0x4000, v45
    v_cmp_gt_u32 vcc, s{sVS}, v44
    v_lshlrev_b32 v43, 4, v0
    s_mov_b32 s50, 0xffff0000
    v_cndmask_b32 v45, v46, v45, vcc
    s_waitcnt lgkmcnt(0)
    s_barrier
    ds_read_b128 v[48:51], v45
    ds_read_b128 v[52:55], v45 offset:16
    ds_read_b128 v[56:59], v46
    ds_read_b128 v[60:63], v46 offset:16
    s_mov_b32 s51, 8192
    """)
    for i in range(2):
        for j in range(4):
            x = XR + 4*i + j
            a(f"v_lshlrev_b32 v{64+8*i+2*j}, 16, v{x}")
            a(f"v_and_b32 v{64+8*i+2*j+1}, s50, v{x}")
    for i in range(2):
        a(f"s_waitcnt lgkmcnt({2-2*i})")
        for j in range(8):
            a(f"v_add_f32 v{48+8*i+j}, v{48+8*i+j}, v{64+8*i+j}")
        for j in range(4):
            a(f"v_cvt_pk_bf16_f32 v{80+4*i+j}, v{48+8*i+2*j}, v{48+8*i+2*j+1}")
        a(f"buffer_store_dwordx4 {vr(80+4*i,4)}, v43, s[32:35], {'s51' if i else '0'} offen")
    a("K2_end:\ns_endpgm")
    return desc(name, NV + 48, 96, NV)

def generate(opt=None):
    opt = opt or {}
    a = Asm()
    hdr = f"""; GatedGCN layer: prep_kernel builds the per-node table and partitions edges by destination bin,
; @launch kernel=prep_kernel grid=({NG+P},1,1) block=(512,1,1) lds={K1_LDS}
; @launch kernel={NAME}_kernel grid=(256,1,1) block=(512,1,1) lds={K2_LDS}
.amdgcn_target "amdgcn-amd-amdhsa--gfx950"
.text
"""
    d1 = gen_k1(a, opt)
    d2 = gen_k2(a, opt)
    return hdr + a.text() + d1 + d2

if __name__ == "__main__":
    opt = {}
    out = f"cdna_kernels/{NAME}.s"
    for x in sys.argv[1:]:
        k, v = x.split("=", 1)
        if k == "out":
            out = v
        else:
            opt[k] = int(v) if v.lstrip("-").isdigit() else v
    open(out, "w").write(generate(opt))
    print("wrote", out)
```

```python
import sys, struct

NAME = "gather_scatter__edge_featured_mpnn_gatedgcn__graph"
N, E = 12500, 400000
SB = 49
CH = 3128
P = 128
NG = 200
RG = 1568
DUMMY = 2047
WS_REC = 0x800000
WS_WFR = 0xA00000
WS_SLOT = 0x1000000
WS_END = WS_SLOT + 0x400000
SHIFT = 48
LOG2E = 1.4426950408889634

def f32(x):
    return struct.unpack("<I", struct.pack("<f", x))[0]

class Asm:
    def __init__(self):
        self.l = []
    def __call__(self, s):
        for x in s.strip("\n").split("\n"):
            x = x.strip()
            if not x:
                continue
            self.l.append(x if x.endswith(":") else "  " + x)
    def text(self):
        return "\n".join(self.l) + "\n"

def vr(b, n=1):
    return f"v{b}" if n == 1 else f"v[{b}:{b+n-1}]"
def ar(b, n=1):
    return f"a{b}" if n == 1 else f"a[{b}:{b+n-1}]"
def sr(b, n=1):
    return f"s{b}" if n == 1 else f"s[{b}:{b+n-1}]"

def srd(a, d, base, nbytes, stride=0, add=None):
    if add is None:
        a(f"s_mov_b32 s{d}, s{base}")
        a(f"s_and_b32 s{d+1}, s{base+1}, 0xffff")
    else:
        a(f"s_add_u32 s{d}, s{base}, {add}")
        a(f"s_addc_u32 s{d+1}, s{base+1}, 0")
        a(f"s_and_b32 s{d+1}, s{d+1}, 0xffff")
    if stride:
        a(f"s_or_b32 s{d+1}, s{d+1}, {hex(stride << 16)}")
    a(f"s_mov_b32 s{d+2}, {nbytes}")
    a(f"s_mov_b32 s{d+3}, 0x20000")

def scan64(a, regs):
    steps = [("row_shr:1", ""), ("row_shr:2", ""), ("row_shr:4", ""), ("row_shr:8", ""),
             ("row_bcast:15", " row_mask:0xa"), ("row_bcast:31", " row_mask:0xc")]
    for ctl, mask in steps:
        a(f"s_nop {1 if len(regs) == 1 else 0}")
        for r in regs:
            rm = mask if mask else " row_mask:0xf"
            a(f"v_add_u32_dpp v{r}, v{r}, v{r} {ctl}{rm} bank_mask:0xf")

def onehot(a, d, dst, t0, t1):
    a(f"v_and_b32 v{t0}, 1, v{d}")
    a(f"v_lshlrev_b32 v{t0}, 4, v{t0}")
    a(f"v_mov_b32 v{t1}, 0x3f80")
    a(f"v_lshlrev_b32 v{t0}, v{t0}, v{t1}")
    a(f"v_ashrrev_i32 v{t1}, 1, v{d}")
    for j in range(4):
        a(f"v_cmp_eq_u32 vcc, {j}, v{t1}")
        a("s_nop 1")
        a(f"v_cndmask_b32 v{dst+j}, 0, v{t0}, vcc")

def desc(name, vgpr, sgpr, accum):
    return f""".section .rodata,"a"
.p2align 6
.amdhsa_kernel {name}
  .amdhsa_next_free_vgpr {vgpr}
  .amdhsa_next_free_sgpr {sgpr}
  .amdhsa_accum_offset {accum}
  .amdhsa_group_segment_fixed_size 0
  .amdhsa_kernarg_size 96
  .amdhsa_user_sgpr_count 2
  .amdhsa_user_sgpr_kernarg_segment_ptr 1
  .amdhsa_system_sgpr_workgroup_id_x 1
.end_amdhsa_kernel
.text
"""

def head(a, name):
    a.l += [f".globl {name}", ".p2align 8", f".type {name},@function", f"{name}:"]

MF = "v_mfma_f32_32x32x16_bf16"
WS_STAMP = 0xC00000

class Stamps:
    def __init__(self, a, on, vreg, base):
        self.a, self.on, self.v, self.base, self.n = a, on, vreg, base, 0
    def __call__(self, idx=None):
        if not self.on:
            return
        i = self.n if idx is None else idx
        self.n = i + 1
        if self.on == 2 and i not in (0, 9, 11, 12):
            return
        if self.on >= 100 and i not in (0, self.on - 100):
            return
        self.a(f"""
        s_memrealtime s[98:99]
        s_waitcnt lgkmcnt(0)
        v_writelane_b32 v{self.v}, s98, {i}
        s_memtime s[98:99]
        s_waitcnt lgkmcnt(0)
        v_writelane_b32 v{self.v}, s98, {16+i}
        """)
    def flush(self):
        if not self.on:
            return
        self.a(f"""
        s_lshl_b32 s98, s2, 11
        s_add_u32 s98, s98, {self.base}
        v_lshlrev_b32 v1, 2, v0
        v_add_u32 v1, s98, v1
        global_store_dword v1, v{self.v}, s[4:5]
        """)

K1_LDS = 81920

def gen_k1(a, opt):
    name = "prep_kernel"
    head(a, name)
    st = Stamps(a, opt.get("stamp"), 124, WS_STAMP)
    st(0)
    stf = opt.get("k1st", "sc1")
    S0 = opt.get("s0", 48)
    a(f"""
    s_cmp_ge_u32 s2, {NG + 1 + P}
    s_cbranch_scc1 K1_end
    s_load_dwordx2 s[4:5], s[0:1], 88
    s_sub_u32 s3, s2, {S0}
    s_cmp_le_u32 s3, {NG}
    s_cbranch_scc0 K1_sort
    """)
    a(f"""
    s_load_dwordx2 s[6:7], s[0:1], 0
    s_load_dwordx8 s[40:47], s[0:1], 32
    s_load_dwordx2 s[10:11], s[0:1], 64
    v_lshrrev_b32 v1, 6, v0
    v_and_b32 v2, 63, v0
    v_readfirstlane_b32 s3, v1
    v_lshrrev_b32 v3, 4, v2
    v_and_b32 v4, 15, v2
    v_lshrrev_b32 v12, 2, v2
    v_and_b32 v15, 3, v2
    v_lshlrev_b32 v5, 4, v15
    v_lshl_add_u32 v5, v12, 8, v5
    s_and_b32 s24, s3, 3
    s_lshr_b32 s25, s3, 2
    s_lshl_b32 s26, s24, 2
    v_add_u32 v6, s26, v3
    v_xor_b32 v6, v6, v4
    v_lshlrev_b32 v6, 4, v6
    v_lshl_add_u32 v6, v3, 8, v6
    s_and_b32 s48, s2, 7
    s_lshr_b32 s49, s2, 3
    s_sub_u32 s49, s49, {S0 // 8}
    s_mul_i32 s27, s48, {RG * 256}
    s_lshl_b32 s30, s49, 14
    s_add_u32 s27, s27, s30
    s_lshl_b32 s30, s3, 10
    s_add_u32 s27, s27, s30
    s_add_u32 s31, s27, 8192
    s_lshl_b32 s32, s24, 6
    s_lshl_b32 s33, s3, 13
    s_mov_b32 s14, {N*256}
    s_mov_b32 s15, 0x20000
    s_mov_b32 s18, 32768
    s_mov_b32 s19, 0x20000
    s_add_u32 m0, s30, 65536
    s_waitcnt lgkmcnt(0)
    s_mov_b32 s12, s6
    s_mov_b32 s13, s7
    buffer_load_dwordx4 v6, s[12:15], s27 offen lds
    s_add_u32 m0, s30, 73728
    s_cmp_eq_u32 s2, {NG + S0}
    buffer_load_dwordx4 v6, s[12:15], s31 offen lds
    s_cselect_b32 s8, s40, s42
    s_cselect_b32 s9, s41, s43
    s_cselect_b32 s28, s46, s10
    s_cselect_b32 s29, s47, s11
    s_cmp_eq_u32 s25, 0
    s_cselect_b32 s16, s8, s28
    s_cselect_b32 s17, s9, s29
    """)
    for q in range(8):
        a(f"s_add_u32 m0, s33, {1024*q}")
        a(f"s_add_u32 s34, s32, {4096*q}")
        a("buffer_load_dwordx4 v5, s[16:19], s34 offen lds")
    a(f"""
    v_lshrrev_b32 v10, 5, v2
    v_lshrrev_b32 v11, 2, v4
    v_lshl_add_u32 v7, v10, 3, v11
    v_lshl_add_u32 v7, v7, 6, s33
    v_and_b32 v13, 1, v3
    v_lshl_add_u32 v7, v13, 5, v7
    v_lshl_add_u32 v7, v15, 3, v7
    v_and_b32 v13, 31, v2
    v_xor_b32 v8, v10, v4
    v_lshlrev_b32 v8, 4, v8
    v_lshl_add_u32 v8, v13, 8, v8
    v_add_u32 v8, 0x10000, v8
    v_bfe_u32 v9, v2, 1, 2
    v_lshl_add_u32 v9, v9, 4, s33
    v_lshl_add_u32 v9, v13, 6, v9
    v_lshl_add_u32 v9, v10, 3, v9
    v_bfe_u32 v10, v2, 3, 2
    v_xor_b32 v10, v10, v15
    v_lshl_add_u32 v10, v10, 4, s33
    v_lshl_add_u32 v10, v12, 6, v10
    v_lshlrev_b32 v11, 4, v15
    v_lshl_add_u32 v11, v12, 9, v11
    s_mov_b32 s36, {hex(f32(-LOG2E))}
    s_cmp_eq_u32 s2, {NG + S0}
    s_cbranch_scc1 K1_wprep
    s_cmp_eq_u32 s25, 0
    s_cselect_b32 s36, s36, 1.0
    s_lshl_b32 s37, s48, 20
    s_lshl_b32 s38, s49, 15
    s_add_u32 s37, s37, s38
    s_add_u32 s20, s4, s37
    s_addc_u32 s21, s5, 0
    s_mov_b32 s22, 32768
    s_mov_b32 s23, 0x20000
    s_lshl_b32 s37, s24, 7
    s_lshl_b32 s38, s25, 6
    s_add_u32 s37, s37, s38
    s_waitcnt vmcnt(8)
    s_barrier
    """)
    st(1)
    WF, XF, D = 16, 24, 88
    def wr(q):
        a(f"s_waitcnt vmcnt({7-q})")
        for z in range(2):
            a(f"ds_read_b64_tr_b16 {vr(WF+4*(q % 2)+2*z, 2)}, v7 offset:{1024*q+256*z}")
    for q in range(8):
        if q:
            a(f"v_xor_b32 v14, {32*q}, v8")
        ad = "v14" if q else "v8"
        a(f"ds_read_b128 {vr(XF+8*q, 4)}, {ad}")
        a(f"ds_read_b128 {vr(XF+8*q+4, 4)}, {ad} offset:8192")
        if q < 2:
            wr(q)
    for q in range(8):
        a(f"s_waitcnt lgkmcnt({[15, 14, 2, 2, 2, 2, 2, 0][q]})")
        for rt in range(2):
            c = "0" if q == 0 else vr(D+16*rt, 16)
            a(f"{MF} {vr(D+16*rt,16)}, {vr(WF+4*(q % 2),4)}, {vr(XF+8*q+4*rt,4)}, {c}")
        if q < 6:
            wr(q + 2)
    a("s_add_u32 s38, s37, 8192\ns_add_u32 s39, s37, 16384\ns_add_u32 s40, s37, 24576\ns_nop 7")
    st(2)
    for rt in range(2):
        for j in range(4):
            b = D + 16*rt + 4*j
            for i in range(4):
                a(f"v_mul_f32 v{b+i}, s36, v{b+i}")
            a(f"v_cvt_pk_bf16_f32 v{b}, v{b}, v{b+1}")
            a(f"v_cvt_pk_bf16_f32 v{b+1}, v{b+2}, v{b+3}")
            if j:
                a(f"v_xor_b32 v14, {16*j}, v9")
            ad = "v14" if j else "v9"
            a(f"ds_write_b64 {ad}, {vr(b,2)} offset:{2048*rt}")
        for i in (2*rt, 2*rt+1):
            a(f"ds_read_b128 {vr(24+4*i,4)}, v10 offset:{1024*i}")
    for i in range(4):
        a(f"s_waitcnt lgkmcnt({[7, 6, 1, 0][i]})")
        a(f"buffer_store_dwordx4 {vr(24+4*i,4)}, v11, s[20:23], s{37+i} offen {stf}")
    if st.on:
        a("s_waitcnt vmcnt(0)")
    st(3)
    st.flush()
    a("s_endpgm")
    a(f"""
    K1_wprep:
    s_mov_b32 s12, s44
    s_mov_b32 s13, s45
    s_mov_b32 s14, 4096
    v_lshrrev_b32 v10, 5, v2
    v_lshlrev_b32 v10, 11, v10
    v_lshl_add_u32 v10, v13, 1, v10
    """)
    for j in range(8):
        a(f"buffer_load_ushort v{56+j}, v10, s[12:15], s32 offen offset:{256*j}")
    a(f"""
    s_add_u32 s20, s4, {WS_WFR}
    s_addc_u32 s21, s5, 0
    s_mov_b32 s22, {65536 + 4096}
    s_mov_b32 s23, 0x20000
    v_lshlrev_b32 v11, 4, v2
    s_add_u32 s34, s33, 4096
    s_lshl_b32 s35, s24, 10
    s_add_u32 s35, s35, 65536
    s_waitcnt vmcnt(0)
    """)
    for q in range(8):
        for z in range(2):
            a(f"ds_read_b64_tr_b16 {vr(24+4*q+2*z, 2)}, v7 offset:{1024*q+256*z}")
    for j in range(8):
        a(f"v_lshlrev_b32 v{56+j}, 16, v{56+j}")
        a(f"v_mul_f32 v{56+j}, s36, v{56+j}")
    for j in range(4):
        a(f"v_cvt_pk_bf16_f32 v{64+j}, v{56+2*j}, v{57+2*j}")
    a(f"buffer_store_dwordx4 v[64:67], v11, s[20:23], s35 offen {stf}")
    a("s_waitcnt lgkmcnt(0)")
    for q in range(8):
        a(f"buffer_store_dwordx4 {vr(24+4*q,4)}, v11, s[20:23], {'s33' if q < 4 else 's34'} offen offset:{1024*(q % 4)} {stf}")
    a(f"""
    s_add_u32 s20, s4, {DUMMY * 512}
    s_addc_u32 s21, s5, 0
    s_mov_b32 s22, 512
    v_and_b32 v4, 4, v0
    v_cmp_eq_u32 vcc, 0, v4
    v_mov_b32 v5, 0x71807180
    v_lshlrev_b32 v11, 4, v0
    v_cndmask_b32 v16, 0, v5, vcc
    v_mov_b32 v17, v16
    v_mov_b32 v18, v16
    v_mov_b32 v19, v16
    buffer_store_dwordx4 v[16:19], v11, s[20:23], 0 offen {stf}
    s_endpgm
    """)
    IMG, STG = 4096, 36864
    a(f"""
    K1_sort:
    s_load_dwordx4 s[8:11], s[0:1], 16
    s_sub_u32 s3, s2, {NG + 1}
    s_cmp_lt_u32 s2, {S0}
    s_cselect_b32 s3, s2, s3
    s_mul_i32 s24, s3, {CH*4}
    s_sub_u32 s25, {E*4}, s24
    s_min_u32 s25, s25, {CH*4}
    v_lshlrev_b32 v1, 4, v0
    s_mov_b32 s14, {E*4}
    s_mov_b32 s15, 0x20000
    s_mov_b32 s18, {E*4}
    s_mov_b32 s19, 0x20000
    s_add_u32 s26, s24, 8192
    v_add_u32 v4, 8192, v1
    v_cmp_gt_u32 s[32:33], s25, v4
    s_waitcnt lgkmcnt(0)
    s_mov_b32 s12, s10
    s_mov_b32 s13, s11
    s_mov_b32 s16, s8
    s_mov_b32 s17, s9
    buffer_load_dwordx4 v[8:11], v1, s[12:15], s24 offen
    buffer_load_dwordx4 v[12:15], v1, s[12:15], s26 offen
    buffer_load_dwordx4 v[16:19], v1, s[16:19], s24 offen
    buffer_load_dwordx4 v[20:23], v1, s[16:19], s26 offen
    v_lshlrev_b32 v2, 2, v0
    v_mov_b32 v3, 0
    ds_write_b32 v2, v3
    v_mov_b32 v40, -1
    v_mov_b32 v41, -1
    v_mov_b32 v42, -1
    v_mov_b32 v43, -1
    """)
    for i in range(4):
        a(f"ds_write_b128 v1, v[40:43] offset:{IMG + 8192*i}")
    ncp = 0
    if opt.get("cpf", 1):
        ncp = 1
        a(f"""
        s_getpc_b64 s[36:37]
        K1_pc:
        s_add_u32 s36, s36, {NAME}_kernel-K1_pc
        s_addc_u32 s37, s37, 0
        v_lshlrev_b32 v4, 7, v0
        v_min_u32 v4, K2_codeend-{NAME}_kernel-4, v4
        global_load_dword v60, v4, s[36:37]
        """)
    a(f"""
    s_mov_b32 s20, s4
    s_mov_b32 s21, s5
    s_mov_b32 s22, {WS_END}
    s_mov_b32 s23, 0x20000
    s_lshl_b32 s27, s3, 7
    s_add_u32 s27, s27, {WS_SLOT}
    s_add_u32 s28, s27, {1 << 20}
    s_add_u32 s29, s27, {2 << 20}
    s_add_u32 s30, s27, {3 << 20}
    v_lshrrev_b32 v5, 3, v0
    v_and_b32 v61, 0x70, v1
    v_lshl_add_u32 v61, v5, 14, v61
    s_mov_b32 s34, {-SB & 0xffffffff}
    s_mov_b32 s35, {2048 - RG}
    v_mov_b32 v6, 4
    v_lshlrev_b32 v7, 22, v0
    v_mov_b32 v36, 0
    v_mov_b32 v37, 0
    v_mov_b32 v38, 0
    v_mov_b32 v39, 0
    s_waitcnt lgkmcnt(0)
    s_barrier
    s_waitcnt vmcnt({2 + ncp})
    """)
    st(1)
    for g in range(2):
        for j in range(4):
            d = 8 + 4*g + j
            t = 24 + 4*g + j
            a(f"v_mul_u32_u24 v{t}, 21400, v{d}")
            a(f"v_lshrrev_b32 v{t}, 20, v{t}")
            a(f"v_mad_i32_i24 v{d}, v{t}, s34, v{d}")
            a(f"v_lshlrev_b32 v{t}, 2, v{t}")
        if g:
            a("s_mov_b64 exec, s[32:33]")
        for j in range(4):
            a(f"ds_add_rtn_u32 v{32+4*g+j}, v{24+4*g+j}, v6")
    a(f"s_mov_b64 exec, -1\ns_waitcnt vmcnt({ncp})")
    for g in range(2):
        for j in range(4):
            s_ = 16 + 4*g + j
            d = 8 + 4*g + j
            a(f"v_mul_u32_u24 v4, 21400, v{s_}")
            a(f"v_lshrrev_b32 v4, 25, v4")
            a(f"v_mad_u32_u24 v{s_}, v4, s35, v{s_}")
            a(f"v_lshl_or_b32 v{s_}, v{d}, 14, v{s_}")
            a(f"v_add_u32 v4, {hex(((2048*g + j) << 20) & 0xffffffff)}, v7")
            a(f"v_or_b32 v{s_}, v4, v{s_}")
    a("s_waitcnt lgkmcnt(0)")
    for k in range(8):
        if k == 4:
            a("s_mov_b64 exec, s[32:33]")
        a(f"v_add_u32 v4, v{32+k}, v{24+k}")
        a(f"v_and_b32 v4, 0x7f, v4")
        a(f"v_lshl_add_u32 v{44+k}, v{24+k}, 5, v4")
        a(f"ds_write_b32 v{44+k}, v{16+k} offset:{IMG}")
    a(f"""
    s_mov_b64 exec, -1
    v_or3_b32 v4, v32, v33, v34
    v_or3_b32 v5, v35, v36, v37
    v_or3_b32 v4, v4, v38, v39
    v_or_b32 v4, v4, v5
    v_cmp_lt_u32 vcc, 0x7f, v4
    s_mov_b64 exec, vcc
    ds_write_b32 v3, v6 offset:1024
    s_mov_b64 exec, -1
    s_waitcnt lgkmcnt(0)
    s_barrier
    ds_read_b32 v4, v3 offset:1024
    """)
    OUTR = [8, 12, 52, 56]
    def img_reads():
        for i in range(4):
            a(f"ds_read_b128 {vr(OUTR[i],4)}, v1 offset:{IMG + 8192*i}")
    img_reads()
    a("""
    s_waitcnt lgkmcnt(4)
    v_readfirstlane_b32 s31, v4
    s_cmp_lg_u32 s31, 0
    s_cbranch_scc1 K1_slow
    K1_out:
    """)
    for i in range(4):
        a(f"s_waitcnt lgkmcnt({3-i})")
        a(f"buffer_store_dwordx4 {vr(OUTR[i],4)}, v61, s[20:23], s{27+i} offen {stf}")
    st(2)
    if st.on:
        a("s_waitcnt vmcnt(0)")
    st(3)
    st.flush()
    a("""
    K1_end:
    s_endpgm
    K1_slow:
    v_and_b32 v5, 63, v0
    v_lshlrev_b32 v5, 4, v5
    s_waitcnt lgkmcnt(0)
    ds_read_b128 v[8:11], v5
    s_waitcnt lgkmcnt(0)
    v_add_u32 v13, v8, v9
    v_add_u32 v14, v13, v10
    v_add_u32 v15, v14, v11
    v_mov_b32 v4, v15
    """)
    scan64(a, [4])
    a("""
    v_sub_u32 v40, v4, v15
    v_add_u32 v41, v40, v8
    v_add_u32 v42, v40, v13
    v_add_u32 v43, v40, v14
    ds_write_b128 v5, v[40:43] offset:2048
    """)
    for k in range(8):
        a(f"ds_read_b32 v{24+k}, v{24+k} offset:2048")
    a("s_waitcnt lgkmcnt(0)")
    for k in range(8):
        a(f"s_mov_b64 exec, {'s[32:33]' if k >= 4 else '-1'}")
        a(f"v_add_u32 v{24+k}, v{24+k}, v{32+k}")
        a(f"ds_write_b32 v{24+k}, v{16+k} offset:{STG}")
        a(f"v_cmp_gt_u32 vcc, 0x80, v{32+k}")
        a("s_mov_b64 exec, vcc")
        a(f"ds_write_b32 v{44+k}, v{16+k} offset:{IMG}")
    a(f"""
    s_mov_b64 exec, -1
    s_waitcnt lgkmcnt(0)
    s_barrier
    v_lshlrev_b32 v16, 4, v5
    v_and_b32 v16, {0x3800 if opt.get("rot", 1) else 0}, v16
    v_or_b32 v16, {62 << 14}, v16
    """)
    for j in range(4):
        a(f"""
        v_add_u32 v12, {4*j}, v5
        v_add_u32 v13, 124, v12
        v_and_b32 v13, 0x7f, v13
        v_lshl_add_u32 v13, v12, 5, v13
        v_add_u32 v14, 120, v{40+j}
        v_lshl_or_b32 v14, v14, 18, v16
        v_add_u32 v15, -124, v{8+j}
        v_cmp_lt_u32 vcc, 0x80, v{8+j}
        s_mov_b64 exec, vcc
        ds_write_b32 v13, v14 offset:{IMG}
        ds_write_b32 v{40+j}, v15 offset:{STG + 120}
        s_mov_b64 exec, -1
        """)
    a(f"""
    ds_read_b128 v[16:19], v1 offset:{STG}
    ds_read_b128 v[20:23], v1 offset:{STG + 8192}
    s_add_u32 s36, s4, s24
    s_addc_u32 s37, s5, 0
    s_add_u32 s36, s36, {WS_REC}
    s_addc_u32 s37, s37, 0
    s_mov_b32 s38, s25
    s_mov_b32 s39, 0x20000
    s_mov_b32 s31, 8192
    s_waitcnt lgkmcnt(0)
    buffer_store_dwordx4 v[16:19], v1, s[36:39], 0 offen
    buffer_store_dwordx4 v[20:23], v1, s[36:39], s31 offen
    """)
    img_reads()
    a("s_branch K1_out")
    return desc(name, 128 if st.on else 120, 100 if st.on else 56, 128 if st.on else 120)

CNT = 0
TW0, TW1 = 1024, 2048
FLAG = 3072
LIST = 12544
CAPS = 2496
LSET = CAPS * 8
ATAB = LIST + 2 * LSET
AST = 576
ERING = 81920
RING = 98304
K2_LDS = RING + 65536
LIMIT = 2240 * 8
SDW = "dst_sel:DWORD dst_unused:UNUSED_PAD"

def gen_k2(a, opt):
    name = NAME + "_kernel"
    cls = [int(c) for c in str(opt.get("cls", "c01122333"))[1:]]
    lut = sum(c << (2*i) for i, c in enumerate(cls))
    rot = opt.get("rot", 1)
    head(a, name)
    st = Stamps(a, opt.get("stamp"), 205, WS_STAMP + 0x100000)
    st(0)
    SEL0, SEL1, PIND, WC, CI, CT = 4, 8, 12, 16, 20, 36
    G = [52, 68]; H = 84
    OE, OB0, OB1, OH0, OH1, OA = 100, 104, 108, 112, 116, 120
    IND = [124, 128]
    SS, MM, AS, AM, BD, BN = 132, 140, 148, 156, 164, 168
    IX, OF0, OF1, EP = 172, 176, 177, 178
    RA = [180, 181, 182, 183]
    EA, LI, LE, LP, TA0, TA1, TC, PF = 184, 185, 186, 187, 188, 189, 190, 191
    XR = 192
    SEG, SLEN, SIDX, PB, PFD = 200, 201, 202, 203, 204
    NV = 208
    ACD, ACN, AU = 0, 16, 32
    sW, sSET, sTILE, sBIN = 3, 36, 37, 38
    sRING, sEM0, sS, sK, sVS, sSTART, sWIDTH, sMORE, s512, sPF = 39, 40, 41, 42, 43, 44, 45, 46, 47, 6
    sCC = 48
    sM = 64
    sMODE, sMARK = 7, 9
    REC, CA, RK, BB = 36, 44, 52, 60
    T = 76
    XF, WA = 100, 0
    FX, FA, FB = 169, 170, 167
    DA = 36
    sLUT, sROT = 45, 62
    npf = opt.get("pf0", 1)
    pfdiv = opt.get("pf", 0)

    def emit(lst):
        for x in lst:
            a(x)
    def rec_loads(n=2):
        a(f"buffer_load_dwordx4 {vr(REC,4)}, v{SEG}, s[12:15], s{sSTART} offen")
        if n == 2:
            a(f"buffer_load_dwordx4 {vr(REC+4,4)}, v{SEG}, s[12:15], s{sSTART} offen offset:64")

    a(f"""
    s_cmp_ge_u32 s2, 256
    s_cbranch_scc1 K2_end
    s_load_dwordx2 s[4:5], s[0:1], 88
    s_load_dwordx4 s[52:55], s[0:1], 0
    s_load_dwordx2 s[10:11], s[0:1], 72
    v_lshrrev_b32 v1, 6, v0
    v_and_b32 v2, 63, v0
    v_readfirstlane_b32 s{sW}, v1
    s_and_b32 s50, s2, 7
    s_lshl_b32 s50, s50, 5
    s_lshr_b32 s51, s2, 3
    s_add_u32 s{sBIN}, s50, s51
    v_lshrrev_b32 v3, 2, v0
    v_and_b32 v{SIDX}, 3, v0
    v_lshlrev_b32 v{SIDX}, 4, v{SIDX}
    v_lshl_add_u32 v{SEG}, v3, 7, v{SIDX}
    s_lshl_b32 s{sSTART}, s{sBIN}, 14
    s_add_u32 s{sSTART}, s{sSTART}, {WS_SLOT}
    s_mov_b32 s14, {WS_END}
    s_mov_b32 s15, 0x20000
    s_lshr_b32 s{sSET}, s{sW}, 2
    s_and_b32 s{sTILE}, s{sW}, 3
    v_lshrrev_b32 v76, 4, v2
    v_and_b32 v77, 15, v2
    s_lshl_b32 s50, s{sTILE}, 2
    v_add_u32 v79, s50, v76
    v_xor_b32 v79, v79, v77
    v_lshlrev_b32 v79, 4, v79
    v_lshl_add_u32 v79, v76, 8, v79
    v_lshlrev_b32 v168, 4, v2
    s_mul_i32 s8, s{sBIN}, {SB*256}
    s_lshl_b32 s50, s{sW}, 10
    s_add_u32 s51, s8, s50
    s_mov_b32 s22, {N*256}
    s_mov_b32 s23, 0x20000
    s_add_u32 m0, s50, {ERING}
    s_add_u32 s58, s51, 8192
    s_cmp_lt_u32 s{sW}, 5
    s_cselect_b32 s58, s58, 0x7000000
    s_waitcnt lgkmcnt(0)
    s_mov_b32 s12, s4
    s_mov_b32 s13, s5
    """)
    rec_loads()
    a(f"""
    s_mov_b32 s20, s52
    s_mov_b32 s21, s53
    buffer_load_dwordx4 v79, s[20:23], s51 offen lds
    s_add_u32 m0, s50, {ERING + 8192}
    s_lshl_b32 s59, s{sW}, 13
    buffer_load_dwordx4 v79, s[20:23], s58 offen lds
    """)

    def lds_reset(prefill):
        a(f"""
        v_lshlrev_b32 v84, 2, v0
        v_and_b32 v84, 0x3ff, v84
        v_mov_b32 v85, 0
        ds_write_b32 v84, v85
        """)
        if prefill:
            a(f"""
            v_mov_b32 v80, {hex(DUMMY | (SB*AST) << 16)}
            v_mov_b32 v81, -1
            v_mov_b32 v82, v80
            v_mov_b32 v83, -1
            v_lshlrev_b32 v84, 4, v0
            """)
            for i in range(5):
                a(f"ds_write_b128 v84, v[80:83] offset:{LIST - 1024 + 8192*i}")
    lds_reset(True)
    a(f"""
    s_waitcnt lgkmcnt(5)
    s_barrier
    s_add_u32 s89, s59, {WS_WFR}
    s_add_u32 s90, s59, {WS_WFR + 4096}
    """)
    st(1)
    bulk = []
    for q in range(8):
        bulk.append(f"buffer_load_dwordx4 {ar(WA+4*q,4)}, v168, s[12:15], {'s89' if q < 4 else 's90'} offen offset:{1024*(q % 4)}")
    nearly = opt.get("early", 4)
    emit(bulk[:nearly])
    a(f"""
    v_mul_u32_u24 v{PB}, {CH}, v3
    s_add_u32 s{sRING}, s59, {RING}
    s_mov_b32 s{sMODE}, 0
    s_and_b32 s{sROT}, s2, {7 if rot else 0}
    s_lshl_b32 s50, s{sROT}, 1
    s_lshl_b32 s{sLUT}, {hex(lut)}, s50
    s_lshr_b32 s50, s{sLUT}, 16
    s_or_b32 s{sLUT}, s{sLUT}, s50
    v_and_b32 v84, 31, v3
    v_lshrrev_b32 v86, 1, v{SIDX}
    v_sub_u32 v84, v84, v86
    v_cmp_eq_u32 s[60:61], {SB}, v3
    v_mov_b32 v86, 64
    s_nop 0
    v_cndmask_b32 v84, v84, v86, s[60:61]
    """)
    onehot(a, 84, 88, 86, 87)
    a(f"""
    v_mul_u32_u24 v86, {AST}, v3
    v_add_u32 v86, v86, v{SIDX}
    v_cmp_ge_u32 vcc, {SB}, v3
    s_mov_b64 exec, vcc
    """)
    for t in range(4):
        a(f"ds_write_b128 v86, v[88:91] offset:{ATAB+128*t+64}")
    a("s_mov_b64 exec, s[60:61]")
    for t in range(4):
        a(f"ds_write_b128 v86, v[88:91] offset:{ATAB+128*t}")
    a(f"""
    s_mov_b64 exec, -1
    s_mul_i32 s50, s{sW}, 25
    v_min_u32 v84, 24, v2
    v_add_u32 v84, s50, v84
    v_min_u32 v84, 195, v84
    s_lshr_b32 s50, s2, 3
    s_mul_i32 s50, s50, {196*128}
    v_lshl_add_u32 v{PF}, v84, 7, s50
    v_lshrrev_b32 v80, 5, v2
    v_and_b32 v81, 31, v2
    v_xor_b32 v85, v80, v77
    v_lshlrev_b32 v85, 4, v85
    v_lshl_add_u32 v{FX}, v81, 8, v85
    v_add_u32 v{FX}, {ERING}, v{FX}
    v_lshrrev_b32 v84, 4, v0
    v_xor_b32 v85, v84, v0
    v_and_b32 v85, 15, v85
    v_lshlrev_b32 v85, 4, v85
    v_lshl_add_u32 v85, v84, 8, v85
    v_add_u32 v171, {ERING}, v85
    v_and_b32 v84, 7, v2
    v_xor_b32 v84, v84, v76
    s_lshl_b32 s50, s{sTILE}, 7
    v_lshl_add_u32 v{OF0}, v84, 4, s50
    v_xor_b32 v{OF1}, 64, v{OF0}
    s_lshr_b32 s51, s{sTILE}, 1
    v_xor_b32 v84, s51, v2
    v_and_b32 v84, 1, v84
    v_lshlrev_b32 v{EP+1}, 4, v84
    v_and_b32 v84, 1, v76
    v_lshlrev_b32 v84, 5, v84
    v_and_b32 v85, 3, v2
    v_lshl_add_u32 v84, v85, 3, v84
    s_add_u32 s50, s50, {ATAB}
    v_add_u32 v{TC}, s50, v84
    s_mov_b32 s16, s54
    s_or_b32 s17, s55, {hex(32 << 16)}
    s_mov_b32 s18, {opt.get('erows', E)}
    s_mov_b32 s19, 0x20000
    s_mov_b32 s{s512}, 512
    """)
    a(f"s_lshl_b32 s93, s{sTILE}, 10\ns_add_u32 s93, s93, {WS_WFR + 65536}")
    pfl = []
    for i in range(npf):
        a(f"s_add_u32 s{94+i}, s{sROT}, {i}\ns_and_b32 s{94+i}, s{94+i}, 7\ns_lshl_b32 s{94+i}, s{94+i}, 20")
        pfl.append(f"buffer_load_dword v{PFD}, v{PF}, s[12:15], s{94+i} offen")
    late = list(bulk[nearly:]) + [f"buffer_load_dwordx4 {vr(WC,4)}, v168, s[12:15], s93 offen"]
    late = pfl + late if opt.get("pffirst", 0) else late + pfl
    pfn = -(-196 // pfdiv) if pfdiv else 0
    pfw = -(-pfn // 8)
    def pf():
        return [f"s_add_u32 s50, s61, s{sROT}", "s_and_b32 s50, s50, 7", "s_lshl_b32 s50, s50, 20",
                f"s_mul_i32 s51, s60, {pfn*128}", "s_add_u32 s50, s50, s51", "s_cmp_lt_u32 s61, 8",
                "s_cselect_b32 s50, s50, 0x7000000", "s_add_u32 s60, s60, 1", f"s_cmp_eq_u32 s60, {pfdiv}",
                "s_cselect_b32 s60, 0, s60", "s_addc_u32 s61, s61, 0",
                f"s_mov_b64 exec, {hex((1 << pfw) - 1)}",
                f"buffer_load_dword v{PFD}, v{PF}, s[12:15], s50 offen", "s_mov_b64 exec, -1"]

    def consts():
        b = Asm()
        b("""
        v_lshrrev_b32 v80, 5, v2
        v_and_b32 v81, 31, v2
        v_lshlrev_b32 v86, 3, v80
        v_sub_u32 v84, v81, v86
        """)
        onehot(b, 84, SEL0, 85, 87)
        b("v_add_u32 v84, -16, v84")
        onehot(b, 84, SEL1, 85, 87)
        b("""
        v_lshrrev_b32 v84, 3, v81
        v_and_b32 v85, 1, v81
        v_lshl_add_u32 v84, v84, 1, v85
        v_and_b32 v85, 4, v81
        v_lshl_add_u32 v84, v85, 1, v84
        v_sub_u32 v84, v84, v86
        """)
        onehot(b, 84, PIND, 85, 87)
        b(f"""
        v_bfe_u32 v84, v81, 1, 3
        v_xor_b32 v84, v84, v80
        v_lshlrev_b32 v84, 4, v84
        v_lshl_add_u32 v84, v81, 7, v84
        v_add_u32 v{RA[0]}, s{sRING}, v84
        v_xor_b32 v{RA[1]}, 32, v{RA[0]}
        v_xor_b32 v{RA[2]}, 64, v{RA[0]}
        v_xor_b32 v{RA[3]}, 0x60, v{RA[0]}
        s_sub_u32 s51, {N*256}, s8
        s_min_u32 s34, s51, {SB*256}
        s_add_u32 s32, s10, s8
        s_addc_u32 s33, s11, 0
        s_mov_b32 s35, 0x20000
        s_mov_b32 s{sCC}, {hex(f32(2.0**-SHIFT))}
        s_mov_b32 s{sCC+1}, {hex(f32(2.0**-SHIFT))}
        s_lshl_b32 s51, s{sTILE}, 7
        s_add_u32 s51, s51, {ATAB}
        v_mul_u32_u24 v84, {AST}, v81
        v_add3_u32 v84, v84, v86, s51
        s_lshl_b32 s51, s{sTILE}, 2
        v_and_b32 v85, 15, v2
        v_xor_b32 v85, s51, v85
        v_lshl_add_u32 v85, v85, 4, v86
        v_lshl_add_u32 v85, v81, 8, v85
        s_mov_b32 s51, 8192
        s_cmp_eq_u32 s{sSET}, 0
        s_cselect_b64 vcc, -1, 0
        s_cselect_b32 s51, {32*AST}, s51
        s_cselect_b32 s50, {hex(f32(-LOG2E))}, 1.0
        v_cndmask_b32 v{FA}, v85, v84, vcc
        v_add_u32 v{FB}, s51, v{FA}
        v_cmp_gt_u32 s[56:57], {SB - 32}, v81
        """)
        if pfdiv:
            b(f"""
            s_mul_i32 s51, s{sW}, {pfw}
            v_add_u32 v84, s51, v2
            s_lshr_b32 s51, s2, 3
            s_mul_i32 s51, s51, {196*128}
            v_lshl_add_u32 v{PF}, v84, 7, s51
            s_mov_b32 s60, 0
            s_mov_b32 s61, {npf}
            """)
        return [x.strip() for x in b.l]

    def list_ptrs():
        a(f"""
        s_mul_i32 s50, s{sSET}, {LSET}
        s_add_u32 s50, s50, {LIST}
        v_and_b32 v84, 0x28, v2
        v_bfe_u32 v85, v2, 4, 1
        v_add_u32 v84, v84, v85
        v_lshl_add_u32 v{LI}, v84, 3, s50
        v_and_b32 v84, 12, v2
        v_and_b32 v86, 32, v2
        v_lshl_add_u32 v84, v84, 1, v86
        v_lshl_add_u32 v{LP}, v84, 3, s50
        v_and_b32 v84, 10, v2
        v_bfe_u32 v87, v2, 2, 1
        v_lshl_add_u32 v84, v84, 2, v87
        s_lshr_b32 s51, s{sTILE}, 1
        s_lshl_b32 s51, s51, 5
        s_add_u32 s50, s50, s51
        s_and_b32 s51, s{sTILE}, 1
        s_lshl_b32 s51, s51, 7
        s_add_u32 s50, s50, s51
        v_lshl_add_u32 v{LE}, v84, 3, s50
        v_lshrrev_b32 v86, 5, v2
        v_xor_b32 v84, v85, v86
        v_lshlrev_b32 v84, 4, v84
        v_and_b32 v86, 31, v2
        v_lshl_add_u32 v84, v86, 5, v84
        s_lshl_b32 s50, s{sSET}, 12
        s_add_u32 s50, s50, {ERING}
        v_add_u32 v{EA}, s50, v84
        s_lshl_b32 s51, s{sTILE}, 8
        s_add_u32 s{sEM0}, s50, s51
        """)
    list_ptrs()

    frag = []
    for q in range(8):
        frag.append((f"v_xor_b32 v3, {32*q}, v{FX}", f"ds_read_b128 {vr(XF+8*q,4)}, v3"))
        frag.append((None, f"ds_read_b128 {vr(XF+8*q+4,4)}, v3 offset:8192"))
    frag.append((None, f"ds_read_b128 {vr(XR,4)}, v171"))
    frag.append((None, f"ds_read_b128 {vr(XR+4,4)}, v171 offset:8192"))

    def classes(ks, with_masks):
        a(f"s_mov_b32 s51, {63*16}")
        for k in ks:
            a(f"v_lshrrev_b32 v{CA+k}, 10, v{REC+k}")
            a(f"v_and_b32 v3, 14, v{CA+k}")
            a(f"v_and_b32 v{CA+k}, 0x3f0, v{CA+k}")
            a(f"v_bfe_u32 v3, s{sLUT}, v3, 2")
            a(f"v_lshl_or_b32 v{CA+k}, v3, 2, v{CA+k}")
            if with_masks:
                a(f"v_cmp_gt_u32 {sr(sM+2*k,2)}, s51, v{CA+k}")

    def sort(first):
        fr = list(frag) if first else []
        lt = list(late) if first else []
        sites = [9]
        def fl(n):
            for _ in range(n):
                if fr:
                    p, r_ = fr.pop(0)
                    if p:
                        a(p)
                    a(r_)
            for _ in range(-(-len(lt) // max(sites[0], 1))):
                a(lt.pop(0))
            sites[0] -= 1
        a(f"""
        v_mov_b32 v85, 8
        v_lshlrev_b32 v{T}, 4, v2
        """)
        if first:
            a(f"s_waitcnt vmcnt({2 + nearly})")
            st(2)
        else:
            a(f"""
            v_mov_b32 v86, 0
            s_waitcnt vmcnt(0) lgkmcnt(0)
            s_barrier
            s_mov_b64 exec, s[56:57]
            ds_write_b32 v86, v85 offset:{62*16}
            s_mov_b64 exec, -1
            """)
        classes(range(8), first)
        for k in range(8):
            a(f"s_mov_b64 exec, {sr(sM+2*k,2)}")
            a(f"ds_add_rtn_u32 v{RK+k}, v{CA+k}, v85")
        c, EA_, EB_, UA, UB, nA, nB, IA, IB = T+4, T+8, T+9, T+10, T+11, T+12, T+13, T+14, T+15
        XA, XB, TA_, TB_, t0, t1, t2 = T+16, T+17, T+18, T+19, T+1, T+2, T+3
        a(f"""
        s_mov_b64 exec, -1
        s_waitcnt vmcnt({nearly if first else 0}) lgkmcnt(0)
        s_barrier
        ds_read_b128 {vr(c,4)}, v{T}
        """)
        if first:
            st(3)
        fl(0)
        a(f"""
        s_waitcnt lgkmcnt(0)
        v_readlane_b32 s{sMORE}, v{c}, 62
        v_writelane_b32 v{c}, 0, 62
        v_add_u32 v{t0}, v{c}, v{c+1}
        v_add_u32 v{t1}, v{t0}, v{c+2}
        v_lshl_or_b32 v{EA_}, v{t0}, 16, v{c}
        v_add_u32 v{t0}, v{t1}, v{c+3}
        v_lshl_or_b32 v{EB_}, v{t0}, 16, v{t1}
        v_add_u32 v{UA}, 0x001f001f, v{EA_}
        v_add_u32 v{UB}, 0x001f001f, v{EB_}
        v_and_b32 v{UA}, 0xffe0ffe0, v{UA}
        v_and_b32 v{UB}, 0xffe0ffe0, v{UB}
        v_lshlrev_b32 v{t0}, 16, v{UA}
        v_alignbit_b32 v{t1}, v{UB}, v{UA}, 16
        v_sub_u32 v{nA}, v{UA}, v{t0}
        v_sub_u32 v{nB}, v{UB}, v{t1}
        v_mov_b32 v{IA}, v{nA}
        v_mov_b32 v{IB}, v{nB}
        s_mov_b32 s88, {FLAG}
        """)
        steps = [("row_shr:1", "0xf"), ("row_shr:2", "0xf"), ("row_shr:4", "0xf"), ("row_shr:8", "0xf"),
                 ("row_bcast:15", "0xa"), ("row_bcast:31", "0xc")]
        extra = [f"v_sub_u32 v{EA_}, v{UA}, v{EA_}", f"v_sub_u32 v{EB_}, v{UB}, v{EB_}",
                 f"v_lshlrev_b32 v{TA_}, 16, v{EA_}", f"v_alignbit_b32 v{TB_}, v{EB_}, v{EA_}, 16",
                 f"v_mul_u32_u24 v{t2}, {AST}, v2", f"v_lshlrev_b32 v{t2}, 16, v{t2}"]
        for i, (ctl, m_) in enumerate(steps):
            for r in (IA, IB):
                a(f"v_add_u32_dpp v{r}, v{r}, v{r} {ctl} row_mask:{m_} bank_mask:0xf")
            a(extra[i])
            fl(2)
        a(f"""
        v_sub_u32 v{XA}, v{IA}, v{nA}
        v_sub_u32 v{XB}, v{IB}, v{nB}
        v_readlane_b32 s56, v{IA}, 63
        v_readlane_b32 s57, v{IB}, 63
        """)
        if first:
            a(f"""
            v_add_u32 v{t0}, v{IA}, v{IB}
            v_add_u32_sdwa v{t0}, v{t0}, v{t0} {SDW} src0_sel:WORD_0 src1_sel:WORD_1
            v_lshrrev_b32 v{t1}, 16, v{UB}
            v_readlane_b32 s50, v{t0}, 63
            v_lshlrev_b32 v{t0}, 1, v{t0}
            v_sub_u32 v{t0}, v{t0}, v{t1}
            v_cmp_ge_u32 vcc, s50, v{t0}
            s_bcnt1_i32_b64 s50, vcc
            s_max_u32 s50, s50, 17
            s_min_u32 s{sVS}, s50, 32
            """)
        fl(4)
        a(f"""
        v_readlane_b32 s58, v{XA}, s{sVS}
        v_readlane_b32 s59, v{XB}, s{sVS}
        v_cmp_gt_u32 vcc, s{sVS}, v2
        """)
        fl(4)
        assert not fr and not lt
        a(f"""
        s_sub_u32 s56, s56, s58
        s_sub_u32 s57, s57, s59
        s_mul_i32 s84, s58, 0x10001
        s_mul_i32 s85, s56, 0x10001
        s_pack_hh_b32_b16 s84, s84, s84
        s_pack_hh_b32_b16 s85, s85, s85
        s_mul_i32 s86, s59, 0x10001
        s_mul_i32 s87, s57, 0x10001
        s_add_u32 s86, s86, s84
        s_add_u32 s87, s87, s85
        s_max_u32 s50, s86, s87
        s_lshr_b32 s50, s50, 16
        s_cmp_le_u32 s50, {LIMIT}
        s_cbranch_scc0 K2_over
        s_lshl_b32 s80, s58, 16
        s_add_u32 s80, s80, {hex(LIST * 0x10001)}
        s_sub_u32 s81, s86, s59
        s_add_u32 s81, s81, {hex(LIST * 0x10001)}
        s_lshl_b32 s82, s56, 16
        s_add_u32 s82, s82, {hex((LIST + LSET) * 0x10001)}
        s_sub_u32 s82, s82, s58
        s_sub_u32 s83, s87, s57
        s_add_u32 s83, s83, {hex((LIST + LSET) * 0x10001)}
        s_sub_u32 s83, s83, s59
        v_add_u32 v{t0}, s80, v{XA}
        v_add_u32 v{XA}, s82, v{XA}
        v_add_u32 v{t1}, s81, v{XB}
        v_add_u32 v{XB}, s83, v{XB}
        v_cndmask_b32 v{XA}, v{XA}, v{t0}, vcc
        v_cndmask_b32 v{XB}, v{XB}, v{t1}, vcc
        v_cmp_lt_u32 vcc, 0xffff, v{nA}
        v_add_u32 v{IA}, v{XA}, v{nA}
        v_add_u32 v{IB}, v{XB}, v{nB}
        v_cndmask_b32_sdwa v{t0}, v{IA}, v{IA}, vcc {SDW} src0_sel:WORD_0 src1_sel:WORD_1
        v_and_b32 v{nB}, 0xffff, v{nB}
        v_cmp_lt_u32 vcc, 0, v{nB}
        v_sub_u32 v{c}, v{XA}, v{TA_}
        v_sub_u32 v{XB}, v{XB}, v{TB_}
        v_cndmask_b32 v{t1}, v{t0}, v{IB}, vcc
        v_sub_u32 v{IA}, v{IA}, v{EA_}
        v_alignbit_b32 v{c+1}, v{IA}, v{c}, 16
        v_sub_u32 v{t0}, v{t0}, v{TB_}
        v_sub_u32 v{t1}, v{t1}, v{EB_}
        v_and_b32 v{c+2}, 0xffff, v{XB}
        v_lshl_or_b32 v{c+2}, v{t0}, 16, v{c+2}
        v_alignbit_b32 v{c+3}, v{t1}, v{XB}, 16
        v_writelane_b32 v{c}, s88, 62
        ds_write_b128 v{T}, {vr(c,4)} offset:{TW0}
        s_mov_b32 s51, 0xffff
        v_mov_b32 v{T+20}, v{t2}
        v_and_or_b32 v{T+21}, v{EA_}, s51, v{t2}
        v_and_or_b32 v{T+22}, v{TB_}, s51, v{t2}
        v_and_or_b32 v{T+23}, v{EB_}, s51, v{t2}
        ds_write_b128 v{T}, {vr(T+20,4)} offset:{TW1}
        """)
        for k in range(8):
            a(f"ds_read2st64_b32 {vr(BB+2*k,2)}, v{CA+k} offset0:{TW0//256} offset1:{TW1//256}")
        nleft = 0
        for k in range(8):
            a(f"v_lshrrev_b32 v{CA+k}, 20, v{REC+k}")
        a(f"""
        s_add_u32 s50, s50, 511
        s_lshr_b32 s50, s50, 9
        s_max_u32 s{sS}, s50, 1
        s_mov_b32 s50, 0x3fff
        s_waitcnt lgkmcnt({nleft})
        """)
        for k in range(8):
            b = BB + 2*k
            a(f"""
            v_cmp_lt_u32_sdwa vcc, v{RK+k}, v{b+1} src0_sel:DWORD src1_sel:WORD_0
            v_bfi_b32 v{T+4}, s50, v{REC+k}, v{b+1}
            v_add_u32 v{b+1}, v{CA+k}, v{PB}
            v_cndmask_b32_sdwa v{T+5}, v{b}, v{b}, vcc {SDW} src0_sel:WORD_0 src1_sel:WORD_1
            v_mov_b32 v{b}, v{T+4}
            v_add_u32 v{RK+k}, v{RK+k}, v{T+5}
            """)
        for k in range(8):
            a(f"s_mov_b64 exec, {sr(sM+2*k,2)}")
            a(f"ds_write_b64 v{RK+k}, {vr(BB+2*k,2)}")
        a("""
        s_mov_b64 exec, -1
        s_waitcnt lgkmcnt(0)
        s_barrier
        """)

    def idx_reads(blk, sub):
        o = 128*blk + 4*sub
        return [f"ds_read2_b32 {vr(IX,2)}, v{LI} offset0:{o} offset1:{o+32}",
                f"ds_read2_b32 {vr(IX+2,2)}, v{LI} offset0:{o+8} offset1:{o+40}"]
    def dma(slot):
        o = []
        for t in range(4):
            o.append(f"s_add_u32 m0, s{sRING}, {4096*slot + 1024*t}")
            o.append(f"v_mad_u32_u16 v{IX+t}, v{IX+t}, s{s512}, v{OF1 if t % 2 else OF0}")
            o.append(f"buffer_load_dwordx4 v{IX+t}, s[12:15], 0 offen lds")
        return o
    def edma(step):
        return [f"s_add_u32 m0, s{sEM0}, {1024*(step % 4)}", "s_mov_b64 exec, 0xffff",
                f"buffer_load_dwordx4 {vr(EP,2)}, s[16:19], 0 idxen offen {opt.get('eflag','')} lds", "s_mov_b64 exec, -1"]
    def eid_read(step, dst=None):
        return [f"ds_read_b32 v{dst or EP}, v{LE} offset:{512*(step // 2) + 16*(step % 2) + 4}"]
    def pn_read(blk):
        return [f"ds_read2_b32 {vr(TA0,2)}, v{LP} offset0:{128*blk} offset1:{128*blk+8}"]
    ta = [f"v_add_u32_sdwa v{x}, v{x}, v{TC} {SDW} src0_sel:WORD_1 src1_sel:DWORD" for x in (TA0, TA1)]
    def reads(step):
        s = step % 2
        o = [f"ds_read_b128 {vr(OE,4)}, v{EA} offset:{1024*(step % 4)}"]
        o += [f"ds_read_b128 {vr(r,4)}, v{RA[i]} offset:{4096*s}" for i, r in enumerate((OB0, OB1, OH0, OH1))]
        return o
    def tr_reads(blk):
        i = IND[blk % 2]
        return [f"ds_read_b64_tr_b16 {vr(OA,2)}, v{TA0}", f"ds_read_b64_tr_b16 {vr(OA+2,2)}, v{TA1}",
                f"ds_read_b64_tr_b16 {vr(i,2)}, v{TA0} offset:64", f"ds_read_b64_tr_b16 {vr(i+2,2)}, v{TA1} offset:64"]
    mct = f"{MF} {vr(CT,16)}, {vr(PIND,4)}, {vr(OA,4)}, {vr(CI,16)}"
    def mf_g(g):
        d = vr(g, 16)
        return [f"{MF} {d}, {vr(OE,4)}, {vr(WC,4)}, {vr(CT,16)}",
                f"{MF} {d}, {vr(OB0,4)}, {vr(SEL0,4)}, {d}",
                f"{MF} {d}, {vr(OB1,4)}, {vr(SEL1,4)}, {d}"]
    mf_h = [f"{MF} {vr(H,16)}, {vr(OH0,4)}, {vr(SEL0,4)}, 0",
            f"{MF} {vr(H,16)}, {vr(OH1,4)}, {vr(SEL1,4)}, {vr(H,16)}"]
    def mf_red(i):
        return [f"{MF} {ar(ACD,16)}, {vr(IND[i],4)}, {vr(BD,4)}, {ar(ACD,16)}",
                f"{MF} {ar(ACN,16)}, {vr(IND[i],4)}, {vr(BN,4)}, {ar(ACN,16)}"]
    cvts = [f"v_cvt_pk_bf16_f32 v{BD+j}, v{AS+2*j}, v{AS+2*j+1}" for j in range(4)] + \
           [f"v_cvt_pk_bf16_f32 v{BN+j}, v{AM+2*j}, v{AM+2*j+1}" for j in range(4)]
    def pk(op, d, *s):
        return f"v_pk_{op}_f32 {vr(d,2)}, " + ", ".join(x if isinstance(x, str) else vr(x, 2) for x in s)
    def pk2(k):
        g = G[k % 2]
        o = []
        for dst, src in ((AS, SS), (AM, MM)):
            for j in range(4):
                if k % 2 == 0:
                    o.append(pk("mul", dst+2*j, src+2*j, g+4*j))
                else:
                    o.append(pk("fma", dst+2*j, src+2*j, g+4*j, dst+2*j))
        return o
    nx = 1 if pfdiv else 0
    def load_seg(u, first=False):
        o = eid_read(u + 4) + idx_reads(*[(1, 1), (0, 0), (0, 1), (1, 0)][u])
        if u % 2 == 0:
            o += pn_read(u // 2)
        else:
            o += tr_reads((u + 1) // 2)
        o += [f"s_waitcnt vmcnt({5 + (nx if first else 2*nx)})"]
        o += reads(u + 1)
        if u == 0:
            o += [f"v_add_u32 v{LI}, 0x400, v{LI}"]
        if u == 2:
            o += [f"v_add_u32 v{LP}, 0x400, v{LP}"]
        if u == 3:
            o += [f"v_add_u32 v{LE}, 0x400, v{LE}"]
        if opt.get("eearly", 1):
            o += ["s_waitcnt lgkmcnt(5)"] + edma(u) + ["s_waitcnt lgkmcnt(0)"]
        else:
            o += ["s_waitcnt lgkmcnt(0)"] + edma(u)
        o += dma((u + 1) % 2)
        if u % 2 == 0:
            o += ta
        if nx:
            o += pf()
        if u % 2:
            o += [f"s_add_u32 s{sK}, s{sK}, 1", f"s_cmp_ge_u32 s{sK}, s{sS}"]
        if opt.get("nodma"):
            o = [x for x in o if "buffer_load" not in x]
        return o + ["s_setprio 0", "s_barrier"]
    def comp_seg(u, first=False):
        g, gn = G[u % 2], G[(u + 1) % 2]
        ex = [f"v_exp_f32 v{g+r}, v{g+r} clamp" for r in range(16)]
        mg = mf_g(gn)
        if first:
            o = [mg[0]] + ex[:3] + [mg[1]] + ex[3:6] + [mg[2]] + ex[6:]
        elif u % 2 == 0:
            mr = mf_red((u // 2 - 1) % 2)
            o = pk2(u - 1) + [mg[0]] + cvts[:6] + [mg[1]] + cvts[6:] + ex[:2] + [mg[2]] + ex[2:5] + \
                [mr[0]] + ex[5:8] + [mr[1]] + ex[8:]
        else:
            o = pk2(u - 1) + [mct] + ex[:3] + [mg[0]] + ex[3:6] + [mg[1]] + ex[6:9] + [mg[2]] + ex[9:]
        for j in range(4):
            b = g + 4*j
            o += [pk("add", b, b, sr(sCC, 2)), pk("add", b+2, b+2, sr(sCC, 2))]
        for j in range(4):
            b, hh = g + 4*j, H + 4*j
            o += [pk("mul", MM+2*j, hh, b+2), pk("add", SS+2*j, b, b+2), pk("fma", MM+2*j, hh+2, b, MM+2*j), pk("mul", b, b, b+2)]
        rc = [f"v_rcp_f32 v{g+4*j+i}, v{g+4*j+i}" for j in range(4) for i in range(2)]
        o += [mf_h[0]] + rc[:3] + [mf_h[1]] + rc[3:]
        pos = len(o) - opt.get("bpos", 4)
        return o[:pos] + ["s_setprio 1", "s_barrier"] + o[pos:]

    def fill_a():
        emit(eid_read(0) + eid_read(1, 1) + idx_reads(0, 0) + pn_read(0))
        a("s_waitcnt lgkmcnt(0)")
        emit(edma(0) + [f"v_mov_b32 v{EP}, v1"] + edma(1) + dma(0))
        emit(eid_read(2) + idx_reads(0, 1) + ta)
        a("s_waitcnt lgkmcnt(0)")
        emit(edma(2) + dma(1) + eid_read(3) + idx_reads(1, 0))

    sort(True)
    st(4)
    fill_a()
    a("K2_gemm:\ns_waitcnt vmcnt(11)")
    fillers = consts() + [f"v_mov_b32 v{CI+i}, {hex(f32(-float(SHIFT)))}" for i in range(16)]
    def outp(rt):
        o = []
        for j in range(4):
            b = DA + 16*rt + 4*j
            o += [f"v_mul_f32 v{b+i}, s50, v{b+i}" for i in range(4)]
            o += [f"v_cvt_pk_bf16_f32 v{b}, v{b}, v{b+1}", f"v_cvt_pk_bf16_f32 v{b+1}, v{b+2}, v{b+3}",
                  f"v_xor_b32 v3, {16*j}, v{FB if rt else FA}", f"ds_write_b64 v3, {vr(b,2)}"]
        return o
    n1 = len(fillers)
    fillers += outp(0)
    per = -(-len(fillers) // 16)
    assert n1 >= 7 * per + 12
    for q in range(16):
        rt = q // 8
        d = vr(DA + 16*rt, 16)
        a(f"{MF} {d}, {ar(WA+4*(q % 8),4)}, {vr(XF+8*(q % 8)+4*rt,4)}, {'0' if q % 8 == 0 else d}")
        emit(fillers[per*q:per*q+per])
    emit([f"v_accvgpr_write_b32 a{i}, 0" for i in range(32)])
    a("s_mov_b64 exec, s[56:57]")
    emit(outp(1))
    a(f"""
    s_mov_b64 exec, -1
    v_add_u32 v171, {-ERING & 0xffffffff}, v171
    s_waitcnt vmcnt(5) lgkmcnt(0)
    s_barrier
    ds_read_b128 {ar(AU,4)}, v171
    ds_read_b128 {ar(AU+4,4)}, v171 offset:8192
    K2_fillb:
    """)
    emit(tr_reads(0) + reads(0))
    a(f"v_add_u32 v{LP}, 0x200, v{LP}")
    emit(edma(3))
    a("s_waitcnt lgkmcnt(0)")
    emit(dma(0))
    if nx:
        emit(pf())
    emit([mct] + mf_g(G[0]) + mf_h)
    a(f"s_mov_b32 s{sK}, 0")
    st(5)
    a(f"""
    s_cmp_eq_u32 s{sSET}, 0
    s_barrier
    s_cbranch_scc1 K2_lead
    s_barrier
    s_setprio 1
    K2_lead:
    """)
    emit(load_seg(0, first=True) + comp_seg(0, first=True))
    a("s_branch K2_loop1")
    a.l.append(".p2align 6")
    a("K2_loop:")
    for u in range(4):
        if u == 1:
            a("K2_loop1:")
        emit(load_seg(u) + comp_seg(u))
        if u == 1:
            a("s_cbranch_scc1 K2_drain0")
        if u == 3:
            a("s_cbranch_scc0 K2_loop")
    for i in (1, 0):
        a(f"K2_drain{i}:")
        a("s_setprio 0")
        if i == 0:
            emit([f"v_mov_b32 v{IND[1]+j}, v{IND[0]+j}" for j in range(4)])
        else:
            a("s_branch K2_drain")
    a(f"""
    K2_drain:
    s_cmp_lg_u32 s{sSET}, 0
    s_cbranch_scc1 K2_done
    s_barrier
    K2_done:
    """)
    emit(pk2(1) + cvts + ["s_nop 1"] + mf_red(1))
    st(6)
    a(f"""
    s_cmp_lg_u32 s{sMORE}, 0
    s_cbranch_scc1 K2_again
    """)
    a(f"""
    v_lshrrev_b32 v40, 5, v2
    v_and_b32 v41, 31, v2
    v_lshlrev_b32 v42, 2, v41
    v_lshl_add_u32 v42, v40, 9, v42
    v_add_u32 v42, s{sRING}, v42
    v_lshrrev_b32 v44, 4, v0
    v_bfe_u32 v45, v0, 2, 2
    v_lshlrev_b32 v45, 13, v45
    v_lshl_add_u32 v45, v44, 7, v45
    v_and_b32 v46, 3, v0
    v_lshl_add_u32 v45, v46, 5, v45
    v_add_u32 v45, {RING}, v45
    v_add_u32 v46, 0x8000, v45
    v_cmp_gt_u32 vcc, s{sVS}, v44
    v_lshlrev_b32 v43, 4, v0
    s_mov_b32 s50, {hex(f32(1e-6 * 2.0**SHIFT))}
    v_cndmask_b32 v45, v46, v45, vcc
    """)
    for r in range(16):
        a(f"v_accvgpr_read_b32 v{48+r}, a{ACD+r}")
    for r in range(16):
        a(f"v_add_f32 v{48+r}, s50, v{48+r}")
    for r in range(16):
        a(f"v_rcp_f32 v{48+r}, v{48+r}")
        a(f"v_accvgpr_read_b32 v{64+r}, a{ACN+r}")
    a("s_waitcnt vmcnt(0)")
    for r in range(16):
        a(f"v_mul_f32 v{48+r}, v{48+r}, v{64+r}")
        a(f"ds_write_b32 v42, v{48+r} offset:{128*(8*(r//4) + r % 4)}")
    a("s_mov_b32 s50, 0xffff0000\ns_mov_b32 s51, 8192")
    for i in range(2):
        for j in range(4):
            x = XR + 4*i + j
            a(f"v_lshlrev_b32 v{64+8*i+2*j}, 16, v{x}")
            a(f"v_and_b32 v{64+8*i+2*j+1}, s50, v{x}")
            a(f"v_accvgpr_read_b32 v{x}, a{AU+4*i+j}")
            a(f"v_lshlrev_b32 v{96+8*i+2*j}, 16, v{x}")
            a(f"v_and_b32 v{96+8*i+2*j+1}, s50, v{x}")
    a("""
    s_waitcnt lgkmcnt(0)
    s_barrier
    """)
    st(7)
    a("""
    ds_read_b128 v[48:51], v45
    ds_read_b128 v[52:55], v45 offset:16
    ds_read_b128 v[56:59], v46
    ds_read_b128 v[60:63], v46 offset:16
    """)
    for i in range(2):
        a(f"s_waitcnt lgkmcnt({2-2*i})")
        for j in range(8):
            a(f"v_add_f32 v{48+8*i+j}, v{48+8*i+j}, v{96+8*i+j}")
        for j in range(8):
            a(f"v_max_f32 v{48+8*i+j}, 0, v{48+8*i+j}")
        for j in range(8):
            a(f"v_add_f32 v{48+8*i+j}, v{48+8*i+j}, v{64+8*i+j}")
        for j in range(4):
            a(f"v_cvt_pk_bf16_f32 v{80+4*i+j}, v{48+8*i+2*j}, v{48+8*i+2*j+1}")
        a(f"buffer_store_dwordx4 {vr(80+4*i,4)}, v43, s[32:35], {'s51' if i else '0'} offen {opt.get('ost','')}")
    if st.on:
        a("s_waitcnt vmcnt(0)")
        a(f"s_lshl_b32 s50, s{sS}, 1")
        a(f"v_writelane_b32 v205, s50, 15")
    st(8)
    st.flush()
    a("K2_end:\ns_endpgm")
    zero_masks = lambda ks: [f"s_mov_b64 {sr(sM+2*k,2)}, 0" for k in ks]
    a(f"""
    K2_again:
    s_waitcnt vmcnt(0) lgkmcnt(0)
    s_barrier
    """)
    lds_reset(True)
    a(f"""
    s_cmp_eq_u32 s{sMODE}, 3
    s_cbranch_scc1 K2_next
    """)
    rec_loads()
    a(f"""
    s_waitcnt vmcnt(0)
    s_cmp_eq_u32 s{sMODE}, 1
    s_cbranch_scc0 K2_marks
    s_mov_b32 s{sMODE}, 2
    s_mov_b64 s[56:57], 0
    """)
    classes(range(4, 8), True)
    emit(zero_masks(range(4)))
    a(f"""
    s_branch K2_resort
    K2_marks:
    s_mov_b32 s{sMODE}, 3
    v_mov_b32 v84, 0
    """)
    for k in range(8):
        a(f"""
        v_bfe_u32 v85, v{REC+k}, 14, 6
        v_cmp_eq_u32 vcc, 62, v85
        s_nop 1
        v_cndmask_b32 v84, v84, v{REC+k}, vcc
        """)
    a(f"""
    s_nop 1
    v_or_b32_dpp v84, v84, v84 quad_perm:[1,0,3,2] row_mask:0xf bank_mask:0xf
    s_nop 1
    v_or_b32_dpp v84, v84, v84 quad_perm:[2,3,0,1] row_mask:0xf bank_mask:0xf
    v_cmp_ne_u32 vcc, 0, v84
    v_lshrrev_b32 v84, 20, v84
    v_add_lshl_u32 v84, v84, v{PB}, 2
    s_mov_b32 s{sSTART}, {WS_REC}
    buffer_load_dword v{SLEN}, v84, s[12:15], s{sSTART} offen
    v_add_u32 v{SEG}, v84, v{SIDX}
    s_mov_b32 s{sSTART}, {WS_REC + 4 - 64}
    s_waitcnt vmcnt(0)
    v_cndmask_b32 v{SLEN}, 0, v{SLEN}, vcc
    v_add_u32 v{SLEN}, 64, v{SLEN}
    K2_next:
    s_add_u32 s{sSTART}, s{sSTART}, 64
    v_add_u32 v{SLEN}, -64, v{SLEN}
    """)
    rec_loads(1)
    a(f"""
    v_cmp_lt_i32 s[56:57], 64, v{SLEN}
    v_sub_u32 v84, v{SLEN}, v{SIDX}
    """)
    for k in range(4):
        a(f"v_cmp_lt_i32 {sr(sM+2*k,2)}, {4*k}, v84")
    emit(zero_masks(range(4, 8)))
    a("K2_resort:")
    list_ptrs()
    sort(False)
    fill_a()
    a(f"""
    s_cmp_eq_u32 s{sMODE}, 2
    s_cselect_b32 s{sMORE}, s{sMARK}, s{sMORE}
    s_cmp_eq_u32 s{sMODE}, 1
    s_cbranch_scc0 K2_refill
    s_mov_b32 s{sMORE}, 1
    s_branch K2_gemm
    K2_refill:
    s_waitcnt vmcnt(5) lgkmcnt(0)
    s_barrier
    s_branch K2_fillb
    K2_over:
    s_mov_b32 s{sMODE}, 1
    s_mov_b32 s{sMARK}, s{sMORE}
    s_mov_b64 s[56:57], 0
    s_waitcnt lgkmcnt(0)
    s_barrier
    """)
    lds_reset(False)
    emit(zero_masks(range(4, 8)))
    a("s_branch K2_resort\nK2_codeend:")
    return desc(name, NV + 40, 100, NV)

def generate_fused(opt):
    a1, a2 = Asm(), Asm()
    gen_k1(a1, opt)
    d = gen_k2(a2, opt)
    name = NAME + "_kernel"
    k1 = a1.l[4:]
    k2 = a2.l[4:]
    k1 = [("  s_branch F_next" if l.strip() == "s_endpgm" else l) for l in k1]
    a = Asm()
    head(a, name)
    a("""
    s_cmp_ge_u32 s2, 256
    s_cbranch_scc1 K2_end
    s_mov_b32 s97, s2
    s_memrealtime s[100:101]
    s_waitcnt lgkmcnt(0)
    F_item:
    """)
    a.l += k1
    a(f"""
    F_next:
    s_waitcnt vmcnt(0) lgkmcnt(0)
    s_barrier
    s_add_u32 s2, s2, 256
    s_cmp_lt_u32 s2, {NG + P}
    s_cbranch_scc1 F_item
    s_mov_b32 s2, s97
    s_load_dwordx2 s[6:7], s[0:1], 80
    v_mov_b32 v1, 0
    v_mov_b32 v2, 1
    v_readfirstlane_b32 s3, v0
    s_waitcnt lgkmcnt(0)
    s_cmp_lg_u32 s3, 0
    s_cbranch_scc1 F_wait
    buffer_wbl2 sc1
    s_waitcnt vmcnt(0)
    s_mov_b64 exec, 1
    global_atomic_add v1, v2, s[6:7] sc1
    s_mov_b32 s9, 0
    F_poll:
    s_sleep 2
    global_load_dword v3, v1, s[6:7] sc1
    s_waitcnt vmcnt(0)
    v_readfirstlane_b32 s8, v3
    s_add_u32 s9, s9, 1
    s_cmp_ge_u32 s9, 200000
    s_cbranch_scc1 F_polled
    s_cmp_lt_u32 s8, 256
    s_cbranch_scc1 F_poll
    F_polled:
    s_mov_b64 exec, -1
    buffer_inv sc1
    s_waitcnt vmcnt(0)
    F_wait:
    s_barrier
    """)
    if opt.get("spin"):
        i = k2.index("K2_end:")
        sp = Asm()
        sp("""
        s_cmp_lg_u32 s2, 0
        s_cbranch_scc1 K2_end
        F_spin:
        s_memrealtime s[10:11]
        s_waitcnt lgkmcnt(0)
        s_sub_u32 s10, s10, s100
        s_cmp_lt_u32 s10, 10000
        s_cbranch_scc1 F_spin
        """)
        k2 = k2[:i] + sp.l + k2[i:]
    a.l += k2
    ln = f"; @launch grid=(256,1,1) block=(512,1,1) lds={K2_LDS}\n"
    if opt.get("aslist"):
        ln = f"; @launch kernel={name} grid=(256,1,1) block=(512,1,1) lds={K2_LDS}\n"
    return "; fused\n" + ln + '.amdgcn_target "amdgcn-amd-amdhsa--gfx950"\n.text\n' + a.text() + d.replace("next_free_sgpr 100", "next_free_sgpr 102")

def gen_probe(a, opt):
    head(a, "probe_kernel")
    pr = opt["probe"].split(":")
    pa, pb = [WS_STAMP + int(x, 16) for x in pr[:2]]
    cnt = int(pr[2]) if len(pr) > 2 else 1
    a(f"""
    s_cmp_lg_u32 s2, 0
    s_cbranch_scc1 P_end
    s_load_dwordx2 s[4:5], s[0:1], 88
    s_mov_b32 s12, {WS_STAMP}
    s_mov_b32 s13, {pa}
    s_mov_b32 s14, {pb}
    s_waitcnt lgkmcnt(0)
    s_load_dword s6, s[4:5], s12
    s_load_dword s7, s[4:5], s13
    s_mov_b32 s8, 0
    s_mov_b32 s15, {cnt}
    P_max:
    s_load_dword s9, s[4:5], s14
    s_waitcnt lgkmcnt(0)
    s_sub_u32 s9, s9, s7
    s_max_i32 s8, s8, s9
    s_add_u32 s14, s14, 2048
    s_sub_u32 s15, s15, 1
    s_cmp_lg_u32 s15, 0
    s_cbranch_scc1 P_max
    s_min_u32 s8, s8, 10000
    s_mul_i32 s8, s8, 10
    s_add_u32 s8, s8, 30000
    P_spin:
    s_memrealtime s[10:11]
    s_waitcnt lgkmcnt(0)
    s_sub_u32 s10, s10, s6
    s_cmp_lt_u32 s10, s8
    s_cbranch_scc1 P_spin
    P_end:
    s_endpgm
    """)
    return desc("probe_kernel", 8, 24, 8)

def generate(opt=None):
    opt = opt or {}
    if opt.get("fused"):
        return generate_fused(opt)
    a = Asm()
    L = {"1": f"; @launch kernel=prep_kernel grid=({NG+1+P},1,1) block=(512,1,1) lds={K1_LDS}\n",
         "2": f"; @launch kernel={NAME}_kernel grid=(256,1,1) block=(512,1,1) lds={K2_LDS}\n",
         "e": "; @launch kernel=empty_kernel grid=(1,1,1) block=(64,1,1) lds=0\n",
         "p": "; @launch kernel=probe_kernel grid=(1,1,1) block=(64,1,1) lds=0\n"}
    order = str(opt.get("list", "12"))
    hdr = """; GatedGCN layer: prep_kernel builds the per-node table and partitions edges by destination bin,
; the main kernel sorts each bin by node and runs the gate / aggregation loop.
""" + "".join(L[c] for c in order) + """.amdgcn_target "amdgcn-amd-amdhsa--gfx950"
.text
"""
    d = gen_k1(a, opt)
    d += gen_k2(a, opt)
    if "e" in order:
        head(a, "empty_kernel")
        a("s_endpgm")
        d += desc("empty_kernel", 8, 8, 8)
    if "p" in order:
        d += gen_probe(a, opt)
    txt = a.text()
    if opt.get("wsoff"):
        out, pend = [], False
        for l in txt.split("\n"):
            out.append(l)
            if l.strip().endswith("_kernel:") or l.strip() == "K1_sort:":
                pend = True
            elif pend and l.strip().startswith("s_waitcnt lgkmcnt(0)") and "memrealtime" not in out[-2] and "memtime" not in out[-2]:
                out += [f"  s_add_u32 s4, s4, {opt['wsoff'] << 20}", "  s_addc_u32 s5, s5, 0"]
                pend = False
        txt = "\n".join(out)
    return hdr + txt + d

if __name__ == "__main__":
    opt = {}
    out = f"cdna_kernels/{NAME}.s"
    for x in sys.argv[1:]:
        k, v = x.split("=", 1)
        if k == "out":
            out = v
        else:
            opt[k] = int(v) if v.lstrip("-").isdigit() else v
    open(out, "w").write(generate(opt))
    print("wrote", out)
```

```python
import sys
from gen import (NAME, N, E, SB, CH, P, RG, DUMMY, WS_REC, WS_SLOT, WS_END, SHIFT, LOG2E, WS_STAMP, MF,
                 f32, Asm, vr, ar, sr, scan64, desc, head, Stamps)

TW0, TW1, TRASH = 1024, 2048, 3072
LIST = 12544
CAPS = 2496
LSET = CAPS * 8
ATAB = LIST + 2 * LSET
AST = 576
WCL = 73728
WS_FLG = 0xA00000
XP = ATAB
ERING = 81920
RING = 98304
LDS = RING + 65536
LIMIT = 2240 * 8
IMG, STG = 4096, 36864
SDW = "dst_sel:DWORD dst_unused:UNUSED_PAD"
OOB = 0x7000000

def generate(opt=None):
    opt = opt or {}
    a = Asm()
    name = NAME + "_kernel"
    cls = [int(c) for c in str(opt.get("cls", "c00112233"))[1:]]
    lut = sum(c << (2*i) for i, c in enumerate(cls))
    rot = opt.get("rot", 1)
    tfl = opt.get("tfl", "sc1")
    head(a, name)
    st = Stamps(a, opt.get("stamp"), 205, WS_STAMP)
    SEL0, SEL1, PIND, WC, CI, CT = 4, 8, 12, 16, 20, 36
    G = [52, 68]; H = 84
    OE, OB0, OB1, OH0, OH1, OA = 100, 104, 108, 112, 116, 120
    IND = [124, 128]
    SS, MM, AS, AM, BD, BN = 132, 140, 148, 156, 164, 168
    IX, OF0, OF1, EP = 172, 176, 177, 178
    RA = [180, 181, 182, 183]
    EA, LI, LE, LP, TA0, TA1, TC = 184, 185, 186, 187, 188, 189, 190
    XR = 192
    SEG, SLEN, SIDX, PB = 200, 201, 202, 203
    NV = 208
    ACD, ACN, AU = 0, 16, 32
    sW, sSET, sTILE, sBIN = 3, 36, 37, 38
    sRING, sEM0, sS, sK, sVS, sSTART, sLUT, sMORE, s512 = 39, 40, 41, 42, 43, 44, 45, 46, 47
    sCC, sM, sMODE, sMARK, sXO, sPROD = 48, 64, 7, 9, 8, 6
    REC, CA, RK, BB, EN, T = 36, 44, 52, 60, 20, 76
    XF, WA, DA, SO, WCR = 100, 0, 36, 68, 164
    VW, FW, FX, FS, FR, FG, FA, FB, FU = 168, 169, 170, 171, 172, 173, 207, 204, 191
    ONE, PL = 206, 164

    def emit(lst):
        for x in lst:
            a(x)

    a("s_cmp_ge_u32 s2, 256\ns_cbranch_scc1 K_end")
    st(0)
    a(f"""
    s_load_dwordx8 s[52:59], s[0:1], 0
    s_load_dwordx16 s[64:79], s[0:1], 32
    v_lshrrev_b32 v1, 6, v0
    v_and_b32 v2, 63, v0
    v_readfirstlane_b32 s{sW}, v1
    s_and_b32 s60, s2, 7
    s_lshr_b32 s61, s2, 3
    s_lshl_b32 s50, s60, 5
    s_add_u32 s{sBIN}, s50, s61
    v_lshrrev_b32 v84, 4, v2
    v_and_b32 v85, 15, v2
    v_bfe_u32 v3, v0, 4, 4
    v_xor_b32 v3, v3, v85
    v_lshlrev_b32 v3, 4, v3
    v_lshl_add_u32 v3, v84, 8, v3
    v_lshlrev_b32 v1, 4, v0
    s_mul_i32 s{sXO}, s{sBIN}, {SB*256}
    s_lshl_b32 s90, s{sW}, 10
    s_add_u32 s51, s{sXO}, s90
    s_add_u32 s91, s51, 8192
    s_cmp_lt_u32 s{sW}, 5
    s_cselect_b32 s91, s91, {OOB}
    s_mov_b32 s22, {N*256}
    s_mov_b32 s23, 0x20000
    v_lshrrev_b32 v86, 2, v2
    v_and_b32 v87, 3, v2
    v_lshlrev_b32 v{VW}, 4, v87
    v_lshl_add_u32 v{FG}, v86, 9, v{VW}
    v_lshl_add_u32 v{VW}, v86, 8, v{VW}
    v_mov_b32 v{ONE}, 1
    s_lshr_b32 s50, s2, 4
    s_lshl_b32 s50, s50, 3
    s_add_u32 s62, s50, s60
    s_lshr_b32 s{sSET}, s{sW}, 2
    s_and_b32 s{sTILE}, s{sW}, 3
    s_mov_b32 s83, 0x20000
    s_mov_b32 s87, 0x20000
    s_bitcmp1_b32 s2, 3
    s_cbranch_scc0 K_prod
    """)
    def xdma(base, delta):
        o = []
        for i, so in enumerate(("s51", "s91")):
            o.append(f"s_add_u32 m0, s90, {base + 8192*i}")
            o.append(f"s_sub_u32 s50, {so}, {delta}")
            o.append("buffer_load_dwordx4 v3, s[20:23], s50 offen lds")
        return o
    def wdma():
        o = []
        for q in range(8):
            o += [f"s_add_u32 m0, s{sRING}, {1024*q}", f"s_add_u32 s50, s63, {4096*q}",
                  f"buffer_load_dwordx4 v{VW}, s[24:27], s50 offen lds"]
        return o
    wcdma = [f"s_lshl_b32 s50, s{sTILE}, 10", f"s_add_u32 m0, s50, {WCL}", "s_nop 0",
             f"buffer_load_dwordx4 v{VW}, s[32:35], s63 offen lds"]
    def common(first):
        a(f"""
        s_lshl_b32 s{sRING}, s{sW}, 13
        s_add_u32 s{sRING}, s{sRING}, {RING}
        s_lshl_b32 s63, s{sTILE}, 6
        s_cmp_eq_u32 s{sSET}, 0
        s_cselect_b32 s64, s64, s70
        s_cselect_b32 s65, s65, s71
        s_cselect_b32 s66, s66, s72
        s_cselect_b32 s67, s67, s73
        s_mov_b32 s24, s{first}
        s_mov_b32 s25, s{first+1}
        s_mov_b32 s26, 32768
        s_mov_b32 s27, 0x20000
        """)
    def common2(x):
        x(f"""
        s_mov_b32 s32, s68
        s_mov_b32 s33, s69
        s_mov_b32 s34, 4096
        s_mov_b32 s35, 0x20000
        s_mov_b32 s14, {WS_END}
        s_mov_b32 s15, 0x20000
        s_movk_i32 s30, 256
        s_mov_b32 s31, 0x20000
        s_mov_b32 s4, s78
        s_mov_b32 s5, s79
        s_mov_b32 s12, s78
        s_mov_b32 s13, s79
        s_mov_b32 s10, s74
        s_mov_b32 s11, s75
        s_mov_b32 s28, s76
        s_mov_b32 s29, s77
        v_lshrrev_b32 v88, 5, v2
        v_and_b32 v89, 31, v2
        v_lshrrev_b32 v90, 2, v85
        v_lshl_add_u32 v90, v88, 3, v90
        v_and_b32 v91, 1, v84
        v_lshlrev_b32 v91, 5, v91
        v_lshl_add_u32 v91, v87, 3, v91
        v_lshl_add_u32 v90, v90, 6, v91
        v_add_u32 v{FW}, s{sRING}, v90
        s_lshl_b32 s50, s{sTILE}, 10
        s_add_u32 s50, s50, {WCL}
        v_add_u32 v{WCR}, s50, v90
        v_xor_b32 v90, v88, v85
        v_lshlrev_b32 v90, 4, v90
        v_lshl_add_u32 v{FX}, v89, 8, v90
        v_lshlrev_b32 v93, 3, v88
        v_lshrrev_b32 v94, 4, v0
        v_xor_b32 v90, v94, v0
        v_and_b32 v90, 15, v90
        v_lshlrev_b32 v90, 4, v90
        v_lshl_add_u32 v{FU}, v94, 8, v90
        s_mov_b32 s94, {hex(f32(-LOG2E))}
        s_mov_b32 s95, {hex(f32(-LOG2E))}
        s_lshr_b32 s50, s62, 2
        s_lshl_b32 s50, s50, 7
        s_and_b32 s97, s2, 3
        s_lshl_b32 s97, s97, 2
        s_add_u32 s97, s97, s50
        s_cmp_eq_u32 s{sW}, 0
        s_cselect_b32 s97, s97, {OOB}
        s_cselect_b32 s{sPROD}, 0, {OOB}
        """)
    def wfrag(q):
        return [f"ds_read_b64_tr_b16 {ar(WA+4*q+2*z,2)}, v{FW} offset:{1024*q+256*z}" for z in range(2)]
    def xfrag(q, off=0):
        return [f"v_xor_b32 v3, {32*q}, v{FX}", f"ds_read_b128 {vr(XF+8*q,4)}, v3 offset:{off}",
                f"ds_read_b128 {vr(XF+8*q+4,4)}, v3 offset:{off+8192}"]
    misc = [f"v_add_u32 v3, {ERING}, v{FU}", f"ds_read_b128 {vr(XR,4)}, v3", f"ds_read_b128 {vr(XR+4,4)}, v3 offset:8192",
            f"ds_read_b64_tr_b16 {vr(WCR+2,2)}, v{WCR} offset:256", f"ds_read_b64_tr_b16 {vr(WCR,2)}, v{WCR}"]
    def gm(q, rt, base=DA):
        d = vr(base + 16*rt, 16)
        return f"{MF} {d}, {ar(WA+4*q,4)}, {vr(XF+8*q+4*rt,4)}, {'0' if q == 0 else d}"
    RDY = 99
    ready_load = f"buffer_load_dword v{RDY}, off, s[28:31], s{sPROD} sc1"
    def ready_check(tag):
        a(f"""
        s_cmp_lg_u32 s{sW}, 0
        s_cbranch_scc1 K_{tag}
        s_mov_b32 s50, 0
        K_{tag}_spin:
        v_cmp_eq_u32 vcc, 0, v{RDY}
        s_cbranch_vccz K_{tag}
        {ready_load}
        s_add_u32 s50, s50, 1
        s_cmp_lt_u32 s50, 0x40000
        s_waitcnt vmcnt(0)
        s_cbranch_scc1 K_{tag}_spin
        K_{tag}:
        """)
    def scale(tag):
        a(f"s_cmp_lg_u32 s{sSET}, 0\ns_cbranch_scc1 K_{tag}")
        for i in range(16):
            a(f"v_pk_mul_f32 {vr(DA+2*i,2)}, {vr(DA+2*i,2)}, s[94:95]")
        a(f"K_{tag}:")
    def conv(rt, addrs, base=DA, mul=None):
        o = []
        for j in range(4):
            b_ = base + 16*rt + 4*j
            if mul:
                o += [f"v_mul_f32 v{b_+i}, {mul}, v{b_+i}" for i in range(4)]
            o += [f"v_cvt_pk_bf16_f32 v{b_}, v{b_}, v{b_+1}", f"v_cvt_pk_bf16_f32 v{b_+1}, v{b_+2}, v{b_+3}",
                  f"ds_write_b64 v{addrs[j]}, {vr(b_,2)}"]
        return o

    def lds_reset(prefill):
        a(f"""
        v_lshlrev_b32 v76, 2, v0
        v_and_b32 v76, 0x3ff, v76
        v_mov_b32 v77, 0
        ds_write_b32 v76, v77
        """)
        if prefill:
            a(f"""
            v_mov_b32 v76, {hex(DUMMY | (SB*AST) << 16)}
            v_mov_b32 v77, -1
            v_mov_b32 v78, v76
            v_mov_b32 v79, -1
            v_lshlrev_b32 v80, 4, v0
            """)
            for i in range(5):
                a(f"ds_write_b128 v80, v[76:79] offset:{LIST - 1024 + 8192*i}")

    a(f"""
    s_or_b32 s50, s90, s2
    s_cmp_eq_u32 s50, {7*1024 + 8}
    s_cbranch_scc1 K_clr
    s_waitcnt lgkmcnt(0)
    s_mov_b32 s20, s52
    s_mov_b32 s21, s53
    """)
    emit(xdma(XP, SB*256) + xdma(ERING, 0))
    if opt.get("warm", 1):
        a(f"""
        s_cmp_lt_u32 s{sW}, 3
        s_cbranch_scc0 K_nowarm
        s_getpc_b64 s[96:97]
        K_pc:
        s_mov_b32 s92, K_codeend-K_pc-4
        s_cmp_eq_u32 s{sW}, 0
        s_cselect_b64 s[96:97], s[64:65], s[96:97]
        s_cmp_eq_u32 s{sW}, 1
        s_cselect_b64 s[96:97], s[70:71], s[96:97]
        s_cmp_lt_u32 s{sW}, 2
        s_cselect_b32 s92, 32764, s92
        s_lshr_b32 s93, s2, 4
        s_lshl_b32 s93, s93, 11
        v_lshl_add_u32 v4, v85, 7, s93
        v_min_u32 v4, s92, v4
        s_mov_b64 exec, 0xffff
        global_load_dword v60, v4, s[96:97]
        s_mov_b64 exec, -1
        K_nowarm:
        """)
    a("K_np1:")
    common(66)
    w1 = wdma()
    b = Asm()
    common2(b)
    b(f"""
    s_add_u32 s97, s97, {WS_FLG}
    v_bfe_u32 v90, v2, 1, 2
    v_lshl_add_u32 v90, v90, 4, v93
    v_lshl_add_u32 v90, v89, 6, v90
    v_add_u32 v{FS}, s{sRING}, v90
    v_bfe_u32 v90, v2, 3, 2
    v_xor_b32 v90, v90, v87
    v_lshl_add_u32 v90, v90, 4, s{sRING}
    v_lshl_add_u32 v{FR}, v86, 6, v90
    v_xor_b32 v95, 16, v{FS}
    v_xor_b32 v96, 32, v{FS}
    v_xor_b32 v97, 48, v{FS}
    s_lshl_b32 s51, s60, 20
    s_mul_i32 s56, s61, {SB*512}
    s_add_u32 s51, s51, s56
    s_sub_u32 s56, s51, {SB*512}
    s_add_u32 s80, s4, s56
    s_addc_u32 s81, s5, 0
    s_mov_b32 s82, {SB*512}
    s_add_u32 s84, s4, s51
    s_addc_u32 s85, s5, 0
    s_mov_b32 s86, {SB*512}
    s_lshl_b32 s56, s{sTILE}, 7
    s_lshl_b32 s51, s{sSET}, 6
    s_add_u32 s56, s56, s51
    s_add_u32 s57, s56, 8192
    s_add_u32 s58, s56, 16384
    s_add_u32 s59, s56, 24576
    s_cmp_eq_u32 s{sSET}, 0
    s_cselect_b32 s96, s94, 1.0
    """)
    nw = opt.get("wearly", 4)
    emit(w1[:3*nw])
    lds_reset(True)
    cut = [i for i, l in enumerate(b.l) if f"v{FX}," in l][0] + 1
    a.l += b.l[:cut]
    later = [x.strip() for x in b.l[cut:]]
    a(f"s_waitcnt vmcnt({nw})\ns_barrier")
    st(1)
    emit(xfrag(0, XP) + xfrag(1, XP) + xfrag(2, XP) + xfrag(3, XP))
    emit(w1[3*nw:] + wcdma)
    D1 = 4
    SA = [FS, 95, 96, 97]
    emit(["s_waitcnt vmcnt(8)"] + wfrag(0) + ["s_waitcnt vmcnt(7)"] + wfrag(1))
    for q in range(8):
        a(f"s_waitcnt lgkmcnt({[2, 4, 4, 4, 4, 4, 4, 2][q]})")
        a(gm(q, 0, D1))
        if q == 4:
            a(f"v_add_u32 v{FX}, {ERING}, v{FX}")
        emit(xfrag(q + 4, XP) if q < 4 else xfrag(q - 4))
        if q < 6:
            emit([f"s_waitcnt vmcnt({6 - q})"] + wfrag(q + 2))
        a(gm(q, 1, D1))
        n_ = -(-len(later) // (8 - q))
        while n_ < len(later) and ("cselect" in later[n_] or "addc" in later[n_]):
            n_ += 1
        emit(later[:n_])
        later = later[n_:]
    st(2)
    a(f"s_mov_b32 s24, s64\ns_mov_b32 s25, s65\ns_waitcnt vmcnt(0)\n{ready_load}")
    c1 = conv(0, SA, D1, "s96") + [f"ds_read_b128 {vr(SO+4*i,4)}, v{FR} offset:{1024*i}" for i in range(2)] + \
         conv(1, SA, D1, "s96") + [f"ds_read_b128 {vr(SO+8+4*i,4)}, v{FR} offset:{1024*i}" for i in range(2)]
    slots = [[] for _ in range(16)]
    slots[0] = xfrag(4) + xfrag(5)
    slots[1] = xfrag(6) + xfrag(7)
    slots[2] = misc
    for i in range(10):
        slots[3 + i] = c1[6*i:6*i+6]
    stores = lambda srd: [f"buffer_store_dwordx4 {vr(SO+4*i,4)}, v{FG}, {srd}, s{56+i} offen sc1" for i in range(4)]
    s1 = stores("s[80:83]")
    slots[9] += ["s_waitcnt lgkmcnt(1)"] + s1[:2]
    slots[14] = ["s_waitcnt lgkmcnt(0)"] + s1[2:]
    a("s_waitcnt lgkmcnt(0)")
    for i in range(16):
        if i == 8:
            a("s_waitcnt lgkmcnt(6)")
        a(gm(i // 2, i % 2))
        emit(slots[i])
    a("s_nop 9")
    st(3)
    scale("ns1")
    for rt in range(2):
        emit(conv(rt, SA))
        for i in range(2):
            a(f"ds_read_b128 {vr(SO+8*rt+4*i,4)}, v{FR} offset:{1024*i}")
    s2_ = stores("s[84:87]")
    for i in range(4):
        a(f"s_waitcnt lgkmcnt({[7, 6, 1, 0][i]})")
        a(s2_[i])
    a("s_waitcnt vmcnt(8)")
    ready_check("rn")
    a("s_barrier\nK_join:")
    st(4)
    def poll_issue(base, lanes):
        return [f"s_cmp_eq_u32 s{sW}, 0", f"s_cselect_b32 s50, {base}, s14"] + \
               [f"buffer_load_dwordx4 {vr(PL,4)}, v{lanes}, s[12:15], s50 offen sc1"]
    def poll_check(tag, base, lanes):
        a(f"""
        s_cmp_lg_u32 s{sW}, 0
        s_cbranch_scc1 K_{tag}_done
        s_mov_b32 s50, 0
        s_mov_b32 s51, {base}
        K_{tag}_spin:
        s_waitcnt vmcnt(0)
        v_and_b32 v{PL}, v{PL}, v{PL+1}
        v_and_b32 v{PL+2}, v{PL+2}, v{PL+3}
        v_and_b32 v{PL}, v{PL}, v{PL+2}
        v_cmp_ne_u32 vcc, 1, v{PL}
        s_cbranch_vccz K_{tag}_done
        s_add_u32 s50, s50, 1
        s_cmp_lt_u32 s50, 0x40000
        buffer_load_dwordx4 {vr(PL,4)}, v{lanes}, s[12:15], s51 offen sc1
        s_cbranch_scc1 K_{tag}_spin
        K_{tag}_done:
        """)
    def list_ptrs():
        a(f"""
        s_mul_i32 s50, s{sSET}, {LSET}
        s_add_u32 s50, s50, {LIST}
        v_and_b32 v84, 0x28, v2
        v_bfe_u32 v85, v2, 4, 1
        v_add_u32 v84, v84, v85
        v_lshl_add_u32 v{LI}, v84, 3, s50
        v_and_b32 v84, 12, v2
        v_and_b32 v86, 32, v2
        v_lshl_add_u32 v84, v84, 1, v86
        v_lshl_add_u32 v{LP}, v84, 3, s50
        v_and_b32 v84, 10, v2
        v_bfe_u32 v87, v2, 2, 1
        v_lshl_add_u32 v84, v84, 2, v87
        s_lshr_b32 s51, s{sTILE}, 1
        s_lshl_b32 s51, s51, 5
        s_add_u32 s50, s50, s51
        s_and_b32 s51, s{sTILE}, 1
        s_lshl_b32 s51, s51, 7
        s_add_u32 s50, s50, s51
        v_lshl_add_u32 v{LE}, v84, 3, s50
        """)
    a("s_mov_b32 s51, 0xffff0000")
    for j in range(4):
        a(f"""
        v_lshlrev_b32 v20, 16, v{WCR+j}
        v_and_b32 v21, s51, v{WCR+j}
        v_pk_mul_f32 v[20:21], v[20:21], s[94:95]
        v_cvt_pk_bf16_f32 v{WC+j}, v20, v21
        """)
    a(f"""
    v_lshlrev_b32 v{FS}, 7, v89
    """)
    emit(poll_issue(WS_FLG + 4096, FS))
    a(f"""
    v_lshrrev_b32 v95, 2, v0
    v_mul_u32_u24 v{PB}, {CH}, v95
    v_lshlrev_b32 v{SIDX}, 4, v87
    v_lshl_add_u32 v{SEG}, v95, 7, v{SIDX}
    s_cmp_lg_u32 s{sSET}, 0
    s_cbranch_scc1 K_nooh
    v_and_b32 v6, 31, v95
    v_lshlrev_b32 v7, 3, v87
    v_sub_u32 v6, v6, v7
    v_cmp_eq_u32 s[90:91], {SB}, v95
    v_mov_b32 v7, 64
    v_cmp_ge_u32 s[92:93], {SB}, v95
    v_cndmask_b32 v6, v6, v7, s[90:91]
    v_and_b32 v7, 1, v6
    v_lshlrev_b32 v7, 4, v7
    v_mov_b32 v12, 0x3f80
    v_lshlrev_b32 v7, v7, v12
    v_ashrrev_i32 v6, 1, v6
    v_cmp_eq_u32 s[64:65], 0, v6
    v_cmp_eq_u32 s[66:67], 1, v6
    v_cmp_eq_u32 s[68:69], 2, v6
    v_cmp_eq_u32 s[70:71], 3, v6
    v_cndmask_b32 v12, 0, v7, s[64:65]
    v_cndmask_b32 v13, 0, v7, s[66:67]
    v_cndmask_b32 v14, 0, v7, s[68:69]
    v_cndmask_b32 v15, 0, v7, s[70:71]
    v_mul_u32_u24 v6, {AST}, v95
    v_add_u32 v6, v6, v{SIDX}
    s_mov_b64 exec, s[92:93]
    """)
    for t in range(4):
        a(f"ds_write_b128 v6, v[12:15] offset:{ATAB+128*t+64}")
    a(f"""
    s_mov_b64 exec, -1
    K_nooh:
    s_lshl_b32 s{sSTART}, s{sBIN}, 14
    s_add_u32 s{sSTART}, s{sSTART}, {WS_SLOT}
    """)
    st(5)
    def rec_loads(n=2):
        a(f"buffer_load_dwordx4 {vr(REC,4)}, v{SEG}, s[12:15], s{sSTART} offen sc1")
        if n == 2:
            a(f"buffer_load_dwordx4 {vr(REC+4,4)}, v{SEG}, s[12:15], s{sSTART} offen offset:64 sc1")
    poll_check("s", WS_FLG + 4096, FS)
    a("s_waitcnt vmcnt(0) lgkmcnt(0)\ns_barrier")
    rec_loads()
    a(f"""
    s_mov_b64 exec, 1
    buffer_store_dword v{ONE}, off, s[12:15], s97 sc1
    s_mov_b64 exec, -1
    """)
    st(6)
    a(f"""
    v_mul_u32_u24 v92, {AST}, v89
    v_lshl_add_u32 v3, v88, 4, v92
    ds_read_b128 {vr(SEL0,4)}, v3 offset:{ATAB + 64}
    ds_read_b128 {vr(SEL1,4)}, v3 offset:{ATAB + 96}
    v_lshrrev_b32 v90, 3, v89
    v_and_b32 v96, 1, v89
    v_lshl_add_u32 v90, v90, 1, v96
    v_and_b32 v96, 4, v89
    v_lshl_add_u32 v90, v96, 1, v90
    v_mul_u32_u24 v90, {AST}, v90
    v_lshl_add_u32 v3, v88, 4, v90
    ds_read_b128 {vr(PIND,4)}, v3 offset:{ATAB + 64}
    s_lshl_b32 s50, s{sTILE}, 7
    s_add_u32 s51, s50, {ATAB}
    v_add_u32 v{TC}, s51, v91
    v_add3_u32 v{FA}, v92, v93, s51
    v_and_b32 v90, 7, v2
    v_xor_b32 v90, v90, v84
    v_lshl_add_u32 v{OF0}, v90, 4, s50
    v_xor_b32 v{OF1}, 64, v{OF0}
    s_lshl_b32 s51, s{sTILE}, 2
    v_xor_b32 v90, s51, v85
    v_lshl_add_u32 v90, v90, 4, v93
    v_lshl_add_u32 v90, v89, 8, v90
    s_movk_i32 s51, 8192
    s_cmp_eq_u32 s{sSET}, 0
    s_cselect_b64 vcc, -1, 0
    s_cselect_b32 s51, {32*AST}, s51
    v_cndmask_b32 v{FA}, v90, v{FA}, vcc
    v_add_u32 v{FB}, s51, v{FA}
    v_bfe_u32 v90, v89, 1, 3
    v_xor_b32 v90, v90, v88
    v_lshlrev_b32 v90, 4, v90
    v_lshl_add_u32 v90, v89, 7, v90
    v_add_u32 v{RA[0]}, s{sRING}, v90
    """)
    list_ptrs()
    a(f"""
    v_xor_b32 v84, v85, v88
    v_lshlrev_b32 v84, 4, v84
    v_lshl_add_u32 v84, v89, 5, v84
    s_lshl_b32 s50, s{sSET}, 12
    s_add_u32 s50, s50, {ERING}
    v_add_u32 v{EA}, s50, v84
    s_lshl_b32 s51, s{sTILE}, 8
    s_add_u32 s{sEM0}, s50, s51
    s_lshr_b32 s51, s{sTILE}, 1
    v_xor_b32 v84, s51, v2
    v_and_b32 v84, 1, v84
    v_lshlrev_b32 v{EP+1}, 4, v84
    s_mov_b32 s16, s54
    s_or_b32 s17, s55, {hex(32 << 16)}
    s_mov_b32 s18, {opt.get('erows', E)}
    s_mov_b32 s19, 0x20000
    s_mov_b32 s{s512}, 512
    s_mov_b32 s{sMODE}, 0
    s_lshl_b32 s50, s60, 1
    s_lshl_b32 s{sLUT}, {hex(lut)}, {'s50' if rot else '0'}
    s_lshr_b32 s50, s{sLUT}, 16
    s_or_b32 s{sLUT}, s{sLUT}, s50
    """)

    def classes(ks, with_masks):
        a(f"s_mov_b32 s51, {63*16}")
        for k in ks:
            a(f"v_lshrrev_b32 v{CA+k}, 10, v{REC+k}")
            a(f"v_and_b32 v3, 14, v{CA+k}")
            a(f"v_and_b32 v{CA+k}, 0x3f0, v{CA+k}")
            a(f"v_bfe_u32 v3, s{sLUT}, v3, 2")
            a(f"v_lshl_or_b32 v{CA+k}, v3, 2, v{CA+k}")
            if with_masks:
                a(f"v_cmp_gt_u32 {sr(sM+2*k,2)}, s51, v{CA+k}")

    def sort(first):
        a(f"""
        v_mov_b32 v{T+1}, 8
        v_lshlrev_b32 v{T}, 4, v2
        """)
        if first:
            w2 = wdma()
            emit(w2[:12])
            a("s_waitcnt vmcnt(5)")
            st(7)
        else:
            a(f"""
            v_mov_b32 v{T+2}, 0
            s_waitcnt vmcnt(0) lgkmcnt(0)
            s_barrier
            s_mov_b64 exec, s[56:57]
            ds_write_b32 v{T+2}, v{T+1} offset:{62*16}
            s_mov_b64 exec, -1
            """)
        classes(range(8), first)
        for k in range(8):
            a(f"s_mov_b64 exec, {sr(sM+2*k,2)}")
            a(f"ds_add_rtn_u32 v{RK+k}, v{CA+k}, v{T+1}")
        a("s_mov_b64 exec, -1")
        if first:
            emit(w2[12:])
        a(f"s_movk_i32 s50, {AST*4}")
        ent = []
        for k in range(8):
            e = EN + 2*k
            ent += [f"v_and_b32 v{e}, 0x3fff, v{REC+k}", f"v_and_b32 v{e+1}, 0xfc000, v{REC+k}",
                    f"v_mad_u32_u24 v{e}, v{e+1}, s50, v{e}", f"v_lshrrev_b32 v{e+1}, 20, v{REC+k}",
                    f"v_add_u32 v{e+1}, v{e+1}, v{PB}"]
        c, Z0, EA_, TB_, EB_ = T+4, T+8, T+9, T+10, T+11
        UA, UB, nA, nB, IA, IB, XA, XB, TA_, t0, t1 = T+12, T+13, T+14, T+15, T+16, T+17, T+18, T+19, T+20, T+2, T+3
        emit(ent[:20])
        a(f"""
        s_waitcnt lgkmcnt(0)
        s_barrier
        ds_read_b128 {vr(c,4)}, v{T}
        """)
        if first:
            st(8)
        emit(ent[20:])
        a(f"""
        s_waitcnt lgkmcnt(0)
        v_readlane_b32 s{sMORE}, v{c}, 62
        v_writelane_b32 v{c}, 0, 62
        v_add_u32 v{t0}, v{c}, v{c+1}
        v_add_u32 v{t1}, v{t0}, v{c+2}
        v_lshl_or_b32 v{EA_}, v{t0}, 16, v{c}
        v_add_u32 v{t0}, v{t1}, v{c+3}
        v_lshl_or_b32 v{EB_}, v{t0}, 16, v{t1}
        v_add_u32 v{UA}, 0x001f001f, v{EA_}
        v_add_u32 v{UB}, 0x001f001f, v{EB_}
        v_and_b32 v{UA}, 0xffe0ffe0, v{UA}
        v_and_b32 v{UB}, 0xffe0ffe0, v{UB}
        v_lshlrev_b32 v{t0}, 16, v{UA}
        v_alignbit_b32 v{t1}, v{UB}, v{UA}, 16
        v_sub_u32 v{IA}, v{UA}, v{t0}
        v_sub_u32 v{IB}, v{UB}, v{t1}
        v_sub_u32 v{nA}, v{UA}, v{t0}
        """)
        steps = [("row_shr:1", "0xf"), ("row_shr:2", "0xf"), ("row_shr:4", "0xf"), ("row_shr:8", "0xf"),
                 ("row_bcast:15", "0xa"), ("row_bcast:31", "0xc")]
        extra = [f"v_sub_u32 v{nB}, v{UB}, v{t1}", f"v_sub_u32 v{EA_}, v{UA}, v{EA_}", f"v_sub_u32 v{EB_}, v{UB}, v{EB_}",
                 f"v_alignbit_b32 v{TB_}, v{EB_}, v{EA_}, 16", f"v_mov_b32 v{Z0}, 0",
                 f"ds_write_b128 v{T}, {vr(Z0,4)} offset:{TW1}"]
        for i, (ctl, m_) in enumerate(steps):
            for r in (IA, IB):
                a(f"v_add_u32_dpp v{r}, v{r}, v{r} {ctl} row_mask:{m_} bank_mask:0xf")
            a(extra[i])
        if first:
            emit(poll_issue(WS_FLG, FS))
            a(f"""
            v_add_u32 v{t0}, v{IA}, v{IB}
            v_add_u32_sdwa v{t0}, v{t0}, v{t0} {SDW} src0_sel:WORD_0 src1_sel:WORD_1
            v_lshrrev_b32 v{t1}, 16, v{UB}
            v_readlane_b32 s50, v{t0}, 63
            v_lshlrev_b32 v{t0}, 1, v{t0}
            v_sub_u32 v{t0}, v{t0}, v{t1}
            v_cmp_ge_u32 vcc, s50, v{t0}
            """)
        a(f"""
        v_sub_u32 v{XA}, v{IA}, v{nA}
        v_sub_u32 v{XB}, v{IB}, v{nB}
        v_readlane_b32 s56, v{IA}, 63
        v_readlane_b32 s57, v{IB}, 63
        """)
        if first:
            a(f"""
            s_bcnt1_i32_b64 s50, vcc
            s_max_u32 s50, s50, 17
            s_min_u32 s{sVS}, s50, 32
            """)
        a(f"""
        v_readlane_b32 s58, v{XA}, s{sVS}
        v_readlane_b32 s59, v{XB}, s{sVS}
        v_cmp_gt_u32 vcc, s{sVS}, v2
        v_lshlrev_b32 v{TA_}, 16, v{EA_}
        v_add_u32 v{XA}, {hex(LIST * 0x10001)}, v{XA}
        v_add_u32 v{XB}, {hex(LIST * 0x10001)}, v{XB}
        s_sub_u32 s56, s56, s58
        s_sub_u32 s57, s57, s59
        s_mul_i32 s84, s58, 0x10001
        s_mul_i32 s85, s56, 0x10001
        s_pack_hh_b32_b16 s84, s84, s84
        s_pack_hh_b32_b16 s85, s85, s85
        s_mul_i32 s86, s59, 0x10001
        s_mul_i32 s88, s57, 0x10001
        s_add_u32 s86, s86, s84
        s_add_u32 s88, s88, s85
        s_lshl_b32 s80, s58, 16
        s_sub_u32 s81, s86, s59
        s_lshl_b32 s82, s56, 16
        s_sub_u32 s58, {hex(LSET * 0x10001)}, s58
        s_sub_u32 s89, s88, s57
        s_sub_u32 s59, {hex(LSET * 0x10001)}, s59
        s_add_u32 s82, s82, s58
        s_add_u32 s89, s89, s59
        v_add_u32 v{t0}, s80, v{XA}
        v_add_u32 v{t1}, s81, v{XB}
        v_add_u32 v{XA}, s82, v{XA}
        v_add_u32 v{XB}, s89, v{XB}
        v_cndmask_b32 v{XA}, v{XA}, v{t0}, vcc
        v_cndmask_b32 v{XB}, v{XB}, v{t1}, vcc
        v_cmp_lt_u32 vcc, 0xffff, v{nA}
        v_add_u32 v{IA}, v{XA}, v{nA}
        v_add_u32 v{IB}, v{XB}, v{nB}
        v_cndmask_b32_sdwa v{t0}, v{IA}, v{IA}, vcc {SDW} src0_sel:WORD_0 src1_sel:WORD_1
        v_and_b32 v{nB}, 0xffff, v{nB}
        v_cmp_lt_u32 vcc, 0, v{nB}
        v_sub_u32 v{c}, v{XA}, v{TA_}
        v_sub_u32 v{XB}, v{XB}, v{TB_}
        v_cndmask_b32 v{t1}, v{t0}, v{IB}, vcc
        v_sub_u32 v{IA}, v{IA}, v{EA_}
        v_alignbit_b32 v{c+1}, v{IA}, v{c}, 16
        v_sub_u32 v{t0}, v{t0}, v{TB_}
        v_sub_u32 v{t1}, v{t1}, v{EB_}
        s_movk_i32 s51, {TRASH}
        v_and_b32 v{c+2}, 0xffff, v{XB}
        v_lshl_or_b32 v{c+2}, v{t0}, 16, v{c+2}
        v_alignbit_b32 v{c+3}, v{t1}, v{XB}, 16
        v_writelane_b32 v{c}, s51, 62
        ds_write_b128 v{T}, {vr(c,4)} offset:{TW0}
        """)
        for k in range(8):
            a(f"ds_read2st64_b32 {vr(BB+2*k,2)}, v{CA+k} offset0:{TW0//256} offset1:{TW1//256}")
        a(f"""
        s_max_u32 s50, s86, s88
        s_lshr_b32 s50, s50, 16
        s_cmp_le_u32 s50, {LIMIT}
        s_cbranch_scc0 K_over
        s_add_u32 s50, s50, 511
        s_lshr_b32 s50, s50, 9
        s_max_u32 s{sS}, s50, 1
        """)
        for k0 in (0, 4):
            a(f"s_waitcnt lgkmcnt({4 - k0})")
            for k in range(k0, k0 + 4):
                a(f"v_cmp_lt_u32_sdwa {sr(80+2*(k % 4),2)}, v{RK+k}, v{BB+2*k+1} src0_sel:DWORD src1_sel:WORD_0")
                a(f"v_lshrrev_b32 v{BB+2*k+1}, 16, v{BB+2*k}")
            for k in range(k0, k0 + 4):
                a(f"v_cndmask_b32 v{BB+2*k}, v{BB+2*k}, v{BB+2*k+1}, {sr(80+2*(k % 4),2)}")
                a(f"v_add_u32_sdwa v{RK+k}, v{RK+k}, v{BB+2*k} {SDW} src0_sel:DWORD src1_sel:WORD_0")
        for k in range(8):
            a(f"s_mov_b64 exec, {sr(sM+2*k,2)}")
            a(f"ds_write_b64 v{RK+k}, {vr(EN+2*k,2)}")
        a("s_mov_b64 exec, -1")

    def idx_reads(blk, sub):
        o = 128*blk + 4*sub
        return [f"ds_read2_b32 {vr(IX,2)}, v{LI} offset0:{o} offset1:{o+32}",
                f"ds_read2_b32 {vr(IX+2,2)}, v{LI} offset0:{o+8} offset1:{o+40}"]
    def dma(slot):
        o = []
        for t in range(4):
            o.append(f"s_add_u32 m0, s{sRING}, {4096*slot + 1024*t}")
            o.append(f"v_mad_u32_u16 v{IX+t}, v{IX+t}, s{s512}, v{OF1 if t % 2 else OF0}")
            o.append(f"buffer_load_dwordx4 v{IX+t}, s[12:15], 0 offen {tfl} lds")
        return o
    def edma(step):
        return [f"s_add_u32 m0, s{sEM0}, {1024*(step % 4)}", "s_mov_b64 exec, 0xffff",
                f"buffer_load_dwordx4 {vr(EP,2)}, s[16:19], 0 idxen offen {opt.get('eflag','')} lds", "s_mov_b64 exec, -1"]
    def eid_read(step, dst=None):
        return [f"ds_read_b32 v{dst or EP}, v{LE} offset:{512*(step // 2) + 16*(step % 2) + 4}"]
    def pn_read(blk):
        return [f"ds_read2_b32 {vr(TA0,2)}, v{LP} offset0:{128*blk} offset1:{128*blk+8}"]
    ta = [f"v_add_u32_sdwa v{x}, v{x}, v{TC} {SDW} src0_sel:WORD_1 src1_sel:DWORD" for x in (TA0, TA1)]
    def reads(step):
        s = step % 2
        o = [f"ds_read_b128 {vr(OE,4)}, v{EA} offset:{1024*(step % 4)}"]
        o += [f"ds_read_b128 {vr(r,4)}, v{RA[i]} offset:{4096*s}" for i, r in enumerate((OB0, OB1, OH0, OH1))]
        return o
    def tr_reads(blk):
        i = IND[blk % 2]
        return [f"ds_read_b64_tr_b16 {vr(OA,2)}, v{TA0}", f"ds_read_b64_tr_b16 {vr(OA+2,2)}, v{TA1}",
                f"ds_read_b64_tr_b16 {vr(i,2)}, v{TA0} offset:64", f"ds_read_b64_tr_b16 {vr(i+2,2)}, v{TA1} offset:64"]
    mct = f"{MF} {vr(CT,16)}, {vr(PIND,4)}, {vr(OA,4)}, {vr(CI,16)}"
    def mf_g(g):
        d = vr(g, 16)
        return [f"{MF} {d}, {vr(OE,4)}, {vr(WC,4)}, {vr(CT,16)}",
                f"{MF} {d}, {vr(OB0,4)}, {vr(SEL0,4)}, {d}",
                f"{MF} {d}, {vr(OB1,4)}, {vr(SEL1,4)}, {d}"]
    mf_h = [f"{MF} {vr(H,16)}, {vr(OH0,4)}, {vr(SEL0,4)}, 0",
            f"{MF} {vr(H,16)}, {vr(OH1,4)}, {vr(SEL1,4)}, {vr(H,16)}"]
    def mf_red(i):
        return [f"{MF} {ar(ACD,16)}, {vr(IND[i],4)}, {vr(BD,4)}, {ar(ACD,16)}",
                f"{MF} {ar(ACN,16)}, {vr(IND[i],4)}, {vr(BN,4)}, {ar(ACN,16)}"]
    cvts = [f"v_cvt_pk_bf16_f32 v{BD+j}, v{AS+2*j}, v{AS+2*j+1}" for j in range(4)] + \
           [f"v_cvt_pk_bf16_f32 v{BN+j}, v{AM+2*j}, v{AM+2*j+1}" for j in range(4)]
    def pk(op, d, *s):
        return f"v_pk_{op}_f32 {vr(d,2)}, " + ", ".join(x if isinstance(x, str) else vr(x, 2) for x in s)
    def pk2(k):
        g = G[k % 2]
        o = []
        for dst, src in ((AS, SS), (AM, MM)):
            for j in range(4):
                if k % 2 == 0:
                    o.append(pk("mul", dst+2*j, src+2*j, g+4*j))
                else:
                    o.append(pk("fma", dst+2*j, src+2*j, g+4*j, dst+2*j))
        return o
    def load_seg(u):
        o = eid_read(u + 4) + idx_reads(*[(1, 1), (0, 0), (0, 1), (1, 0)][u])
        o += pn_read(u // 2) if u % 2 == 0 else tr_reads((u + 1) // 2)
        o += ["s_waitcnt vmcnt(5)"] + reads(u + 1)
        adv = {0: LI, 2: LP, 3: LE}.get(u)
        if adv:
            o += [f"v_add_u32 v{adv}, 0x400, v{adv}"]
        o += ["s_waitcnt lgkmcnt(5)"] + edma(u) + ["s_waitcnt lgkmcnt(0)"] + dma((u + 1) % 2)
        if u % 2 == 0:
            o += ta
        else:
            o += [f"s_add_u32 s{sK}, s{sK}, 1", f"s_cmp_ge_u32 s{sK}, s{sS}"]
        return o + ["s_setprio 0", "s_barrier"]
    def comp_seg(u, first=False):
        g, gn = G[u % 2], G[(u + 1) % 2]
        ex = [f"v_exp_f32 v{g+r}, v{g+r} clamp" for r in range(16)]
        mg = mf_g(gn)
        if first:
            o = [mg[0]] + ex[:3] + [mg[1]] + ex[3:6] + [mg[2]] + ex[6:]
        elif u % 2 == 0:
            mr = mf_red((u // 2 - 1) % 2)
            o = pk2(u - 1) + [mg[0]] + cvts[:6] + [mg[1]] + cvts[6:] + ex[:2] + [mg[2]] + ex[2:5] + \
                [mr[0]] + ex[5:8] + [mr[1]] + ex[8:]
        else:
            o = pk2(u - 1) + [mct] + ex[:3] + [mg[0]] + ex[3:6] + [mg[1]] + ex[6:9] + [mg[2]] + ex[9:]
        for j in range(4):
            b_ = g + 4*j
            o += [pk("add", b_, b_, sr(sCC, 2)), pk("add", b_+2, b_+2, sr(sCC, 2))]
        for j in range(4):
            b_, hh = g + 4*j, H + 4*j
            o += [pk("mul", MM+2*j, hh, b_+2), pk("add", SS+2*j, b_, b_+2), pk("fma", MM+2*j, hh+2, b_, MM+2*j), pk("mul", b_, b_, b_+2)]
        rc = [f"v_rcp_f32 v{g+4*j+i}, v{g+4*j+i}" for j in range(4) for i in range(2)]
        o += [mf_h[0]] + rc[:3] + [mf_h[1]] + rc[3:]
        pos = len(o) - opt.get("bpos", 2)
        return o[:pos] + ["s_setprio 1", "s_barrier"] + o[pos:]

    def fill_a():
        emit(eid_read(0) + eid_read(1, 1) + idx_reads(0, 0) + pn_read(0))
        a("s_waitcnt lgkmcnt(0)")
        emit(edma(0) + [f"v_mov_b32 v{EP}, v1"] + edma(1) + dma(0))
        emit(eid_read(2) + idx_reads(0, 1) + ta)
        a("s_waitcnt lgkmcnt(0)")
        emit(edma(2) + dma(1) + eid_read(3) + idx_reads(1, 0))
        a(f"v_add_u32 v{LP}, 0x200, v{LP}\ns_mov_b32 s{sK}, 0")
    sort(True)
    a("K_sorted:\ns_waitcnt vmcnt(1)")
    for q in range(8):
        emit(wfrag(q))
    poll_check("t", WS_FLG, FS)
    a("s_waitcnt lgkmcnt(0)\ns_barrier")
    st(9)
    fill_a()
    m48 = (f32(-float(SHIFT)) >> 16) * 0x10001
    b = Asm()
    for i in range(4):
        b(f"v_mov_b32 v{68+i}, {hex(m48)}\nv_mov_b32 v{72+i}, 0")
    b(f"""
    v_xor_b32 v{RA[1]}, 32, v{RA[0]}
    v_xor_b32 v{RA[2]}, 64, v{RA[0]}
    v_xor_b32 v{RA[3]}, 0x60, v{RA[0]}
    v_xor_b32 v76, 16, v{FA}
    v_xor_b32 v77, 32, v{FA}
    v_xor_b32 v78, 48, v{FA}
    v_xor_b32 v79, 16, v{FB}
    v_xor_b32 v80, 32, v{FB}
    v_xor_b32 v81, 48, v{FB}
    v_and_b32 v3, 31, v2
    s_sub_u32 s51, {SB - 31}, s{sSET}
    v_cmp_gt_u32 s[90:91], s51, v3
    s_sub_u32 s51, {N*256}, s{sXO}
    s_min_u32 s34, s51, {SB*256}
    s_add_u32 s32, s10, s{sXO}
    s_addc_u32 s33, s11, 0
    s_mov_b32 s{sCC}, {hex(f32(2.0**-SHIFT))}
    s_mov_b32 s{sCC+1}, {hex(f32(2.0**-SHIFT))}
    """)
    f2 = [x.strip() for x in b.l]
    for i in range(16):
        a(gm(i // 2, i % 2))
        emit(f2[2*i:2*i+2])
    a(f"""
    {MF} {vr(CI,16)}, {vr(PIND,4)}, v[68:71], 0
    {MF} {ar(ACD,16)}, v[72:75], v[72:75], 0
    {MF} {ar(ACN,16)}, v[72:75], v[72:75], 0
    s_nop 7
    """)
    scale("ns2")
    emit(conv(0, [FA, 76, 77, 78]))
    a("s_mov_b64 exec, s[90:91]")
    emit(conv(1, [FB, 79, 80, 81]))
    a(f"""
    s_mov_b64 exec, -1
    s_waitcnt vmcnt(5) lgkmcnt(0)
    s_barrier
    ds_read_b128 {ar(AU,4)}, v{FU}
    ds_read_b128 {ar(AU+4,4)}, v{FU} offset:8192
    K_fillb:
    """)
    emit(tr_reads(0) + reads(0) + edma(3))
    a(f"s_waitcnt lgkmcnt(5)\n{mct}\ns_waitcnt lgkmcnt(0)")
    d0 = dma(0)
    mm = mf_g(G[0]) + mf_h
    for t in range(4):
        emit([mm[t]] + d0[3*t:3*t+3])
    a(mm[4])
    st(10)
    a(f"""
    s_cmp_eq_u32 s{sSET}, 0
    s_barrier
    s_cbranch_scc1 K_lead
    s_barrier
    s_setprio 1
    K_lead:
    """)
    emit(load_seg(0) + comp_seg(0, first=True))
    a("s_branch K_loop1")
    a.l.append(".p2align 6")
    a("K_loop:")
    for u in range(4):
        if u == 1:
            a("K_loop1:")
        emit(load_seg(u) + comp_seg(u))
        if u == 1:
            a("s_cbranch_scc1 K_drain0")
        if u == 3:
            a("s_cbranch_scc0 K_loop")
    a("s_branch K_drain\nK_drain0:")
    emit([f"v_mov_b32 v{IND[1]+j}, v{IND[0]+j}" for j in range(4)])
    a(f"""
    K_drain:
    s_setprio 0
    s_cmp_lg_u32 s{sSET}, 0
    s_cbranch_scc1 K_done
    s_barrier
    K_done:
    """)
    emit(pk2(1) + cvts + ["s_nop 1"] + mf_red(1))
    st(11)
    a(f"""
    s_cmp_lg_u32 s{sMORE}, 0
    s_cbranch_scc1 K_again
    v_lshrrev_b32 v40, 5, v2
    v_and_b32 v41, 31, v2
    v_lshlrev_b32 v42, 2, v41
    v_lshl_add_u32 v42, v40, 9, v42
    v_add_u32 v42, s{sRING}, v42
    v_lshrrev_b32 v44, 4, v0
    v_bfe_u32 v45, v0, 2, 2
    v_lshlrev_b32 v45, 13, v45
    v_lshl_add_u32 v45, v44, 7, v45
    v_and_b32 v46, 3, v0
    v_lshl_add_u32 v45, v46, 5, v45
    v_add_u32 v45, {RING}, v45
    v_add_u32 v46, 0x8000, v45
    v_cmp_gt_u32 vcc, s{sVS}, v44
    v_lshlrev_b32 v43, 4, v0
    s_mov_b32 s50, {hex(f32(1e-6 * 2.0**SHIFT))}
    v_cndmask_b32 v45, v46, v45, vcc
    """)
    for r in range(16):
        a(f"v_accvgpr_read_b32 v{48+r}, a{ACD+r}")
    for r in range(16):
        a(f"v_add_f32 v{48+r}, s50, v{48+r}")
    for r in range(16):
        a(f"v_rcp_f32 v{48+r}, v{48+r}")
        a(f"v_accvgpr_read_b32 v{64+r}, a{ACN+r}")
    a("s_waitcnt vmcnt(0)")
    for r in range(16):
        a(f"v_mul_f32 v{48+r}, v{48+r}, v{64+r}")
        a(f"ds_write_b32 v42, v{48+r} offset:{128*(8*(r//4) + r % 4)}")
    a("s_mov_b32 s50, 0xffff0000\ns_mov_b32 s51, 8192")
    for i in range(2):
        for j in range(4):
            x = XR + 4*i + j
            a(f"v_lshlrev_b32 v{64+8*i+2*j}, 16, v{x}")
            a(f"v_and_b32 v{64+8*i+2*j+1}, s50, v{x}")
            a(f"v_accvgpr_read_b32 v{x}, a{AU+4*i+j}")
            a(f"v_lshlrev_b32 v{96+8*i+2*j}, 16, v{x}")
            a(f"v_and_b32 v{96+8*i+2*j+1}, s50, v{x}")
    a("""
    s_waitcnt lgkmcnt(0)
    s_barrier
    ds_read_b128 v[48:51], v45
    ds_read_b128 v[52:55], v45 offset:16
    ds_read_b128 v[56:59], v46
    ds_read_b128 v[60:63], v46 offset:16
    """)
    for i in range(2):
        a(f"s_waitcnt lgkmcnt({2-2*i})")
        for j in range(8):
            a(f"v_add_f32 v{48+8*i+j}, v{48+8*i+j}, v{96+8*i+j}")
        for j in range(8):
            a(f"v_max_f32 v{48+8*i+j}, 0, v{48+8*i+j}")
        for j in range(8):
            a(f"v_add_f32 v{48+8*i+j}, v{48+8*i+j}, v{64+8*i+j}")
        for j in range(4):
            a(f"v_cvt_pk_bf16_f32 v{80+4*i+j}, v{48+8*i+2*j}, v{48+8*i+2*j+1}")
        a(f"buffer_store_dwordx4 {vr(80+4*i,4)}, v43, s[32:35], {'s51' if i else '0'} offen {opt.get('ost','nt')}")
    if st.on:
        a("s_waitcnt vmcnt(0)")
        a(f"s_lshl_b32 s50, s{sS}, 1")
        a("v_writelane_b32 v205, s50, 15")
    st(12)
    st.flush()
    a("K_end:\ns_endpgm\nK_codeend:")
    a(f"""
    K_clr:
    s_waitcnt lgkmcnt(0)
    s_mov_b32 s20, s52
    s_mov_b32 s21, s53
    s_mov_b32 s12, s78
    s_mov_b32 s13, s79
    s_mov_b32 s14, {WS_END}
    s_mov_b32 s15, 0x20000
    s_mov_b32 s28, s76
    s_mov_b32 s29, s77
    s_movk_i32 s30, 256
    s_mov_b32 s31, 0x20000
    v_mov_b32 v8, 0
    v_mov_b32 v9, 0
    v_mov_b32 v10, 0
    v_mov_b32 v11, 0
    v_lshlrev_b32 v4, 7, v2
    s_mov_b32 s50, {WS_FLG}
    buffer_store_dwordx4 v[8:11], v4, s[12:15], s50 offen sc1
    """)
    emit(xdma(XP, SB*256) + xdma(ERING, 0))
    a(f"""
    v_and_b32 v12, 4, v2
    v_cmp_eq_u32 vcc, 0, v12
    v_mov_b32 v13, 0x71807180
    v_and_b32 v5, 0x1f0, v1
    v_cndmask_b32 v12, 0, v13, vcc
    v_mov_b32 v13, v12
    v_mov_b32 v14, v12
    v_mov_b32 v15, v12
    s_mov_b32 s50, {DUMMY*512}
    buffer_store_dwordx4 v[12:15], v5, s[12:15], s50 offen sc1
    s_mov_b64 exec, 1
    s_waitcnt vmcnt(5)
    buffer_store_dword v{ONE}, off, s[28:31], 0 sc1
    s_mov_b64 exec, -1
    s_branch K_np1
    """)
    a(f"""
    K_prod:
    s_mul_i32 s88, s62, {CH*4}
    s_add_u32 s89, s88, 8192
    s_add_u32 s82, s88, {CH*4}
    s_min_u32 s82, s82, {E*4}
    s_mov_b32 s86, s82
    s_waitcnt lgkmcnt(0)
    s_mov_b32 s80, s58
    s_mov_b32 s81, s59
    s_mov_b32 s84, s56
    s_mov_b32 s85, s57
    buffer_load_dwordx4 v[8:11], v1, s[80:83], s88 offen
    buffer_load_dwordx4 v[12:15], v1, s[80:83], s89 offen
    buffer_load_dwordx4 v[16:19], v1, s[84:87], s88 offen
    buffer_load_dwordx4 v[20:23], v1, s[84:87], s89 offen
    s_mov_b32 s20, s52
    s_mov_b32 s21, s53
    v_lshlrev_b32 v4, 2, v0
    v_mov_b32 v62, 0
    ds_write_b32 v4, v62
    v_mov_b32 v40, -1
    v_mov_b32 v41, -1
    v_mov_b32 v42, -1
    v_mov_b32 v43, -1
    """)
    for i in range(4):
        a(f"ds_write_b128 v1, v[40:43] offset:{IMG + 8192*i}")
    common(64)
    a("s_waitcnt lgkmcnt(0)\ns_barrier")
    emit(xdma(ERING, 0))
    common2(a)
    emit(wcdma)
    a(f"""
    s_sub_u32 s90, s82, s88
    v_add_u32 v4, 8192, v1
    v_cmp_gt_u32 s[92:93], s90, v4
    s_lshl_b32 s56, s62, 7
    s_add_u32 s56, s56, {WS_SLOT}
    s_add_u32 s57, s56, {1 << 20}
    s_add_u32 s58, s56, {2 << 20}
    s_add_u32 s59, s56, {3 << 20}
    v_lshrrev_b32 v5, 3, v0
    v_and_b32 v61, 0x70, v1
    v_lshl_add_u32 v61, v5, 14, v61
    s_mov_b32 s91, {-SB & 0xffffffff}
    s_mov_b32 s96, {2048 - RG}
    v_mov_b32 v6, 4
    v_lshlrev_b32 v7, 22, v0
    v_mov_b32 v36, 0
    v_mov_b32 v37, 0
    v_mov_b32 v38, 0
    v_mov_b32 v39, 0
    v_add_u32 v{FX}, {ERING}, v{FX}
    """)
    for k in range(8):
        a(f"v_add_u32 v{68+k}, {hex(((2048*(k//4) + k % 4) << 20) & 0xffffffff)}, v7")
    for g in range(2):
        a(f"s_waitcnt vmcnt({6 - g})")
        if g == 0:
            st(1)
        for j in range(4):
            d, t = 8 + 4*g + j, 24 + 4*g + j
            a(f"v_mul_u32_u24 v{44+4*g+j}, 21400, v{d}")
            a(f"v_lshrrev_b32 v{44+4*g+j}, 20, v{44+4*g+j}")
            a(f"v_lshlrev_b32 v{t}, 2, v{44+4*g+j}")
        if g:
            a("s_mov_b64 exec, s[92:93]")
        for j in range(4):
            a(f"ds_add_rtn_u32 v{32+4*g+j}, v{24+4*g+j}, v6")
    a("s_mov_b64 exec, -1\ns_waitcnt vmcnt(3)")
    for k in range(8):
        s_, d = 16 + k, 8 + k
        a(f"v_mad_i32_i24 v{d}, v{44+k}, s91, v{d}")
        a(f"v_mul_u32_u24 v4, 21400, v{s_}")
        a(f"v_lshl_or_b32 v{d}, v{d}, 14, v{68+k}")
        a(f"v_lshrrev_b32 v4, 25, v4")
        a(f"v_mad_u32_u24 v{s_}, v4, s96, v{s_}")
        a(f"v_or_b32 v{s_}, v{d}, v{s_}")
    a("s_waitcnt lgkmcnt(0)")
    for k in range(8):
        if k == 4:
            a("s_mov_b64 exec, s[92:93]")
        a(f"v_add_u32 v4, v{32+k}, v{24+k}")
        a(f"v_and_b32 v4, 0x7f, v4")
        a(f"v_lshl_add_u32 v{44+k}, v{24+k}, 5, v4")
        a(f"ds_write_b32 v{44+k}, v{16+k} offset:{IMG}")
    a(f"""
    s_mov_b64 exec, -1
    v_or3_b32 v4, v32, v33, v34
    v_or3_b32 v5, v35, v36, v37
    v_or3_b32 v4, v4, v38, v39
    v_or_b32 v4, v4, v5
    v_cmp_lt_u32 vcc, 0x7f, v4
    s_mov_b64 exec, vcc
    ds_write_b32 v62, v6 offset:1024
    s_mov_b64 exec, -1
    s_waitcnt vmcnt(0) lgkmcnt(0)
    s_barrier
    ds_read_b32 v4, v62 offset:1024
    """)
    OUTR = [8, 12, 68, 72]
    def img_reads():
        for i in range(4):
            a(f"ds_read_b128 {vr(OUTR[i],4)}, v1 offset:{IMG + 8192*i}")
    img_reads()
    a(f"""
    {ready_load}
    s_waitcnt lgkmcnt(4)
    v_readfirstlane_b32 s50, v4
    s_cmp_lg_u32 s50, 0
    s_cbranch_scc1 K_slow
    K_out:
    """)
    for i in range(4):
        a(f"s_waitcnt lgkmcnt({3-i})")
        a(f"buffer_store_dwordx4 {vr(OUTR[i],4)}, v61, s[12:15], s{56+i} offen sc1")
    st(2)
    for q in range(8):
        emit(xfrag(q))
    emit(misc)
    a(f"s_add_u32 s96, s97, {WS_FLG + 4096}\ns_mov_b32 s97, {OOB}\ns_waitcnt vmcnt(0) lgkmcnt(0)")
    ready_check("rp")
    a(f"""
    s_mov_b64 exec, 1
    s_barrier
    buffer_store_dword v{ONE}, off, s[12:15], s96 sc1
    s_mov_b64 exec, -1
    """)
    st(3)
    lds_reset(True)
    a("s_branch K_join")


    a("""
    K_slow:
    v_lshlrev_b32 v5, 4, v2
    s_waitcnt lgkmcnt(0)
    ds_read_b128 v[8:11], v5
    s_waitcnt lgkmcnt(0)
    v_add_u32 v13, v8, v9
    v_add_u32 v14, v13, v10
    v_add_u32 v15, v14, v11
    v_mov_b32 v4, v15
    """)
    scan64(a, [4])
    a("""
    v_sub_u32 v40, v4, v15
    v_add_u32 v41, v40, v8
    v_add_u32 v42, v40, v13
    v_add_u32 v43, v40, v14
    ds_write_b128 v5, v[40:43] offset:2048
    """)
    for k in range(8):
        a(f"ds_read_b32 v{24+k}, v{24+k} offset:2048")
    a("s_waitcnt lgkmcnt(0)")
    for k in range(8):
        a(f"s_mov_b64 exec, {'s[92:93]' if k >= 4 else '-1'}")
        a(f"v_add_u32 v{24+k}, v{24+k}, v{32+k}")
        a(f"ds_write_b32 v{24+k}, v{16+k} offset:{STG}")
        a(f"v_cmp_gt_u32 vcc, 0x80, v{32+k}")
        a("s_mov_b64 exec, vcc")
        a(f"ds_write_b32 v{44+k}, v{16+k} offset:{IMG}")
    a(f"""
    s_mov_b64 exec, -1
    s_waitcnt lgkmcnt(0)
    s_barrier
    v_lshlrev_b32 v16, 4, v5
    v_and_b32 v16, {0x3800 if rot else 0}, v16
    v_or_b32 v16, {62 << 14}, v16
    """)
    for j in range(4):
        a(f"""
        v_add_u32 v12, {4*j}, v5
        v_add_u32 v13, 124, v12
        v_and_b32 v13, 0x7f, v13
        v_lshl_add_u32 v13, v12, 5, v13
        v_add_u32 v14, 120, v{40+j}
        v_lshl_or_b32 v14, v14, 18, v16
        v_add_u32 v15, -124, v{8+j}
        v_cmp_lt_u32 vcc, 0x80, v{8+j}
        s_mov_b64 exec, vcc
        ds_write_b32 v13, v14 offset:{IMG}
        ds_write_b32 v{40+j}, v15 offset:{STG + 120}
        s_mov_b64 exec, -1
        """)
    a(f"""
    ds_read_b128 v[16:19], v1 offset:{STG}
    ds_read_b128 v[20:23], v1 offset:{STG + 8192}
    s_add_u32 s50, s88, {WS_REC}
    s_add_u32 s80, s4, s50
    s_addc_u32 s81, s5, 0
    s_mov_b32 s82, s90
    s_movk_i32 s50, 8192
    s_waitcnt lgkmcnt(0)
    buffer_store_dwordx4 v[16:19], v1, s[80:83], 0 offen sc1
    buffer_store_dwordx4 v[20:23], v1, s[80:83], s50 offen sc1
    """)
    img_reads()
    a("s_branch K_out")

    zero_masks = lambda ks: [f"s_mov_b64 {sr(sM+2*k,2)}, 0" for k in ks]
    a("""
    K_again:
    s_waitcnt vmcnt(0) lgkmcnt(0)
    s_barrier
    """)
    lds_reset(True)
    a(f"""
    s_cmp_eq_u32 s{sMODE}, 3
    s_cbranch_scc1 K_next
    """)
    rec_loads()
    a(f"""
    s_waitcnt vmcnt(0)
    s_cmp_eq_u32 s{sMODE}, 1
    s_cbranch_scc0 K_marks
    s_mov_b32 s{sMODE}, 2
    s_mov_b64 s[56:57], 0
    """)
    classes(range(4, 8), True)
    emit(zero_masks(range(4)))
    a(f"""
    s_branch K_resort
    K_marks:
    s_mov_b32 s{sMODE}, 3
    v_mov_b32 v84, 0
    """)
    for k in range(8):
        a(f"""
        v_bfe_u32 v85, v{REC+k}, 14, 6
        v_cmp_eq_u32 vcc, 62, v85
        s_nop 1
        v_cndmask_b32 v84, v84, v{REC+k}, vcc
        """)
    a(f"""
    s_nop 1
    v_or_b32_dpp v84, v84, v84 quad_perm:[1,0,3,2] row_mask:0xf bank_mask:0xf
    s_nop 1
    v_or_b32_dpp v84, v84, v84 quad_perm:[2,3,0,1] row_mask:0xf bank_mask:0xf
    v_cmp_ne_u32 vcc, 0, v84
    v_lshrrev_b32 v84, 20, v84
    v_add_lshl_u32 v84, v84, v{PB}, 2
    s_mov_b32 s{sSTART}, {WS_REC}
    buffer_load_dword v{SLEN}, v84, s[12:15], s{sSTART} offen sc1
    v_add_u32 v{SEG}, v84, v{SIDX}
    s_mov_b32 s{sSTART}, {WS_REC + 4 - 64}
    s_waitcnt vmcnt(0)
    v_cndmask_b32 v{SLEN}, 0, v{SLEN}, vcc
    v_min_u32 v{SLEN}, {CH*4}, v{SLEN}
    v_add_u32 v{SLEN}, 64, v{SLEN}
    K_next:
    s_add_u32 s{sSTART}, s{sSTART}, 64
    v_add_u32 v{SLEN}, -64, v{SLEN}
    """)
    rec_loads(1)
    a(f"""
    v_cmp_lt_i32 s[56:57], 64, v{SLEN}
    v_sub_u32 v84, v{SLEN}, v{SIDX}
    """)
    for k in range(4):
        a(f"v_cmp_lt_i32 {sr(sM+2*k,2)}, {4*k}, v84")
    emit(zero_masks(range(4, 8)))
    a("K_resort:")
    list_ptrs()
    sort(False)
    a(f"""
    s_cmp_eq_u32 s{sMODE}, 2
    s_cselect_b32 s{sMORE}, s{sMARK}, s{sMORE}
    s_cmp_eq_u32 s{sMODE}, 1
    s_cselect_b32 s{sMORE}, 1, s{sMORE}
    s_cbranch_scc1 K_sorted
    s_waitcnt lgkmcnt(0)
    s_barrier
    """)
    fill_a()
    emit([f"v_mov_b32 v{CI+i}, {hex(f32(-float(SHIFT)))}" for i in range(16)])
    a(f"""
    s_waitcnt vmcnt(5) lgkmcnt(0)
    s_barrier
    s_branch K_fillb
    K_over:
    s_cmp_lg_u32 s{sMODE}, 0
    s_cbranch_scc1 K_end
    s_mov_b32 s{sMODE}, 1
    s_mov_b32 s{sMARK}, s{sMORE}
    s_mov_b64 s[56:57], 0
    s_waitcnt lgkmcnt(0)
    s_barrier
    """)
    lds_reset(False)
    emit(zero_masks(range(4, 8)))
    a("s_branch K_resort")
    d = desc(name, NV + 40, 100, NV)
    ln = f"; @launch grid=(256,1,1) block=(512,1,1) lds={LDS}\n"
    if opt.get("probe"):
        import gen
        ln = f"; @launch kernel={name} grid=(256,1,1) block=(512,1,1) lds={LDS}\n; @launch kernel=probe_kernel grid=(1,1,1) block=(64,1,1) lds=0\n"
        d += gen.gen_probe(a, opt)
    hdr = """; GatedGCN layer in one launch: each workgroup builds the table rows of its 49 nodes, half of them also
; partition a chunk of edges by destination bin; after two counted hand-offs every workgroup sorts its bin
; and runs the gate / aggregation loop.
""" + ln + '.amdgcn_target "amdgcn-amd-amdhsa--gfx950"\n.text\n'
    return hdr + a.text() + d

if __name__ == "__main__":
    opt = {}
    out = f"cdna_kernels/{NAME}.s"
    for x in sys.argv[1:]:
        k, v = x.split("=", 1)
        if k == "out":
            out = v
        else:
            opt[k] = int(v) if v.lstrip("-").isdigit() else v
    open(out, "w").write(generate(opt))
    print("wrote", out)
```

```python
import sys
from gen import (NAME, N, E, SB, CH, P, RG, DUMMY, WS_REC, WS_SLOT, WS_END, SHIFT, LOG2E, WS_STAMP, MF,
                 f32, Asm, vr, ar, sr, scan64, desc, head, Stamps)

TW0, TW1, TRASH = 1024, 2048, 3072
LIST = 4096
CAPS = 2560
LSET = CAPS * 8
ATAB = LIST + 2 * LSET
AST = 592
WCL = 77824
WS_FLG = 0xA00000
XP = ATAB
ERING = 81920
RING = 98304
LDS = RING + 65536
LIMIT = 2240 * 8
IMG, STG = 4096, 36864
SDW = "dst_sel:DWORD dst_unused:UNUSED_PAD"
OOB = 0x7000000

def generate(opt=None):
    opt = opt or {}
    a = Asm()
    name = NAME + "_kernel"
    cls = [int(c) for c in str(opt.get("cls", "c01122333"))[1:]]
    lut = sum(c << (2*i) for i, c in enumerate(cls))
    rot = opt.get("rot", 1)
    tfl = opt.get("tfl", "sc1").replace("+", " ")
    tst = opt.get("tst", "sc1").replace("+", " ")
    head(a, name)
    st = Stamps(a, opt.get("stamp"), 205, WS_STAMP)
    SEL0, SEL1, PIND, WC, CI, CT = 4, 8, 12, 16, 20, 36
    G = [52, 68]; H = 84
    OE, OB0, OB1, OH0, OH1, OA = 100, 104, 108, 112, 116, 120
    IND = [124, 128]
    SS, MM, AS, AM, BD, BN = 132, 140, 148, 156, 164, 168
    IX, OF0, OF1, EP = 172, 176, 177, 178
    RA = [180, 181, 182, 183]
    EA, LI, LE, LP, TA0, TA1, TC = 184, 185, 186, 187, 188, 189, 190
    XR = 192
    SEG, SLEN, SIDX, PB = 200, 201, 202, 203
    NV = 208
    ACD, ACN, AU = 0, 16, 32
    sW, sSET, sTILE, sBIN = 3, 36, 37, 38
    sRING, sEM0, sS, sK, sVS, sSTART, sLUT, sMORE, s512 = 39, 40, 41, 42, 43, 44, 45, 46, 47
    sCC, sM, sMODE, sMARK, sXO, sPROD = 48, 64, 7, 9, 8, 6
    REC, CA, RK, BB, EN, T = 36, 44, 52, 60, 100, 76
    XF, WA, DA, SO, WCR = 100, 0, 36, 68, 164
    VW, FW, FX, FS, FR, FG, FA, FB, FU = 168, 169, 170, 171, 172, 173, 207, 204, 191
    ONE, PL = 206, 164

    def emit(lst):
        for x in lst:
            a(x)

    a("s_cmp_ge_u32 s2, 256\ns_cbranch_scc1 K_end")
    st(0)
    a(f"""
    s_load_dwordx8 s[52:59], s[0:1], 0
    s_load_dwordx16 s[64:79], s[0:1], 32
    v_lshrrev_b32 v1, 6, v0
    v_and_b32 v2, 63, v0
    v_readfirstlane_b32 s{sW}, v1
    s_and_b32 s60, s2, 7
    s_lshr_b32 s61, s2, 3
    s_lshl_b32 s50, s60, 5
    s_add_u32 s{sBIN}, s50, s61
    v_lshrrev_b32 v84, 4, v2
    v_and_b32 v85, 15, v2
    v_bfe_u32 v3, v0, 4, 4
    v_xor_b32 v3, v3, v85
    v_lshlrev_b32 v3, 4, v3
    v_lshl_add_u32 v3, v84, 8, v3
    v_lshlrev_b32 v1, 4, v0
    s_mul_i32 s{sXO}, s{sBIN}, {SB*256}
    s_lshl_b32 s90, s{sW}, 10
    s_add_u32 s51, s{sXO}, s90
    s_add_u32 s91, s51, 8192
    s_cmp_lt_u32 s{sW}, 5
    s_cselect_b32 s91, s91, {OOB}
    s_mov_b32 s22, {N*256}
    s_mov_b32 s23, 0x20000
    v_lshrrev_b32 v86, 2, v2
    v_and_b32 v87, 3, v2
    v_lshlrev_b32 v{VW}, 4, v87
    v_lshl_add_u32 v{FG}, v86, 9, v{VW}
    v_lshl_add_u32 v{VW}, v86, 8, v{VW}
    v_mov_b32 v{ONE}, 1
    s_lshr_b32 s50, s2, 4
    s_lshl_b32 s50, s50, 3
    s_add_u32 s62, s50, s60
    s_lshr_b32 s{sSET}, s{sW}, 2
    s_and_b32 s{sTILE}, s{sW}, 3
    s_mov_b32 s83, 0x20000
    s_mov_b32 s87, 0x20000
    s_bitcmp1_b32 s2, 3
    s_cbranch_scc1 K_np
    s_mul_i32 s88, s62, {CH*4}
    s_add_u32 s89, s88, 8192
    s_add_u32 s82, s88, {CH*4}
    s_min_u32 s82, s82, {E*4}
    s_mov_b32 s86, s82
    s_waitcnt lgkmcnt(0)
    s_mov_b32 s80, s58
    s_mov_b32 s81, s59
    s_mov_b32 s84, s56
    s_mov_b32 s85, s57
    buffer_load_dwordx4 v[8:11], v1, s[80:83], s88 offen
    buffer_load_dwordx4 v[12:15], v1, s[80:83], s89 offen
    buffer_load_dwordx4 v[16:19], v1, s[84:87], s88 offen
    buffer_load_dwordx4 v[20:23], v1, s[84:87], s89 offen
    s_branch K_prod
    K_np:
    """)
    def xdma(base, delta):
        o = []
        for i, so in enumerate(("s51", "s91")):
            o.append(f"s_add_u32 m0, s90, {base + 8192*i}")
            o.append(f"s_sub_u32 s50, {so}, {delta}")
            o.append("buffer_load_dwordx4 v3, s[20:23], s50 offen lds")
        return o
    def wdma():
        o = []
        for q in range(8):
            o += [f"s_add_u32 m0, s{sRING}, {1024*q}", f"s_add_u32 s89, s63, {4096*q}",
                  f"buffer_load_dwordx4 v{VW}, s[24:27], s89 offen lds"]
        return o
    wcdma = [f"s_lshl_b32 s89, s{sTILE}, 10", f"s_add_u32 m0, s89, {WCL}", "s_nop 0",
             f"buffer_load_dwordx4 v{VW}, s[32:35], s63 offen lds"]
    def common(first):
        a(f"""
        s_lshl_b32 s{sRING}, s{sW}, 13
        s_add_u32 s{sRING}, s{sRING}, {RING}
        s_lshl_b32 s63, s{sTILE}, 6
        s_cmp_eq_u32 s{sSET}, 0
        s_cselect_b32 s64, s64, s70
        s_cselect_b32 s65, s65, s71
        s_cselect_b32 s66, s66, s72
        s_cselect_b32 s67, s67, s73
        s_mov_b32 s24, s{first}
        s_mov_b32 s25, s{first+1}
        s_mov_b32 s26, 32768
        s_mov_b32 s27, 0x20000
        """)
    def common2(x):
        x(f"""
        s_mov_b32 s32, s68
        s_mov_b32 s33, s69
        s_mov_b32 s34, 4096
        s_mov_b32 s35, 0x20000
        s_mov_b32 s14, {WS_END}
        s_mov_b32 s15, 0x20000
        s_movk_i32 s30, 256
        s_mov_b32 s31, 0x20000
        s_mov_b32 s4, s78
        s_mov_b32 s5, s79
        s_mov_b32 s12, s78
        s_mov_b32 s13, s79
        s_mov_b32 s10, s74
        s_mov_b32 s11, s75
        s_mov_b32 s28, s76
        s_mov_b32 s29, s77
        v_lshrrev_b32 v88, 5, v2
        v_and_b32 v89, 31, v2
        v_lshrrev_b32 v90, 2, v85
        v_lshl_add_u32 v90, v88, 3, v90
        v_and_b32 v91, 1, v84
        v_lshlrev_b32 v91, 5, v91
        v_lshl_add_u32 v91, v87, 3, v91
        v_lshl_add_u32 v90, v90, 6, v91
        v_add_u32 v{FW}, s{sRING}, v90
        s_lshl_b32 s50, s{sTILE}, 10
        s_add_u32 s50, s50, {WCL}
        v_add_u32 v{WCR}, s50, v90
        v_xor_b32 v90, v88, v85
        v_lshlrev_b32 v90, 4, v90
        v_lshl_add_u32 v{FX}, v89, 8, v90
        v_lshlrev_b32 v93, 3, v88
        v_lshrrev_b32 v94, 4, v0
        v_xor_b32 v90, v94, v0
        v_and_b32 v90, 15, v90
        v_lshlrev_b32 v90, 4, v90
        v_lshl_add_u32 v{FU}, v94, 8, v90
        s_mov_b32 s94, {hex(f32(-LOG2E))}
        s_mov_b32 s95, {hex(f32(-LOG2E))}
        s_lshr_b32 s50, s62, 2
        s_lshl_b32 s50, s50, 7
        s_and_b32 s97, s2, 3
        s_lshl_b32 s97, s97, 2
        s_add_u32 s97, s97, s50
        s_cmp_eq_u32 s{sW}, 0
        s_cselect_b32 s97, s97, {OOB}
        s_cselect_b32 s{sPROD}, 0, {OOB}
        """)
    def wfrag(q):
        return [f"ds_read_b64_tr_b16 {ar(WA+4*q+2*z,2)}, v{FW} offset:{1024*q+256*z}" for z in range(2)]
    def xfrag(q, off=0):
        return [f"v_xor_b32 v3, {32*q}, v{FX}", f"ds_read_b128 {vr(XF+8*q,4)}, v3 offset:{off}",
                f"ds_read_b128 {vr(XF+8*q+4,4)}, v3 offset:{off+8192}"]
    misc = [f"v_add_u32 v3, {ERING}, v{FU}", f"ds_read_b128 {vr(XR,4)}, v3", f"ds_read_b128 {vr(XR+4,4)}, v3 offset:8192",
            f"ds_read_b64_tr_b16 {vr(WCR+2,2)}, v{WCR} offset:256", f"ds_read_b64_tr_b16 {vr(WCR,2)}, v{WCR}"]
    def gm(q, rt, base=DA):
        d = vr(base + 16*rt, 16)
        return f"{MF} {d}, {ar(WA+4*q,4)}, {vr(XF+8*q+4*rt,4)}, {'0' if q == 0 else d}"
    RDY = 99
    ready_load = f"buffer_load_dword v{RDY}, off, s[28:31], s{sPROD} sc1"
    def ready_check(tag):
        a(f"""
        s_cmp_lg_u32 s{sW}, 0
        s_cbranch_scc1 K_{tag}
        s_mov_b32 s50, 0
        K_{tag}_spin:
        v_cmp_eq_u32 vcc, 0, v{RDY}
        s_cbranch_vccz K_{tag}
        {ready_load}
        s_add_u32 s50, s50, 1
        s_cmp_lt_u32 s50, 0x40000
        s_waitcnt vmcnt(0)
        s_cbranch_scc1 K_{tag}_spin
        K_{tag}:
        """)
    D1 = 4
    def conv(rt, addrs, base=DA, mul=None, off=lambda j: 0):
        o = []
        for j in range(4):
            b_ = base + 16*rt + 4*j
            if mul:
                o += [f"v_mul_f32 v{b_+i}, {mul}, v{b_+i}" for i in range(4)]
            o += [f"v_cvt_pk_bf16_f32 v{b_}, v{b_}, v{b_+1}", f"v_cvt_pk_bf16_f32 v{b_+1}, v{b_+2}, v{b_+3}",
                  f"ds_write_b64 v{addrs[j]}, {vr(b_,2)} offset:{off(j)}"]
        return o

    def lds_reset(prefill):
        a(f"""
        v_lshlrev_b32 v76, 2, v0
        v_and_b32 v76, 0x3ff, v76
        v_mov_b32 v77, 0
        ds_write_b32 v76, v77
        """)
        if prefill:
            a(f"""
            v_mov_b32 v76, {hex(DUMMY | (SB*AST) << 16)}
            v_mov_b32 v77, -1
            v_mov_b32 v78, v76
            v_mov_b32 v79, -1
            v_lshlrev_b32 v80, 4, v0
            """)
            for i in range(5):
                a(f"ds_write_b128 v80, v[76:79] offset:{LIST + 8192*i}")

    a(f"""
    s_or_b32 s50, s90, s2
    s_cmp_eq_u32 s50, {7*1024 + 8}
    s_cbranch_scc1 K_clr
    s_waitcnt lgkmcnt(0)
    s_mov_b32 s20, s52
    s_mov_b32 s21, s53
    """)
    emit(xdma(XP, SB*256) + xdma(ERING, 0))
    a("K_np1:")
    common(66)
    w1 = wdma()
    b = Asm()
    common2(b)
    b(f"""
    s_add_u32 s97, s97, {WS_FLG}
    """)
    priv = opt.get("stg", "priv") == "priv"
    if priv:
        b(f"""
        v_bfe_u32 v90, v2, 1, 2
        v_lshl_add_u32 v90, v90, 4, v93
        v_lshl_add_u32 v90, v89, 6, v90
        s_lshl_b32 s50, s{sW}, 11
        s_add_u32 s50, s50, {XP}
        v_add_u32 v{FS}, s50, v90
        v_bfe_u32 v90, v2, 3, 2
        v_xor_b32 v90, v90, v87
        v_lshl_add_u32 v90, v90, 4, s50
        v_lshl_add_u32 v{FR}, v86, 6, v90
        s_lshl_b32 s50, s{sTILE}, 7
        s_lshl_b32 s51, s{sSET}, 6
        s_add_u32 s50, s50, s51
        v_add_u32 v{FG}, s50, v{FG}
        """)
    else:
        b(f"""
    s_lshl_b32 s50, s{sTILE}, 3
    s_lshl_b32 s51, s{sSET}, 2
    s_add_u32 s50, s50, s51
    v_and_b32 v90, 7, v2
    v_xor_b32 v90, s50, v90
    v_lshl_add_u32 v90, v90, 4, v93
    v_lshl_add_u32 v{FS}, v89, 9, v90
    v_bfe_u32 v90, v0, 5, 3
    v_lshlrev_b32 v90, 4, v90
    v_xor_b32 v90, v90, v1
    v_add_u32 v{FR}, {XP}, v90
    v_add_u32 v{FS}, {XP}, v{FS}
        """)
    b(f"""
    v_xor_b32 v95, 16, v{FS}
    v_xor_b32 v96, 32, v{FS}
    v_xor_b32 v97, 48, v{FS}
    s_lshl_b32 s51, s60, 20
    s_mul_i32 s56, s61, {SB*512}
    s_add_u32 s51, s51, s56
    s_sub_u32 s56, s51, {SB*512}
    s_add_u32 s80, s4, s56
    s_addc_u32 s81, s5, 0
    s_mov_b32 s82, {SB*512}
    s_add_u32 s84, s4, s51
    s_addc_u32 s85, s5, 0
    s_mov_b32 s86, {SB*512}
    s_movk_i32 s56, 0
    s_movk_i32 s57, 8192
    s_movk_i32 s58, 16384
    s_movk_i32 s59, 24576
    s_cmp_eq_u32 s{sSET}, 0
    s_cselect_b32 s96, s94, 1.0
    """)
    nw = opt.get("wearly", 3)
    a("s_barrier")
    emit(w1[:3*nw])
    lds_reset(True)
    cut = [i for i, l in enumerate(b.l) if f"v{FX}," in l][0] + 1
    a.l += b.l[:cut]
    later = [x.strip() for x in b.l[cut:]]
    a(f"""
    s_or_b32 s50, s90, s2
    s_cmp_eq_u32 s50, {7*1024 + 8}
    s_cbranch_scc1 K_pub
    s_waitcnt vmcnt({nw})
    K_np2:
    s_barrier
    """)
    st(1)
    emit(xfrag(0, XP) + xfrag(1, XP) + xfrag(2, XP) + xfrag(3, XP))
    w2 = wdma()
    ahead = opt.get("ahead", 5)
    seq = [w1[3*q:3*q+3] for q in range(8)] + [wcdma + ["s_mov_b32 s24, s64", "s_mov_b32 s25, s65"]] + \
          [w2[3*q:3*q+3] for q in range(8)]
    sent = [nw]
    def send(n):
        o = []
        while sent[0] < min(n, len(seq)):
            o += seq[sent[0]]
            sent[0] += 1
        return o
    landed = lambda i: f"s_waitcnt vmcnt({sent[0] - 1 - i})"
    SA = [FS, 95, 96, 97]
    emit(send(ahead))
    emit([landed(0)] + wfrag(0) + [landed(1)] + wfrag(1))
    for q in range(8):
        a(f"s_waitcnt lgkmcnt({[2, 4, 4, 4, 4, 4, 4, 2][q]})")
        a(gm(q, 0, D1))
        emit(send(ahead + q + 1))
        if q == 4:
            a(f"v_add_u32 v{FX}, {ERING}, v{FX}")
        emit(xfrag(q + 4, XP) if q < 4 else xfrag(q - 4))
        if q < 6:
            emit([landed(q + 2)] + wfrag(q + 2))
        a(gm(q, 1, D1))
        n_ = -(-len(later) // (8 - q))
        while n_ < len(later) and ("cselect" in later[n_] or "addc" in later[n_]):
            n_ += 1
        emit(later[:n_])
        later = later[n_:]
    st(2)
    a(landed(8))
    stores = lambda srd: [f"buffer_store_dwordx4 {vr(SO+4*i,4)}, v{FG if priv else 1}, {srd}, s{56+i} offen {tst}" for i in range(4)]
    slots = [[] for _ in range(16)]
    slots[0] = xfrag(4) + xfrag(5)
    slots[1] = xfrag(6) + xfrag(7)
    slots[2] = list(misc)
    slot3 = [[] for _ in range(16)]
    s1, s2_ = stores("s[80:83]"), stores("s[84:87]")
    if priv:
        def cst(base):
            return conv(0, SA, base, "s96") + [f"ds_read_b128 {vr(SO+4*i,4)}, v{FR} offset:{1024*i}" for i in range(2)] + \
                   conv(1, SA, base, "s96") + [f"ds_read_b128 {vr(SO+8+4*i,4)}, v{FR} offset:{1024*i}" for i in range(2)]
        c1, c2 = cst(D1), cst(DA)
        for i in range(10):
            slots[3 + i] = c1[6*i:6*i+6]
            slot3[1 + i] = c2[6*i:6*i+6]
        slots[9] += ["s_waitcnt lgkmcnt(1)"] + s1[:2]
        slots[13] = ["s_waitcnt vmcnt(2)"] + wfrag(0) + wfrag(1) + wfrag(2) + wfrag(3)
        slots[14] = ["s_waitcnt lgkmcnt(8)"] + s1[2:]
        slots[15] = wfrag(4) + wfrag(5) + wfrag(6)
        slot3[0] = wfrag(7) + ["s_nop 1"]
        slot3[7] += ["s_waitcnt lgkmcnt(1)"] + s2_[:2]
        slot3[12] = ["s_waitcnt lgkmcnt(0)"] + s2_[2:]
        w8, mid, w83 = 6, "s_waitcnt lgkmcnt(6)", None
    else:
        B2 = SB * 512
        back = lambda o: [f"ds_read_b128 {vr(SO+4*i,4)}, v{FR} offset:{o + 8192*i}" for i in range(4)]
        c1 = conv(0, SA, D1, "s96") + conv(1, SA, D1, "s96", lambda j: 16384)
        c2 = conv(0, SA, DA, "s96", lambda j: B2) + conv(1, SA, DA, "s96", lambda j: B2 + 16384)
        for i in range(8):
            slots[3 + i] = c1[7*i:7*i+7]
            slot3[4 + i] = c2[7*i:7*i+7]
        slots[12] = ["s_waitcnt vmcnt(0)"] + wfrag(0) + wfrag(1) + wfrag(2) + wfrag(3)
        slots[13] = wfrag(4) + wfrag(5)
        slots[15] = wfrag(6)
        slot3[0] = back(0) + wfrag(7)
        slot3[3] = ["s_waitcnt lgkmcnt(0)"] + s1
        w8, mid, w83 = 5, "s_waitcnt lgkmcnt(2)\ns_barrier", None
    for q in range(8):
        slots[q] += send(sent[0] + 1)
    assert sent[0] == len(seq)
    a("s_waitcnt lgkmcnt(0)\ns_barrier")
    for i in range(16):
        if i == 8:
            a(f"s_waitcnt lgkmcnt({w8})")
        a(gm(i // 2, i % 2))
        emit(slots[i])
    st(3)
    slot3[0] = [ready_load] + slot3[0]
    a(mid)
    for i in range(16):
        a(gm(i // 2, i % 2, D1))
        emit(slot3[i])
    a("s_waitcnt vmcnt(4)")
    ready_check("rn")
    if not priv:
        a("s_waitcnt lgkmcnt(0)\ns_barrier")
        emit(back(B2))
        for i in range(4):
            emit([f"s_waitcnt lgkmcnt({3-i})", s2_[i]])
    a("s_barrier\nK_join:")
    st(4)
    def poll_issue(base, lanes):
        return [f"s_cmp_eq_u32 s{sW}, 0", f"s_cselect_b32 s50, {base}, s14"] + \
               [f"buffer_load_dwordx4 {vr(PL,4)}, v{lanes}, s[12:15], s50 offen sc1"]
    def poll_check(tag, base, lanes):
        a(f"""
        s_cmp_lg_u32 s{sW}, 0
        s_cbranch_scc1 K_{tag}_done
        s_mov_b32 s50, 0
        s_mov_b32 s51, {base}
        K_{tag}_spin:
        s_waitcnt vmcnt(0)
        v_and_b32 v{PL}, v{PL}, v{PL+1}
        v_and_b32 v{PL+2}, v{PL+2}, v{PL+3}
        v_and_b32 v{PL}, v{PL}, v{PL+2}
        v_cmp_ne_u32 vcc, 1, v{PL}
        s_cbranch_vccz K_{tag}_done
        s_add_u32 s50, s50, 1
        s_cmp_lt_u32 s50, 0x40000
        buffer_load_dwordx4 {vr(PL,4)}, v{lanes}, s[12:15], s51 offen sc1
        s_cbranch_scc1 K_{tag}_spin
        K_{tag}_done:
        """)
    def list_ptrs():
        a(f"""
        s_mul_i32 s50, s{sSET}, {LSET}
        s_add_u32 s50, s50, {LIST}
        v_and_b32 v84, 0x28, v2
        v_bfe_u32 v85, v2, 4, 1
        v_add_u32 v84, v84, v85
        v_lshl_add_u32 v{LI}, v84, 3, s50
        v_and_b32 v84, 12, v2
        v_and_b32 v86, 32, v2
        v_lshl_add_u32 v84, v84, 1, v86
        v_lshl_add_u32 v{LP}, v84, 3, s50
        v_and_b32 v84, 10, v2
        v_bfe_u32 v87, v2, 2, 1
        v_lshl_add_u32 v84, v84, 2, v87
        s_lshr_b32 s51, s{sTILE}, 1
        s_lshl_b32 s51, s51, 5
        s_add_u32 s50, s50, s51
        s_and_b32 s51, s{sTILE}, 1
        s_lshl_b32 s51, s51, 7
        s_add_u32 s50, s50, s51
        v_lshl_add_u32 v{LE}, v84, 3, s50
        """)
    PL = 68
    a(f"""
    v_lshlrev_b32 v{FS}, 7, v89
    v_lshrrev_b32 v95, 2, v0
    v_lshlrev_b32 v{SIDX}, 4, v87
    v_lshl_add_u32 v{SEG}, v95, 7, v{SIDX}
    v_mul_u32_u24 v92, {AST}, v89
    s_lshl_b32 s{sSTART}, s{sBIN}, 14
    s_add_u32 s{sSTART}, s{sSTART}, {WS_SLOT}
    s_cmp_lg_u32 s{sSET}, 0
    s_cbranch_scc1 K_uaddr
    v_cmp_gt_u32 s[72:73], {SB - 31}, v89
    s_lshl_b32 s51, s{sTILE}, 7
    s_add_u32 s51, s51, {ATAB}
    v_add3_u32 v52, v92, v93, s51
    s_cmp_lg_u32 s{sW}, 0
    s_cbranch_scc1 K_nopoll
    s_mov_b32 s50, {WS_FLG + 4096}
    buffer_load_dwordx4 {vr(PL,4)}, v{FS}, s[12:15], s50 offen sc1
    K_nopoll:
    """)
    for i in range(16):
        a(f"v_pk_mul_f32 {vr(D1+2*i,2)}, {vr(D1+2*i,2)}, s[94:95]")
    emit(conv(0, [52]*4, D1, None, lambda j: 16*j))
    a("s_mov_b64 exec, s[72:73]")
    emit(conv(1, [52]*4, D1, None, lambda j: 16*j + 32*AST))
    a(f"""
    s_mov_b64 exec, -1
    s_branch K_conv
    K_uaddr:
    v_and_b32 v45, 63, v95
    v_and_b32 v46, 31, v95
    v_lshlrev_b32 v47, 3, v87
    v_sub_u32 v46, v46, v47
    v_cmp_eq_u32 s[90:91], {SB}, v45
    v_mov_b32 v47, 64
    v_cmp_ge_u32 s[92:93], {SB}, v45
    v_cndmask_b32 v46, v46, v47, s[90:91]
    v_and_b32 v47, 1, v46
    v_lshlrev_b32 v47, 4, v47
    v_mov_b32 v48, 0x3f80
    v_lshlrev_b32 v47, v47, v48
    v_ashrrev_i32 v46, 1, v46
    v_cmp_eq_u32 s[64:65], 0, v46
    v_cmp_eq_u32 s[66:67], 1, v46
    v_cmp_eq_u32 s[68:69], 2, v46
    v_cmp_eq_u32 s[70:71], 3, v46
    v_cndmask_b32 v48, 0, v47, s[64:65]
    v_cndmask_b32 v49, 0, v47, s[66:67]
    v_cndmask_b32 v50, 0, v47, s[68:69]
    v_cndmask_b32 v51, 0, v47, s[70:71]
    v_mul_u32_u24 v46, {AST}, v45
    v_add_u32 v46, v46, v{SIDX}
    s_mov_b64 exec, s[92:93]
    """)
    for t in range(4):
        a(f"ds_write_b128 v46, v[48:51] offset:{ATAB+128*t+64}")
    a(f"""
    s_mov_b64 exec, -1
    v_bfe_u32 v52, v2, 1, 2
    v_lshl_add_u32 v52, v52, 4, v93
    v_lshl_add_u32 v52, v89, 6, v52
    v_add_u32 v52, s{sRING}, v52
    """)
    for j in range(1, 4):
        a(f"v_xor_b32 v{52+j}, {16*j}, v52")
    emit(conv(0, [52, 53, 54, 55], D1) + conv(1, [52, 53, 54, 55], D1, None, lambda j: 2048))
    a("K_conv:")
    st(5)
    def rec_loads(n=2):
        a(f"buffer_load_dwordx4 {vr(REC,4)}, v{SEG}, s[12:15], s{sSTART} offen sc1")
        if n == 2:
            a(f"buffer_load_dwordx4 {vr(REC+4,4)}, v{SEG}, s[12:15], s{sSTART} offen offset:64 sc1")
    poll_check("s", WS_FLG + 4096, FS)
    a("s_waitcnt vmcnt(0) lgkmcnt(0)\ns_barrier")
    rec_loads()
    a(f"""
    s_mov_b64 exec, 1
    buffer_store_dword v{ONE}, off, s[12:15], s97 sc1
    s_mov_b64 exec, -1
    """)
    st(6)
    PL = 164
    a(f"s_mov_b32 s51, 0xffff0000\nv_mul_u32_u24 v{PB}, {CH}, v95")
    for j in range(4):
        a(f"""
        v_lshlrev_b32 v20, 16, v{WCR+j}
        v_and_b32 v21, s51, v{WCR+j}
        v_pk_mul_f32 v[20:21], v[20:21], s[94:95]
        v_cvt_pk_bf16_f32 v{WC+j}, v20, v21
        """)
    a(f"""
    v_lshl_add_u32 v3, v88, 4, v92
    ds_read_b128 {vr(SEL0,4)}, v3 offset:{ATAB + 64}
    ds_read_b128 {vr(SEL1,4)}, v3 offset:{ATAB + 96}
    v_lshrrev_b32 v90, 3, v89
    v_and_b32 v96, 1, v89
    v_lshl_add_u32 v90, v90, 1, v96
    v_and_b32 v96, 4, v89
    v_lshl_add_u32 v90, v96, 1, v90
    v_mul_u32_u24 v90, {AST}, v90
    v_lshl_add_u32 v3, v88, 4, v90
    ds_read_b128 {vr(PIND,4)}, v3 offset:{ATAB + 64}
    s_lshl_b32 s50, s{sTILE}, 7
    s_add_u32 s51, s50, {ATAB}
    v_add_u32 v{TC}, s51, v91
    v_and_b32 v90, 7, v2
    v_xor_b32 v90, v90, v84
    v_lshl_add_u32 v{OF0}, v90, 4, s50
    v_xor_b32 v{OF1}, 64, v{OF0}
    v_bfe_u32 v90, v0, 2, 2
    v_lshlrev_b32 v90, 13, v90
    v_lshl_add_u32 v90, v94, 6, v90
    v_bfe_u32 v96, v0, 5, 2
    v_xor_b32 v96, v96, v87
    v_lshl_add_u32 v90, v96, 4, v90
    v_add_u32 v3, {RING + 32768}, v90
    ds_read_b128 {ar(AU,4)}, v3
    ds_read_b128 {ar(AU+4,4)}, v3 offset:2048
    v_bfe_u32 v90, v89, 1, 3
    v_xor_b32 v90, v90, v88
    v_lshlrev_b32 v90, 4, v90
    v_lshl_add_u32 v90, v89, 7, v90
    v_add_u32 v{RA[0]}, s{sRING}, v90
    """)
    list_ptrs()
    a(f"""
    v_xor_b32 v84, v85, v88
    v_lshlrev_b32 v84, 4, v84
    v_lshl_add_u32 v84, v89, 5, v84
    s_lshl_b32 s50, s{sSET}, 12
    s_add_u32 s50, s50, {ERING}
    v_add_u32 v{EA}, s50, v84
    s_lshl_b32 s51, s{sTILE}, 8
    s_add_u32 s{sEM0}, s50, s51
    s_lshr_b32 s51, s{sTILE}, 1
    v_xor_b32 v84, s51, v2
    v_and_b32 v84, 1, v84
    v_lshlrev_b32 v{EP+1}, 4, v84
    s_mov_b32 s16, s54
    s_or_b32 s17, s55, {hex(32 << 16)}
    s_mov_b32 s18, {opt.get('erows', E)}
    s_mov_b32 s19, 0x20000
    s_mov_b32 s{s512}, 512
    s_mov_b32 s{sMODE}, 0
    s_lshl_b32 s50, s60, 1
    s_lshl_b32 s{sLUT}, {hex(lut)}, {'s50' if rot else '0'}
    s_lshr_b32 s50, s{sLUT}, 16
    s_or_b32 s{sLUT}, s{sLUT}, s50
    """)

    def classes(ks, with_masks):
        a(f"s_mov_b32 s51, {63*16}")
        for k in ks:
            a(f"v_lshrrev_b32 v{CA+k}, 10, v{REC+k}")
            a(f"v_and_b32 v3, 14, v{CA+k}")
            a(f"v_and_b32 v{CA+k}, 0x3f0, v{CA+k}")
            a(f"v_bfe_u32 v3, s{sLUT}, v3, 2")
            a(f"v_lshl_or_b32 v{CA+k}, v3, 2, v{CA+k}")
            if with_masks:
                a(f"v_cmp_gt_u32 {sr(sM+2*k,2)}, s51, v{CA+k}")

    def sort(first):
        a(f"""
        v_mov_b32 v{T+1}, 8
        v_lshlrev_b32 v{T}, 4, v2
        """)
        if first:
            a("s_waitcnt vmcnt(1)")
            st(7)
        else:
            a(f"""
            v_mov_b32 v{T+2}, 0
            s_waitcnt vmcnt(0) lgkmcnt(0)
            s_barrier
            s_mov_b64 exec, s[56:57]
            ds_write_b32 v{T+2}, v{T+1} offset:{62*16}
            s_mov_b64 exec, -1
            """)
        classes(range(8), first)
        for k in range(8):
            a(f"s_mov_b64 exec, {sr(sM+2*k,2)}")
            a(f"ds_add_rtn_u32 v{RK+k}, v{CA+k}, v{T+1}")
        a("s_mov_b64 exec, -1")
        a(f"s_movk_i32 s50, {AST*4}")
        ent = []
        for k in range(8):
            e = EN + 2*k
            ent += [f"v_and_b32 v{e}, 0x3fff, v{REC+k}", f"v_and_b32 v{e+1}, 0xfc000, v{REC+k}",
                    f"v_mad_u32_u24 v{e}, v{e+1}, s50, v{e}", f"v_lshrrev_b32 v{e+1}, 20, v{REC+k}",
                    f"v_add_u32 v{e+1}, v{e+1}, v{PB}"]
        c, Z0, EA_, TB_, EB_ = T+4, T+8, T+9, T+10, T+11
        UA, UB, nA, nB, IA, IB, XA, XB, TA_, t0, t1 = T+12, T+13, T+14, T+15, T+16, T+17, T+18, T+19, T+20, T+2, T+3
        emit(ent[:20])
        a(f"""
        s_waitcnt lgkmcnt(0)
        s_barrier
        ds_read_b128 {vr(c,4)}, v{T}
        """)
        if first:
            st(8)
        emit(ent[20:])
        if first and opt.get("ewarm", 1):
            for k in range(8):
                a(f"""
                v_and_b32 v3, 12, v{CA+k}
                v_cmp_gt_u32 vcc, {4*opt.get("ewarm", 1)}, v3
                s_and_b64 exec, vcc, {sr(sM+2*k,2)}
                buffer_load_dword v{SLEN}, v{EN+2*k+1}, s[16:19], 0 idxen
                s_mov_b64 exec, -1
                """)
        a(f"""
        s_waitcnt lgkmcnt(0)
        v_readlane_b32 s{sMORE}, v{c}, 62
        v_writelane_b32 v{c}, 0, 62
        v_add_u32 v{t0}, v{c}, v{c+1}
        v_add_u32 v{t1}, v{t0}, v{c+2}
        v_lshl_or_b32 v{EA_}, v{t0}, 16, v{c}
        v_add_u32 v{t0}, v{t1}, v{c+3}
        v_lshl_or_b32 v{EB_}, v{t0}, 16, v{t1}
        v_add_u32 v{UA}, 0x001f001f, v{EA_}
        v_add_u32 v{UB}, 0x001f001f, v{EB_}
        v_and_b32 v{UA}, 0xffe0ffe0, v{UA}
        v_and_b32 v{UB}, 0xffe0ffe0, v{UB}
        v_lshlrev_b32 v{t0}, 16, v{UA}
        v_alignbit_b32 v{t1}, v{UB}, v{UA}, 16
        v_sub_u32 v{IA}, v{UA}, v{t0}
        v_sub_u32 v{IB}, v{UB}, v{t1}
        v_sub_u32 v{nA}, v{UA}, v{t0}
        """)
        steps = [("row_shr:1", "0xf"), ("row_shr:2", "0xf"), ("row_shr:4", "0xf"), ("row_shr:8", "0xf"),
                 ("row_bcast:15", "0xa"), ("row_bcast:31", "0xc")]
        extra = [f"v_sub_u32 v{nB}, v{UB}, v{t1}", f"v_sub_u32 v{EA_}, v{UA}, v{EA_}", f"v_sub_u32 v{EB_}, v{UB}, v{EB_}",
                 f"v_alignbit_b32 v{TB_}, v{EB_}, v{EA_}, 16", f"v_mov_b32 v{Z0}, 0",
                 f"ds_write_b128 v{T}, {vr(Z0,4)} offset:{TW1}"]
        for i, (ctl, m_) in enumerate(steps):
            for r in (IA, IB):
                a(f"v_add_u32_dpp v{r}, v{r}, v{r} {ctl} row_mask:{m_} bank_mask:0xf")
            a(extra[i])
        if first:
            emit(poll_issue(WS_FLG, FS))
            a(f"""
            v_add_u32 v{t0}, v{IA}, v{IB}
            v_add_u32_sdwa v{t0}, v{t0}, v{t0} {SDW} src0_sel:WORD_0 src1_sel:WORD_1
            v_lshrrev_b32 v{t1}, 16, v{UB}
            v_readlane_b32 s50, v{t0}, 63
            v_lshlrev_b32 v{t0}, 1, v{t0}
            v_sub_u32 v{t0}, v{t0}, v{t1}
            v_cmp_ge_u32 vcc, s50, v{t0}
            """)
        a(f"""
        v_sub_u32 v{XA}, v{IA}, v{nA}
        v_sub_u32 v{XB}, v{IB}, v{nB}
        v_readlane_b32 s56, v{IA}, 63
        v_readlane_b32 s57, v{IB}, 63
        """)
        if first:
            a(f"""
            s_bcnt1_i32_b64 s50, vcc
            s_max_u32 s50, s50, 17
            s_min_u32 s{sVS}, s50, 32
            """)
        a(f"""
        v_readlane_b32 s58, v{XA}, s{sVS}
        v_readlane_b32 s59, v{XB}, s{sVS}
        v_cmp_gt_u32 vcc, s{sVS}, v2
        v_lshlrev_b32 v{TA_}, 16, v{EA_}
        v_add_u32 v{XA}, {hex(LIST * 0x10001)}, v{XA}
        v_add_u32 v{XB}, {hex(LIST * 0x10001)}, v{XB}
        s_sub_u32 s56, s56, s58
        s_sub_u32 s57, s57, s59
        s_mul_i32 s84, s58, 0x10001
        s_mul_i32 s85, s56, 0x10001
        s_pack_hh_b32_b16 s84, s84, s84
        s_pack_hh_b32_b16 s85, s85, s85
        s_mul_i32 s86, s59, 0x10001
        s_mul_i32 s88, s57, 0x10001
        s_add_u32 s86, s86, s84
        s_add_u32 s88, s88, s85
        s_lshl_b32 s80, s58, 16
        s_sub_u32 s81, s86, s59
        s_lshl_b32 s82, s56, 16
        s_sub_u32 s58, {hex(LSET * 0x10001)}, s58
        s_sub_u32 s89, s88, s57
        s_sub_u32 s59, {hex(LSET * 0x10001)}, s59
        s_add_u32 s82, s82, s58
        s_add_u32 s89, s89, s59
        v_add_u32 v{t0}, s80, v{XA}
        v_add_u32 v{t1}, s81, v{XB}
        v_add_u32 v{XA}, s82, v{XA}
        v_add_u32 v{XB}, s89, v{XB}
        v_cndmask_b32 v{XA}, v{XA}, v{t0}, vcc
        v_cndmask_b32 v{XB}, v{XB}, v{t1}, vcc
        v_cmp_lt_u32 vcc, 0xffff, v{nA}
        v_add_u32 v{IA}, v{XA}, v{nA}
        v_add_u32 v{IB}, v{XB}, v{nB}
        v_cndmask_b32_sdwa v{t0}, v{IA}, v{IA}, vcc {SDW} src0_sel:WORD_0 src1_sel:WORD_1
        v_and_b32 v{nB}, 0xffff, v{nB}
        v_cmp_lt_u32 vcc, 0, v{nB}
        v_sub_u32 v{c}, v{XA}, v{TA_}
        v_sub_u32 v{XB}, v{XB}, v{TB_}
        v_cndmask_b32 v{t1}, v{t0}, v{IB}, vcc
        v_sub_u32 v{IA}, v{IA}, v{EA_}
        v_alignbit_b32 v{c+1}, v{IA}, v{c}, 16
        v_sub_u32 v{t0}, v{t0}, v{TB_}
        v_sub_u32 v{t1}, v{t1}, v{EB_}
        s_movk_i32 s51, {TRASH}
        v_and_b32 v{c+2}, 0xffff, v{XB}
        v_lshl_or_b32 v{c+2}, v{t0}, 16, v{c+2}
        v_alignbit_b32 v{c+3}, v{t1}, v{XB}, 16
        v_writelane_b32 v{c}, s51, 62
        ds_write_b128 v{T}, {vr(c,4)} offset:{TW0}
        """)
        for k in range(8):
            a(f"ds_read2st64_b32 {vr(BB+2*k,2)}, v{CA+k} offset0:{TW0//256} offset1:{TW1//256}")
        a(f"""
        s_max_u32 s50, s86, s88
        s_lshr_b32 s50, s50, 16
        s_cmp_le_u32 s50, {LIMIT}
        s_cbranch_scc0 K_over
        s_add_u32 s50, s50, 511
        s_lshr_b32 s50, s50, 9
        s_max_u32 s{sS}, s50, 1
        """)
        for k0 in (0, 4):
            a(f"s_waitcnt lgkmcnt({4 - k0})")
            for k in range(k0, k0 + 4):
                a(f"v_cmp_lt_u32_sdwa {sr(80+2*(k % 4),2)}, v{RK+k}, v{BB+2*k+1} src0_sel:DWORD src1_sel:WORD_0")
                a(f"v_lshrrev_b32 v{BB+2*k+1}, 16, v{BB+2*k}")
            for k in range(k0, k0 + 4):
                a(f"v_cndmask_b32 v{BB+2*k}, v{BB+2*k}, v{BB+2*k+1}, {sr(80+2*(k % 4),2)}")
                a(f"v_add_u32_sdwa v{RK+k}, v{RK+k}, v{BB+2*k} {SDW} src0_sel:DWORD src1_sel:WORD_0")
        for k in range(8):
            a(f"s_mov_b64 exec, {sr(sM+2*k,2)}")
            a(f"ds_write_b64 v{RK+k}, {vr(EN+2*k,2)}")
        a("s_mov_b64 exec, -1")

    def idx_reads(blk, sub):
        o = 128*blk + 4*sub
        return [f"ds_read2_b32 {vr(IX,2)}, v{LI} offset0:{o} offset1:{o+32}",
                f"ds_read2_b32 {vr(IX+2,2)}, v{LI} offset0:{o+8} offset1:{o+40}"]
    def dma(slot):
        o = []
        for t in range(4):
            o.append(f"s_add_u32 m0, s{sRING}, {4096*slot + 1024*t}")
            o.append(f"v_mad_u32_u16 v{IX+t}, v{IX+t}, s{s512}, v{OF1 if t % 2 else OF0}")
            o.append(f"buffer_load_dwordx4 v{IX+t}, s[12:15], 0 offen {tfl} lds")
        return o
    def edma(step):
        return [f"s_add_u32 m0, s{sEM0}, {1024*(step % 4)}", "s_mov_b64 exec, 0xffff",
                f"buffer_load_dwordx4 {vr(EP,2)}, s[16:19], 0 idxen offen {opt.get('eflag','')} lds", "s_mov_b64 exec, -1"]
    def eid_read(step, dst=None):
        return [f"ds_read_b32 v{dst or EP}, v{LE} offset:{512*(step // 2) + 16*(step % 2) + 4}"]
    def pn_read(blk):
        return [f"ds_read2_b32 {vr(TA0,2)}, v{LP} offset0:{128*blk} offset1:{128*blk+8}"]
    ta = [f"v_add_u32_sdwa v{x}, v{x}, v{TC} {SDW} src0_sel:WORD_1 src1_sel:DWORD" for x in (TA0, TA1)]
    def reads(step):
        s = step % 2
        o = [f"ds_read_b128 {vr(OE,4)}, v{EA} offset:{1024*(step % 4)}"]
        o += [f"ds_read_b128 {vr(r,4)}, v{RA[i]} offset:{4096*s}" for i, r in enumerate((OB0, OB1, OH0, OH1))]
        return o
    def tr_reads(blk):
        i = IND[blk % 2]
        return [f"ds_read_b64_tr_b16 {vr(OA,2)}, v{TA0}", f"ds_read_b64_tr_b16 {vr(OA+2,2)}, v{TA1}",
                f"ds_read_b64_tr_b16 {vr(i,2)}, v{TA0} offset:64", f"ds_read_b64_tr_b16 {vr(i+2,2)}, v{TA1} offset:64"]
    mct = f"{MF} {vr(CT,16)}, {vr(PIND,4)}, {vr(OA,4)}, {vr(CI,16)}"
    def mf_g(g):
        d = vr(g, 16)
        return [f"{MF} {d}, {vr(OE,4)}, {vr(WC,4)}, {vr(CT,16)}",
                f"{MF} {d}, {vr(OB0,4)}, {vr(SEL0,4)}, {d}",
                f"{MF} {d}, {vr(OB1,4)}, {vr(SEL1,4)}, {d}"]
    mf_h = [f"{MF} {vr(H,16)}, {vr(OH0,4)}, {vr(SEL0,4)}, 0",
            f"{MF} {vr(H,16)}, {vr(OH1,4)}, {vr(SEL1,4)}, {vr(H,16)}"]
    def mf_red(i):
        return [f"{MF} {ar(ACD,16)}, {vr(IND[i],4)}, {vr(BD,4)}, {ar(ACD,16)}",
                f"{MF} {ar(ACN,16)}, {vr(IND[i],4)}, {vr(BN,4)}, {ar(ACN,16)}"]
    cvts = [f"v_cvt_pk_bf16_f32 v{BD+j}, v{AS+2*j}, v{AS+2*j+1}" for j in range(4)] + \
           [f"v_cvt_pk_bf16_f32 v{BN+j}, v{AM+2*j}, v{AM+2*j+1}" for j in range(4)]
    def pk(op, d, *s):
        return f"v_pk_{op}_f32 {vr(d,2)}, " + ", ".join(x if isinstance(x, str) else vr(x, 2) for x in s)
    def pk2(k):
        g = G[k % 2]
        o = []
        for dst, src in ((AS, SS), (AM, MM)):
            for j in range(4):
                if k % 2 == 0:
                    o.append(pk("mul", dst+2*j, src+2*j, g+4*j))
                else:
                    o.append(pk("fma", dst+2*j, src+2*j, g+4*j, dst+2*j))
        return o
    def load_seg(u):
        o = eid_read(u + 4) + idx_reads(*[(1, 1), (0, 0), (0, 1), (1, 0)][u])
        o += pn_read(u // 2) if u % 2 == 0 else tr_reads((u + 1) // 2)
        o += ["s_waitcnt vmcnt(5)"] + reads(u + 1)
        adv = {0: LI, 2: LP, 3: LE}.get(u)
        if adv:
            o += [f"v_add_u32 v{adv}, 0x400, v{adv}"]
        o += ["s_waitcnt lgkmcnt(5)"] + edma(u) + ["s_waitcnt lgkmcnt(0)"] + dma((u + 1) % 2)
        if u % 2 == 0:
            o += ta
        else:
            o += [f"s_add_u32 s{sK}, s{sK}, 1", f"s_cmp_ge_u32 s{sK}, s{sS}"]
        return o + ["s_setprio 0", "s_barrier"]
    def comp_seg(u, first=False):
        g, gn = G[u % 2], G[(u + 1) % 2]
        ex = [f"v_exp_f32 v{g+r}, v{g+r} clamp" for r in range(16)]
        mg = mf_g(gn)
        if first:
            o = [mg[0]] + ex[:3] + [mg[1]] + ex[3:6] + [mg[2]] + ex[6:]
        elif u % 2 == 0:
            mr = mf_red((u // 2 - 1) % 2)
            o = pk2(u - 1) + [mg[0]] + cvts[:6] + [mg[1]] + cvts[6:] + ex[:2] + [mg[2]] + ex[2:5] + \
                [mr[0]] + ex[5:8] + [mr[1]] + ex[8:]
        else:
            o = pk2(u - 1) + [mct] + ex[:3] + [mg[0]] + ex[3:6] + [mg[1]] + ex[6:9] + [mg[2]] + ex[9:]
        for j in range(4):
            b_ = g + 4*j
            o += [pk("add", b_, b_, sr(sCC, 2)), pk("add", b_+2, b_+2, sr(sCC, 2))]
        for j in range(4):
            b_, hh = g + 4*j, H + 4*j
            o += [pk("mul", MM+2*j, hh, b_+2), pk("add", SS+2*j, b_, b_+2), pk("fma", MM+2*j, hh+2, b_, MM+2*j), pk("mul", b_, b_, b_+2)]
        rc = [f"v_rcp_f32 v{g+4*j+i}, v{g+4*j+i}" for j in range(4) for i in range(2)]
        o += [mf_h[0]] + rc[:3] + [mf_h[1]] + rc[3:]
        pos = len(o) - opt.get("bpos", 2)
        return o[:pos] + ["s_setprio 1", "s_barrier"] + o[pos:]

    def fill_a():
        emit(eid_read(0) + eid_read(1, 1) + idx_reads(0, 0) + pn_read(0))
        a("s_waitcnt lgkmcnt(0)")
        emit(edma(0) + [f"v_mov_b32 v{EP}, v1"] + edma(1) + dma(0))
        emit(eid_read(2) + idx_reads(0, 1) + ta)
    def fill_b():
        a("s_waitcnt lgkmcnt(0)")
        emit(edma(2) + dma(1) + eid_read(3) + idx_reads(1, 0))
        a(f"v_add_u32 v{LP}, 0x200, v{LP}\ns_mov_b32 s{sK}, 0")
    sort(True)
    a("K_sorted:")
    poll_check("t", WS_FLG, FS)
    a("s_waitcnt lgkmcnt(0)\ns_barrier")
    st(9)
    fill_a()
    st(13)
    m48 = (f32(-float(SHIFT)) >> 16) * 0x10001
    for i in range(4):
        a(f"v_mov_b32 v{68+i}, {hex(m48)}\nv_mov_b32 v{72+i}, 0")
    a(f"""
    v_xor_b32 v{RA[1]}, 32, v{RA[0]}
    v_xor_b32 v{RA[2]}, 64, v{RA[0]}
    v_xor_b32 v{RA[3]}, 0x60, v{RA[0]}
    {MF} {vr(CI,16)}, {vr(PIND,4)}, v[68:71], 0
    s_sub_u32 s51, {N*256}, s{sXO}
    s_min_u32 s34, s51, {SB*256}
    s_add_u32 s32, s10, s{sXO}
    s_addc_u32 s33, s11, 0
    {MF} {ar(ACD,16)}, v[72:75], v[72:75], 0
    s_mov_b32 s{sCC}, {hex(f32(2.0**-SHIFT))}
    s_mov_b32 s{sCC+1}, {hex(f32(2.0**-SHIFT))}
    {MF} {ar(ACN,16)}, v[72:75], v[72:75], 0
    K_fillb:
    """)
    emit(tr_reads(0))
    fill_b()
    a(f"{mct}\ns_waitcnt lgkmcnt(0)")
    st(14)
    a("s_waitcnt vmcnt(5)\ns_barrier")
    emit(reads(0) + edma(3))
    a("s_waitcnt lgkmcnt(0)")
    d0 = dma(0)
    mm = mf_g(G[0]) + mf_h
    for t in range(4):
        emit([mm[t]] + d0[3*t:3*t+3])
    a(mm[4])
    st(10)
    a(f"""
    s_cmp_eq_u32 s{sSET}, 0
    s_barrier
    s_cbranch_scc1 K_lead
    s_barrier
    s_setprio 1
    K_lead:
    """)
    emit(load_seg(0) + comp_seg(0, first=True))
    a("s_branch K_loop1")
    a.l.append(".p2align 6")
    a("K_loop:")
    for u in range(4):
        if u == 1:
            a("K_loop1:")
        emit(load_seg(u) + comp_seg(u))
        if u == 1:
            a("s_cbranch_scc1 K_drain0")
        if u == 3:
            a("s_cbranch_scc0 K_loop")
    a("s_branch K_drain\nK_drain0:")
    emit([f"v_mov_b32 v{IND[1]+j}, v{IND[0]+j}" for j in range(4)])
    a(f"""
    K_drain:
    s_setprio 0
    s_cmp_lg_u32 s{sSET}, 0
    s_cbranch_scc1 K_done
    s_barrier
    K_done:
    """)
    emit(pk2(1) + cvts + ["s_nop 1"] + mf_red(1))
    st(11)
    a(f"""
    s_cmp_lg_u32 s{sMORE}, 0
    s_cbranch_scc1 K_again
    v_lshrrev_b32 v40, 5, v2
    v_and_b32 v41, 31, v2
    v_lshlrev_b32 v42, 2, v41
    v_lshl_add_u32 v42, v40, 9, v42
    v_add_u32 v42, s{sRING}, v42
    v_lshrrev_b32 v44, 4, v0
    v_bfe_u32 v45, v0, 2, 2
    v_lshlrev_b32 v45, 13, v45
    v_lshl_add_u32 v45, v44, 7, v45
    v_and_b32 v46, 3, v0
    v_lshl_add_u32 v45, v46, 5, v45
    v_add_u32 v45, {RING}, v45
    v_add_u32 v46, 0x8000, v45
    v_cmp_gt_u32 vcc, s{sVS}, v44
    v_lshlrev_b32 v43, 4, v0
    s_mov_b32 s50, {hex(f32(1e-6 * 2.0**SHIFT))}
    v_cndmask_b32 v45, v46, v45, vcc
    """)
    for r in range(16):
        a(f"v_accvgpr_read_b32 v{48+r}, a{ACD+r}")
    for r in range(16):
        a(f"v_add_f32 v{48+r}, s50, v{48+r}")
    for r in range(16):
        a(f"v_rcp_f32 v{48+r}, v{48+r}")
        a(f"v_accvgpr_read_b32 v{64+r}, a{ACN+r}")
    a("s_waitcnt vmcnt(0)")
    for r in range(16):
        a(f"v_mul_f32 v{48+r}, v{48+r}, v{64+r}")
        a(f"ds_write_b32 v42, v{48+r} offset:{128*(8*(r//4) + r % 4)}")
    a("s_mov_b32 s50, 0xffff0000\ns_mov_b32 s51, 8192")
    for i in range(2):
        for j in range(4):
            x = XR + 4*i + j
            a(f"v_lshlrev_b32 v{64+8*i+2*j}, 16, v{x}")
            a(f"v_and_b32 v{64+8*i+2*j+1}, s50, v{x}")
            a(f"v_accvgpr_read_b32 v{x}, a{AU+4*i+j}")
            a(f"v_lshlrev_b32 v{96+8*i+2*j}, 16, v{x}")
            a(f"v_and_b32 v{96+8*i+2*j+1}, s50, v{x}")
    a("""
    s_waitcnt lgkmcnt(0)
    s_barrier
    ds_read_b128 v[48:51], v45
    ds_read_b128 v[52:55], v45 offset:16
    ds_read_b128 v[56:59], v46
    ds_read_b128 v[60:63], v46 offset:16
    """)
    for i in range(2):
        a(f"s_waitcnt lgkmcnt({2-2*i})")
        for j in range(8):
            a(f"v_add_f32 v{48+8*i+j}, v{48+8*i+j}, v{96+8*i+j}")
        for j in range(8):
            a(f"v_max_f32 v{48+8*i+j}, 0, v{48+8*i+j}")
        for j in range(8):
            a(f"v_add_f32 v{48+8*i+j}, v{48+8*i+j}, v{64+8*i+j}")
        for j in range(4):
            a(f"v_cvt_pk_bf16_f32 v{80+4*i+j}, v{48+8*i+2*j}, v{48+8*i+2*j+1}")
        a(f"buffer_store_dwordx4 {vr(80+4*i,4)}, v43, s[32:35], {'s51' if i else '0'} offen {opt.get('ost','nt')}")
    if st.on:
        a("s_waitcnt vmcnt(0)")
        a(f"s_lshl_b32 s50, s{sS}, 1")
        a("v_writelane_b32 v205, s50, 15")
    st(12)
    st.flush()
    a("K_end:\ns_endpgm")
    a(f"""
    K_clr:
    s_waitcnt lgkmcnt(0)
    s_mov_b32 s20, s52
    s_mov_b32 s21, s53
    s_mov_b32 s12, s78
    s_mov_b32 s13, s79
    s_mov_b32 s14, {WS_END}
    s_mov_b32 s15, 0x20000
    s_mov_b32 s28, s76
    s_mov_b32 s29, s77
    s_movk_i32 s30, 256
    s_mov_b32 s31, 0x20000
    v_mov_b32 v8, 0
    v_mov_b32 v9, 0
    v_mov_b32 v10, 0
    v_mov_b32 v11, 0
    v_lshlrev_b32 v4, 7, v2
    s_mov_b32 s50, {WS_FLG}
    buffer_store_dwordx4 v[8:11], v4, s[12:15], s50 offen sc1
    """)
    emit(xdma(XP, SB*256) + xdma(ERING, 0))
    a(f"""
    v_and_b32 v12, 4, v2
    v_cmp_eq_u32 vcc, 0, v12
    v_mov_b32 v13, 0x71807180
    v_and_b32 v5, 0x1f0, v1
    v_cndmask_b32 v12, 0, v13, vcc
    v_mov_b32 v13, v12
    v_mov_b32 v14, v12
    v_mov_b32 v15, v12
    s_mov_b32 s50, {DUMMY*512}
    buffer_store_dwordx4 v[12:15], v5, s[12:15], s50 offen sc1
    s_branch K_np1
    K_pub:
    s_mov_b64 exec, 1
    s_waitcnt vmcnt({5 + nw})
    buffer_store_dword v{ONE}, off, s[28:31], 0 sc1
    s_mov_b64 exec, -1
    s_waitcnt vmcnt({nw + 1})
    s_branch K_np2
    """)
    a(f"""
    K_prod:
    """)
    a(f"""
    s_mov_b32 s20, s52
    s_mov_b32 s21, s53
    v_lshlrev_b32 v4, 2, v0
    v_mov_b32 v62, 0
    ds_write_b32 v4, v62
    v_mov_b32 v40, -1
    v_mov_b32 v41, -1
    v_mov_b32 v42, -1
    v_mov_b32 v43, -1
    """)
    for i in range(4):
        a(f"ds_write_b128 v1, v[40:43] offset:{IMG + 8192*i}")
    wm = opt.get("warm", 1)
    if wm:
        a(f"""
        s_getpc_b64 s[96:97]
        K_pc:
        s_sub_u32 s96, s96, K_pc-K_np1
        s_subb_u32 s97, s97, 0
        s_mov_b32 s92, K_codeend-K_np1-4
        s_cmp_eq_u32 s{sW}, 0
        s_cselect_b64 s[96:97], s[66:67], s[96:97]
        s_cmp_eq_u32 s{sW}, 1
        s_cselect_b64 s[96:97], s[72:73], s[96:97]
        s_cmp_eq_u32 s{sW}, 2
        s_cselect_b64 s[96:97], s[64:65], s[96:97]
        s_cmp_eq_u32 s{sW}, 3
        s_cselect_b64 s[96:97], s[70:71], s[96:97]
        s_cmp_lt_u32 s{sW}, 4
        s_cselect_b32 s92, 32764, s92
        s_lshr_b32 s93, s2, 4
        s_lshl_b32 s93, s93, 11
        v_lshl_add_u32 v4, v85, 7, s93
        v_min_u32 v4, s92, v4
        s_mov_b64 exec, 0xffff
        global_load_dword v60, v4, s[96:97]
        s_mov_b64 exec, -1
        """)
    common(64)
    a("s_waitcnt lgkmcnt(0)\ns_barrier")
    emit(xdma(ERING, 0))
    common2(a)
    emit(wcdma)
    a(f"""
    s_sub_u32 s90, s82, s88
    v_add_u32 v4, 8192, v1
    v_cmp_gt_u32 s[92:93], s90, v4
    s_lshl_b32 s56, s62, 7
    s_add_u32 s56, s56, {WS_SLOT}
    s_add_u32 s57, s56, {1 << 20}
    s_add_u32 s58, s56, {2 << 20}
    s_add_u32 s59, s56, {3 << 20}
    v_lshrrev_b32 v5, 3, v0
    v_and_b32 v61, 0x70, v1
    v_lshl_add_u32 v61, v5, 14, v61
    s_mov_b32 s91, {-SB & 0xffffffff}
    s_mov_b32 s96, {2048 - RG}
    v_mov_b32 v6, 4
    v_lshlrev_b32 v7, 22, v0
    v_mov_b32 v36, 0
    v_mov_b32 v37, 0
    v_mov_b32 v38, 0
    v_mov_b32 v39, 0
    v_add_u32 v{FX}, {ERING}, v{FX}
    """)
    for k in range(8):
        a(f"v_add_u32 v{68+k}, {hex(((2048*(k//4) + k % 4) << 20) & 0xffffffff)}, v7")
    for g in range(2):
        a(f"s_waitcnt vmcnt({6 - g + wm})")
        if g == 0:
            st(1)
        for j in range(4):
            d, t = 8 + 4*g + j, 24 + 4*g + j
            a(f"v_mul_u32_u24 v{44+4*g+j}, 21400, v{d}")
            a(f"v_lshrrev_b32 v{44+4*g+j}, 20, v{44+4*g+j}")
            a(f"v_lshlrev_b32 v{t}, 2, v{44+4*g+j}")
        if g:
            a("s_mov_b64 exec, s[92:93]")
        for j in range(4):
            a(f"ds_add_rtn_u32 v{32+4*g+j}, v{24+4*g+j}, v6")
    a(f"s_mov_b64 exec, -1\ns_waitcnt vmcnt({3 + wm})")
    wp = wdma()
    for k in range(8):
        s_, d = 16 + k, 8 + k
        a(f"v_mad_i32_i24 v{d}, v{44+k}, s91, v{d}")
        a(f"v_mul_u32_u24 v4, 21400, v{s_}")
        a(f"v_lshl_or_b32 v{d}, v{d}, 14, v{68+k}")
        a(f"v_lshrrev_b32 v4, 25, v4")
        a(f"v_mad_u32_u24 v{s_}, v4, s96, v{s_}")
        a(f"v_or_b32 v{s_}, v{d}, v{s_}")
    a("s_waitcnt lgkmcnt(0)")
    for k in range(8):
        if k == 4:
            a("s_mov_b64 exec, s[92:93]")
        a(f"v_add_u32 v4, v{32+k}, v{24+k}")
        a(f"v_and_b32 v4, 0x7f, v4")
        a(f"v_lshl_add_u32 v{44+k}, v{24+k}, 5, v4")
        a(f"ds_write_b32 v{44+k}, v{16+k} offset:{IMG}")
    a(f"""
    s_mov_b64 exec, -1
    v_or3_b32 v4, v32, v33, v34
    v_or3_b32 v5, v35, v36, v37
    v_or3_b32 v4, v4, v38, v39
    v_or_b32 v4, v4, v5
    v_cmp_lt_u32 vcc, 0x7f, v4
    s_mov_b64 exec, vcc
    ds_write_b32 v62, v6 offset:1024
    s_mov_b64 exec, -1
    s_waitcnt vmcnt(0) lgkmcnt(0)
    s_barrier
    ds_read_b32 v4, v62 offset:1024
    """)
    OUTR = [8, 12, 68, 72]
    def img_reads():
        for i in range(4):
            a(f"ds_read_b128 {vr(OUTR[i],4)}, v1 offset:{IMG + 8192*i}")
    img_reads()
    a(f"""
    {ready_load}
    s_waitcnt lgkmcnt(4)
    v_readfirstlane_b32 s50, v4
    s_cmp_lg_u32 s50, 0
    s_cbranch_scc1 K_slow
    K_out:
    """)
    for i in range(4):
        a(f"s_waitcnt lgkmcnt({3-i})")
        a(f"buffer_store_dwordx4 {vr(OUTR[i],4)}, v61, s[12:15], s{56+i} offen sc1")
    st(2)
    for q in range(8):
        emit(xfrag(q))
    emit(misc + wp[:12])
    a(f"s_add_u32 s96, s97, {WS_FLG + 4096}\ns_mov_b32 s97, {OOB}\ns_waitcnt vmcnt(4) lgkmcnt(0)")
    ready_check("rp")
    a(f"""
    s_mov_b64 exec, 1
    s_barrier
    buffer_store_dword v{ONE}, off, s[12:15], s96 sc1
    s_mov_b64 exec, -1
    """)
    st(3)
    emit(wp[12:])
    lds_reset(True)
    emit(["s_waitcnt vmcnt(5)"] + wfrag(0) + wfrag(1) + wfrag(2) + wfrag(3))
    for q in range(8):
        if q == 2:
            emit(["s_waitcnt vmcnt(0)"] + wfrag(4) + wfrag(5) + wfrag(6) + wfrag(7))
        a(f"s_waitcnt lgkmcnt({6 - 2*q if q < 2 else 14 - 2*q})")
        emit([gm(q, 0, D1), gm(q, 1, D1)])
    a("s_branch K_join")


    a("""
    K_slow:
    v_lshlrev_b32 v5, 4, v2
    s_waitcnt lgkmcnt(0)
    ds_read_b128 v[8:11], v5
    s_waitcnt lgkmcnt(0)
    v_add_u32 v13, v8, v9
    v_add_u32 v14, v13, v10
    v_add_u32 v15, v14, v11
    v_mov_b32 v4, v15
    """)
    scan64(a, [4])
    a("""
    v_sub_u32 v40, v4, v15
    v_add_u32 v41, v40, v8
    v_add_u32 v42, v40, v13
    v_add_u32 v43, v40, v14
    ds_write_b128 v5, v[40:43] offset:2048
    """)
    for k in range(8):
        a(f"ds_read_b32 v{24+k}, v{24+k} offset:2048")
    a("s_waitcnt lgkmcnt(0)")
    for k in range(8):
        a(f"s_mov_b64 exec, {'s[92:93]' if k >= 4 else '-1'}")
        a(f"v_add_u32 v{24+k}, v{24+k}, v{32+k}")
        a(f"ds_write_b32 v{24+k}, v{16+k} offset:{STG}")
        a(f"v_cmp_gt_u32 vcc, 0x80, v{32+k}")
        a("s_mov_b64 exec, vcc")
        a(f"ds_write_b32 v{44+k}, v{16+k} offset:{IMG}")
    a(f"""
    s_mov_b64 exec, -1
    s_waitcnt lgkmcnt(0)
    s_barrier
    v_lshlrev_b32 v16, 4, v5
    v_and_b32 v16, {0x3800 if rot else 0}, v16
    v_or_b32 v16, {62 << 14}, v16
    """)
    for j in range(4):
        a(f"""
        v_add_u32 v12, {4*j}, v5
        v_add_u32 v13, 124, v12
        v_and_b32 v13, 0x7f, v13
        v_lshl_add_u32 v13, v12, 5, v13
        v_add_u32 v14, 120, v{40+j}
        v_lshl_or_b32 v14, v14, 18, v16
        v_add_u32 v15, -124, v{8+j}
        v_cmp_lt_u32 vcc, 0x80, v{8+j}
        s_mov_b64 exec, vcc
        ds_write_b32 v13, v14 offset:{IMG}
        ds_write_b32 v{40+j}, v15 offset:{STG + 120}
        s_mov_b64 exec, -1
        """)
    a(f"""
    ds_read_b128 v[16:19], v1 offset:{STG}
    ds_read_b128 v[20:23], v1 offset:{STG + 8192}
    s_add_u32 s50, s88, {WS_REC}
    s_add_u32 s80, s4, s50
    s_addc_u32 s81, s5, 0
    s_mov_b32 s82, s90
    s_movk_i32 s50, 8192
    s_waitcnt lgkmcnt(0)
    buffer_store_dwordx4 v[16:19], v1, s[80:83], 0 offen sc1
    buffer_store_dwordx4 v[20:23], v1, s[80:83], s50 offen sc1
    """)
    img_reads()
    a("s_branch K_out")

    zero_masks = lambda ks: [f"s_mov_b64 {sr(sM+2*k,2)}, 0" for k in ks]
    a("""
    K_again:
    s_waitcnt vmcnt(0) lgkmcnt(0)
    s_barrier
    """)
    lds_reset(True)
    a(f"""
    s_cmp_eq_u32 s{sMODE}, 3
    s_cbranch_scc1 K_next
    """)
    rec_loads()
    a(f"""
    s_waitcnt vmcnt(0)
    s_cmp_eq_u32 s{sMODE}, 1
    s_cbranch_scc0 K_marks
    s_mov_b32 s{sMODE}, 2
    s_mov_b64 s[56:57], 0
    """)
    classes(range(4, 8), True)
    emit(zero_masks(range(4)))
    a(f"""
    s_branch K_resort
    K_marks:
    s_mov_b32 s{sMODE}, 3
    v_mov_b32 v84, 0
    """)
    for k in range(8):
        a(f"""
        v_bfe_u32 v85, v{REC+k}, 14, 6
        v_cmp_eq_u32 vcc, 62, v85
        s_nop 1
        v_cndmask_b32 v84, v84, v{REC+k}, vcc
        """)
    a(f"""
    s_nop 1
    v_or_b32_dpp v84, v84, v84 quad_perm:[1,0,3,2] row_mask:0xf bank_mask:0xf
    s_nop 1
    v_or_b32_dpp v84, v84, v84 quad_perm:[2,3,0,1] row_mask:0xf bank_mask:0xf
    v_cmp_ne_u32 vcc, 0, v84
    v_lshrrev_b32 v84, 20, v84
    v_add_lshl_u32 v84, v84, v{PB}, 2
    s_mov_b32 s{sSTART}, {WS_REC}
    buffer_load_dword v{SLEN}, v84, s[12:15], s{sSTART} offen sc1
    v_add_u32 v{SEG}, v84, v{SIDX}
    s_mov_b32 s{sSTART}, {WS_REC + 4 - 64}
    s_waitcnt vmcnt(0)
    v_cndmask_b32 v{SLEN}, 0, v{SLEN}, vcc
    v_min_u32 v{SLEN}, {CH*4}, v{SLEN}
    v_add_u32 v{SLEN}, 64, v{SLEN}
    K_next:
    s_add_u32 s{sSTART}, s{sSTART}, 64
    v_add_u32 v{SLEN}, -64, v{SLEN}
    """)
    rec_loads(1)
    a(f"""
    v_cmp_lt_i32 s[56:57], 64, v{SLEN}
    v_sub_u32 v84, v{SLEN}, v{SIDX}
    """)
    for k in range(4):
        a(f"v_cmp_lt_i32 {sr(sM+2*k,2)}, {4*k}, v84")
    emit(zero_masks(range(4, 8)))
    a("K_resort:")
    list_ptrs()
    sort(False)
    a(f"""
    s_cmp_eq_u32 s{sMODE}, 2
    s_cselect_b32 s{sMORE}, s{sMARK}, s{sMORE}
    s_cmp_eq_u32 s{sMODE}, 1
    s_cselect_b32 s{sMORE}, 1, s{sMORE}
    s_cbranch_scc1 K_sorted
    s_waitcnt lgkmcnt(0)
    s_barrier
    """)
    fill_a()
    a(f"""
    s_branch K_fillb
    K_over:
    s_cmp_lg_u32 s{sMODE}, 0
    s_cbranch_scc1 K_end
    s_mov_b32 s{sMODE}, 1
    s_mov_b32 s{sMARK}, s{sMORE}
    s_mov_b64 s[56:57], 0
    s_waitcnt lgkmcnt(0)
    s_barrier
    """)
    lds_reset(False)
    emit(zero_masks(range(4, 8)))
    a("s_branch K_resort\nK_codeend:")
    d = desc(name, NV + 40, 100, NV)
    ln = f"; @launch grid=(256,1,1) block=(512,1,1) lds={LDS}\n"
    if opt.get("probe"):
        import gen
        ln = f"; @launch kernel={name} grid=(256,1,1) block=(512,1,1) lds={LDS}\n; @launch kernel=probe_kernel grid=(1,1,1) block=(64,1,1) lds=0\n"
        d += gen.gen_probe(a, opt)
    hdr = """; GatedGCN layer in one launch: each workgroup builds the table rows of its 49 nodes, half of them also
; partition a chunk of edges by destination bin; after two counted hand-offs every workgroup sorts its bin
; and runs the gate / aggregation loop.
""" + ln + '.amdgcn_target "amdgcn-amd-amdhsa--gfx950"\n.text\n'
    return hdr + a.text() + d

if __name__ == "__main__":
    opt = {}
    out = f"cdna_kernels/{NAME}.s"
    for x in sys.argv[1:]:
        k, v = x.split("=", 1)
        if k == "out":
            out = v
        else:
            opt[k] = int(v) if v.lstrip("-").isdigit() else v
    open(out, "w").write(generate(opt))
    print("wrote", out)
```

```python
import sys
from gen import (NAME, N, E, SB, CH, P, RG, DUMMY, WS_REC, WS_SLOT, WS_END, SHIFT, LOG2E, WS_STAMP, MF,
                 f32, Asm, vr, ar, sr, scan64, desc, head, Stamps)

TW0, TW1, TRASH = 1024, 2048, 3072
LIST = 4096
CAPS = 2560
LSET = CAPS * 8
ATAB = LIST + 2 * LSET
AST = 592
WCL = 77824
WS_FLG = 0xA00000
XP = ATAB
ERING = 81920
RING = 98304
LDS = RING + 65536
LIMIT = 2240 * 8
IMG, STG = 4096, 36864
SDW = "dst_sel:DWORD dst_unused:UNUSED_PAD"
OOB = 0x7000000

def generate(opt=None):
    opt = opt or {}
    a = Asm()
    name = NAME + "_kernel"
    cls = [int(c) for c in str(opt.get("cls", "c01122333"))[1:]]
    lut = sum(c << (2*i) for i, c in enumerate(cls))
    rot = opt.get("rot", 1)
    tfl = opt.get("tfl", "sc1").replace("+", " ")
    tst = opt.get("tst", "sc1").replace("+", " ")
    head(a, name)
    st = Stamps(a, opt.get("stamp"), 205, WS_STAMP)
    SEL0, SEL1, PIND, WC, CI, CT = 4, 8, 12, 16, 20, 36
    G = [52, 68]; H = 84
    OE, OB0, OB1, OH0, OH1, OA = 100, 104, 108, 112, 116, 120
    IND = [124, 128]
    SS, MM, AS, AM, BD, BN = 132, 140, 148, 156, 164, 168
    IX, OF0, OF1, EP = 172, 176, 177, 178
    RA = [180, 181, 182, 183]
    EA, LI, LE, LP, TA0, TA1, TC = 184, 185, 186, 187, 188, 189, 190
    XR = 192
    SEG, SLEN, SIDX, PB = 200, 201, 202, 203
    NV = 208
    ACD, ACN, AU = 0, 16, 32
    sW, sSET, sTILE, sBIN = 3, 36, 37, 38
    sRING, sEM0, sS, sK, sVS, sSTART, sLUT, sMORE, s512 = 39, 40, 41, 42, 43, 44, 45, 46, 47
    sCC, sM, sMODE, sMARK, sXO, sPROD = 48, 64, 7, 9, 8, 6
    REC, CA, RK, BB, EN, T = 36, 44, 52, 60, 100, 76
    XF, WA, DA, SO, WCR = 100, 0, 36, 68, 164
    VW, FW, FX, FS, FR, FG, FA, FB, FU = 168, 169, 170, 171, 172, 173, 207, 204, 191
    ONE, PL = 206, 164

    def emit(lst):
        for x in lst:
            a(x)

    a("s_cmp_ge_u32 s2, 256\ns_cbranch_scc1 K_end")
    st(0)
    if opt.get("inv"):
        a(f"""
        s_cmp_lt_u32 s2, 8
        s_cbranch_scc0 K_noinv
        buffer_inv {opt["inv"].replace("+", " ")}
        K_noinv:
        """)
    a(f"""
    s_load_dwordx8 s[52:59], s[0:1], 0
    s_load_dwordx16 s[64:79], s[0:1], 32
    v_lshrrev_b32 v1, 6, v0
    v_and_b32 v2, 63, v0
    v_readfirstlane_b32 s{sW}, v1
    s_and_b32 s60, s2, 7
    s_lshr_b32 s61, s2, 3
    s_lshl_b32 s50, s60, 5
    s_add_u32 s{sBIN}, s50, s61
    v_lshrrev_b32 v84, 4, v2
    v_and_b32 v85, 15, v2
    v_bfe_u32 v3, v0, 4, 4
    v_xor_b32 v3, v3, v85
    v_lshlrev_b32 v3, 4, v3
    v_lshl_add_u32 v3, v84, 8, v3
    v_lshlrev_b32 v1, 4, v0
    s_mul_i32 s{sXO}, s{sBIN}, {SB*256}
    s_lshl_b32 s90, s{sW}, 10
    s_add_u32 s51, s{sXO}, s90
    s_add_u32 s91, s51, 8192
    s_cmp_lt_u32 s{sW}, 5
    s_cselect_b32 s91, s91, {OOB}
    s_mov_b32 s22, {N*256}
    s_mov_b32 s23, 0x20000
    v_lshrrev_b32 v86, 2, v2
    v_and_b32 v87, 3, v2
    v_lshlrev_b32 v{VW}, 4, v87
    v_lshl_add_u32 v{FG}, v86, 9, v{VW}
    v_lshl_add_u32 v{VW}, v86, 8, v{VW}
    v_mov_b32 v{ONE}, 1
    s_lshr_b32 s50, s2, 4
    s_lshl_b32 s50, s50, 3
    s_add_u32 s62, s50, s60
    s_lshr_b32 s{sSET}, s{sW}, 2
    s_and_b32 s{sTILE}, s{sW}, 3
    s_mov_b32 s83, 0x20000
    s_mov_b32 s87, 0x20000
    s_bitcmp1_b32 s2, 3
    s_cbranch_scc1 K_np
    s_mul_i32 s88, s62, {CH*4}
    s_add_u32 s89, s88, 8192
    s_add_u32 s82, s88, {CH*4}
    s_min_u32 s82, s82, {E*4}
    s_mov_b32 s86, s82
    s_waitcnt lgkmcnt(0)
    s_mov_b32 s80, s58
    s_mov_b32 s81, s59
    s_mov_b32 s84, s56
    s_mov_b32 s85, s57
    buffer_load_dwordx4 v[8:11], v1, s[80:83], s88 offen
    buffer_load_dwordx4 v[12:15], v1, s[80:83], s89 offen
    buffer_load_dwordx4 v[16:19], v1, s[84:87], s88 offen
    buffer_load_dwordx4 v[20:23], v1, s[84:87], s89 offen
    s_branch K_prod
    K_np:
    """)
    def xdma(base, delta):
        o = []
        for i, so in enumerate(("s51", "s91")):
            o.append(f"s_add_u32 m0, s90, {base + 8192*i}")
            o.append(f"s_sub_u32 s50, {so}, {delta}")
            o.append("buffer_load_dwordx4 v3, s[20:23], s50 offen lds")
        return o
    def wdma():
        o = []
        for q in range(8):
            o += [f"s_add_u32 m0, s{sRING}, {1024*q}", f"s_add_u32 s89, s63, {4096*q}",
                  f"buffer_load_dwordx4 v{VW}, s[24:27], s89 offen lds"]
        return o
    wcdma = [f"s_lshl_b32 s89, s{sTILE}, 10", f"s_add_u32 m0, s89, {WCL}", "s_nop 0",
             f"buffer_load_dwordx4 v{VW}, s[32:35], s63 offen lds"]
    def common(first):
        a(f"""
        s_lshl_b32 s{sRING}, s{sW}, 13
        s_add_u32 s{sRING}, s{sRING}, {RING}
        s_lshl_b32 s63, s{sTILE}, 6
        s_cmp_eq_u32 s{sSET}, 0
        s_cselect_b32 s64, s64, s70
        s_cselect_b32 s65, s65, s71
        s_cselect_b32 s66, s66, s72
        s_cselect_b32 s67, s67, s73
        s_mov_b32 s24, s{first}
        s_mov_b32 s25, s{first+1}
        s_mov_b32 s26, 32768
        s_mov_b32 s27, 0x20000
        """)
    def common2(x):
        x(f"""
        s_mov_b32 s32, s68
        s_mov_b32 s33, s69
        s_mov_b32 s34, 4096
        s_mov_b32 s35, 0x20000
        s_mov_b32 s14, {WS_END}
        s_mov_b32 s15, 0x20000
        s_movk_i32 s30, 256
        s_mov_b32 s31, 0x20000
        s_mov_b32 s4, s78
        s_mov_b32 s5, s79
        s_mov_b32 s12, s78
        s_mov_b32 s13, s79
        s_mov_b32 s10, s74
        s_mov_b32 s11, s75
        s_mov_b32 s28, s76
        s_mov_b32 s29, s77
        v_lshrrev_b32 v88, 5, v2
        v_and_b32 v89, 31, v2
        v_lshrrev_b32 v90, 2, v85
        v_lshl_add_u32 v90, v88, 3, v90
        v_and_b32 v91, 1, v84
        v_lshlrev_b32 v91, 5, v91
        v_lshl_add_u32 v91, v87, 3, v91
        v_lshl_add_u32 v90, v90, 6, v91
        v_add_u32 v{FW}, s{sRING}, v90
        s_lshl_b32 s50, s{sTILE}, 10
        s_add_u32 s50, s50, {WCL}
        v_add_u32 v{WCR}, s50, v90
        v_xor_b32 v90, v88, v85
        v_lshlrev_b32 v90, 4, v90
        v_lshl_add_u32 v{FX}, v89, 8, v90
        v_lshlrev_b32 v93, 3, v88
        v_lshrrev_b32 v94, 4, v0
        v_xor_b32 v90, v94, v0
        v_and_b32 v90, 15, v90
        v_lshlrev_b32 v90, 4, v90
        v_lshl_add_u32 v{FU}, v94, 8, v90
        s_mov_b32 s94, {hex(f32(-LOG2E))}
        s_mov_b32 s95, {hex(f32(-LOG2E))}
        s_lshr_b32 s50, s62, 2
        s_lshl_b32 s50, s50, 7
        s_and_b32 s97, s2, 3
        s_lshl_b32 s97, s97, 2
        s_add_u32 s97, s97, s50
        s_cmp_eq_u32 s{sW}, 0
        s_cselect_b32 s97, s97, {OOB}
        s_cselect_b32 s{sPROD}, 0, {OOB}
        """)
    def wfrag(q):
        return [f"ds_read_b64_tr_b16 {ar(WA+4*q+2*z,2)}, v{FW} offset:{1024*q+256*z}" for z in range(2)]
    def xfrag(q, off=0):
        return [f"v_xor_b32 v3, {32*q}, v{FX}", f"ds_read_b128 {vr(XF+8*q,4)}, v3 offset:{off}",
                f"ds_read_b128 {vr(XF+8*q+4,4)}, v3 offset:{off+8192}"]
    misc = [f"v_add_u32 v3, {ERING}, v{FU}", f"ds_read_b128 {vr(XR,4)}, v3", f"ds_read_b128 {vr(XR+4,4)}, v3 offset:8192",
            f"ds_read_b64_tr_b16 {vr(WCR+2,2)}, v{WCR} offset:256", f"ds_read_b64_tr_b16 {vr(WCR,2)}, v{WCR}"]
    def gm(q, rt, base=DA):
        d = vr(base + 16*rt, 16)
        return f"{MF} {d}, {ar(WA+4*q,4)}, {vr(XF+8*q+4*rt,4)}, {'0' if q == 0 else d}"
    RDY = 99
    ready_load = f"buffer_load_dword v{RDY}, off, s[28:31], s{sPROD} sc1"
    def ready_check(tag):
        a(f"""
        s_cmp_lg_u32 s{sW}, 0
        s_cbranch_scc1 K_{tag}
        s_mov_b32 s50, 0
        K_{tag}_spin:
        v_cmp_eq_u32 vcc, 0, v{RDY}
        s_cbranch_vccz K_{tag}
        {ready_load}
        s_add_u32 s50, s50, 1
        s_cmp_lt_u32 s50, 0x40000
        s_waitcnt vmcnt(0)
        s_cbranch_scc1 K_{tag}_spin
        K_{tag}:
        """)
    D1 = 4
    def conv(rt, addrs, base=DA, mul=None, off=lambda j: 0):
        o = []
        for j in range(4):
            b_ = base + 16*rt + 4*j
            if mul:
                o += [f"v_mul_f32 v{b_+i}, {mul}, v{b_+i}" for i in range(4)]
            o += [f"v_cvt_pk_bf16_f32 v{b_}, v{b_}, v{b_+1}", f"v_cvt_pk_bf16_f32 v{b_+1}, v{b_+2}, v{b_+3}",
                  f"ds_write_b64 v{addrs[j]}, {vr(b_,2)} offset:{off(j)}"]
        return o

    def lds_reset(prefill):
        a(f"""
        v_lshlrev_b32 v76, 2, v0
        v_and_b32 v76, 0x3ff, v76
        v_mov_b32 v77, 0
        ds_write_b32 v76, v77
        """)
        if prefill:
            a(f"""
            v_mov_b32 v76, {hex(DUMMY | (SB*AST) << 16)}
            v_mov_b32 v77, -1
            v_mov_b32 v78, v76
            v_mov_b32 v79, -1
            v_lshlrev_b32 v80, 4, v0
            """)
            for i in range(5):
                a(f"ds_write_b128 v80, v[76:79] offset:{LIST + 8192*i}")

    a(f"""
    s_or_b32 s50, s90, s2
    s_cmp_eq_u32 s50, {7*1024 + 8}
    s_cbranch_scc1 K_clr
    s_waitcnt lgkmcnt(0)
    s_mov_b32 s20, s52
    s_mov_b32 s21, s53
    """)
    emit(xdma(XP, SB*256) + xdma(ERING, 0))
    a("K_np1:")
    common(66)
    w1 = wdma()
    b = Asm()
    common2(b)
    b(f"""
    s_add_u32 s97, s97, {WS_FLG}
    """)
    priv = opt.get("stg", "priv") == "priv"
    if priv:
        b(f"""
        v_bfe_u32 v90, v2, 1, 2
        v_lshl_add_u32 v90, v90, 4, v93
        v_lshl_add_u32 v90, v89, 6, v90
        s_lshl_b32 s50, s{sW}, 11
        s_add_u32 s50, s50, {XP}
        v_add_u32 v{FS}, s50, v90
        v_bfe_u32 v90, v2, 3, 2
        v_xor_b32 v90, v90, v87
        v_lshl_add_u32 v90, v90, 4, s50
        v_lshl_add_u32 v{FR}, v86, 6, v90
        s_lshl_b32 s50, s{sTILE}, 7
        s_lshl_b32 s51, s{sSET}, 6
        s_add_u32 s50, s50, s51
        v_add_u32 v{FG}, s50, v{FG}
        """)
    else:
        b(f"""
    s_lshl_b32 s50, s{sTILE}, 3
    s_lshl_b32 s51, s{sSET}, 2
    s_add_u32 s50, s50, s51
    v_and_b32 v90, 7, v2
    v_xor_b32 v90, s50, v90
    v_lshl_add_u32 v90, v90, 4, v93
    v_lshl_add_u32 v{FS}, v89, 9, v90
    v_bfe_u32 v90, v0, 5, 3
    v_lshlrev_b32 v90, 4, v90
    v_xor_b32 v90, v90, v1
    v_add_u32 v{FR}, {XP}, v90
    v_add_u32 v{FS}, {XP}, v{FS}
        """)
    b(f"""
    v_xor_b32 v95, 16, v{FS}
    v_xor_b32 v96, 32, v{FS}
    v_xor_b32 v97, 48, v{FS}
    s_lshl_b32 s51, s60, 20
    s_mul_i32 s56, s61, {SB*512}
    s_add_u32 s51, s51, s56
    s_sub_u32 s56, s51, {SB*512}
    s_add_u32 s80, s4, s56
    s_addc_u32 s81, s5, 0
    s_mov_b32 s82, {SB*512}
    s_add_u32 s84, s4, s51
    s_addc_u32 s85, s5, 0
    s_mov_b32 s86, {SB*512}
    s_movk_i32 s56, 0
    s_movk_i32 s57, 8192
    s_movk_i32 s58, 16384
    s_movk_i32 s59, 24576
    s_cmp_eq_u32 s{sSET}, 0
    s_cselect_b32 s96, s94, 1.0
    """)
    nw = opt.get("wearly", 3)
    a("s_barrier")
    emit(w1[:3*nw])
    lds_reset(True)
    cut = [i for i, l in enumerate(b.l) if f"v{FX}," in l][0] + 1
    a.l += b.l[:cut]
    later = [x.strip() for x in b.l[cut:]]
    a(f"""
    s_or_b32 s50, s90, s2
    s_cmp_eq_u32 s50, {7*1024 + 8}
    s_cbranch_scc1 K_pub
    s_waitcnt vmcnt({nw})
    K_np2:
    s_barrier
    """)
    st(1)
    emit(xfrag(0, XP) + xfrag(1, XP) + xfrag(2, XP) + xfrag(3, XP))
    w2 = wdma()
    ahead = opt.get("ahead", 5)
    seq = [w1[3*q:3*q+3] for q in range(8)] + [wcdma + ["s_mov_b32 s24, s64", "s_mov_b32 s25, s65"]] + \
          [w2[3*q:3*q+3] for q in range(8)]
    sent = [nw]
    def send(n):
        o = []
        while sent[0] < min(n, len(seq)):
            o += seq[sent[0]]
            sent[0] += 1
        return o
    landed = lambda i: f"s_waitcnt vmcnt({sent[0] - 1 - i})"
    SA = [FS, 95, 96, 97]
    emit(send(ahead))
    emit([landed(0)] + wfrag(0) + [landed(1)] + wfrag(1))
    for q in range(8):
        a(f"s_waitcnt lgkmcnt({[2, 4, 4, 4, 4, 4, 4, 2][q]})")
        a(gm(q, 0, D1))
        emit(send(ahead + q + 1))
        if q == 4:
            a(f"v_add_u32 v{FX}, {ERING}, v{FX}")
        emit(xfrag(q + 4, XP) if q < 4 else xfrag(q - 4))
        if q < 6:
            emit([landed(q + 2)] + wfrag(q + 2))
        a(gm(q, 1, D1))
        n_ = -(-len(later) // (8 - q))
        while n_ < len(later) and ("cselect" in later[n_] or "addc" in later[n_]):
            n_ += 1
        emit(later[:n_])
        later = later[n_:]
    st(2)
    a(landed(8))
    stores = lambda srd: [f"buffer_store_dwordx4 {vr(SO+4*i,4)}, v{FG if priv else 1}, {srd}, s{56+i} offen {tst}" for i in range(4)]
    slots = [[] for _ in range(16)]
    slots[0] = xfrag(4) + xfrag(5)
    slots[1] = xfrag(6) + xfrag(7)
    slots[2] = list(misc)
    slot3 = [[] for _ in range(16)]
    s1, s2_ = stores("s[80:83]"), stores("s[84:87]")
    if priv:
        def cst(base):
            return conv(0, SA, base, "s96") + [f"ds_read_b128 {vr(SO+4*i,4)}, v{FR} offset:{1024*i}" for i in range(2)] + \
                   conv(1, SA, base, "s96") + [f"ds_read_b128 {vr(SO+8+4*i,4)}, v{FR} offset:{1024*i}" for i in range(2)]
        c1, c2 = cst(D1), cst(DA)
        for i in range(10):
            slots[3 + i] = c1[6*i:6*i+6]
            slot3[1 + i] = c2[6*i:6*i+6]
        slots[9] += ["s_waitcnt lgkmcnt(1)"] + s1[:2]
        slots[13] = ["s_waitcnt vmcnt(2)"] + wfrag(0) + wfrag(1) + wfrag(2) + wfrag(3)
        slots[14] = ["s_waitcnt lgkmcnt(8)"] + s1[2:]
        slots[15] = wfrag(4) + wfrag(5) + wfrag(6)
        slot3[0] = wfrag(7) + ["s_nop 1"]
        slot3[7] += ["s_waitcnt lgkmcnt(1)"] + s2_[:2]
        slot3[12] = ["s_waitcnt lgkmcnt(0)"] + s2_[2:]
        w8, mid, w83 = 6, "s_waitcnt lgkmcnt(6)", None
    else:
        B2 = SB * 512
        back = lambda o: [f"ds_read_b128 {vr(SO+4*i,4)}, v{FR} offset:{o + 8192*i}" for i in range(4)]
        c1 = conv(0, SA, D1, "s96") + conv(1, SA, D1, "s96", lambda j: 16384)
        c2 = conv(0, SA, DA, "s96", lambda j: B2) + conv(1, SA, DA, "s96", lambda j: B2 + 16384)
        for i in range(8):
            slots[3 + i] = c1[7*i:7*i+7]
            slot3[4 + i] = c2[7*i:7*i+7]
        slots[12] = ["s_waitcnt vmcnt(0)"] + wfrag(0) + wfrag(1) + wfrag(2) + wfrag(3)
        slots[13] = wfrag(4) + wfrag(5)
        slots[15] = wfrag(6)
        slot3[0] = back(0) + wfrag(7)
        slot3[3] = ["s_waitcnt lgkmcnt(0)"] + s1
        w8, mid, w83 = 5, "s_waitcnt lgkmcnt(2)\ns_barrier", None
    for q in range(8):
        slots[q] += send(sent[0] + 1)
    assert sent[0] == len(seq)
    a("s_waitcnt lgkmcnt(0)\ns_barrier")
    for i in range(16):
        if i == 8:
            a(f"s_waitcnt lgkmcnt({w8})")
        a(gm(i // 2, i % 2))
        emit(slots[i])
    st(3)
    slot3[0] = [ready_load] + slot3[0]
    a(mid)
    for i in range(16):
        a(gm(i // 2, i % 2, D1))
        emit(slot3[i])
    a("s_waitcnt vmcnt(4)")
    ready_check("rn")
    if not priv:
        a("s_waitcnt lgkmcnt(0)\ns_barrier")
        emit(back(B2))
        for i in range(4):
            emit([f"s_waitcnt lgkmcnt({3-i})", s2_[i]])
    a("s_barrier\nK_join:")
    st(4)
    def poll_issue(base, lanes):
        return [f"s_cmp_eq_u32 s{sW}, 0", f"s_cselect_b32 s50, {base}, s14"] + \
               [f"buffer_load_dwordx4 {vr(PL,4)}, v{lanes}, s[12:15], s50 offen sc1"]
    def poll_check(tag, base, lanes):
        a(f"""
        s_cmp_lg_u32 s{sW}, 0
        s_cbranch_scc1 K_{tag}_done
        s_mov_b32 s50, 0
        s_mov_b32 s51, {base}
        K_{tag}_spin:
        s_waitcnt vmcnt(0)
        v_and_b32 v{PL}, v{PL}, v{PL+1}
        v_and_b32 v{PL+2}, v{PL+2}, v{PL+3}
        v_and_b32 v{PL}, v{PL}, v{PL+2}
        v_cmp_ne_u32 vcc, 1, v{PL}
        s_cbranch_vccz K_{tag}_done
        s_add_u32 s50, s50, 1
        s_cmp_lt_u32 s50, 0x40000
        buffer_load_dwordx4 {vr(PL,4)}, v{lanes}, s[12:15], s51 offen sc1
        s_cbranch_scc1 K_{tag}_spin
        K_{tag}_done:
        """)
    def list_ptrs():
        a(f"""
        s_mul_i32 s50, s{sSET}, {LSET}
        s_add_u32 s50, s50, {LIST}
        v_and_b32 v84, 0x28, v2
        v_bfe_u32 v85, v2, 4, 1
        v_add_u32 v84, v84, v85
        v_lshl_add_u32 v{LI}, v84, 3, s50
        v_and_b32 v84, 12, v2
        v_and_b32 v86, 32, v2
        v_lshl_add_u32 v84, v84, 1, v86
        v_lshl_add_u32 v{LP}, v84, 3, s50
        v_and_b32 v84, 10, v2
        v_bfe_u32 v87, v2, 2, 1
        v_lshl_add_u32 v84, v84, 2, v87
        s_lshr_b32 s51, s{sTILE}, 1
        s_lshl_b32 s51, s51, 5
        s_add_u32 s50, s50, s51
        s_and_b32 s51, s{sTILE}, 1
        s_lshl_b32 s51, s51, 7
        s_add_u32 s50, s50, s51
        v_lshl_add_u32 v{LE}, v84, 3, s50
        """)
    PL = 68
    a(f"""
    v_lshlrev_b32 v{FS}, 7, v89
    v_lshrrev_b32 v95, 2, v0
    v_lshlrev_b32 v{SIDX}, 4, v87
    v_lshl_add_u32 v{SEG}, v95, 7, v{SIDX}
    v_mul_u32_u24 v92, {AST}, v89
    s_lshl_b32 s{sSTART}, s{sBIN}, 14
    s_add_u32 s{sSTART}, s{sSTART}, {WS_SLOT}
    s_cmp_lg_u32 s{sSET}, 0
    s_cbranch_scc1 K_uaddr
    v_cmp_gt_u32 s[72:73], {SB - 31}, v89
    s_lshl_b32 s51, s{sTILE}, 7
    s_add_u32 s51, s51, {ATAB}
    v_add3_u32 v52, v92, v93, s51
    s_cmp_lg_u32 s{sW}, 0
    s_cbranch_scc1 K_nopoll
    s_mov_b32 s50, {WS_FLG + 4096}
    buffer_load_dwordx4 {vr(PL,4)}, v{FS}, s[12:15], s50 offen sc1
    K_nopoll:
    """)
    for i in range(16):
        a(f"v_pk_mul_f32 {vr(D1+2*i,2)}, {vr(D1+2*i,2)}, s[94:95]")
    emit(conv(0, [52]*4, D1, None, lambda j: 16*j))
    a("s_mov_b64 exec, s[72:73]")
    emit(conv(1, [52]*4, D1, None, lambda j: 16*j + 32*AST))
    a(f"""
    s_mov_b64 exec, -1
    s_branch K_conv
    K_uaddr:
    v_and_b32 v45, 63, v95
    v_and_b32 v46, 31, v95
    v_lshlrev_b32 v47, 3, v87
    v_sub_u32 v46, v46, v47
    v_cmp_eq_u32 s[90:91], {SB}, v45
    v_mov_b32 v47, 64
    v_cmp_ge_u32 s[92:93], {SB}, v45
    v_cndmask_b32 v46, v46, v47, s[90:91]
    v_and_b32 v47, 1, v46
    v_lshlrev_b32 v47, 4, v47
    v_mov_b32 v48, 0x3f80
    v_lshlrev_b32 v47, v47, v48
    v_ashrrev_i32 v46, 1, v46
    v_cmp_eq_u32 s[64:65], 0, v46
    v_cmp_eq_u32 s[66:67], 1, v46
    v_cmp_eq_u32 s[68:69], 2, v46
    v_cmp_eq_u32 s[70:71], 3, v46
    v_cndmask_b32 v48, 0, v47, s[64:65]
    v_cndmask_b32 v49, 0, v47, s[66:67]
    v_cndmask_b32 v50, 0, v47, s[68:69]
    v_cndmask_b32 v51, 0, v47, s[70:71]
    v_mul_u32_u24 v46, {AST}, v45
    v_add_u32 v46, v46, v{SIDX}
    s_mov_b64 exec, s[92:93]
    """)
    for t in range(4):
        a(f"ds_write_b128 v46, v[48:51] offset:{ATAB+128*t+64}")
    a(f"""
    s_mov_b64 exec, -1
    v_bfe_u32 v52, v2, 1, 2
    v_lshl_add_u32 v52, v52, 4, v93
    v_lshl_add_u32 v52, v89, 6, v52
    v_add_u32 v52, s{sRING}, v52
    """)
    for j in range(1, 4):
        a(f"v_xor_b32 v{52+j}, {16*j}, v52")
    emit(conv(0, [52, 53, 54, 55], D1) + conv(1, [52, 53, 54, 55], D1, None, lambda j: 2048))
    a("K_conv:")
    st(5)
    def rec_loads(n=2):
        a(f"buffer_load_dwordx4 {vr(REC,4)}, v{SEG}, s[12:15], s{sSTART} offen sc1")
        if n == 2:
            a(f"buffer_load_dwordx4 {vr(REC+4,4)}, v{SEG}, s[12:15], s{sSTART} offen offset:64 sc1")
    poll_check("s", WS_FLG + 4096, FS)
    a("s_waitcnt vmcnt(0) lgkmcnt(0)\ns_barrier")
    rec_loads()
    a(f"""
    s_mov_b64 exec, 1
    buffer_store_dword v{ONE}, off, s[12:15], s97 sc1
    s_mov_b64 exec, -1
    """)
    st(6)
    PL = 164
    a(f"s_mov_b32 s51, 0xffff0000\nv_mul_u32_u24 v{PB}, {CH}, v95")
    for j in range(4):
        a(f"""
        v_lshlrev_b32 v20, 16, v{WCR+j}
        v_and_b32 v21, s51, v{WCR+j}
        v_pk_mul_f32 v[20:21], v[20:21], s[94:95]
        v_cvt_pk_bf16_f32 v{WC+j}, v20, v21
        """)
    a(f"""
    v_lshl_add_u32 v3, v88, 4, v92
    ds_read_b128 {vr(SEL0,4)}, v3 offset:{ATAB + 64}
    ds_read_b128 {vr(SEL1,4)}, v3 offset:{ATAB + 96}
    v_lshrrev_b32 v90, 3, v89
    v_and_b32 v96, 1, v89
    v_lshl_add_u32 v90, v90, 1, v96
    v_and_b32 v96, 4, v89
    v_lshl_add_u32 v90, v96, 1, v90
    v_mul_u32_u24 v90, {AST}, v90
    v_lshl_add_u32 v3, v88, 4, v90
    ds_read_b128 {vr(PIND,4)}, v3 offset:{ATAB + 64}
    s_lshl_b32 s50, s{sTILE}, 7
    s_add_u32 s51, s50, {ATAB}
    v_add_u32 v{TC}, s51, v91
    v_and_b32 v90, 7, v2
    v_xor_b32 v90, v90, v84
    v_lshl_add_u32 v{OF0}, v90, 4, s50
    v_xor_b32 v{OF1}, 64, v{OF0}
    v_bfe_u32 v90, v0, 2, 2
    v_lshlrev_b32 v90, 13, v90
    v_lshl_add_u32 v90, v94, 6, v90
    v_bfe_u32 v96, v0, 5, 2
    v_xor_b32 v96, v96, v87
    v_lshl_add_u32 v90, v96, 4, v90
    v_add_u32 v3, {RING + 32768}, v90
    ds_read_b128 {ar(AU,4)}, v3
    ds_read_b128 {ar(AU+4,4)}, v3 offset:2048
    v_bfe_u32 v90, v89, 1, 3
    v_xor_b32 v90, v90, v88
    v_lshlrev_b32 v90, 4, v90
    v_lshl_add_u32 v90, v89, 7, v90
    v_add_u32 v{RA[0]}, s{sRING}, v90
    """)
    list_ptrs()
    a(f"""
    v_xor_b32 v84, v85, v88
    v_lshlrev_b32 v84, 4, v84
    v_lshl_add_u32 v84, v89, 5, v84
    s_lshl_b32 s50, s{sSET}, 12
    s_add_u32 s50, s50, {ERING}
    v_add_u32 v{EA}, s50, v84
    s_lshl_b32 s51, s{sTILE}, 8
    s_add_u32 s{sEM0}, s50, s51
    s_lshr_b32 s51, s{sTILE}, 1
    v_xor_b32 v84, s51, v2
    v_and_b32 v84, 1, v84
    v_lshlrev_b32 v{EP+1}, 4, v84
    s_mov_b32 s16, s54
    s_or_b32 s17, s55, {hex(32 << 16)}
    s_mov_b32 s18, {opt.get('erows', E)}
    s_mov_b32 s19, 0x20000
    s_mov_b32 s{s512}, 512
    s_mov_b32 s{sMODE}, 0
    s_lshl_b32 s50, s60, 1
    s_lshl_b32 s{sLUT}, {hex(lut)}, {'s50' if rot else '0'}
    s_lshr_b32 s50, s{sLUT}, 16
    s_or_b32 s{sLUT}, s{sLUT}, s50
    """)

    def classes(ks, with_masks):
        a(f"s_mov_b32 s51, {63*16}")
        for k in ks:
            a(f"v_lshrrev_b32 v{CA+k}, 10, v{REC+k}")
            a(f"v_and_b32 v3, 14, v{CA+k}")
            a(f"v_and_b32 v{CA+k}, 0x3f0, v{CA+k}")
            a(f"v_bfe_u32 v3, s{sLUT}, v3, 2")
            a(f"v_lshl_or_b32 v{CA+k}, v3, 2, v{CA+k}")
            if with_masks:
                a(f"v_cmp_gt_u32 {sr(sM+2*k,2)}, s51, v{CA+k}")

    def sort(first):
        a(f"""
        v_mov_b32 v{T+1}, 8
        v_lshlrev_b32 v{T}, 4, v2
        """)
        if first:
            a("s_waitcnt vmcnt(1)")
            st(7)
        else:
            a(f"""
            v_mov_b32 v{T+2}, 0
            s_waitcnt vmcnt(0) lgkmcnt(0)
            s_barrier
            s_mov_b64 exec, s[56:57]
            ds_write_b32 v{T+2}, v{T+1} offset:{62*16}
            s_mov_b64 exec, -1
            """)
        classes(range(8), first)
        for k in range(8):
            a(f"s_mov_b64 exec, {sr(sM+2*k,2)}")
            a(f"ds_add_rtn_u32 v{RK+k}, v{CA+k}, v{T+1}")
        a("s_mov_b64 exec, -1")
        a(f"s_movk_i32 s50, {AST*4}")
        ent = []
        for k in range(8):
            e = EN + 2*k
            ent += [f"v_and_b32 v{e}, 0x3fff, v{REC+k}", f"v_and_b32 v{e+1}, 0xfc000, v{REC+k}",
                    f"v_mad_u32_u24 v{e}, v{e+1}, s50, v{e}", f"v_lshrrev_b32 v{e+1}, 20, v{REC+k}",
                    f"v_add_u32 v{e+1}, v{e+1}, v{PB}"]
        c, Z0, EA_, TB_, EB_ = T+4, T+8, T+9, T+10, T+11
        UA, UB, nA, nB, IA, IB, XA, XB, TA_, t0, t1 = T+12, T+13, T+14, T+15, T+16, T+17, T+18, T+19, T+20, T+2, T+3
        emit(ent[:20])
        a(f"""
        s_waitcnt lgkmcnt(0)
        s_barrier
        ds_read_b128 {vr(c,4)}, v{T}
        """)
        if first:
            st(8)
        emit(ent[20:])
        if first and opt.get("ewarm", 1):
            for k in range(8):
                a(f"""
                v_and_b32 v3, 12, v{CA+k}
                v_cmp_gt_u32 vcc, {4*opt.get("ewarm", 1)}, v3
                s_and_b64 exec, vcc, {sr(sM+2*k,2)}
                buffer_load_dword v{SLEN}, v{EN+2*k+1}, s[16:19], 0 idxen
                s_mov_b64 exec, -1
                """)
        a(f"""
        s_waitcnt lgkmcnt(0)
        v_readlane_b32 s{sMORE}, v{c}, 62
        v_writelane_b32 v{c}, 0, 62
        v_add_u32 v{t0}, v{c}, v{c+1}
        v_add_u32 v{t1}, v{t0}, v{c+2}
        v_lshl_or_b32 v{EA_}, v{t0}, 16, v{c}
        v_add_u32 v{t0}, v{t1}, v{c+3}
        v_lshl_or_b32 v{EB_}, v{t0}, 16, v{t1}
        v_add_u32 v{UA}, 0x001f001f, v{EA_}
        v_add_u32 v{UB}, 0x001f001f, v{EB_}
        v_and_b32 v{UA}, 0xffe0ffe0, v{UA}
        v_and_b32 v{UB}, 0xffe0ffe0, v{UB}
        v_lshlrev_b32 v{t0}, 16, v{UA}
        v_alignbit_b32 v{t1}, v{UB}, v{UA}, 16
        v_sub_u32 v{IA}, v{UA}, v{t0}
        v_sub_u32 v{IB}, v{UB}, v{t1}
        v_sub_u32 v{nA}, v{UA}, v{t0}
        """)
        steps = [("row_shr:1", "0xf"), ("row_shr:2", "0xf"), ("row_shr:4", "0xf"), ("row_shr:8", "0xf"),
                 ("row_bcast:15", "0xa"), ("row_bcast:31", "0xc")]
        extra = [f"v_sub_u32 v{nB}, v{UB}, v{t1}", f"v_sub_u32 v{EA_}, v{UA}, v{EA_}", f"v_sub_u32 v{EB_}, v{UB}, v{EB_}",
                 f"v_alignbit_b32 v{TB_}, v{EB_}, v{EA_}, 16", f"v_mov_b32 v{Z0}, 0",
                 f"ds_write_b128 v{T}, {vr(Z0,4)} offset:{TW1}"]
        for i, (ctl, m_) in enumerate(steps):
            for r in (IA, IB):
                a(f"v_add_u32_dpp v{r}, v{r}, v{r} {ctl} row_mask:{m_} bank_mask:0xf")
            a(extra[i])
        if first:
            emit(poll_issue(WS_FLG, FS))
            a(f"""
            v_add_u32 v{t0}, v{IA}, v{IB}
            v_add_u32_sdwa v{t0}, v{t0}, v{t0} {SDW} src0_sel:WORD_0 src1_sel:WORD_1
            v_lshrrev_b32 v{t1}, 16, v{UB}
            v_readlane_b32 s50, v{t0}, 63
            v_lshlrev_b32 v{t0}, 1, v{t0}
            v_sub_u32 v{t0}, v{t0}, v{t1}
            v_cmp_ge_u32 vcc, s50, v{t0}
            """)
        a(f"""
        v_sub_u32 v{XA}, v{IA}, v{nA}
        v_sub_u32 v{XB}, v{IB}, v{nB}
        v_readlane_b32 s56, v{IA}, 63
        v_readlane_b32 s57, v{IB}, 63
        """)
        if first:
            a(f"""
            s_bcnt1_i32_b64 s50, vcc
            s_max_u32 s50, s50, 17
            s_min_u32 s{sVS}, s50, 32
            """)
        a(f"""
        v_readlane_b32 s58, v{XA}, s{sVS}
        v_readlane_b32 s59, v{XB}, s{sVS}
        v_cmp_gt_u32 vcc, s{sVS}, v2
        v_lshlrev_b32 v{TA_}, 16, v{EA_}
        v_add_u32 v{XA}, {hex(LIST * 0x10001)}, v{XA}
        v_add_u32 v{XB}, {hex(LIST * 0x10001)}, v{XB}
        s_sub_u32 s56, s56, s58
        s_sub_u32 s57, s57, s59
        s_mul_i32 s84, s58, 0x10001
        s_mul_i32 s85, s56, 0x10001
        s_pack_hh_b32_b16 s84, s84, s84
        s_pack_hh_b32_b16 s85, s85, s85
        s_mul_i32 s86, s59, 0x10001
        s_mul_i32 s88, s57, 0x10001
        s_add_u32 s86, s86, s84
        s_add_u32 s88, s88, s85
        s_lshl_b32 s80, s58, 16
        s_sub_u32 s81, s86, s59
        s_lshl_b32 s82, s56, 16
        s_sub_u32 s58, {hex(LSET * 0x10001)}, s58
        s_sub_u32 s89, s88, s57
        s_sub_u32 s59, {hex(LSET * 0x10001)}, s59
        s_add_u32 s82, s82, s58
        s_add_u32 s89, s89, s59
        v_add_u32 v{t0}, s80, v{XA}
        v_add_u32 v{t1}, s81, v{XB}
        v_add_u32 v{XA}, s82, v{XA}
        v_add_u32 v{XB}, s89, v{XB}
        v_cndmask_b32 v{XA}, v{XA}, v{t0}, vcc
        v_cndmask_b32 v{XB}, v{XB}, v{t1}, vcc
        v_cmp_lt_u32 vcc, 0xffff, v{nA}
        v_add_u32 v{IA}, v{XA}, v{nA}
        v_add_u32 v{IB}, v{XB}, v{nB}
        v_cndmask_b32_sdwa v{t0}, v{IA}, v{IA}, vcc {SDW} src0_sel:WORD_0 src1_sel:WORD_1
        v_and_b32 v{nB}, 0xffff, v{nB}
        v_cmp_lt_u32 vcc, 0, v{nB}
        v_sub_u32 v{c}, v{XA}, v{TA_}
        v_sub_u32 v{XB}, v{XB}, v{TB_}
        v_cndmask_b32 v{t1}, v{t0}, v{IB}, vcc
        v_sub_u32 v{IA}, v{IA}, v{EA_}
        v_alignbit_b32 v{c+1}, v{IA}, v{c}, 16
        v_sub_u32 v{t0}, v{t0}, v{TB_}
        v_sub_u32 v{t1}, v{t1}, v{EB_}
        s_movk_i32 s51, {TRASH}
        v_and_b32 v{c+2}, 0xffff, v{XB}
        v_lshl_or_b32 v{c+2}, v{t0}, 16, v{c+2}
        v_alignbit_b32 v{c+3}, v{t1}, v{XB}, 16
        v_writelane_b32 v{c}, s51, 62
        ds_write_b128 v{T}, {vr(c,4)} offset:{TW0}
        """)
        for k in range(8):
            a(f"ds_read2st64_b32 {vr(BB+2*k,2)}, v{CA+k} offset0:{TW0//256} offset1:{TW1//256}")
        a(f"""
        s_max_u32 s50, s86, s88
        s_lshr_b32 s50, s50, 16
        s_cmp_le_u32 s50, {LIMIT}
        s_cbranch_scc0 K_over
        s_add_u32 s50, s50, 511
        s_lshr_b32 s50, s50, 9
        s_max_u32 s{sS}, s50, 1
        """)
        for k0 in (0, 4):
            a(f"s_waitcnt lgkmcnt({4 - k0})")
            for k in range(k0, k0 + 4):
                a(f"v_cmp_lt_u32_sdwa {sr(80+2*(k % 4),2)}, v{RK+k}, v{BB+2*k+1} src0_sel:DWORD src1_sel:WORD_0")
                a(f"v_lshrrev_b32 v{BB+2*k+1}, 16, v{BB+2*k}")
            for k in range(k0, k0 + 4):
                a(f"v_cndmask_b32 v{BB+2*k}, v{BB+2*k}, v{BB+2*k+1}, {sr(80+2*(k % 4),2)}")
                a(f"v_add_u32_sdwa v{RK+k}, v{RK+k}, v{BB+2*k} {SDW} src0_sel:DWORD src1_sel:WORD_0")
        for k in range(8):
            a(f"s_mov_b64 exec, {sr(sM+2*k,2)}")
            a(f"ds_write_b64 v{RK+k}, {vr(EN+2*k,2)}")
        a("s_mov_b64 exec, -1")

    def idx_reads(blk, sub):
        o = 128*blk + 4*sub
        return [f"ds_read2_b32 {vr(IX,2)}, v{LI} offset0:{o} offset1:{o+32}",
                f"ds_read2_b32 {vr(IX+2,2)}, v{LI} offset0:{o+8} offset1:{o+40}"]
    def dma(slot):
        o = []
        for t in range(4):
            o.append(f"s_add_u32 m0, s{sRING}, {4096*slot + 1024*t}")
            o.append(f"v_mad_u32_u16 v{IX+t}, v{IX+t}, s{s512}, v{OF1 if t % 2 else OF0}")
            o.append(f"buffer_load_dwordx4 v{IX+t}, s[12:15], 0 offen {tfl} lds")
        return o
    def edma(step):
        return [f"s_add_u32 m0, s{sEM0}, {1024*(step % 4)}", "s_mov_b64 exec, 0xffff",
                f"buffer_load_dwordx4 {vr(EP,2)}, s[16:19], 0 idxen offen {opt.get('eflag','')} lds", "s_mov_b64 exec, -1"]
    def eid_read(step, dst=None):
        return [f"ds_read_b32 v{dst or EP}, v{LE} offset:{512*(step // 2) + 16*(step % 2) + 4}"]
    def pn_read(blk):
        return [f"ds_read2_b32 {vr(TA0,2)}, v{LP} offset0:{128*blk} offset1:{128*blk+8}"]
    ta = [f"v_add_u32_sdwa v{x}, v{x}, v{TC} {SDW} src0_sel:WORD_1 src1_sel:DWORD" for x in (TA0, TA1)]
    def reads(step):
        s = step % 2
        o = [f"ds_read_b128 {vr(OE,4)}, v{EA} offset:{1024*(step % 4)}"]
        o += [f"ds_read_b128 {vr(r,4)}, v{RA[i]} offset:{4096*s}" for i, r in enumerate((OB0, OB1, OH0, OH1))]
        return o
    def tr_reads(blk):
        i = IND[blk % 2]
        return [f"ds_read_b64_tr_b16 {vr(OA,2)}, v{TA0}", f"ds_read_b64_tr_b16 {vr(OA+2,2)}, v{TA1}",
                f"ds_read_b64_tr_b16 {vr(i,2)}, v{TA0} offset:64", f"ds_read_b64_tr_b16 {vr(i+2,2)}, v{TA1} offset:64"]
    mct = f"{MF} {vr(CT,16)}, {vr(PIND,4)}, {vr(OA,4)}, {vr(CI,16)}"
    def mf_g(g):
        d = vr(g, 16)
        return [f"{MF} {d}, {vr(OE,4)}, {vr(WC,4)}, {vr(CT,16)}",
                f"{MF} {d}, {vr(OB0,4)}, {vr(SEL0,4)}, {d}",
                f"{MF} {d}, {vr(OB1,4)}, {vr(SEL1,4)}, {d}"]
    mf_h = [f"{MF} {vr(H,16)}, {vr(OH0,4)}, {vr(SEL0,4)}, 0",
            f"{MF} {vr(H,16)}, {vr(OH1,4)}, {vr(SEL1,4)}, {vr(H,16)}"]
    def mf_red(i):
        return [f"{MF} {ar(ACD,16)}, {vr(IND[i],4)}, {vr(BD,4)}, {ar(ACD,16)}",
                f"{MF} {ar(ACN,16)}, {vr(IND[i],4)}, {vr(BN,4)}, {ar(ACN,16)}"]
    cvts = [f"v_cvt_pk_bf16_f32 v{BD+j}, v{AS+2*j}, v{AS+2*j+1}" for j in range(4)] + \
           [f"v_cvt_pk_bf16_f32 v{BN+j}, v{AM+2*j}, v{AM+2*j+1}" for j in range(4)]
    def pk(op, d, *s):
        return f"v_pk_{op}_f32 {vr(d,2)}, " + ", ".join(x if isinstance(x, str) else vr(x, 2) for x in s)
    def pk2(k):
        g = G[k % 2]
        o = []
        for dst, src in ((AS, SS), (AM, MM)):
            for j in range(4):
                if k % 2 == 0:
                    o.append(pk("mul", dst+2*j, src+2*j, g+4*j))
                else:
                    o.append(pk("fma", dst+2*j, src+2*j, g+4*j, dst+2*j))
        return o
    def load_seg(u):
        o = eid_read(u + 4) + idx_reads(*[(1, 1), (0, 0), (0, 1), (1, 0)][u])
        o += pn_read(u // 2) if u % 2 == 0 else tr_reads((u + 1) // 2)
        o += ["s_waitcnt vmcnt(5)"] + reads(u + 1)
        adv = {0: LI, 2: LP, 3: LE}.get(u)
        if adv:
            o += [f"v_add_u32 v{adv}, 0x400, v{adv}"]
        o += ["s_waitcnt lgkmcnt(5)"] + edma(u) + ["s_waitcnt lgkmcnt(0)"] + dma((u + 1) % 2)
        if u % 2 == 0:
            o += ta
        else:
            o += [f"s_add_u32 s{sK}, s{sK}, 1", f"s_cmp_ge_u32 s{sK}, s{sS}"]
        return o + ["s_setprio 0", "s_barrier"]
    def comp_seg(u, first=False):
        g, gn = G[u % 2], G[(u + 1) % 2]
        ex = [f"v_exp_f32 v{g+r}, v{g+r} clamp" for r in range(16)]
        mg = mf_g(gn)
        if first:
            o = [mg[0]] + ex[:3] + [mg[1]] + ex[3:6] + [mg[2]] + ex[6:]
        elif u % 2 == 0:
            mr = mf_red((u // 2 - 1) % 2)
            o = pk2(u - 1) + [mg[0]] + cvts[:6] + [mg[1]] + cvts[6:] + ex[:2] + [mg[2]] + ex[2:5] + \
                [mr[0]] + ex[5:8] + [mr[1]] + ex[8:]
        else:
            o = pk2(u - 1) + [mct] + ex[:3] + [mg[0]] + ex[3:6] + [mg[1]] + ex[6:9] + [mg[2]] + ex[9:]
        for j in range(4):
            b_ = g + 4*j
            o += [pk("add", b_, b_, sr(sCC, 2)), pk("add", b_+2, b_+2, sr(sCC, 2))]
        for j in range(4):
            b_, hh = g + 4*j, H + 4*j
            o += [pk("mul", MM+2*j, hh, b_+2), pk("add", SS+2*j, b_, b_+2), pk("fma", MM+2*j, hh+2, b_, MM+2*j), pk("mul", b_, b_, b_+2)]
        rc = [f"v_rcp_f32 v{g+4*j+i}, v{g+4*j+i}" for j in range(4) for i in range(2)]
        o += [mf_h[0]] + rc[:3] + [mf_h[1]] + rc[3:]
        pos = len(o) - opt.get("bpos", 2)
        return o[:pos] + ["s_setprio 1", "s_barrier"] + o[pos:]

    def fill_a():
        emit(eid_read(0) + eid_read(1, 1) + idx_reads(0, 0) + pn_read(0))
        a("s_waitcnt lgkmcnt(0)")
        emit(edma(0) + [f"v_mov_b32 v{EP}, v1"] + edma(1) + dma(0))
        emit(eid_read(2) + idx_reads(0, 1) + ta)
    def fill_b():
        a("s_waitcnt lgkmcnt(0)")
        emit(edma(2) + dma(1) + eid_read(3) + idx_reads(1, 0))
        a(f"v_add_u32 v{LP}, 0x200, v{LP}\ns_mov_b32 s{sK}, 0")
    sort(True)
    a("K_sorted:")
    poll_check("t", WS_FLG, FS)
    a("s_waitcnt lgkmcnt(0)\ns_barrier")
    st(9)
    fill_a()
    st(13)
    m48 = (f32(-float(SHIFT)) >> 16) * 0x10001
    for i in range(4):
        a(f"v_mov_b32 v{68+i}, {hex(m48)}\nv_mov_b32 v{72+i}, 0")
    a(f"""
    v_xor_b32 v{RA[1]}, 32, v{RA[0]}
    v_xor_b32 v{RA[2]}, 64, v{RA[0]}
    v_xor_b32 v{RA[3]}, 0x60, v{RA[0]}
    {MF} {vr(CI,16)}, {vr(PIND,4)}, v[68:71], 0
    s_sub_u32 s51, {N*256}, s{sXO}
    s_min_u32 s34, s51, {SB*256}
    s_add_u32 s32, s10, s{sXO}
    s_addc_u32 s33, s11, 0
    {MF} {ar(ACD,16)}, v[72:75], v[72:75], 0
    s_mov_b32 s{sCC}, {hex(f32(2.0**-SHIFT))}
    s_mov_b32 s{sCC+1}, {hex(f32(2.0**-SHIFT))}
    {MF} {ar(ACN,16)}, v[72:75], v[72:75], 0
    K_fillb:
    """)
    emit(tr_reads(0))
    fill_b()
    a(f"{mct}\ns_waitcnt lgkmcnt(0)")
    st(14)
    a("s_waitcnt vmcnt(5)\ns_barrier")
    emit(reads(0) + edma(3))
    a("s_waitcnt lgkmcnt(0)")
    d0 = dma(0)
    mm = mf_g(G[0]) + mf_h
    for t in range(4):
        emit([mm[t]] + d0[3*t:3*t+3])
    a(mm[4])
    st(10)
    a(f"""
    s_cmp_eq_u32 s{sSET}, 0
    s_barrier
    s_cbranch_scc1 K_lead
    s_barrier
    s_setprio 1
    K_lead:
    """)
    emit(load_seg(0) + comp_seg(0, first=True))
    a("s_branch K_loop1")
    a.l.append(".p2align 6")
    a("K_loop:")
    for u in range(4):
        if u == 1:
            a("K_loop1:")
        emit(load_seg(u) + comp_seg(u))
        if u == 1:
            a("s_cbranch_scc1 K_drain0")
        if u == 3:
            a("s_cbranch_scc0 K_loop")
    a("s_branch K_drain\nK_drain0:")
    emit([f"v_mov_b32 v{IND[1]+j}, v{IND[0]+j}" for j in range(4)])
    a(f"""
    K_drain:
    s_setprio 0
    s_cmp_lg_u32 s{sSET}, 0
    s_cbranch_scc1 K_done
    s_barrier
    K_done:
    """)
    emit(pk2(1) + cvts + ["s_nop 1"] + mf_red(1))
    st(11)
    a(f"""
    s_cmp_lg_u32 s{sMORE}, 0
    s_cbranch_scc1 K_again
    v_lshrrev_b32 v40, 5, v2
    v_and_b32 v41, 31, v2
    v_lshlrev_b32 v42, 2, v41
    v_lshl_add_u32 v42, v40, 9, v42
    v_add_u32 v42, s{sRING}, v42
    v_lshrrev_b32 v44, 4, v0
    v_bfe_u32 v45, v0, 2, 2
    v_lshlrev_b32 v45, 13, v45
    v_lshl_add_u32 v45, v44, 7, v45
    v_and_b32 v46, 3, v0
    v_lshl_add_u32 v45, v46, 5, v45
    v_add_u32 v45, {RING}, v45
    v_add_u32 v46, 0x8000, v45
    v_cmp_gt_u32 vcc, s{sVS}, v44
    v_lshlrev_b32 v43, 4, v0
    s_mov_b32 s50, {hex(f32(1e-6 * 2.0**SHIFT))}
    v_cndmask_b32 v45, v46, v45, vcc
    """)
    for r in range(16):
        a(f"v_accvgpr_read_b32 v{48+r}, a{ACD+r}")
    for r in range(16):
        a(f"v_add_f32 v{48+r}, s50, v{48+r}")
    for r in range(16):
        a(f"v_rcp_f32 v{48+r}, v{48+r}")
        a(f"v_accvgpr_read_b32 v{64+r}, a{ACN+r}")
    a("s_waitcnt vmcnt(0)")
    for r in range(16):
        a(f"v_mul_f32 v{48+r}, v{48+r}, v{64+r}")
        a(f"ds_write_b32 v42, v{48+r} offset:{128*(8*(r//4) + r % 4)}")
    a("s_mov_b32 s50, 0xffff0000\ns_mov_b32 s51, 8192")
    for i in range(2):
        for j in range(4):
            x = XR + 4*i + j
            a(f"v_lshlrev_b32 v{64+8*i+2*j}, 16, v{x}")
            a(f"v_and_b32 v{64+8*i+2*j+1}, s50, v{x}")
            a(f"v_accvgpr_read_b32 v{x}, a{AU+4*i+j}")
            a(f"v_lshlrev_b32 v{96+8*i+2*j}, 16, v{x}")
            a(f"v_and_b32 v{96+8*i+2*j+1}, s50, v{x}")
    a("""
    s_waitcnt lgkmcnt(0)
    s_barrier
    ds_read_b128 v[48:51], v45
    ds_read_b128 v[52:55], v45 offset:16
    ds_read_b128 v[56:59], v46
    ds_read_b128 v[60:63], v46 offset:16
    """)
    for i in range(2):
        a(f"s_waitcnt lgkmcnt({2-2*i})")
        for j in range(8):
            a(f"v_add_f32 v{48+8*i+j}, v{48+8*i+j}, v{96+8*i+j}")
        for j in range(8):
            a(f"v_max_f32 v{48+8*i+j}, 0, v{48+8*i+j}")
        for j in range(8):
            a(f"v_add_f32 v{48+8*i+j}, v{48+8*i+j}, v{64+8*i+j}")
        for j in range(4):
            a(f"v_cvt_pk_bf16_f32 v{80+4*i+j}, v{48+8*i+2*j}, v{48+8*i+2*j+1}")
        a(f"buffer_store_dwordx4 {vr(80+4*i,4)}, v43, s[32:35], {'s51' if i else '0'} offen {opt.get('ost','nt')}")
    if st.on:
        a("s_waitcnt vmcnt(0)")
        a(f"s_lshl_b32 s50, s{sS}, 1")
        a("v_writelane_b32 v205, s50, 15")
    st(12)
    st.flush()
    a("K_end:\ns_endpgm")
    a(f"""
    K_clr:
    s_waitcnt lgkmcnt(0)
    s_mov_b32 s20, s52
    s_mov_b32 s21, s53
    s_mov_b32 s12, s78
    s_mov_b32 s13, s79
    s_mov_b32 s14, {WS_END}
    s_mov_b32 s15, 0x20000
    s_mov_b32 s28, s76
    s_mov_b32 s29, s77
    s_movk_i32 s30, 256
    s_mov_b32 s31, 0x20000
    v_mov_b32 v8, 0
    v_mov_b32 v9, 0
    v_mov_b32 v10, 0
    v_mov_b32 v11, 0
    v_lshlrev_b32 v4, 7, v2
    s_mov_b32 s50, {WS_FLG}
    buffer_store_dwordx4 v[8:11], v4, s[12:15], s50 offen sc1
    """)
    emit(xdma(XP, SB*256) + xdma(ERING, 0))
    a(f"""
    v_and_b32 v12, 4, v2
    v_cmp_eq_u32 vcc, 0, v12
    v_mov_b32 v13, 0x71807180
    v_and_b32 v5, 0x1f0, v1
    v_cndmask_b32 v12, 0, v13, vcc
    v_mov_b32 v13, v12
    v_mov_b32 v14, v12
    v_mov_b32 v15, v12
    s_mov_b32 s50, {DUMMY*512}
    buffer_store_dwordx4 v[12:15], v5, s[12:15], s50 offen sc1
    s_branch K_np1
    K_pub:
    s_mov_b64 exec, 1
    s_waitcnt vmcnt({5 + nw})
    buffer_store_dword v{ONE}, off, s[28:31], 0 sc1
    s_mov_b64 exec, -1
    s_waitcnt vmcnt({nw + 1})
    s_branch K_np2
    """)
    a(f"""
    K_prod:
    """)
    a(f"""
    s_mov_b32 s20, s52
    s_mov_b32 s21, s53
    v_lshlrev_b32 v4, 2, v0
    v_mov_b32 v62, 0
    ds_write_b32 v4, v62
    v_mov_b32 v40, -1
    v_mov_b32 v41, -1
    v_mov_b32 v42, -1
    v_mov_b32 v43, -1
    """)
    for i in range(4):
        a(f"ds_write_b128 v1, v[40:43] offset:{IMG + 8192*i}")
    wm = opt.get("warm", 1)
    if wm:
        a(f"""
        s_getpc_b64 s[96:97]
        K_pc:
        s_sub_u32 s96, s96, K_pc-K_np1
        s_subb_u32 s97, s97, 0
        s_mov_b32 s92, K_codeend-K_np1-4
        s_cmp_eq_u32 s{sW}, 0
        s_cselect_b64 s[96:97], s[66:67], s[96:97]
        s_cmp_eq_u32 s{sW}, 1
        s_cselect_b64 s[96:97], s[72:73], s[96:97]
        s_cmp_eq_u32 s{sW}, 2
        s_cselect_b64 s[96:97], s[64:65], s[96:97]
        s_cmp_eq_u32 s{sW}, 3
        s_cselect_b64 s[96:97], s[70:71], s[96:97]
        s_cmp_lt_u32 s{sW}, 4
        s_cselect_b32 s92, 32764, s92
        s_lshr_b32 s93, s2, 4
        s_lshl_b32 s93, s93, 11
        v_lshl_add_u32 v4, v85, 7, s93
        v_min_u32 v4, s92, v4
        s_mov_b64 exec, 0xffff
        global_load_dword v60, v4, s[96:97]
        s_mov_b64 exec, -1
        """)
    common(64)
    a("s_waitcnt lgkmcnt(0)\ns_barrier")
    emit(xdma(ERING, 0))
    common2(a)
    emit(wcdma)
    own = opt.get("own", 0)
    if own:
        a(f"""
        s_lshl_b32 s50, s60, 20
        s_mul_i32 s51, s61, {SB*512}
        s_add_u32 s50, s50, s51
        s_add_u32 s16, s4, s50
        s_addc_u32 s17, s5, 0
        s_mov_b32 s18, {2*SB*512}
        s_mov_b32 s19, 0x20000
        v_lshlrev_b32 v4, 7, v0
        """)
        for i in range(own):
            a(f"buffer_atomic_or v62, v4, s[16:19], 0 offen offset:{64*i} sc1")
    wm += own
    a(f"""
    s_sub_u32 s90, s82, s88
    v_add_u32 v4, 8192, v1
    v_cmp_gt_u32 s[92:93], s90, v4
    s_lshl_b32 s56, s62, 7
    s_add_u32 s56, s56, {WS_SLOT}
    s_add_u32 s57, s56, {1 << 20}
    s_add_u32 s58, s56, {2 << 20}
    s_add_u32 s59, s56, {3 << 20}
    v_lshrrev_b32 v5, 3, v0
    v_and_b32 v61, 0x70, v1
    v_lshl_add_u32 v61, v5, 14, v61
    s_mov_b32 s91, {-SB & 0xffffffff}
    s_mov_b32 s96, {2048 - RG}
    v_mov_b32 v6, 4
    v_lshlrev_b32 v7, 22, v0
    v_mov_b32 v36, 0
    v_mov_b32 v37, 0
    v_mov_b32 v38, 0
    v_mov_b32 v39, 0
    v_add_u32 v{FX}, {ERING}, v{FX}
    """)
    for k in range(8):
        a(f"v_add_u32 v{68+k}, {hex(((2048*(k//4) + k % 4) << 20) & 0xffffffff)}, v7")
    for g in range(2):
        a(f"s_waitcnt vmcnt({6 - g + wm})")
        if g == 0:
            st(1)
        for j in range(4):
            d, t = 8 + 4*g + j, 24 + 4*g + j
            a(f"v_mul_u32_u24 v{44+4*g+j}, 21400, v{d}")
            a(f"v_lshrrev_b32 v{44+4*g+j}, 20, v{44+4*g+j}")
            a(f"v_lshlrev_b32 v{t}, 2, v{44+4*g+j}")
        if g:
            a("s_mov_b64 exec, s[92:93]")
        for j in range(4):
            a(f"ds_add_rtn_u32 v{32+4*g+j}, v{24+4*g+j}, v6")
    a(f"s_mov_b64 exec, -1\ns_waitcnt vmcnt({3 + wm})")
    wp = wdma()
    for k in range(8):
        s_, d = 16 + k, 8 + k
        a(f"v_mad_i32_i24 v{d}, v{44+k}, s91, v{d}")
        a(f"v_mul_u32_u24 v4, 21400, v{s_}")
        a(f"v_lshl_or_b32 v{d}, v{d}, 14, v{68+k}")
        a(f"v_lshrrev_b32 v4, 25, v4")
        a(f"v_mad_u32_u24 v{s_}, v4, s96, v{s_}")
        a(f"v_or_b32 v{s_}, v{d}, v{s_}")
    a("s_waitcnt lgkmcnt(0)")
    for k in range(8):
        if k == 4:
            a("s_mov_b64 exec, s[92:93]")
        a(f"v_add_u32 v4, v{32+k}, v{24+k}")
        a(f"v_and_b32 v4, 0x7f, v4")
        a(f"v_lshl_add_u32 v{44+k}, v{24+k}, 5, v4")
        a(f"ds_write_b32 v{44+k}, v{16+k} offset:{IMG}")
    a(f"""
    s_mov_b64 exec, -1
    v_or3_b32 v4, v32, v33, v34
    v_or3_b32 v5, v35, v36, v37
    v_or3_b32 v4, v4, v38, v39
    v_or_b32 v4, v4, v5
    v_cmp_lt_u32 vcc, 0x7f, v4
    s_mov_b64 exec, vcc
    ds_write_b32 v62, v6 offset:1024
    s_mov_b64 exec, -1
    s_waitcnt vmcnt({own}) lgkmcnt(0)
    s_barrier
    ds_read_b32 v4, v62 offset:1024
    """)
    OUTR = [8, 12, 68, 72]
    def img_reads():
        for i in range(4):
            a(f"ds_read_b128 {vr(OUTR[i],4)}, v1 offset:{IMG + 8192*i}")
    img_reads()
    a(f"""
    {ready_load}
    s_waitcnt lgkmcnt(4)
    v_readfirstlane_b32 s50, v4
    s_cmp_lg_u32 s50, 0
    s_cbranch_scc1 K_slow
    K_out:
    """)
    for i in range(4):
        a(f"s_waitcnt lgkmcnt({3-i})")
        a(f"buffer_store_dwordx4 {vr(OUTR[i],4)}, v61, s[12:15], s{56+i} offen sc1")
    st(2)
    for q in range(8):
        emit(xfrag(q))
    emit(misc + wp[:12])
    a(f"s_add_u32 s96, s97, {WS_FLG + 4096}\ns_mov_b32 s97, {OOB}\ns_waitcnt vmcnt(4) lgkmcnt(0)")
    ready_check("rp")
    a(f"""
    s_mov_b64 exec, 1
    s_barrier
    buffer_store_dword v{ONE}, off, s[12:15], s96 sc1
    s_mov_b64 exec, -1
    """)
    st(3)
    emit(wp[12:])
    lds_reset(True)
    emit(["s_waitcnt vmcnt(5)"] + wfrag(0) + wfrag(1) + wfrag(2) + wfrag(3))
    for q in range(8):
        if q == 2:
            emit(["s_waitcnt vmcnt(0)"] + wfrag(4) + wfrag(5) + wfrag(6) + wfrag(7))
        a(f"s_waitcnt lgkmcnt({6 - 2*q if q < 2 else 14 - 2*q})")
        emit([gm(q, 0, D1), gm(q, 1, D1)])
    a("s_branch K_join")


    a("""
    K_slow:
    v_lshlrev_b32 v5, 4, v2
    s_waitcnt lgkmcnt(0)
    ds_read_b128 v[8:11], v5
    s_waitcnt lgkmcnt(0)
    v_add_u32 v13, v8, v9
    v_add_u32 v14, v13, v10
    v_add_u32 v15, v14, v11
    v_mov_b32 v4, v15
    """)
    scan64(a, [4])
    a("""
    v_sub_u32 v40, v4, v15
    v_add_u32 v41, v40, v8
    v_add_u32 v42, v40, v13
    v_add_u32 v43, v40, v14
    ds_write_b128 v5, v[40:43] offset:2048
    """)
    for k in range(8):
        a(f"ds_read_b32 v{24+k}, v{24+k} offset:2048")
    a("s_waitcnt lgkmcnt(0)")
    for k in range(8):
        a(f"s_mov_b64 exec, {'s[92:93]' if k >= 4 else '-1'}")
        a(f"v_add_u32 v{24+k}, v{24+k}, v{32+k}")
        a(f"ds_write_b32 v{24+k}, v{16+k} offset:{STG}")
        a(f"v_cmp_gt_u32 vcc, 0x80, v{32+k}")
        a("s_mov_b64 exec, vcc")
        a(f"ds_write_b32 v{44+k}, v{16+k} offset:{IMG}")
    a(f"""
    s_mov_b64 exec, -1
    s_waitcnt lgkmcnt(0)
    s_barrier
    v_lshlrev_b32 v16, 4, v5
    v_and_b32 v16, {0x3800 if rot else 0}, v16
    v_or_b32 v16, {62 << 14}, v16
    """)
    for j in range(4):
        a(f"""
        v_add_u32 v12, {4*j}, v5
        v_add_u32 v13, 124, v12
        v_and_b32 v13, 0x7f, v13
        v_lshl_add_u32 v13, v12, 5, v13
        v_add_u32 v14, 120, v{40+j}
        v_lshl_or_b32 v14, v14, 18, v16
        v_add_u32 v15, -124, v{8+j}
        v_cmp_lt_u32 vcc, 0x80, v{8+j}
        s_mov_b64 exec, vcc
        ds_write_b32 v13, v14 offset:{IMG}
        ds_write_b32 v{40+j}, v15 offset:{STG + 120}
        s_mov_b64 exec, -1
        """)
    a(f"""
    ds_read_b128 v[16:19], v1 offset:{STG}
    ds_read_b128 v[20:23], v1 offset:{STG + 8192}
    s_add_u32 s50, s88, {WS_REC}
    s_add_u32 s80, s4, s50
    s_addc_u32 s81, s5, 0
    s_mov_b32 s82, s90
    s_movk_i32 s50, 8192
    s_waitcnt lgkmcnt(0)
    buffer_store_dwordx4 v[16:19], v1, s[80:83], 0 offen sc1
    buffer_store_dwordx4 v[20:23], v1, s[80:83], s50 offen sc1
    """)
    img_reads()
    a("s_branch K_out")

    zero_masks = lambda ks: [f"s_mov_b64 {sr(sM+2*k,2)}, 0" for k in ks]
    a("""
    K_again:
    s_waitcnt vmcnt(0) lgkmcnt(0)
    s_barrier
    """)
    lds_reset(True)
    a(f"""
    s_cmp_eq_u32 s{sMODE}, 3
    s_cbranch_scc1 K_next
    """)
    rec_loads()
    a(f"""
    s_waitcnt vmcnt(0)
    s_cmp_eq_u32 s{sMODE}, 1
    s_cbranch_scc0 K_marks
    s_mov_b32 s{sMODE}, 2
    s_mov_b64 s[56:57], 0
    """)
    classes(range(4, 8), True)
    emit(zero_masks(range(4)))
    a(f"""
    s_branch K_resort
    K_marks:
    s_mov_b32 s{sMODE}, 3
    v_mov_b32 v84, 0
    """)
    for k in range(8):
        a(f"""
        v_bfe_u32 v85, v{REC+k}, 14, 6
        v_cmp_eq_u32 vcc, 62, v85
        s_nop 1
        v_cndmask_b32 v84, v84, v{REC+k}, vcc
        """)
    a(f"""
    s_nop 1
    v_or_b32_dpp v84, v84, v84 quad_perm:[1,0,3,2] row_mask:0xf bank_mask:0xf
    s_nop 1
    v_or_b32_dpp v84, v84, v84 quad_perm:[2,3,0,1] row_mask:0xf bank_mask:0xf
    v_cmp_ne_u32 vcc, 0, v84
    v_lshrrev_b32 v84, 20, v84
    v_add_lshl_u32 v84, v84, v{PB}, 2
    s_mov_b32 s{sSTART}, {WS_REC}
    buffer_load_dword v{SLEN}, v84, s[12:15], s{sSTART} offen sc1
    v_add_u32 v{SEG}, v84, v{SIDX}
    s_mov_b32 s{sSTART}, {WS_REC + 4 - 64}
    s_waitcnt vmcnt(0)
    v_cndmask_b32 v{SLEN}, 0, v{SLEN}, vcc
    v_min_u32 v{SLEN}, {CH*4}, v{SLEN}
    v_add_u32 v{SLEN}, 64, v{SLEN}
    K_next:
    s_add_u32 s{sSTART}, s{sSTART}, 64
    v_add_u32 v{SLEN}, -64, v{SLEN}
    """)
    rec_loads(1)
    a(f"""
    v_cmp_lt_i32 s[56:57], 64, v{SLEN}
    v_sub_u32 v84, v{SLEN}, v{SIDX}
    """)
    for k in range(4):
        a(f"v_cmp_lt_i32 {sr(sM+2*k,2)}, {4*k}, v84")
    emit(zero_masks(range(4, 8)))
    a("K_resort:")
    list_ptrs()
    sort(False)
    a(f"""
    s_cmp_eq_u32 s{sMODE}, 2
    s_cselect_b32 s{sMORE}, s{sMARK}, s{sMORE}
    s_cmp_eq_u32 s{sMODE}, 1
    s_cselect_b32 s{sMORE}, 1, s{sMORE}
    s_cbranch_scc1 K_sorted
    s_waitcnt lgkmcnt(0)
    s_barrier
    """)
    fill_a()
    a(f"""
    s_branch K_fillb
    K_over:
    s_cmp_lg_u32 s{sMODE}, 0
    s_cbranch_scc1 K_end
    s_mov_b32 s{sMODE}, 1
    s_mov_b32 s{sMARK}, s{sMORE}
    s_mov_b64 s[56:57], 0
    s_waitcnt lgkmcnt(0)
    s_barrier
    """)
    lds_reset(False)
    emit(zero_masks(range(4, 8)))
    a("s_branch K_resort\nK_codeend:")
    d = desc(name, NV + 40, 100, NV)
    ln = f"; @launch grid=(256,1,1) block=(512,1,1) lds={LDS}\n"
    if opt.get("probe"):
        import gen
        ln = f"; @launch kernel={name} grid=(256,1,1) block=(512,1,1) lds={LDS}\n; @launch kernel=probe_kernel grid=(1,1,1) block=(64,1,1) lds=0\n"
        d += gen.gen_probe(a, opt)
    hdr = """; GatedGCN layer in one launch: each workgroup builds the table rows of its 49 nodes, half of them also
; partition a chunk of edges by destination bin; after two counted hand-offs every workgroup sorts its bin
; and runs the gate / aggregation loop.
""" + ln + '.amdgcn_target "amdgcn-amd-amdhsa--gfx950"\n.text\n'
    return hdr + a.text() + d

if __name__ == "__main__":
    opt = {}
    out = f"cdna_kernels/{NAME}.s"
    for x in sys.argv[1:]:
        k, v = x.split("=", 1)
        if k == "out":
            out = v
        else:
            opt[k] = int(v) if v.lstrip("-").isdigit() else v
    open(out, "w").write(generate(opt))
    print("wrote", out)
```

```python
import sys
from gen import (NAME, N, E, SB, CH, P, RG, DUMMY, WS_REC, WS_SLOT, WS_END, SHIFT, LOG2E, WS_STAMP, MF,
                 f32, Asm, vr, ar, sr, scan64, desc, head, Stamps)

TW0, TW1, TRASH = 2048, 4096, 6144
LIST = 7168
CAPS = 2560
LSET = CAPS * 8
ATAB = LIST + 2 * LSET
AST = 592
WCL = 77824
WS_FLG = 0xA00000
XP = ATAB
ERING = 81920
RING = 98304
LDS = RING + 65536
LIMIT = 2240 * 8
IMG, STG = 4096, 36864
SDW = "dst_sel:DWORD dst_unused:UNUSED_PAD"
OOB = 0x7000000

def generate(opt=None):
    opt = opt or {}
    a = Asm()
    name = NAME + "_kernel"
    cmask = {8: 0x7FC, 4: 0x7F8, 2: 0x7F0}[opt.get("R", 8)]
    tfl = opt.get("tfl", "sc1").replace("+", " ")
    tst = opt.get("tst", "sc1").replace("+", " ")
    head(a, name)
    st = Stamps(a, opt.get("stamp"), 205, WS_STAMP)
    SEL0, SEL1, PIND, WC, CI, CT = 4, 8, 12, 16, 20, 36
    G = [52, 68]; H = 84
    OE, OB0, OB1, OH0, OH1, OA = 100, 104, 108, 112, 116, 120
    IND = [124, 128]
    SS, MM, AS, AM, BD, BN = 132, 140, 148, 156, 164, 168
    IX, OF0, OF1, EP = 172, 176, 177, 178
    RA = [180, 181, 182, 183]
    EA, LI, LE, LP, TA0, TA1, TC = 184, 185, 186, 187, 188, 189, 190
    XR = 192
    SEG, SLEN, SIDX, PB = 200, 201, 202, 203
    NV = 208
    ACD, ACN, AU = 0, 16, 32
    sW, sSET, sTILE, sBIN = 3, 36, 37, 38
    sRING, sEM0, sS, sK, sVS, sSTART, sLUT, sMORE, s512 = 39, 40, 41, 42, 43, 44, 45, 46, 47
    sCC, sM, sMODE, sMARK, sXO, sPROD = 48, 64, 7, 9, 8, 6
    REC, CA, RK, BB, EN, T = 36, 44, 52, 60, 100, 76
    XF, WA, DA, SO, WCR = 100, 0, 36, 68, 164
    VW, FW, FX, FS, FR, FG, FA, FB, FU = 168, 169, 170, 171, 172, 173, 207, 204, 191
    ONE, PL = 206, 164

    def emit(lst):
        for x in lst:
            a(x)

    a("s_cmp_ge_u32 s2, 256\ns_cbranch_scc1 K_end")
    st(0)
    a(f"""
    s_load_dwordx8 s[52:59], s[0:1], 0
    s_load_dwordx16 s[64:79], s[0:1], 32
    v_lshrrev_b32 v1, 6, v0
    v_and_b32 v2, 63, v0
    v_readfirstlane_b32 s{sW}, v1
    s_and_b32 s60, s2, 7
    s_lshr_b32 s61, s2, 3
    s_lshl_b32 s50, s60, 5
    s_add_u32 s{sBIN}, s50, s61
    v_lshrrev_b32 v84, 4, v2
    v_and_b32 v85, 15, v2
    v_bfe_u32 v3, v0, 4, 4
    v_xor_b32 v3, v3, v85
    v_lshlrev_b32 v3, 4, v3
    v_lshl_add_u32 v3, v84, 8, v3
    v_lshlrev_b32 v1, 4, v0
    s_mul_i32 s{sXO}, s{sBIN}, {SB*256}
    s_lshl_b32 s90, s{sW}, 10
    s_add_u32 s51, s{sXO}, s90
    s_add_u32 s91, s51, 8192
    s_cmp_lt_u32 s{sW}, 5
    s_cselect_b32 s91, s91, {OOB}
    s_mov_b32 s22, {N*256}
    s_mov_b32 s23, 0x20000
    v_lshrrev_b32 v86, 2, v2
    v_and_b32 v87, 3, v2
    v_lshlrev_b32 v{VW}, 4, v87
    v_lshl_add_u32 v{VW}, v86, 8, v{VW}
    v_mov_b32 v{ONE}, 1
    s_lshr_b32 s50, s2, 4
    s_lshl_b32 s50, s50, 3
    s_add_u32 s62, s50, s60
    s_lshr_b32 s{sSET}, s{sW}, 2
    s_and_b32 s{sTILE}, s{sW}, 3
    s_mov_b32 s83, 0x20000
    s_mov_b32 s87, 0x20000
    s_bitcmp1_b32 s2, 3
    s_cbranch_scc1 K_np
    s_mul_i32 s88, s62, {CH*4}
    s_add_u32 s89, s88, 8192
    s_add_u32 s82, s88, {CH*4}
    s_min_u32 s82, s82, {E*4}
    s_mov_b32 s86, s82
    s_waitcnt lgkmcnt(0)
    s_mov_b32 s80, s58
    s_mov_b32 s81, s59
    s_mov_b32 s84, s56
    s_mov_b32 s85, s57
    buffer_load_dwordx4 v[8:11], v1, s[80:83], s88 offen
    buffer_load_dwordx4 v[12:15], v1, s[80:83], s89 offen
    buffer_load_dwordx4 v[16:19], v1, s[84:87], s88 offen
    buffer_load_dwordx4 v[20:23], v1, s[84:87], s89 offen
    s_branch K_prod
    K_np:
    """)
    def xdma(base, delta):
        o = []
        for i, so in enumerate(("s51", "s91")):
            o.append(f"s_add_u32 m0, s90, {base + 8192*i}")
            o.append(f"s_sub_u32 s50, {so}, {delta}")
            o.append("buffer_load_dwordx4 v3, s[20:23], s50 offen lds")
        return o
    def wdma():
        o = []
        for q in range(8):
            o += [f"s_add_u32 m0, s{sRING}, {1024*q}", f"s_add_u32 s89, s63, {4096*q}",
                  f"buffer_load_dwordx4 v{VW}, s[24:27], s89 offen lds"]
        return o
    wcdma = [f"s_lshl_b32 s89, s{sTILE}, 10", f"s_add_u32 m0, s89, {WCL}", "s_nop 0",
             f"buffer_load_dwordx4 v{VW}, s[32:35], s63 offen lds"]
    def common(first):
        a(f"""
        s_lshl_b32 s{sRING}, s{sW}, 13
        s_add_u32 s{sRING}, s{sRING}, {RING}
        s_lshl_b32 s63, s{sTILE}, 6
        s_cmp_eq_u32 s{sSET}, 0
        s_cselect_b32 s64, s64, s70
        s_cselect_b32 s65, s65, s71
        s_cselect_b32 s66, s66, s72
        s_cselect_b32 s67, s67, s73
        s_mov_b32 s24, s{first}
        s_mov_b32 s25, s{first+1}
        s_mov_b32 s26, 32768
        s_mov_b32 s27, 0x20000
        """)
    def common2(x):
        x(f"""
        s_mov_b32 s32, s68
        s_mov_b32 s33, s69
        s_mov_b32 s34, 4096
        s_mov_b32 s35, 0x20000
        s_mov_b32 s14, {WS_END}
        s_mov_b32 s15, 0x20000
        s_movk_i32 s30, 256
        s_mov_b32 s31, 0x20000
        s_mov_b32 s4, s78
        s_mov_b32 s5, s79
        s_mov_b32 s12, s78
        s_mov_b32 s13, s79
        s_mov_b32 s10, s74
        s_mov_b32 s11, s75
        s_mov_b32 s28, s76
        s_mov_b32 s29, s77
        v_lshrrev_b32 v88, 5, v2
        v_and_b32 v89, 31, v2
        v_lshrrev_b32 v90, 2, v85
        v_lshl_add_u32 v90, v88, 3, v90
        v_and_b32 v91, 1, v84
        v_lshlrev_b32 v91, 5, v91
        v_lshl_add_u32 v91, v87, 3, v91
        v_lshl_add_u32 v90, v90, 6, v91
        v_add_u32 v{FW}, s{sRING}, v90
        s_lshl_b32 s50, s{sTILE}, 10
        s_add_u32 s50, s50, {WCL}
        v_add_u32 v{WCR}, s50, v90
        v_xor_b32 v90, v88, v85
        v_lshlrev_b32 v90, 4, v90
        v_lshl_add_u32 v{FX}, v89, 8, v90
        v_lshlrev_b32 v93, 3, v88
        v_lshrrev_b32 v94, 4, v0
        v_xor_b32 v90, v94, v0
        v_and_b32 v90, 15, v90
        v_lshlrev_b32 v90, 4, v90
        v_lshl_add_u32 v{FU}, v94, 8, v90
        s_mov_b32 s94, {hex(f32(-LOG2E))}
        s_mov_b32 s95, {hex(f32(-LOG2E))}
        s_lshr_b32 s50, s62, 2
        s_lshl_b32 s50, s50, 7
        s_and_b32 s97, s2, 3
        s_lshl_b32 s97, s97, 2
        s_add_u32 s97, s97, s50
        s_cmp_eq_u32 s{sW}, 0
        s_cselect_b32 s97, s97, {OOB}
        s_cselect_b32 s{sPROD}, 0, {OOB}
        """)
    def wfrag(q):
        return [f"ds_read_b64_tr_b16 {ar(WA+4*q+2*z,2)}, v{FW} offset:{1024*q+256*z}" for z in range(2)]
    def xfrag(q, off=0):
        return [f"v_xor_b32 v3, {32*q}, v{FX}", f"ds_read_b128 {vr(XF+8*q,4)}, v3 offset:{off}",
                f"ds_read_b128 {vr(XF+8*q+4,4)}, v3 offset:{off+8192}"]
    misc = [f"v_add_u32 v3, {ERING}, v{FU}", f"ds_read_b128 {vr(XR,4)}, v3", f"ds_read_b128 {vr(XR+4,4)}, v3 offset:8192",
            f"ds_read_b64_tr_b16 {vr(WCR+2,2)}, v{WCR} offset:256", f"ds_read_b64_tr_b16 {vr(WCR,2)}, v{WCR}"]
    def gm(q, rt, base=DA):
        d = vr(base + 16*rt, 16)
        return f"{MF} {d}, {ar(WA+4*q,4)}, {vr(XF+8*q+4*rt,4)}, {'0' if q == 0 else d}"
    RDY = 99
    ready_load = f"buffer_load_dword v{RDY}, off, s[28:31], s{sPROD} sc1"
    def ready_check(tag):
        a(f"""
        s_cmp_lg_u32 s{sW}, 0
        s_cbranch_scc1 K_{tag}
        s_mov_b32 s50, 0
        K_{tag}_spin:
        v_cmp_eq_u32 vcc, 0, v{RDY}
        s_cbranch_vccz K_{tag}
        {ready_load}
        s_add_u32 s50, s50, 1
        s_cmp_lt_u32 s50, 0x40000
        s_waitcnt vmcnt(0)
        s_cbranch_scc1 K_{tag}_spin
        K_{tag}:
        """)
    D1 = 4
    def conv(rt, addrs, base=DA, mul=None, off=lambda j: 0):
        o = []
        for j in range(4):
            b_ = base + 16*rt + 4*j
            if mul:
                o += [f"v_mul_f32 v{b_+i}, {mul}, v{b_+i}" for i in range(4)]
            o += [f"v_cvt_pk_bf16_f32 v{b_}, v{b_}, v{b_+1}", f"v_cvt_pk_bf16_f32 v{b_+1}, v{b_+2}, v{b_+3}",
                  f"ds_write_b64 v{addrs[j]}, {vr(b_,2)} offset:{off(j)}"]
        return o

    def lds_reset(prefill):
        a(f"""
        v_lshlrev_b32 v76, 2, v0
        v_mov_b32 v77, 0
        ds_write_b32 v76, v77
        """)
        if prefill:
            a(f"""
            v_mov_b32 v76, {hex(DUMMY | (SB*AST) << 16)}
            v_mov_b32 v77, -1
            v_mov_b32 v78, v76
            v_mov_b32 v79, -1
            v_lshlrev_b32 v80, 4, v0
            """)
            for i in range(5):
                a(f"ds_write_b128 v80, v[76:79] offset:{LIST + 8192*i}")

    a(f"""
    s_or_b32 s50, s90, s2
    s_cmp_eq_u32 s50, {7*1024 + 8}
    s_cbranch_scc1 K_clr
    s_waitcnt lgkmcnt(0)
    s_mov_b32 s20, s52
    s_mov_b32 s21, s53
    """)
    emit(xdma(XP, SB*256) + xdma(ERING, 0))
    a("K_np1:")
    common(66)
    w1 = wdma()
    b = Asm()
    common2(b)
    b(f"""
    s_add_u32 s97, s97, {WS_FLG}
    """)
    FG1, FG3 = 174, 175
    b(f"""
    v_bfe_u32 v90, v2, 1, 2
    v_lshl_add_u32 v90, v90, 4, v93
    v_lshl_add_u32 v90, v89, 6, v90
    s_lshl_b32 s50, s{sW}, 11
    s_add_u32 s50, s50, {XP}
    v_add_u32 v{FS}, s50, v90
    v_bfe_u32 v90, v2, 3, 2
    v_xor_b32 v90, v90, v87
    v_lshl_add_u32 v90, v90, 4, s50
    v_lshl_add_u32 v{FR}, v86, 6, v90
    v_xor_b32 v95, 16, v{FS}
    v_xor_b32 v96, 32, v{FS}
    v_xor_b32 v97, 48, v{FS}
    s_lshl_b32 s56, s{sTILE}, 7
    s_lshl_b32 s51, s{sSET}, 6
    s_add_u32 s56, s56, s51
    s_mul_i32 s50, s{sBIN}, {SB}
    v_add_u32 v90, s50, v86
    v_and_b32 v98, 7, v90
    v_lshrrev_b32 v{FG1}, 3, v90
    v_lshl_or_b32 v{FG1}, v98, 11, v{FG1}
    v_lshl_add_u32 v{FG1}, v{FG1}, 5, v87
    v_lshlrev_b32 v{FG1}, 4, v{FG1}
    v_add_u32 v90, {-SB & 0xffffffff}, v90
    v_and_b32 v98, 7, v90
    v_lshrrev_b32 v{FG}, 3, v90
    v_lshl_or_b32 v{FG}, v98, 11, v{FG}
    v_lshl_add_u32 v{FG}, v{FG}, 5, v87
    v_lshlrev_b32 v{FG}, 4, v{FG}
    s_cmp_eq_u32 s{sSET}, 0
    s_cselect_b32 s96, s94, 1.0
    """)
    nw = opt.get("wearly", 3)
    a("s_barrier")
    emit(w1[:3*nw])
    lds_reset(True)
    cut = [i for i, l in enumerate(b.l) if f"v{FX}," in l][0] + 1
    a.l += b.l[:cut]
    later = [x.strip() for x in b.l[cut:]]
    a(f"""
    s_or_b32 s50, s90, s2
    s_cmp_eq_u32 s50, {7*1024 + 8}
    s_cbranch_scc1 K_pub
    s_waitcnt vmcnt({nw})
    K_np2:
    s_barrier
    """)
    st(1)
    emit(xfrag(0, XP) + xfrag(1, XP) + xfrag(2, XP) + xfrag(3, XP))
    w2 = wdma()
    ahead = opt.get("ahead", 5)
    seq = [w1[3*q:3*q+3] for q in range(8)] + [wcdma + ["s_mov_b32 s24, s64", "s_mov_b32 s25, s65"]] + \
          [w2[3*q:3*q+3] for q in range(8)]
    sent = [nw]
    def send(n):
        o = []
        while sent[0] < min(n, len(seq)):
            o += seq[sent[0]]
            sent[0] += 1
        return o
    landed = lambda i: f"s_waitcnt vmcnt({sent[0] - 1 - i})"
    SA = [FS, 95, 96, 97]
    emit(send(ahead))
    emit([landed(0)] + wfrag(0) + [landed(1)] + wfrag(1))
    for q in range(8):
        a(f"s_waitcnt lgkmcnt({[2, 4, 4, 4, 4, 4, 4, 2][q]})")
        a(gm(q, 0, D1))
        emit(send(ahead + q + 1))
        if q == 4:
            a(f"v_add_u32 v{FX}, {ERING}, v{FX}")
        emit(xfrag(q + 4, XP) if q < 4 else xfrag(q - 4))
        if q < 6:
            emit([landed(q + 2)] + wfrag(q + 2))
        a(gm(q, 1, D1))
        n_ = -(-len(later) // (8 - q))
        while n_ < len(later) and ("cselect" in later[n_] or "addc" in later[n_]):
            n_ += 1
        emit(later[:n_])
        later = later[n_:]
    st(2)
    a(landed(8))
    def stores(fg):
        o = [f"buffer_store_dwordx4 {vr(SO+4*i,4)}, v{fg}, s[12:15], s56 offen offset:{1024*i} {tst}" for i in range(4)]
        return o[:2], [o[2], "s_mov_b64 exec, 15", o[3], "s_mov_b64 exec, -1"]
    def cst(base):
        return conv(0, SA, base, "s96") + [f"ds_read_b128 {vr(SO+4*i,4)}, v{FR} offset:{1024*i}" for i in range(2)] + \
               conv(1, SA, base, "s96") + [f"ds_read_b128 {vr(SO+8+4*i,4)}, v{FR} offset:{1024*i}" for i in range(2)]
    slots = [[] for _ in range(16)]
    slots[0] = xfrag(4) + xfrag(5)
    slots[1] = xfrag(6) + xfrag(7)
    slots[2] = list(misc)
    slot3 = [[] for _ in range(16)]
    s1, s2_ = stores(FG), stores(FG1)
    c1, c2 = cst(D1), cst(DA)
    for i in range(10):
        slots[3 + i] = c1[6*i:6*i+6]
        slot3[1 + i] = c2[6*i:6*i+6]
    slots[9] += ["s_waitcnt lgkmcnt(1)"] + s1[0]
    slots[13] = ["s_waitcnt vmcnt(2)"] + wfrag(0) + wfrag(1) + wfrag(2) + wfrag(3)
    slots[14] = ["s_waitcnt lgkmcnt(8)"] + s1[1]
    slots[15] = wfrag(4) + wfrag(5) + wfrag(6)
    slot3[0] = wfrag(7) + ["s_nop 1"]
    slot3[7] += ["s_waitcnt lgkmcnt(1)"] + s2_[0]
    slot3[12] = ["s_waitcnt lgkmcnt(0)"] + s2_[1]
    w8, mid = 6, "s_waitcnt lgkmcnt(6)"
    for q in range(8):
        slots[q] += send(sent[0] + 1)
    assert sent[0] == len(seq)
    a("s_waitcnt lgkmcnt(0)\ns_barrier")
    for i in range(16):
        if i == 8:
            a(f"s_waitcnt lgkmcnt({w8})")
        a(gm(i // 2, i % 2))
        emit(slots[i])
    st(3)
    slot3[0] = [ready_load] + slot3[0]
    a(mid)
    for i in range(16):
        a(gm(i // 2, i % 2, D1))
        emit(slot3[i])
    a("s_waitcnt vmcnt(4)")
    ready_check("rn")
    a("s_barrier\nK_join:")
    st(4)
    def poll_check(tag, base, lanes, wave=0):
        a(f"""
        s_cmp_lg_u32 s{sW}, {wave}
        s_cbranch_scc1 K_{tag}_done
        s_mov_b32 s50, 0
        s_mov_b32 s51, {base}
        K_{tag}_spin:
        s_waitcnt vmcnt(0)
        v_and_b32 v{PL}, v{PL}, v{PL+1}
        v_and_b32 v{PL+2}, v{PL+2}, v{PL+3}
        v_and_b32 v{PL}, v{PL}, v{PL+2}
        v_cmp_ne_u32 vcc, 1, v{PL}
        s_cbranch_vccz K_{tag}_done
        s_add_u32 s50, s50, 1
        s_cmp_lt_u32 s50, 0x40000
        buffer_load_dwordx4 {vr(PL,4)}, v{lanes}, s[12:15], s51 offen sc1
        s_cbranch_scc1 K_{tag}_spin
        K_{tag}_done:
        """)
    def list_ptrs():
        a(f"""
        s_mul_i32 s50, s{sSET}, {LSET}
        s_add_u32 s50, s50, {LIST}
        v_and_b32 v84, 0x28, v2
        v_bfe_u32 v85, v2, 4, 1
        v_add_u32 v84, v84, v85
        v_lshl_add_u32 v{LI}, v84, 3, s50
        v_and_b32 v84, 12, v2
        v_and_b32 v86, 32, v2
        v_lshl_add_u32 v84, v84, 1, v86
        v_lshl_add_u32 v{LP}, v84, 3, s50
        v_and_b32 v84, 10, v2
        v_bfe_u32 v87, v2, 2, 1
        v_lshl_add_u32 v84, v84, 2, v87
        s_lshr_b32 s51, s{sTILE}, 1
        s_lshl_b32 s51, s51, 5
        s_add_u32 s50, s50, s51
        s_and_b32 s51, s{sTILE}, 1
        s_lshl_b32 s51, s51, 7
        s_add_u32 s50, s50, s51
        v_lshl_add_u32 v{LE}, v84, 3, s50
        """)
    PL = 68
    a(f"""
    v_lshlrev_b32 v{FS}, 7, v89
    v_lshrrev_b32 v95, 2, v0
    v_lshlrev_b32 v{SIDX}, 4, v87
    v_lshl_add_u32 v{SEG}, v95, 7, v{SIDX}
    v_mul_u32_u24 v92, {AST}, v89
    s_lshl_b32 s{sSTART}, s{sBIN}, 14
    s_add_u32 s{sSTART}, s{sSTART}, {WS_SLOT}
    s_cmp_lg_u32 s{sSET}, 0
    s_cbranch_scc1 K_uaddr
    v_cmp_gt_u32 s[72:73], {SB - 31}, v89
    s_lshl_b32 s51, s{sTILE}, 7
    s_add_u32 s51, s51, {ATAB}
    v_add3_u32 v52, v92, v93, s51
    s_cmp_lg_u32 s{sW}, 0
    s_cbranch_scc1 K_nopoll
    s_mov_b32 s50, {WS_FLG + 4096}
    buffer_load_dwordx4 {vr(PL,4)}, v{FS}, s[12:15], s50 offen sc1
    K_nopoll:
    """)
    for i in range(16):
        a(f"v_pk_mul_f32 {vr(D1+2*i,2)}, {vr(D1+2*i,2)}, s[94:95]")
    emit(conv(0, [52]*4, D1, None, lambda j: 16*j))
    a("s_mov_b64 exec, s[72:73]")
    emit(conv(1, [52]*4, D1, None, lambda j: 16*j + 32*AST))
    a(f"""
    s_mov_b64 exec, -1
    s_branch K_conv
    K_uaddr:
    v_and_b32 v45, 63, v95
    v_and_b32 v46, 31, v95
    v_lshlrev_b32 v47, 3, v87
    v_sub_u32 v46, v46, v47
    v_cmp_eq_u32 s[90:91], {SB}, v45
    v_mov_b32 v47, 64
    v_cmp_ge_u32 s[92:93], {SB}, v45
    v_cndmask_b32 v46, v46, v47, s[90:91]
    v_and_b32 v47, 1, v46
    v_lshlrev_b32 v47, 4, v47
    v_mov_b32 v48, 0x3f80
    v_lshlrev_b32 v47, v47, v48
    v_ashrrev_i32 v46, 1, v46
    v_cmp_eq_u32 s[64:65], 0, v46
    v_cmp_eq_u32 s[66:67], 1, v46
    v_cmp_eq_u32 s[68:69], 2, v46
    v_cmp_eq_u32 s[70:71], 3, v46
    v_cndmask_b32 v48, 0, v47, s[64:65]
    v_cndmask_b32 v49, 0, v47, s[66:67]
    v_cndmask_b32 v50, 0, v47, s[68:69]
    v_cndmask_b32 v51, 0, v47, s[70:71]
    v_mul_u32_u24 v46, {AST}, v45
    v_add_u32 v46, v46, v{SIDX}
    s_mov_b64 exec, s[92:93]
    """)
    for t in range(4):
        a(f"ds_write_b128 v46, v[48:51] offset:{ATAB+128*t+64}")
    a(f"""
    s_mov_b64 exec, -1
    v_bfe_u32 v52, v2, 1, 2
    v_lshl_add_u32 v52, v52, 4, v93
    v_lshl_add_u32 v52, v89, 6, v52
    v_add_u32 v52, s{sRING}, v52
    """)
    for j in range(1, 4):
        a(f"v_xor_b32 v{52+j}, {16*j}, v52")
    emit(conv(0, [52, 53, 54, 55], D1) + conv(1, [52, 53, 54, 55], D1, None, lambda j: 2048))
    a("K_conv:")
    st(5)
    def rec_loads(n=2):
        a(f"buffer_load_dwordx4 {vr(REC,4)}, v{SEG}, s[12:15], s{sSTART} offen sc1")
        if n == 2:
            a(f"buffer_load_dwordx4 {vr(REC+4,4)}, v{SEG}, s[12:15], s{sSTART} offen offset:64 sc1")
    poll_check("s", WS_FLG + 4096, FS)
    a("s_waitcnt vmcnt(0) lgkmcnt(0)\ns_barrier")
    rec_loads()
    a(f"""
    s_mov_b64 exec, 1
    buffer_store_dword v{ONE}, off, s[12:15], s97 sc1
    s_mov_b64 exec, -1
    """)
    st(6)
    PL = 164
    a(f"s_mov_b32 s51, 0xffff0000\nv_mul_u32_u24 v{PB}, {CH}, v95")
    for j in range(4):
        a(f"""
        v_lshlrev_b32 v20, 16, v{WCR+j}
        v_and_b32 v21, s51, v{WCR+j}
        v_pk_mul_f32 v[20:21], v[20:21], s[94:95]
        v_cvt_pk_bf16_f32 v{WC+j}, v20, v21
        """)
    a(f"""
    v_lshl_add_u32 v3, v88, 4, v92
    ds_read_b128 {vr(SEL0,4)}, v3 offset:{ATAB + 64}
    ds_read_b128 {vr(SEL1,4)}, v3 offset:{ATAB + 96}
    v_lshrrev_b32 v90, 3, v89
    v_and_b32 v96, 1, v89
    v_lshl_add_u32 v90, v90, 1, v96
    v_and_b32 v96, 4, v89
    v_lshl_add_u32 v90, v96, 1, v90
    v_mul_u32_u24 v90, {AST}, v90
    v_lshl_add_u32 v3, v88, 4, v90
    ds_read_b128 {vr(PIND,4)}, v3 offset:{ATAB + 64}
    s_lshl_b32 s50, s{sTILE}, 7
    s_add_u32 s51, s50, {ATAB}
    v_add_u32 v{TC}, s51, v91
    v_and_b32 v90, 7, v2
    v_xor_b32 v90, v90, v84
    v_lshl_add_u32 v{OF0}, v90, 4, s50
    v_xor_b32 v{OF1}, 64, v{OF0}
    v_bfe_u32 v90, v0, 2, 2
    v_lshlrev_b32 v90, 13, v90
    v_lshl_add_u32 v90, v94, 6, v90
    v_bfe_u32 v96, v0, 5, 2
    v_xor_b32 v96, v96, v87
    v_lshl_add_u32 v90, v96, 4, v90
    v_add_u32 v3, {RING + 32768}, v90
    ds_read_b128 {ar(AU,4)}, v3
    ds_read_b128 {ar(AU+4,4)}, v3 offset:2048
    v_bfe_u32 v90, v89, 1, 3
    v_xor_b32 v90, v90, v88
    v_lshlrev_b32 v90, 4, v90
    v_lshl_add_u32 v90, v89, 7, v90
    v_add_u32 v{RA[0]}, s{sRING}, v90
    """)
    list_ptrs()
    a(f"""
    v_xor_b32 v84, v85, v88
    v_lshlrev_b32 v84, 4, v84
    v_lshl_add_u32 v84, v89, 5, v84
    s_lshl_b32 s50, s{sSET}, 12
    s_add_u32 s50, s50, {ERING}
    v_add_u32 v{EA}, s50, v84
    s_lshl_b32 s51, s{sTILE}, 8
    s_add_u32 s{sEM0}, s50, s51
    s_lshr_b32 s51, s{sTILE}, 1
    v_xor_b32 v84, s51, v2
    v_and_b32 v84, 1, v84
    v_lshlrev_b32 v{EP+1}, 4, v84
    s_mov_b32 s16, s54
    s_or_b32 s17, s55, {hex(32 << 16)}
    s_mov_b32 s18, {opt.get('erows', E)}
    s_mov_b32 s19, 0x20000
    s_mov_b32 s{s512}, 512
    s_mov_b32 s{sMODE}, 0
    """)

    def classes(ks, with_masks):
        a(f"s_movk_i32 s51, {63*32}\ns_movk_i32 s50, {cmask}")
        for k in ks:
            a(f"v_lshrrev_b32 v{CA+k}, 9, v{REC+k}")
            a(f"v_and_b32 v{CA+k}, s50, v{CA+k}")
            if with_masks:
                a(f"v_cmp_gt_u32 {sr(sM+2*k,2)}, s51, v{CA+k}")

    PW = 7
    def sort(first):
        tg = "a" if first else "b"
        a(f"""
        v_mov_b32 v{T+1}, 8
        v_lshlrev_b32 v{T}, 5, v2
        """)
        if first:
            a("s_waitcnt vmcnt(1)")
            st(7)
        else:
            a(f"""
            v_mov_b32 v{T+2}, 0
            s_waitcnt vmcnt(0) lgkmcnt(0)
            s_barrier
            s_mov_b64 exec, s[56:57]
            ds_write_b32 v{T+2}, v{T+1} offset:{62*32}
            s_mov_b64 exec, -1
            """)
        classes(range(8), first)
        for k in range(8):
            a(f"s_mov_b64 exec, {sr(sM+2*k,2)}")
            a(f"ds_add_rtn_u32 v{RK+k}, v{CA+k}, v{T+1}")
        a(f"s_mov_b64 exec, -1\ns_movk_i32 s50, {AST*4}")
        hi, lo, ew = [], [], []
        for k in range(8):
            e = EN + 2*k
            hi += [f"v_lshrrev_b32 v{e+1}, 20, v{REC+k}", f"v_add_u32 v{e+1}, v{e+1}, v{PB}"]
            lo += [f"v_and_b32 v{e}, 0x3fff, v{REC+k}", f"v_and_b32 v3, 0xfc000, v{REC+k}", f"v_mad_u32_u24 v{e}, v3, s50, v{e}"]
            ew += [f"v_and_b32 v3, 28, v{CA+k}", f"v_cmp_gt_u32 vcc, {4*opt.get('ewarm', 2)}, v3",
                   f"s_and_b64 exec, vcc, {sr(sM+2*k,2)}", f"buffer_load_dword v{SLEN}, v{e+1}, s[16:19], 0 idxen",
                   "s_mov_b64 exec, -1"]
        if not (first and opt.get("ewarm", 2)):
            ew = []
        c, W1, U, n, I, X, L, Z = 116, 124, 132, 136, 140, 144, 148, 152
        Tt = lambda i: W1 + 2*i
        Dd = lambda i: W1 + 2*i + 1
        t0, t1, run = T+2, T+3, T+4
        emit(hi + ew[:20])
        a(f"""
        s_cmp_eq_u32 s{sW}, 0
        s_waitcnt lgkmcnt(0)
        s_barrier
        s_cbranch_scc1 K_scan{tg}
        """)
        emit(ew[20:] + lo)
        if first and not opt.get("ppos", 0):
            a(f"""
            s_cmp_lg_u32 s{sW}, {PW}
            s_cbranch_scc1 K_scanned{tg}
            s_mov_b32 s50, {WS_FLG}
            buffer_load_dwordx4 {vr(PL,4)}, v{FS}, s[12:15], s50 offen sc1
            """)
        a(f"""
        s_branch K_scanned{tg}
        K_scan{tg}:
        ds_read_b128 {vr(c,4)}, v{T}
        ds_read_b128 {vr(c+4,4)}, v{T} offset:16
        s_setprio 1
        s_mov_b32 s51, 0xffe0ffe0
        s_waitcnt lgkmcnt(0)
        v_readlane_b32 s{sMORE}, v{c}, 62
        v_writelane_b32 v{c}, 0, 62
        """)
        for r in range(1, 8):
            a(f"v_add_u32 v{c+r}, v{c+r-1}, v{c+r}")
        for i in range(4):
            a(f"v_lshl_or_b32 v{Dd(i)}, v{c+2*i+1}, 16, v{c+2*i}")
        for i in range(4):
            a(f"v_add_u32 v{U+i}, 0x001f001f, v{Dd(i)}")
        for i in range(4):
            a(f"v_and_b32 v{U+i}, s51, v{U+i}")
        for i in range(4):
            a(f"v_lshlrev_b32 v{n}, 16, v{U}" if i == 0 else f"v_alignbit_b32 v{n+i}, v{U+i}, v{U+i-1}, 16")
        for i in range(4):
            a(f"v_sub_u32 v{I+i}, v{U+i}, v{n+i}")
        steps = [("row_shr:1", "0xf"), ("row_shr:2", "0xf"), ("row_shr:4", "0xf"), ("row_shr:8", "0xf"),
                 ("row_bcast:15", "0xa"), ("row_bcast:31", "0xc")]
        for ctl, m_ in steps:
            for i in range(4):
                a(f"v_add_u32_dpp v{I+i}, v{I+i}, v{I+i} {ctl} row_mask:{m_} bank_mask:0xf")
        side = [f"v_sub_u32 v{n+i}, v{U+i}, v{n+i}" for i in range(4)] + [f"v_sub_u32 v{X+i}, v{I+i}, v{n+i}" for i in range(4)]
        if first:
            a(f"""
            v_add_u32 v{t0}, v{I}, v{I+1}
            v_add3_u32 v{t0}, v{t0}, v{I+2}, v{I+3}
            v_add_u32_sdwa v{t0}, v{t0}, v{t0} {SDW} src0_sel:WORD_0 src1_sel:WORD_1
            v_lshrrev_b32 v{t1}, 16, v{U+3}
            v_readlane_b32 s50, v{t0}, 63
            v_lshlrev_b32 v{t0}, 1, v{t0}
            v_sub_u32 v{t0}, v{t0}, v{t1}
            v_cmp_ge_u32 vcc, s50, v{t0}
            """)
            emit(side[:4])
            a(f"""
            s_bcnt1_i32_b64 s50, vcc
            s_max_u32 s50, s50, 17
            s_min_u32 s{sVS}, s50, 32
            """)
            emit(side[4:])
        else:
            emit(side)
        for i in range(4):
            a(f"v_readlane_b32 s{84+i}, v{I+i}, 63")
        for i in range(4):
            a(f"v_readlane_b32 s{80+i}, v{X+i}, s{sVS}")
        a(f"v_cmp_le_u32 vcc, s{sVS}, v2")
        for i in range(4):
            a(f"v_sub_u32 v{Dd(i)}, v{U+i}, v{Dd(i)}")
        for i in range(4):
            a(f"v_mov_b32 v{L+i}, s{80+i}")
        for i in range(4):
            a(f"v_sub_u32 v{Z+i}, s{84+i}, v{L+i}")
            a(f"v_cndmask_b32 v{U+i}, 0, v{L+i}, vcc")
        a(f"v_mov_b32 v{t0}, {hex(LIST * 0x10001)}\nv_mov_b32 v{t1}, {hex((LIST + LSET) * 0x10001)}")
        for i in range(4):
            a(f"v_cndmask_b32 v{L+i}, v{L+i}, v{Z+i}, vcc")
        a(f"v_cndmask_b32 v{run}, v{t0}, v{t1}, vcc\ns_mov_b32 s51, 0x03020302")
        for i in range(4):
            a(f"v_lshlrev_b32 v{Tt(0)}, 16, v{Dd(0)}" if i == 0 else f"v_alignbit_b32 v{Tt(i)}, v{Dd(i)}, v{Dd(i-1)}, 16")
            a(f"v_sub_u32 v{X+i}, v{X+i}, v{U+i}")
        a(f"ds_write_b128 v{T}, {vr(W1,4)} offset:{TW1}\nds_write_b128 v{T}, {vr(W1+4,4)} offset:{TW1+16}")
        for i in range(4):
            a(f"v_lshl_add_u32 v{t0}, v{L+i}, 16, v{run}")
            a(f"v_pk_min_u16 v{Z+i}, v{n+i}, 1 op_sel_hi:[1,0]")
            a(f"v_add_u32 v{t1}, v{t0}, v{L+i}")
            a(f"v_add_u32 v{X+i}, v{X+i}, v{t0}")
            a(f"v_perm_b32 v{run}, v{t1}, v{t1}, s51")
        for i in range(4):
            a(f"v_add_u32 v{I+i}, v{X+i}, v{n+i}")
            a(f"v_sub_u32 v{c+2*i}, v{X+i}, v{Tt(i)}")
        a(f"v_readlane_b32 s56, v{run}, 0\nv_readlane_b32 s57, v{run}, 63")
        for i in range(4):
            a(f"v_pk_mul_lo_u16 v{Z+i}, v{Z+i}, v{I+i}")
            a(f"v_lshrrev_b32 v{c+2*i+1}, 16, v{c+2*i}")
        a(f"v_and_b32 v{t0}, 0xffff, v{Z}\ns_movk_i32 s51, {TRASH}")
        for r in range(1, 8):
            a(f"v_sub_u16_sdwa v{c+r}, v{t0}, v{W1+r} dst_sel:WORD_1 dst_unused:UNUSED_PRESERVE src0_sel:WORD_0 src1_sel:WORD_0")
            if r < 7:
                a(f"v_max_u32_sdwa v{t0}, v{t0}, v{Z+r//2} {SDW} src0_sel:DWORD src1_sel:WORD_{r % 2}")
        a(f"""
        v_writelane_b32 v{c}, s51, 62
        ds_write_b128 v{T}, {vr(c,4)} offset:{TW0}
        ds_write_b128 v{T}, {vr(c+4,4)} offset:{TW0+16}
        """)
        a(f"""
        s_lshr_b32 s56, s56, 16
        s_lshr_b32 s57, s57, 16
        s_sub_u32 s57, s57, {LSET}
        s_max_u32 s50, s56, s57
        v_mov_b32 v{Z}, s50
        v_mov_b32 v{Z+1}, s{sVS}
        v_mov_b32 v{Z+2}, s{sMORE}
        ds_write_b96 v{T+1}, {vr(Z,3)} offset:{63*32 - 8}
        s_setprio 0
        s_waitcnt lgkmcnt(0)
        K_scanned{tg}:
        s_cmp_lg_u32 s{sW}, 0
        s_barrier
        ds_read_b96 {vr(Z,3)}, v{T+1} offset:{63*32 - 8}
        """)
        if first:
            st(8)
        for k in range(8):
            a(f"ds_read2st64_b32 {vr(BB+2*k,2)}, v{CA+k} offset0:{TW0//256} offset1:{TW1//256}")
        a(f"s_cbranch_scc1 K_rest{tg}\ns_movk_i32 s50, {AST*4}")
        emit(lo + ew[20:])
        a(f"""
        K_rest{tg}:
        """)
        if first and opt.get("ppos", 0):
            a(f"""
            s_cmp_lg_u32 s{sW}, {PW}
            s_cbranch_scc1 K_nop2
            s_mov_b32 s50, {WS_FLG}
            buffer_load_dwordx4 {vr(PL,4)}, v{FS}, s[12:15], s50 offen sc1
            K_nop2:
            """)
        a(f"""
        s_waitcnt lgkmcnt(8)
        v_readfirstlane_b32 s50, v{Z}
        v_readfirstlane_b32 s{sVS}, v{Z+1}
        v_readfirstlane_b32 s{sMORE}, v{Z+2}
        s_cmp_le_u32 s50, {LIST + LIMIT}
        s_cbranch_scc0 K_over
        s_sub_u32 s50, s50, {LIST - 511}
        s_lshr_b32 s50, s50, 9
        s_max_u32 s{sS}, s50, 1
        """)
        for k0 in (0, 4):
            a(f"s_waitcnt lgkmcnt({4 - k0})")
            for k in range(k0, k0 + 4):
                a(f"v_cmp_lt_u32_sdwa {sr(80+2*(k % 4),2)}, v{RK+k}, v{BB+2*k+1} src0_sel:DWORD src1_sel:WORD_0")
                a(f"v_lshrrev_b32 v{BB+2*k+1}, 16, v{BB+2*k}")
            for k in range(k0, k0 + 4):
                a(f"v_cndmask_b32 v{BB+2*k}, v{BB+2*k}, v{BB+2*k+1}, {sr(80+2*(k % 4),2)}")
                a(f"v_add_u32_sdwa v{RK+k}, v{RK+k}, v{BB+2*k} {SDW} src0_sel:DWORD src1_sel:WORD_0")
        for k in range(8):
            a(f"s_mov_b64 exec, {sr(sM+2*k,2)}")
            a(f"ds_write_b64 v{RK+k}, {vr(EN+2*k,2)}")
        a("s_mov_b64 exec, -1")

    def idx_reads(blk, sub):
        o = 128*blk + 4*sub
        return [f"ds_read2_b32 {vr(IX,2)}, v{LI} offset0:{o} offset1:{o+32}",
                f"ds_read2_b32 {vr(IX+2,2)}, v{LI} offset0:{o+8} offset1:{o+40}"]
    def dma(slot):
        o = []
        for t in range(4):
            o.append(f"s_add_u32 m0, s{sRING}, {4096*slot + 1024*t}")
            o.append(f"v_mad_u32_u16 v{IX+t}, v{IX+t}, s{s512}, v{OF1 if t % 2 else OF0}")
            o.append(f"buffer_load_dwordx4 v{IX+t}, s[12:15], 0 offen {tfl} lds")
        return o
    def edma(step):
        return [f"s_add_u32 m0, s{sEM0}, {1024*(step % 4)}", "s_mov_b64 exec, 0xffff",
                f"buffer_load_dwordx4 {vr(EP,2)}, s[16:19], 0 idxen offen {opt.get('eflag','')} lds", "s_mov_b64 exec, -1"]
    def eid_read(step, dst=None):
        return [f"ds_read_b32 v{dst or EP}, v{LE} offset:{512*(step // 2) + 16*(step % 2) + 4}"]
    def pn_read(blk):
        return [f"ds_read2_b32 {vr(TA0,2)}, v{LP} offset0:{128*blk} offset1:{128*blk+8}"]
    ta = [f"v_add_u32_sdwa v{x}, v{x}, v{TC} {SDW} src0_sel:WORD_1 src1_sel:DWORD" for x in (TA0, TA1)]
    def reads(step):
        s = step % 2
        o = [f"ds_read_b128 {vr(OE,4)}, v{EA} offset:{1024*(step % 4)}"]
        o += [f"ds_read_b128 {vr(r,4)}, v{RA[i]} offset:{4096*s}" for i, r in enumerate((OB0, OB1, OH0, OH1))]
        return o
    def tr_reads(blk):
        i = IND[blk % 2]
        return [f"ds_read_b64_tr_b16 {vr(OA,2)}, v{TA0}", f"ds_read_b64_tr_b16 {vr(OA+2,2)}, v{TA1}",
                f"ds_read_b64_tr_b16 {vr(i,2)}, v{TA0} offset:64", f"ds_read_b64_tr_b16 {vr(i+2,2)}, v{TA1} offset:64"]
    mct = f"{MF} {vr(CT,16)}, {vr(PIND,4)}, {vr(OA,4)}, {vr(CI,16)}"
    def mf_g(g):
        d = vr(g, 16)
        return [f"{MF} {d}, {vr(OE,4)}, {vr(WC,4)}, {vr(CT,16)}",
                f"{MF} {d}, {vr(OB0,4)}, {vr(SEL0,4)}, {d}",
                f"{MF} {d}, {vr(OB1,4)}, {vr(SEL1,4)}, {d}"]
    mf_h = [f"{MF} {vr(H,16)}, {vr(OH0,4)}, {vr(SEL0,4)}, 0",
            f"{MF} {vr(H,16)}, {vr(OH1,4)}, {vr(SEL1,4)}, {vr(H,16)}"]
    def mf_red(i):
        return [f"{MF} {ar(ACD,16)}, {vr(IND[i],4)}, {vr(BD,4)}, {ar(ACD,16)}",
                f"{MF} {ar(ACN,16)}, {vr(IND[i],4)}, {vr(BN,4)}, {ar(ACN,16)}"]
    cvts = [f"v_cvt_pk_bf16_f32 v{BD+j}, v{AS+2*j}, v{AS+2*j+1}" for j in range(4)] + \
           [f"v_cvt_pk_bf16_f32 v{BN+j}, v{AM+2*j}, v{AM+2*j+1}" for j in range(4)]
    def pk(op, d, *s):
        return f"v_pk_{op}_f32 {vr(d,2)}, " + ", ".join(x if isinstance(x, str) else vr(x, 2) for x in s)
    def pk2(k):
        g = G[k % 2]
        o = []
        for dst, src in ((AS, SS), (AM, MM)):
            for j in range(4):
                if k % 2 == 0:
                    o.append(pk("mul", dst+2*j, src+2*j, g+4*j))
                else:
                    o.append(pk("fma", dst+2*j, src+2*j, g+4*j, dst+2*j))
        return o
    def load_seg(u):
        o = eid_read(u + 4) + idx_reads(*[(1, 1), (0, 0), (0, 1), (1, 0)][u])
        o += pn_read(u // 2) if u % 2 == 0 else tr_reads((u + 1) // 2)
        o += ["s_waitcnt vmcnt(5)"] + reads(u + 1)
        adv = {0: LI, 2: LP, 3: LE}.get(u)
        if adv:
            o += [f"v_add_u32 v{adv}, 0x400, v{adv}"]
        o += ["s_waitcnt lgkmcnt(5)"] + edma(u) + ["s_waitcnt lgkmcnt(0)"] + dma((u + 1) % 2)
        if u % 2 == 0:
            o += ta
        else:
            o += [f"s_add_u32 s{sK}, s{sK}, 1", f"s_cmp_ge_u32 s{sK}, s{sS}"]
        return o + ["s_setprio 0", "s_barrier"]
    def comp_seg(u, first=False):
        g, gn = G[u % 2], G[(u + 1) % 2]
        ex = [f"v_exp_f32 v{g+r}, v{g+r} clamp" for r in range(16)]
        mg = mf_g(gn)
        if first:
            o = [mg[0]] + ex[:3] + [mg[1]] + ex[3:6] + [mg[2]] + ex[6:]
        elif u % 2 == 0:
            mr = mf_red((u // 2 - 1) % 2)
            o = pk2(u - 1) + [mg[0]] + cvts[:6] + [mg[1]] + cvts[6:] + ex[:2] + [mg[2]] + ex[2:5] + \
                [mr[0]] + ex[5:8] + [mr[1]] + ex[8:]
        else:
            o = pk2(u - 1) + [mct] + ex[:3] + [mg[0]] + ex[3:6] + [mg[1]] + ex[6:9] + [mg[2]] + ex[9:]
        for j in range(4):
            b_ = g + 4*j
            o += [pk("add", b_, b_, sr(sCC, 2)), pk("add", b_+2, b_+2, sr(sCC, 2))]
        for j in range(4):
            b_, hh = g + 4*j, H + 4*j
            o += [pk("mul", MM+2*j, hh, b_+2), pk("add", SS+2*j, b_, b_+2), pk("fma", MM+2*j, hh+2, b_, MM+2*j), pk("mul", b_, b_, b_+2)]
        rc = [f"v_rcp_f32 v{g+4*j+i}, v{g+4*j+i}" for j in range(4) for i in range(2)]
        o += [mf_h[0]] + rc[:3] + [mf_h[1]] + rc[3:]
        pos = len(o) - opt.get("bpos", 2)
        return o[:pos] + ["s_setprio 1", "s_barrier"] + o[pos:]

    def fill_a():
        emit(eid_read(0) + eid_read(1, 1) + idx_reads(0, 0) + pn_read(0))
        a("s_waitcnt lgkmcnt(0)")
        emit(edma(0) + [f"v_mov_b32 v{EP}, v1"] + edma(1) + dma(0))
        emit(eid_read(2) + idx_reads(0, 1) + ta)
    def fill_b():
        a("s_waitcnt lgkmcnt(0)")
        emit(edma(2) + dma(1) + eid_read(3) + idx_reads(1, 0))
        a(f"v_add_u32 v{LP}, 0x200, v{LP}\ns_mov_b32 s{sK}, 0")
    sort(True)
    a("K_sorted:")
    poll_check("t", WS_FLG, FS, PW)
    a("s_waitcnt lgkmcnt(0)\ns_barrier")
    st(9)
    fill_a()
    st(13)
    m48 = (f32(-float(SHIFT)) >> 16) * 0x10001
    for i in range(4):
        a(f"v_mov_b32 v{68+i}, {hex(m48)}\nv_mov_b32 v{72+i}, 0")
    a(f"""
    v_xor_b32 v{RA[1]}, 32, v{RA[0]}
    v_xor_b32 v{RA[2]}, 64, v{RA[0]}
    v_xor_b32 v{RA[3]}, 0x60, v{RA[0]}
    {MF} {vr(CI,16)}, {vr(PIND,4)}, v[68:71], 0
    s_sub_u32 s51, {N*256}, s{sXO}
    s_min_u32 s34, s51, {SB*256}
    s_add_u32 s32, s10, s{sXO}
    s_addc_u32 s33, s11, 0
    {MF} {ar(ACD,16)}, v[72:75], v[72:75], 0
    s_mov_b32 s{sCC}, {hex(f32(2.0**-SHIFT))}
    s_mov_b32 s{sCC+1}, {hex(f32(2.0**-SHIFT))}
    {MF} {ar(ACN,16)}, v[72:75], v[72:75], 0
    K_fillb:
    """)
    emit(tr_reads(0))
    fill_b()
    a(f"{mct}\ns_waitcnt lgkmcnt(0)")
    st(14)
    a("s_waitcnt vmcnt(5)\ns_barrier")
    emit(reads(0) + edma(3))
    a("s_waitcnt lgkmcnt(0)")
    d0 = dma(0)
    mm = mf_g(G[0]) + mf_h
    for t in range(4):
        emit([mm[t]] + d0[3*t:3*t+3])
    a(mm[4])
    st(10)
    a(f"""
    s_cmp_eq_u32 s{sSET}, 0
    s_barrier
    s_cbranch_scc1 K_lead
    s_barrier
    s_setprio 1
    K_lead:
    """)
    emit(load_seg(0) + comp_seg(0, first=True))
    a("s_branch K_loop1")
    a.l.append(".p2align 6")
    a("K_loop:")
    for u in range(4):
        if u == 1:
            a("K_loop1:")
        emit(load_seg(u) + comp_seg(u))
        if u == 1:
            a("s_cbranch_scc1 K_drain0")
        if u == 3:
            a("s_cbranch_scc0 K_loop")
    a("s_branch K_drain\nK_drain0:")
    emit([f"v_mov_b32 v{IND[1]+j}, v{IND[0]+j}" for j in range(4)])
    a(f"""
    K_drain:
    s_setprio 0
    s_cmp_lg_u32 s{sSET}, 0
    s_cbranch_scc1 K_done
    s_barrier
    K_done:
    """)
    emit(pk2(1) + cvts + ["s_nop 1"] + mf_red(1))
    st(11)
    a(f"""
    s_cmp_lg_u32 s{sMORE}, 0
    s_cbranch_scc1 K_again
    v_lshrrev_b32 v40, 5, v2
    v_and_b32 v41, 31, v2
    v_lshlrev_b32 v42, 2, v41
    v_lshl_add_u32 v42, v40, 9, v42
    v_add_u32 v42, s{sRING}, v42
    v_lshrrev_b32 v44, 4, v0
    v_bfe_u32 v45, v0, 2, 2
    v_lshlrev_b32 v45, 13, v45
    v_lshl_add_u32 v45, v44, 7, v45
    v_and_b32 v46, 3, v0
    v_lshl_add_u32 v45, v46, 5, v45
    v_add_u32 v45, {RING}, v45
    v_add_u32 v46, 0x8000, v45
    v_cmp_gt_u32 vcc, s{sVS}, v44
    v_lshlrev_b32 v43, 4, v0
    s_mov_b32 s50, {hex(f32(1e-6 * 2.0**SHIFT))}
    v_cndmask_b32 v45, v46, v45, vcc
    """)
    for r in range(16):
        a(f"v_accvgpr_read_b32 v{48+r}, a{ACD+r}")
    for r in range(16):
        a(f"v_add_f32 v{48+r}, s50, v{48+r}")
    for r in range(16):
        a(f"v_rcp_f32 v{48+r}, v{48+r}")
        a(f"v_accvgpr_read_b32 v{64+r}, a{ACN+r}")
    a("s_waitcnt vmcnt(0)")
    for r in range(16):
        a(f"v_mul_f32 v{48+r}, v{48+r}, v{64+r}")
        a(f"ds_write_b32 v42, v{48+r} offset:{128*(8*(r//4) + r % 4)}")
    a("s_mov_b32 s50, 0xffff0000\ns_mov_b32 s51, 8192")
    for i in range(2):
        for j in range(4):
            x = XR + 4*i + j
            a(f"v_lshlrev_b32 v{64+8*i+2*j}, 16, v{x}")
            a(f"v_and_b32 v{64+8*i+2*j+1}, s50, v{x}")
            a(f"v_accvgpr_read_b32 v{x}, a{AU+4*i+j}")
            a(f"v_lshlrev_b32 v{96+8*i+2*j}, 16, v{x}")
            a(f"v_and_b32 v{96+8*i+2*j+1}, s50, v{x}")
    a("""
    s_waitcnt lgkmcnt(0)
    s_barrier
    ds_read_b128 v[48:51], v45
    ds_read_b128 v[52:55], v45 offset:16
    ds_read_b128 v[56:59], v46
    ds_read_b128 v[60:63], v46 offset:16
    """)
    for i in range(2):
        a(f"s_waitcnt lgkmcnt({2-2*i})")
        for j in range(8):
            a(f"v_add_f32 v{48+8*i+j}, v{48+8*i+j}, v{96+8*i+j}")
        for j in range(8):
            a(f"v_max_f32 v{48+8*i+j}, 0, v{48+8*i+j}")
        for j in range(8):
            a(f"v_add_f32 v{48+8*i+j}, v{48+8*i+j}, v{64+8*i+j}")
        for j in range(4):
            a(f"v_cvt_pk_bf16_f32 v{80+4*i+j}, v{48+8*i+2*j}, v{48+8*i+2*j+1}")
        a(f"buffer_store_dwordx4 {vr(80+4*i,4)}, v43, s[32:35], {'s51' if i else '0'} offen {opt.get('ost','nt')}")
    if st.on:
        a("s_waitcnt vmcnt(0)")
        a(f"s_lshl_b32 s50, s{sS}, 1")
        a("v_writelane_b32 v205, s50, 15")
    st(12)
    st.flush()
    a("K_end:\ns_endpgm")
    a(f"""
    K_clr:
    s_waitcnt lgkmcnt(0)
    s_mov_b32 s20, s52
    s_mov_b32 s21, s53
    s_mov_b32 s12, s78
    s_mov_b32 s13, s79
    s_mov_b32 s14, {WS_END}
    s_mov_b32 s15, 0x20000
    s_mov_b32 s28, s76
    s_mov_b32 s29, s77
    s_movk_i32 s30, 256
    s_mov_b32 s31, 0x20000
    v_mov_b32 v8, 0
    v_mov_b32 v9, 0
    v_mov_b32 v10, 0
    v_mov_b32 v11, 0
    v_lshlrev_b32 v4, 7, v2
    s_mov_b32 s50, {WS_FLG}
    buffer_store_dwordx4 v[8:11], v4, s[12:15], s50 offen sc1
    """)
    emit(xdma(XP, SB*256) + xdma(ERING, 0))
    a(f"""
    v_and_b32 v12, 4, v2
    v_cmp_eq_u32 vcc, 0, v12
    v_mov_b32 v13, 0x71807180
    v_and_b32 v5, 0x1f0, v1
    v_cndmask_b32 v12, 0, v13, vcc
    v_mov_b32 v13, v12
    v_mov_b32 v14, v12
    v_mov_b32 v15, v12
    s_mov_b32 s50, {DUMMY*512}
    buffer_store_dwordx4 v[12:15], v5, s[12:15], s50 offen sc1
    s_branch K_np1
    K_pub:
    s_mov_b64 exec, 1
    s_waitcnt vmcnt({5 + nw})
    buffer_store_dword v{ONE}, off, s[28:31], 0 sc1
    s_mov_b64 exec, -1
    s_waitcnt vmcnt({nw + 1})
    s_branch K_np2
    """)
    a(f"""
    K_prod:
    """)
    a(f"""
    s_mov_b32 s20, s52
    s_mov_b32 s21, s53
    v_lshlrev_b32 v4, 2, v0
    v_mov_b32 v62, 0
    ds_write_b32 v4, v62
    v_mov_b32 v40, -1
    v_mov_b32 v41, -1
    v_mov_b32 v42, -1
    v_mov_b32 v43, -1
    """)
    for i in range(4):
        a(f"ds_write_b128 v1, v[40:43] offset:{IMG + 8192*i}")
    wm = opt.get("warm", 1)
    if wm:
        a(f"""
        s_getpc_b64 s[96:97]
        K_pc:
        s_sub_u32 s96, s96, K_pc-K_np1
        s_subb_u32 s97, s97, 0
        s_mov_b32 s92, K_codeend-K_np1-4
        s_cmp_eq_u32 s{sW}, 0
        s_cselect_b64 s[96:97], s[66:67], s[96:97]
        s_cmp_eq_u32 s{sW}, 1
        s_cselect_b64 s[96:97], s[72:73], s[96:97]
        s_cmp_eq_u32 s{sW}, 2
        s_cselect_b64 s[96:97], s[64:65], s[96:97]
        s_cmp_eq_u32 s{sW}, 3
        s_cselect_b64 s[96:97], s[70:71], s[96:97]
        s_cmp_lt_u32 s{sW}, 4
        s_cselect_b32 s92, 32764, s92
        s_lshr_b32 s93, s2, 4
        s_lshl_b32 s93, s93, 11
        v_lshl_add_u32 v4, v85, 7, s93
        v_min_u32 v4, s92, v4
        s_mov_b64 exec, 0xffff
        global_load_dword v60, v4, s[96:97]
        s_mov_b64 exec, -1
        """)
    common(64)
    a("s_waitcnt lgkmcnt(0)\ns_barrier")
    emit(xdma(ERING, 0))
    common2(a)
    emit(wcdma)
    a(f"""
    s_sub_u32 s90, s82, s88
    v_add_u32 v4, 8192, v1
    v_cmp_gt_u32 s[92:93], s90, v4
    s_lshl_b32 s56, s62, 7
    s_add_u32 s56, s56, {WS_SLOT}
    s_add_u32 s57, s56, {1 << 20}
    s_add_u32 s58, s56, {2 << 20}
    s_add_u32 s59, s56, {3 << 20}
    v_lshrrev_b32 v5, 3, v0
    v_and_b32 v61, 0x70, v1
    v_lshl_add_u32 v61, v5, 14, v61
    s_mov_b32 s91, {-SB & 0xffffffff}
    v_mov_b32 v6, 4
    v_lshlrev_b32 v7, 22, v0
    v_mov_b32 v36, 0
    v_mov_b32 v37, 0
    v_mov_b32 v38, 0
    v_mov_b32 v39, 0
    v_add_u32 v{FX}, {ERING}, v{FX}
    """)
    for k in range(8):
        a(f"v_add_u32 v{68+k}, {hex(((2048*(k//4) + k % 4) << 20) & 0xffffffff)}, v7")
    for g in range(2):
        a(f"s_waitcnt vmcnt({6 - g + wm})")
        if g == 0:
            st(1)
        for j in range(4):
            d, t = 8 + 4*g + j, 24 + 4*g + j
            a(f"v_mul_u32_u24 v{44+4*g+j}, 21400, v{d}")
            a(f"v_lshrrev_b32 v{44+4*g+j}, 20, v{44+4*g+j}")
            a(f"v_lshlrev_b32 v{t}, 2, v{44+4*g+j}")
        if g:
            a("s_mov_b64 exec, s[92:93]")
        for j in range(4):
            a(f"ds_add_rtn_u32 v{32+4*g+j}, v{24+4*g+j}, v6")
    a(f"s_mov_b64 exec, -1\ns_waitcnt vmcnt({3 + wm})")
    wp = wdma()
    for k in range(8):
        s_, d = 16 + k, 8 + k
        a(f"v_mad_i32_i24 v{d}, v{44+k}, s91, v{d}")
        a(f"v_and_b32 v4, 7, v{s_}")
        a(f"v_lshl_or_b32 v{d}, v{d}, 3, v4")
        a(f"v_lshrrev_b32 v{s_}, 3, v{s_}")
        a(f"v_lshl_or_b32 v{d}, v{d}, 11, v{68+k}")
        a(f"v_or_b32 v{s_}, v{d}, v{s_}")
    a("s_waitcnt lgkmcnt(0)")
    for k in range(8):
        if k == 4:
            a("s_mov_b64 exec, s[92:93]")
        a(f"v_add_u32 v4, v{32+k}, v{24+k}")
        a(f"v_and_b32 v4, 0x7f, v4")
        a(f"v_lshl_add_u32 v{44+k}, v{24+k}, 5, v4")
        a(f"ds_write_b32 v{44+k}, v{16+k} offset:{IMG}")
    a(f"""
    s_mov_b64 exec, -1
    v_or3_b32 v4, v32, v33, v34
    v_or3_b32 v5, v35, v36, v37
    v_or3_b32 v4, v4, v38, v39
    v_or_b32 v4, v4, v5
    v_cmp_lt_u32 vcc, 0x7f, v4
    s_mov_b64 exec, vcc
    ds_write_b32 v62, v6 offset:1024
    s_mov_b64 exec, -1
    s_waitcnt vmcnt(0) lgkmcnt(0)
    s_barrier
    ds_read_b32 v4, v62 offset:1024
    """)
    OUTR = [8, 12, 68, 72]
    def img_reads():
        for i in range(4):
            a(f"ds_read_b128 {vr(OUTR[i],4)}, v1 offset:{IMG + 8192*i}")
    img_reads()
    a(f"""
    {ready_load}
    s_waitcnt lgkmcnt(4)
    v_readfirstlane_b32 s50, v4
    s_cmp_lg_u32 s50, 0
    s_cbranch_scc1 K_slow
    K_out:
    """)
    for i in range(4):
        a(f"s_waitcnt lgkmcnt({3-i})")
        a(f"buffer_store_dwordx4 {vr(OUTR[i],4)}, v61, s[12:15], s{56+i} offen sc1")
    st(2)
    for q in range(8):
        emit(xfrag(q))
    wb = opt.get("wbefore", 3)
    emit(misc + wp[:3*wb])
    a(f"s_add_u32 s96, s97, {WS_FLG + 4096}\ns_mov_b32 s97, {OOB}\ns_waitcnt vmcnt({wb}) lgkmcnt(0)")
    ready_check("rp")
    a(f"""
    s_mov_b64 exec, 1
    s_barrier
    buffer_store_dword v{ONE}, off, s[12:15], s96 sc1
    s_mov_b64 exec, -1
    """)
    st(3)
    emit(wp[3*wb:])
    lds_reset(True)
    left = lambda q: 7 - q + (1 if q < wb else 0)
    emit([f"s_waitcnt vmcnt({left(0)})"] + wfrag(0))
    for q in range(8):
        if q < 7:
            emit([f"s_waitcnt vmcnt({left(q + 1)})"] + wfrag(q + 1))
        a(f"s_waitcnt lgkmcnt({2 if q < 7 else 0})")
        emit([gm(q, 0, D1), gm(q, 1, D1)])
    a("s_branch K_join")


    a("""
    K_slow:
    v_lshlrev_b32 v5, 4, v2
    s_waitcnt lgkmcnt(0)
    ds_read_b128 v[8:11], v5
    s_waitcnt lgkmcnt(0)
    v_add_u32 v13, v8, v9
    v_add_u32 v14, v13, v10
    v_add_u32 v15, v14, v11
    v_mov_b32 v4, v15
    """)
    scan64(a, [4])
    a("""
    v_sub_u32 v40, v4, v15
    v_add_u32 v41, v40, v8
    v_add_u32 v42, v40, v13
    v_add_u32 v43, v40, v14
    ds_write_b128 v5, v[40:43] offset:2048
    """)
    for k in range(8):
        a(f"ds_read_b32 v{24+k}, v{24+k} offset:2048")
    a("s_waitcnt lgkmcnt(0)")
    for k in range(8):
        a(f"s_mov_b64 exec, {'s[92:93]' if k >= 4 else '-1'}")
        a(f"v_add_u32 v{24+k}, v{24+k}, v{32+k}")
        a(f"ds_write_b32 v{24+k}, v{16+k} offset:{STG}")
        a(f"v_cmp_gt_u32 vcc, 0x80, v{32+k}")
        a("s_mov_b64 exec, vcc")
        a(f"ds_write_b32 v{44+k}, v{16+k} offset:{IMG}")
    a(f"""
    s_mov_b64 exec, -1
    s_waitcnt lgkmcnt(0)
    s_barrier
    v_mov_b32 v16, {62 << 14}
    """)
    for j in range(4):
        a(f"""
        v_add_u32 v12, {4*j}, v5
        v_add_u32 v13, 124, v12
        v_and_b32 v13, 0x7f, v13
        v_lshl_add_u32 v13, v12, 5, v13
        v_add_u32 v14, 120, v{40+j}
        v_lshl_or_b32 v14, v14, 18, v16
        v_add_u32 v15, -124, v{8+j}
        v_cmp_lt_u32 vcc, 0x80, v{8+j}
        s_mov_b64 exec, vcc
        ds_write_b32 v13, v14 offset:{IMG}
        ds_write_b32 v{40+j}, v15 offset:{STG + 120}
        s_mov_b64 exec, -1
        """)
    a(f"""
    ds_read_b128 v[16:19], v1 offset:{STG}
    ds_read_b128 v[20:23], v1 offset:{STG + 8192}
    s_add_u32 s50, s88, {WS_REC}
    s_add_u32 s80, s4, s50
    s_addc_u32 s81, s5, 0
    s_mov_b32 s82, s90
    s_movk_i32 s50, 8192
    s_waitcnt lgkmcnt(0)
    buffer_store_dwordx4 v[16:19], v1, s[80:83], 0 offen sc1
    buffer_store_dwordx4 v[20:23], v1, s[80:83], s50 offen sc1
    """)
    img_reads()
    a("s_branch K_out")

    zero_masks = lambda ks: [f"s_mov_b64 {sr(sM+2*k,2)}, 0" for k in ks]
    a("""
    K_again:
    s_waitcnt vmcnt(0) lgkmcnt(0)
    s_barrier
    """)
    lds_reset(True)
    a(f"""
    s_cmp_eq_u32 s{sMODE}, 3
    s_cbranch_scc1 K_next
    """)
    rec_loads()
    a(f"""
    s_waitcnt vmcnt(0)
    s_cmp_eq_u32 s{sMODE}, 1
    s_cbranch_scc0 K_marks
    s_mov_b32 s{sMODE}, 2
    s_mov_b64 s[56:57], 0
    """)
    classes(range(4, 8), True)
    emit(zero_masks(range(4)))
    a(f"""
    s_branch K_resort
    K_marks:
    s_mov_b32 s{sMODE}, 3
    v_mov_b32 v84, 0
    """)
    for k in range(8):
        a(f"""
        v_bfe_u32 v85, v{REC+k}, 14, 6
        v_cmp_eq_u32 vcc, 62, v85
        s_nop 1
        v_cndmask_b32 v84, v84, v{REC+k}, vcc
        """)
    a(f"""
    s_nop 1
    v_or_b32_dpp v84, v84, v84 quad_perm:[1,0,3,2] row_mask:0xf bank_mask:0xf
    s_nop 1
    v_or_b32_dpp v84, v84, v84 quad_perm:[2,3,0,1] row_mask:0xf bank_mask:0xf
    v_cmp_ne_u32 vcc, 0, v84
    v_lshrrev_b32 v84, 20, v84
    v_add_lshl_u32 v84, v84, v{PB}, 2
    s_mov_b32 s{sSTART}, {WS_REC}
    buffer_load_dword v{SLEN}, v84, s[12:15], s{sSTART} offen sc1
    v_add_u32 v{SEG}, v84, v{SIDX}
    s_mov_b32 s{sSTART}, {WS_REC + 4 - 64}
    s_waitcnt vmcnt(0)
    v_cndmask_b32 v{SLEN}, 0, v{SLEN}, vcc
    v_min_u32 v{SLEN}, {CH*4}, v{SLEN}
    v_add_u32 v{SLEN}, 64, v{SLEN}
    K_next:
    s_add_u32 s{sSTART}, s{sSTART}, 64
    v_add_u32 v{SLEN}, -64, v{SLEN}
    """)
    rec_loads(1)
    a(f"""
    v_cmp_lt_i32 s[56:57], 64, v{SLEN}
    v_sub_u32 v84, v{SLEN}, v{SIDX}
    """)
    for k in range(4):
        a(f"v_cmp_lt_i32 {sr(sM+2*k,2)}, {4*k}, v84")
    emit(zero_masks(range(4, 8)))
    a("K_resort:")
    list_ptrs()
    sort(False)
    a(f"""
    s_cmp_eq_u32 s{sMODE}, 2
    s_cselect_b32 s{sMORE}, s{sMARK}, s{sMORE}
    s_cmp_eq_u32 s{sMODE}, 1
    s_cselect_b32 s{sMORE}, 1, s{sMORE}
    s_cbranch_scc1 K_sorted
    s_waitcnt lgkmcnt(0)
    s_barrier
    """)
    fill_a()
    a(f"""
    s_branch K_fillb
    K_over:
    s_cmp_lg_u32 s{sMODE}, 0
    s_cbranch_scc1 K_end
    s_mov_b32 s{sMODE}, 1
    s_mov_b32 s{sMARK}, s{sMORE}
    s_mov_b64 s[56:57], 0
    s_waitcnt lgkmcnt(0)
    s_barrier
    """)
    lds_reset(False)
    emit(zero_masks(range(4, 8)))
    a("s_branch K_resort\nK_codeend:")
    d = desc(name, NV + 40, 100, NV)
    ln = f"; @launch grid=(256,1,1) block=(512,1,1) lds={LDS}\n"
    if opt.get("probe"):
        import gen
        ln = f"; @launch kernel={name} grid=(256,1,1) block=(512,1,1) lds={LDS}\n; @launch kernel=probe_kernel grid=(1,1,1) block=(64,1,1) lds=0\n"
        d += gen.gen_probe(a, opt)
    hdr = """; GatedGCN layer in one launch: each workgroup builds the table rows of its 49 nodes, half of them also
; partition a chunk of edges by destination bin; after two counted hand-offs every workgroup sorts its bin
; and runs the gate / aggregation loop.
""" + ln + '.amdgcn_target "amdgcn-amd-amdhsa--gfx950"\n.text\n'
    return hdr + a.text() + d

if __name__ == "__main__":
    opt = {}
    out = f"cdna_kernels/{NAME}.s"
    for x in sys.argv[1:]:
        k, v = x.split("=", 1)
        if k == "out":
            out = v
        else:
            opt[k] = int(v) if v.lstrip("-").isdigit() else v
    open(out, "w").write(generate(opt))
    print("wrote", out)
```

```python
import sys
from gen import (NAME, N, E, SB, CH, P, RG, DUMMY, WS_REC, WS_SLOT, WS_END, SHIFT, LOG2E, WS_STAMP, MF,
                 f32, Asm, vr, ar, sr, scan64, desc, head, Stamps)

TW0, TW1, TRASH = 2048, 4096, 6144
LIST = 7168
CAPS = 2560
LSET = CAPS * 8
ATAB = LIST + 2 * LSET
AST = 592
WCL = 77824
WS_FLG = 0xA00000
XP = ATAB
ERING = 81920
RING = 98304
LDS = RING + 65536
LIMIT = 2240 * 8
IMG, STG = 4096, 36864
SDW = "dst_sel:DWORD dst_unused:UNUSED_PAD"
OOB = 0x7000000

def generate(opt=None):
    opt = opt or {}
    a = Asm()
    name = NAME + "_kernel"
    cmask = {8: 0x7FC, 4: 0x7F8, 2: 0x7F0}[opt.get("R", 8)]
    tfl = opt.get("tfl", "sc1").replace("+", " ")
    tst = opt.get("tst", "sc1").replace("+", " ")
    head(a, name)
    st = Stamps(a, opt.get("stamp"), 205, WS_STAMP)
    SEL0, SEL1, PIND, WC, CI, CT = 4, 8, 12, 16, 20, 36
    G = [52, 68]; H = 84
    OE, OB0, OB1, OH0, OH1, OA = 100, 104, 108, 112, 116, 120
    IND = [124, 128]
    SS, MM, AS, AM, BD, BN = 132, 140, 148, 156, 164, 168
    IX, OF0, OF1, EP = 172, 176, 177, 178
    RA = [180, 181, 182, 183]
    EA, LI, LE, LP, TA0, TA1, TC = 184, 185, 186, 187, 188, 189, 190
    XR = 192
    SEG, SLEN, SIDX, PB = 200, 201, 202, 203
    NV = 208
    ACD, ACN, AU = 0, 16, 32
    sW, sSET, sTILE, sBIN = 3, 36, 37, 38
    sRING, sEM0, sS, sK, sVS, sSTART, sLUT, sMORE, s512 = 39, 40, 41, 42, 43, 44, 45, 46, 47
    sCC, sM, sMODE, sMARK, sXO, sPROD = 48, 64, 7, 9, 8, 6
    REC, CA, RK, BB, EN, T = 36, 44, 52, 60, 100, 76
    XF, WA, DA, SO, WCR = 100, 0, 36, 68, 164
    VW, FW, FX, FS, FR, FG, FA, FB, FU = 168, 169, 170, 171, 172, 173, 207, 204, 191
    ONE, PL = 206, 164

    def emit(lst):
        for x in lst:
            a(x)

    a("s_cmp_ge_u32 s2, 256\ns_cbranch_scc1 K_end")
    st(0)
    a(f"""
    s_load_dwordx8 s[52:59], s[0:1], 0
    s_load_dwordx16 s[64:79], s[0:1], 32
    v_lshrrev_b32 v1, 6, v0
    v_and_b32 v2, 63, v0
    v_readfirstlane_b32 s{sW}, v1
    s_and_b32 s60, s2, 7
    s_lshr_b32 s61, s2, 3
    s_lshl_b32 s50, s60, 5
    s_add_u32 s{sBIN}, s50, s61
    v_lshrrev_b32 v84, 4, v2
    v_and_b32 v85, 15, v2
    v_bfe_u32 v3, v0, 4, 4
    v_xor_b32 v3, v3, v85
    v_lshlrev_b32 v3, 4, v3
    v_lshl_add_u32 v3, v84, 8, v3
    v_lshlrev_b32 v1, 4, v0
    s_mul_i32 s{sXO}, s{sBIN}, {SB*256}
    s_lshl_b32 s90, s{sW}, 10
    s_add_u32 s51, s{sXO}, s90
    s_add_u32 s91, s51, 8192
    s_cmp_lt_u32 s{sW}, 5
    s_cselect_b32 s91, s91, {OOB}
    s_mov_b32 s22, {N*256}
    s_mov_b32 s23, 0x20000
    v_lshrrev_b32 v86, 2, v2
    v_and_b32 v87, 3, v2
    v_lshlrev_b32 v{VW}, 4, v87
    v_lshl_add_u32 v{VW}, v86, 8, v{VW}
    v_mov_b32 v{ONE}, 1
    s_lshr_b32 s50, s2, 4
    s_lshl_b32 s50, s50, 3
    s_add_u32 s62, s50, s60
    s_lshr_b32 s{sSET}, s{sW}, 2
    s_and_b32 s{sTILE}, s{sW}, 3
    s_mov_b32 s83, 0x20000
    s_mov_b32 s87, 0x20000
    s_bitcmp1_b32 s2, 3
    s_cbranch_scc1 K_np
    s_mul_i32 s88, s62, {CH*4}
    s_add_u32 s89, s88, 8192
    s_add_u32 s82, s88, {CH*4}
    s_min_u32 s82, s82, {E*4}
    s_mov_b32 s86, s82
    s_waitcnt lgkmcnt(0)
    s_mov_b32 s80, s58
    s_mov_b32 s81, s59
    s_mov_b32 s84, s56
    s_mov_b32 s85, s57
    buffer_load_dwordx4 v[8:11], v1, s[80:83], s88 offen
    buffer_load_dwordx4 v[12:15], v1, s[80:83], s89 offen
    buffer_load_dwordx4 v[16:19], v1, s[84:87], s88 offen
    buffer_load_dwordx4 v[20:23], v1, s[84:87], s89 offen
    s_branch K_prod
    K_np:
    """)
    def xdma(base, delta):
        o = []
        for i, so in enumerate(("s51", "s91")):
            o.append(f"s_add_u32 m0, s90, {base + 8192*i}")
            o.append(f"s_sub_u32 s50, {so}, {delta}")
            o.append("buffer_load_dwordx4 v3, s[20:23], s50 offen lds")
        return o
    def wdma():
        o = []
        for q in range(8):
            o += [f"s_add_u32 m0, s{sRING}, {1024*q}", f"s_add_u32 s89, s63, {4096*q}",
                  f"buffer_load_dwordx4 v{VW}, s[24:27], s89 offen lds"]
        return o
    wcdma = [f"s_lshl_b32 s89, s{sTILE}, 10", f"s_add_u32 m0, s89, {WCL}", "s_nop 0",
             f"buffer_load_dwordx4 v{VW}, s[32:35], s63 offen lds"]
    def common(first):
        a(f"""
        s_lshl_b32 s{sRING}, s{sW}, 13
        s_add_u32 s{sRING}, s{sRING}, {RING}
        s_lshl_b32 s63, s{sTILE}, 6
        s_cmp_eq_u32 s{sSET}, 0
        s_cselect_b32 s64, s64, s70
        s_cselect_b32 s65, s65, s71
        s_cselect_b32 s66, s66, s72
        s_cselect_b32 s67, s67, s73
        s_mov_b32 s24, s{first}
        s_mov_b32 s25, s{first+1}
        s_mov_b32 s26, 32768
        s_mov_b32 s27, 0x20000
        """)
    def common2(x):
        x(f"""
        s_mov_b32 s32, s68
        s_mov_b32 s33, s69
        s_mov_b32 s34, 4096
        s_mov_b32 s35, 0x20000
        s_mov_b32 s14, {WS_END}
        s_mov_b32 s15, 0x20000
        s_movk_i32 s30, 256
        s_mov_b32 s31, 0x20000
        s_mov_b32 s4, s78
        s_mov_b32 s5, s79
        s_mov_b32 s12, s78
        s_mov_b32 s13, s79
        s_mov_b32 s10, s74
        s_mov_b32 s11, s75
        s_mov_b32 s28, s76
        s_mov_b32 s29, s77
        v_lshrrev_b32 v88, 5, v2
        v_and_b32 v89, 31, v2
        v_lshrrev_b32 v90, 2, v85
        v_lshl_add_u32 v90, v88, 3, v90
        v_and_b32 v91, 1, v84
        v_lshlrev_b32 v91, 5, v91
        v_lshl_add_u32 v91, v87, 3, v91
        v_lshl_add_u32 v90, v90, 6, v91
        v_add_u32 v{FW}, s{sRING}, v90
        s_lshl_b32 s50, s{sTILE}, 10
        s_add_u32 s50, s50, {WCL}
        v_add_u32 v{WCR}, s50, v90
        v_xor_b32 v90, v88, v85
        v_lshlrev_b32 v90, 4, v90
        v_lshl_add_u32 v{FX}, v89, 8, v90
        v_lshlrev_b32 v93, 3, v88
        v_lshrrev_b32 v94, 4, v0
        v_xor_b32 v90, v94, v0
        v_and_b32 v90, 15, v90
        v_lshlrev_b32 v90, 4, v90
        v_lshl_add_u32 v{FU}, v94, 8, v90
        s_mov_b32 s94, {hex(f32(-LOG2E))}
        s_mov_b32 s95, {hex(f32(-LOG2E))}
        s_lshr_b32 s50, s62, 2
        s_lshl_b32 s50, s50, 7
        s_and_b32 s97, s2, 3
        s_lshl_b32 s97, s97, 2
        s_add_u32 s97, s97, s50
        s_cmp_eq_u32 s{sW}, 0
        s_cselect_b32 s97, s97, {OOB}
        s_cselect_b32 s{sPROD}, 0, {OOB}
        """)
    def wfrag(q):
        return [f"ds_read_b64_tr_b16 {ar(WA+4*q+2*z,2)}, v{FW} offset:{1024*q+256*z}" for z in range(2)]
    def xfrag(q, off=0):
        return [f"v_xor_b32 v3, {32*q}, v{FX}", f"ds_read_b128 {vr(XF+8*q,4)}, v3 offset:{off}",
                f"ds_read_b128 {vr(XF+8*q+4,4)}, v3 offset:{off+8192}"]
    misc = [f"v_add_u32 v3, {ERING}, v{FU}", f"ds_read_b128 {vr(XR,4)}, v3", f"ds_read_b128 {vr(XR+4,4)}, v3 offset:8192",
            f"ds_read_b64_tr_b16 {vr(WCR+2,2)}, v{WCR} offset:256", f"ds_read_b64_tr_b16 {vr(WCR,2)}, v{WCR}"]
    def gm(q, rt, base=DA):
        d = vr(base + 16*rt, 16)
        return f"{MF} {d}, {ar(WA+4*q,4)}, {vr(XF+8*q+4*rt,4)}, {'0' if q == 0 else d}"
    RDY = 99
    ready_load = f"buffer_load_dword v{RDY}, off, s[28:31], s{sPROD} sc1"
    def ready_check(tag):
        a(f"""
        s_cmp_lg_u32 s{sW}, 0
        s_cbranch_scc1 K_{tag}
        s_mov_b32 s50, 0
        K_{tag}_spin:
        v_cmp_eq_u32 vcc, 0, v{RDY}
        s_cbranch_vccz K_{tag}
        {ready_load}
        s_add_u32 s50, s50, 1
        s_cmp_lt_u32 s50, 0x40000
        s_waitcnt vmcnt(0)
        s_cbranch_scc1 K_{tag}_spin
        K_{tag}:
        """)
    D1 = 4
    def conv(rt, addrs, base=DA, mul=None, off=lambda j: 0):
        o = []
        for j in range(4):
            b_ = base + 16*rt + 4*j
            if mul:
                o += [f"v_mul_f32 v{b_+i}, {mul}, v{b_+i}" for i in range(4)]
            o += [f"v_cvt_pk_bf16_f32 v{b_}, v{b_}, v{b_+1}", f"v_cvt_pk_bf16_f32 v{b_+1}, v{b_+2}, v{b_+3}",
                  f"ds_write_b64 v{addrs[j]}, {vr(b_,2)} offset:{off(j)}"]
        return o

    def lds_reset(prefill):
        a(f"""
        v_lshlrev_b32 v76, 2, v0
        v_mov_b32 v77, 0
        ds_write_b32 v76, v77
        """)
        if prefill:
            a(f"""
            v_mov_b32 v76, {hex(DUMMY | (SB*AST) << 16)}
            v_mov_b32 v77, -1
            v_mov_b32 v78, v76
            v_mov_b32 v79, -1
            v_lshlrev_b32 v80, 4, v0
            """)
            for i in range(5):
                a(f"ds_write_b128 v80, v[76:79] offset:{LIST + 8192*i}")

    a(f"""
    s_or_b32 s50, s90, s2
    s_cmp_eq_u32 s50, {7*1024 + 8}
    s_cbranch_scc1 K_clr
    s_waitcnt lgkmcnt(0)
    s_mov_b32 s20, s52
    s_mov_b32 s21, s53
    """)
    emit(xdma(XP, SB*256) + xdma(ERING, 0))
    a("K_np1:")
    common(66)
    w1 = wdma()
    b = Asm()
    common2(b)
    b(f"""
    s_add_u32 s97, s97, {WS_FLG}
    """)
    FG1, FG3 = 174, 175
    b(f"""
    v_bfe_u32 v90, v2, 1, 2
    v_lshl_add_u32 v90, v90, 4, v93
    v_lshl_add_u32 v90, v89, 6, v90
    s_lshl_b32 s50, s{sW}, 11
    s_add_u32 s50, s50, {XP}
    v_add_u32 v{FS}, s50, v90
    v_bfe_u32 v90, v2, 3, 2
    v_xor_b32 v90, v90, v87
    v_lshl_add_u32 v90, v90, 4, s50
    v_lshl_add_u32 v{FR}, v86, 6, v90
    v_xor_b32 v95, 16, v{FS}
    v_xor_b32 v96, 32, v{FS}
    v_xor_b32 v97, 48, v{FS}
    s_lshl_b32 s56, s{sTILE}, 7
    s_lshl_b32 s51, s{sSET}, 6
    s_add_u32 s56, s56, s51
    s_mul_i32 s50, s{sBIN}, {SB}
    v_add_u32 v90, s50, v86
    v_and_b32 v98, 7, v90
    v_lshrrev_b32 v{FG1}, 3, v90
    v_lshl_or_b32 v{FG1}, v98, 11, v{FG1}
    v_lshl_add_u32 v{FG1}, v{FG1}, 5, v87
    v_lshlrev_b32 v{FG1}, 4, v{FG1}
    v_add_u32 v90, {-SB & 0xffffffff}, v90
    v_and_b32 v98, 7, v90
    v_lshrrev_b32 v{FG}, 3, v90
    v_lshl_or_b32 v{FG}, v98, 11, v{FG}
    v_lshl_add_u32 v{FG}, v{FG}, 5, v87
    v_lshlrev_b32 v{FG}, 4, v{FG}
    s_cmp_eq_u32 s{sSET}, 0
    s_cselect_b32 s96, s94, 1.0
    """)
    nw = opt.get("wearly", 3)
    a("s_barrier")
    emit(w1[:3*nw])
    lds_reset(True)
    cut = [i for i, l in enumerate(b.l) if f"v{FX}," in l][0] + 1
    a.l += b.l[:cut]
    later = [x.strip() for x in b.l[cut:]]
    a(f"""
    s_or_b32 s50, s90, s2
    s_cmp_eq_u32 s50, {7*1024 + 8}
    s_cbranch_scc1 K_pub
    s_waitcnt vmcnt({nw})
    K_np2:
    s_barrier
    """)
    st(1)
    emit(xfrag(0, XP) + xfrag(1, XP) + xfrag(2, XP) + xfrag(3, XP))
    w2 = wdma()
    ahead = opt.get("ahead", 5)
    seq = [w1[3*q:3*q+3] for q in range(8)] + [wcdma + ["s_mov_b32 s24, s64", "s_mov_b32 s25, s65"]] + \
          [w2[3*q:3*q+3] for q in range(8)]
    sent = [nw]
    def send(n):
        o = []
        while sent[0] < min(n, len(seq)):
            o += seq[sent[0]]
            sent[0] += 1
        return o
    landed = lambda i: f"s_waitcnt vmcnt({sent[0] - 1 - i})"
    SA = [FS, 95, 96, 97]
    emit(send(ahead))
    emit([landed(0)] + wfrag(0) + [landed(1)] + wfrag(1))
    for q in range(8):
        a(f"s_waitcnt lgkmcnt({[2, 4, 4, 4, 4, 4, 4, 2][q]})")
        a(gm(q, 0, D1))
        emit(send(ahead + q + 1))
        if q == 4:
            a(f"v_add_u32 v{FX}, {ERING}, v{FX}")
        emit(xfrag(q + 4, XP) if q < 4 else xfrag(q - 4))
        if q < 6:
            emit([landed(q + 2)] + wfrag(q + 2))
        a(gm(q, 1, D1))
        n_ = -(-len(later) // (8 - q))
        while n_ < len(later) and ("cselect" in later[n_] or "addc" in later[n_]):
            n_ += 1
        emit(later[:n_])
        later = later[n_:]
    st(2)
    a(landed(8))
    def stores(fg):
        o = [f"buffer_store_dwordx4 {vr(SO+4*i,4)}, v{fg}, s[12:15], s56 offen offset:{1024*i} {tst}" for i in range(4)]
        return o[:2], [o[2], "s_mov_b64 exec, 15", o[3], "s_mov_b64 exec, -1"]
    def cst(base):
        return conv(0, SA, base, "s96") + [f"ds_read_b128 {vr(SO+4*i,4)}, v{FR} offset:{1024*i}" for i in range(2)] + \
               conv(1, SA, base, "s96") + [f"ds_read_b128 {vr(SO+8+4*i,4)}, v{FR} offset:{1024*i}" for i in range(2)]
    slots = [[] for _ in range(16)]
    slots[0] = xfrag(4) + xfrag(5)
    slots[1] = xfrag(6) + xfrag(7)
    slots[2] = list(misc)
    slot3 = [[] for _ in range(16)]
    s1, s2_ = stores(FG), stores(FG1)
    c1, c2 = cst(D1), cst(DA)
    for i in range(10):
        slots[3 + i] = c1[6*i:6*i+6]
        slot3[1 + i] = c2[6*i:6*i+6]
    slots[9] += ["s_waitcnt lgkmcnt(1)"] + s1[0]
    slots[13] = ["s_waitcnt vmcnt(2)"] + wfrag(0) + wfrag(1) + wfrag(2) + wfrag(3)
    slots[14] = ["s_waitcnt lgkmcnt(8)"] + s1[1]
    slots[15] = wfrag(4) + wfrag(5) + wfrag(6)
    slot3[0] = wfrag(7) + ["s_nop 1"]
    slot3[7] += ["s_waitcnt lgkmcnt(1)"] + s2_[0]
    slot3[12] = ["s_waitcnt lgkmcnt(0)"] + s2_[1]
    w8, mid = 6, "s_waitcnt lgkmcnt(6)"
    for q in range(8):
        slots[q] += send(sent[0] + 1)
    assert sent[0] == len(seq)
    a("s_waitcnt lgkmcnt(0)\ns_barrier")
    for i in range(16):
        if i == 8:
            a(f"s_waitcnt lgkmcnt({w8})")
        a(gm(i // 2, i % 2))
        emit(slots[i])
    st(3)
    slot3[0] = [ready_load] + slot3[0]
    a(mid)
    for i in range(16):
        a(gm(i // 2, i % 2, D1))
        emit(slot3[i])
    a("s_waitcnt vmcnt(4)")
    ready_check("rn")
    a("K_join:")
    st(4)
    def poll_check(tag, base, lanes, wave=0):
        a(f"""
        s_cmp_lg_u32 s{sW}, {wave}
        s_cbranch_scc1 K_{tag}_done
        s_mov_b32 s50, 0
        s_mov_b32 s51, {base}
        K_{tag}_spin:
        s_waitcnt vmcnt(0)
        v_and_b32 v{PL}, v{PL}, v{PL+1}
        v_and_b32 v{PL+2}, v{PL+2}, v{PL+3}
        v_and_b32 v{PL}, v{PL}, v{PL+2}
        v_cmp_ne_u32 vcc, 1, v{PL}
        s_cbranch_vccz K_{tag}_done
        s_add_u32 s50, s50, 1
        s_cmp_lt_u32 s50, 0x40000
        buffer_load_dwordx4 {vr(PL,4)}, v{lanes}, s[12:15], s51 offen sc1
        s_cbranch_scc1 K_{tag}_spin
        K_{tag}_done:
        """)
    def list_ptrs():
        a(f"""
        s_mul_i32 s50, s{sSET}, {LSET}
        s_add_u32 s50, s50, {LIST}
        v_and_b32 v96, 0x28, v2
        v_bfe_u32 v97, v2, 4, 1
        v_add_u32 v96, v96, v97
        v_lshl_add_u32 v{LI}, v96, 3, s50
        v_and_b32 v96, 12, v2
        v_and_b32 v98, 32, v2
        v_lshl_add_u32 v96, v96, 1, v98
        v_lshl_add_u32 v{LP}, v96, 3, s50
        v_and_b32 v96, 10, v2
        v_bfe_u32 v99, v2, 2, 1
        v_lshl_add_u32 v96, v96, 2, v99
        s_lshr_b32 s51, s{sTILE}, 1
        s_lshl_b32 s51, s51, 5
        s_add_u32 s50, s50, s51
        s_and_b32 s51, s{sTILE}, 1
        s_lshl_b32 s51, s51, 7
        s_add_u32 s50, s50, s51
        v_lshl_add_u32 v{LE}, v96, 3, s50
        """)
    PL = 68
    def rec_loads(n=2):
        a(f"buffer_load_dwordx4 {vr(REC,4)}, v{SEG}, s[12:15], s{sSTART} offen sc1")
        if n == 2:
            a(f"buffer_load_dwordx4 {vr(REC+4,4)}, v{SEG}, s[12:15], s{sSTART} offen offset:64 sc1")
    a(f"""
    v_lshlrev_b32 v{FS}, 7, v89
    s_cmp_lg_u32 s{sW}, 0
    s_cbranch_scc1 K_nopoll
    s_mov_b32 s50, {WS_FLG + 4096}
    buffer_load_dwordx4 {vr(PL,4)}, v{FS}, s[12:15], s50 offen sc1
    K_nopoll:
    v_lshrrev_b32 v95, 2, v0
    v_lshlrev_b32 v{SIDX}, 4, v87
    v_lshl_add_u32 v{SEG}, v95, 7, v{SIDX}
    v_mul_u32_u24 v92, {AST}, v89
    v_mul_u32_u24 v{PB}, {CH}, v95
    s_lshl_b32 s{sSTART}, s{sBIN}, 14
    s_add_u32 s{sSTART}, s{sSTART}, {WS_SLOT}
    s_mov_b32 s16, s54
    s_or_b32 s17, s55, {hex(32 << 16)}
    s_mov_b32 s18, {opt.get('erows', E)}
    s_mov_b32 s19, 0x20000
    s_mov_b32 s{sMODE}, 0
    """)
    a(f"""
    s_cmp_lg_u32 s{sSET}, 0
    s_cbranch_scc1 K_uaddr
    v_cmp_gt_u32 s[72:73], {SB - 31}, v89
    s_lshl_b32 s51, s{sTILE}, 7
    s_add_u32 s51, s51, {ATAB}
    v_add3_u32 v52, v92, v93, s51
    """)
    for i in range(16):
        a(f"v_pk_mul_f32 {vr(D1+2*i,2)}, {vr(D1+2*i,2)}, s[94:95]")
    ca = conv(0, [52]*4, D1, None, lambda j: 16*j) + conv(1, [52]*4, D1, None, lambda j: 16*j + 32*AST)
    emit([x for x in ca if x.startswith("v_")])
    a(f"""
    s_branch K_conv
    K_uaddr:
    v_bfe_u32 v52, v2, 1, 2
    v_lshl_add_u32 v52, v52, 4, v93
    v_lshl_add_u32 v52, v89, 6, v52
    v_add_u32 v52, s{sRING}, v52
    """)
    for j in range(1, 4):
        a(f"v_xor_b32 v{52+j}, {16*j}, v52")
    emit(conv(0, [52, 53, 54, 55], D1) + conv(1, [52, 53, 54, 55], D1, None, lambda j: 2048))
    a(f"""
    v_and_b32 v45, 63, v95
    v_and_b32 v46, 31, v95
    v_lshlrev_b32 v47, 3, v87
    v_sub_u32 v46, v46, v47
    v_cmp_eq_u32 s[90:91], {SB}, v45
    v_mov_b32 v47, 64
    v_cmp_ge_u32 s[92:93], {SB}, v45
    v_cndmask_b32 v46, v46, v47, s[90:91]
    v_and_b32 v47, 1, v46
    v_lshlrev_b32 v47, 4, v47
    v_mov_b32 v48, 0x3f80
    v_lshlrev_b32 v47, v47, v48
    v_ashrrev_i32 v46, 1, v46
    v_cmp_eq_u32 s[64:65], 0, v46
    v_cmp_eq_u32 s[66:67], 1, v46
    v_cmp_eq_u32 s[68:69], 2, v46
    v_cmp_eq_u32 s[70:71], 3, v46
    v_cndmask_b32 v48, 0, v47, s[64:65]
    v_cndmask_b32 v49, 0, v47, s[66:67]
    v_cndmask_b32 v50, 0, v47, s[68:69]
    v_cndmask_b32 v51, 0, v47, s[70:71]
    v_mul_u32_u24 v46, {AST}, v45
    v_add_u32 v46, v46, v{SIDX}
    K_conv:
    """)
    st(5)
    poll_check("s", WS_FLG + 4096, FS)
    a("s_waitcnt vmcnt(0) lgkmcnt(0)\ns_barrier")
    rec_loads()
    a(f"""
    s_mov_b64 exec, 1
    buffer_store_dword v{ONE}, off, s[12:15], s97 sc1
    s_mov_b64 exec, -1
    """)
    st(6)
    PL = 156
    wa = [x for x in ca if x.startswith("ds_")]
    a(f"s_cmp_lg_u32 s{sSET}, 0\ns_cbranch_scc1 K_oh")
    emit(wa[:4] + ["s_mov_b64 exec, s[72:73]"] + wa[4:])
    a("s_branch K_tab\nK_oh:\ns_mov_b64 exec, s[92:93]")
    for t in range(4):
        a(f"ds_write_b128 v46, v[48:51] offset:{ATAB+128*t+64}")
    a("K_tab:\ns_mov_b64 exec, -1")
    a(f"""
    s_lshl_b32 s50, s{sTILE}, 7
    s_add_u32 s51, s50, {ATAB}
    v_add_u32 v{TC}, s51, v91
    v_and_b32 v90, 7, v2
    v_xor_b32 v90, v90, v84
    v_lshl_add_u32 v{OF0}, v90, 4, s50
    v_xor_b32 v{OF1}, 64, v{OF0}
    v_bfe_u32 v90, v0, 2, 2
    v_lshlrev_b32 v90, 13, v90
    v_lshl_add_u32 v90, v94, 6, v90
    v_bfe_u32 v96, v0, 5, 2
    v_xor_b32 v96, v96, v87
    v_lshl_add_u32 v90, v96, 4, v90
    v_add_u32 v3, {RING + 32768}, v90
    ds_read_b128 {ar(AU,4)}, v3
    ds_read_b128 {ar(AU+4,4)}, v3 offset:2048
    s_lshr_b32 s51, s{sTILE}, 1
    v_xor_b32 v84, s51, v2
    v_and_b32 v84, 1, v84
    v_lshlrev_b32 v{EP+1}, 4, v84
    s_mov_b32 s{s512}, 512
    s_lshl_b32 s50, s{sSET}, 12
    s_add_u32 s93, s50, {ERING}
    s_lshl_b32 s51, s{sTILE}, 8
    s_add_u32 s{sEM0}, s93, s51
    """)
    list_ptrs()
    def consts2():
        a(f"""
        v_lshl_add_u32 v3, v88, 4, v92
        ds_read_b128 {vr(SEL0,4)}, v3 offset:{ATAB + 64}
        ds_read_b128 {vr(SEL1,4)}, v3 offset:{ATAB + 96}
        v_lshrrev_b32 v90, 3, v89
        v_and_b32 v96, 1, v89
        v_lshl_add_u32 v90, v90, 1, v96
        v_and_b32 v96, 4, v89
        v_lshl_add_u32 v90, v96, 1, v90
        v_mul_u32_u24 v90, {AST}, v90
        v_lshl_add_u32 v3, v88, 4, v90
        ds_read_b128 {vr(PIND,4)}, v3 offset:{ATAB + 64}
        """)
    def consts3():
        a("s_mov_b32 s51, 0xffff0000")
        for j in range(4):
            a(f"""
            v_lshlrev_b32 v76, 16, v{WCR+j}
            v_and_b32 v77, s51, v{WCR+j}
            v_pk_mul_f32 v[76:77], v[76:77], s[94:95]
            v_cvt_pk_bf16_f32 v{WC+j}, v76, v77
            """)
        a(f"""
        v_bfe_u32 v90, v89, 1, 3
        v_xor_b32 v90, v90, v88
        v_lshlrev_b32 v90, 4, v90
        v_lshl_add_u32 v90, v89, 7, v90
        v_add_u32 v{RA[0]}, s{sRING}, v90
        v_xor_b32 v84, v97, v88
        v_lshlrev_b32 v84, 4, v84
        v_lshl_add_u32 v84, v89, 5, v84
        v_add_u32 v{EA}, s93, v84
        """)

    def classes(ks, with_masks):
        a(f"s_movk_i32 s51, {63*32}\ns_movk_i32 s50, {cmask}")
        for k in ks:
            a(f"v_lshrrev_b32 v{CA+k}, 9, v{REC+k}")
            a(f"v_and_b32 v{CA+k}, s50, v{CA+k}")
            if with_masks:
                a(f"v_cmp_gt_u32 {sr(sM+2*k,2)}, s51, v{CA+k}")

    PW = 7
    def sort(first):
        tg = "a" if first else "b"
        a(f"""
        v_mov_b32 v{T+1}, 8
        v_lshlrev_b32 v{T}, 5, v2
        """)
        if first:
            a("s_waitcnt vmcnt(1)")
            st(7)
        else:
            a(f"""
            v_mov_b32 v{T+2}, 0
            s_waitcnt vmcnt(0) lgkmcnt(0)
            s_barrier
            s_mov_b64 exec, s[56:57]
            ds_write_b32 v{T+2}, v{T+1} offset:{62*32}
            s_mov_b64 exec, -1
            """)
        classes(range(8), first)
        for k in range(8):
            a(f"s_mov_b64 exec, {sr(sM+2*k,2)}")
            a(f"ds_add_rtn_u32 v{RK+k}, v{CA+k}, v{T+1}")
        a(f"s_mov_b64 exec, -1\ns_movk_i32 s50, {AST*4}")
        hi, lo, ew = [], [], []
        for k in range(8):
            e = EN + 2*k
            hi += [f"v_lshrrev_b32 v{e+1}, 20, v{REC+k}", f"v_add_u32 v{e+1}, v{e+1}, v{PB}"]
            lo += [f"v_and_b32 v{e}, 0x3fff, v{REC+k}", f"v_and_b32 v3, 0xfc000, v{REC+k}", f"v_mad_u32_u24 v{e}, v3, s50, v{e}"]
            ew += [f"v_and_b32 v3, 28, v{CA+k}", f"v_cmp_gt_u32 vcc, {4*opt.get('ewarm', 2)}, v3",
                   f"s_and_b64 exec, vcc, {sr(sM+2*k,2)}", f"buffer_load_dword v{SLEN}, v{e+1}, s[16:19], 0 idxen",
                   "s_mov_b64 exec, -1"]
        if not (first and opt.get("ewarm", 2)):
            ew = []
        c, W1, U, n, I, X, L, Z = 116, 124, 132, 136, 140, 144, 148, 152
        Tt = lambda i: W1 + 2*i
        Dd = lambda i: W1 + 2*i + 1
        t0, t1, run = T+2, T+3, T+4
        emit(hi + ew[:20])
        a(f"""
        s_cmp_eq_u32 s{sW}, 0
        s_waitcnt lgkmcnt(0)
        s_barrier
        s_cbranch_scc1 K_scan{tg}
        """)
        emit(ew[20:] + lo)
        if first and not opt.get("ppos", 0):
            a(f"""
            s_cmp_lg_u32 s{sW}, {PW}
            s_cbranch_scc1 K_scanned{tg}
            s_mov_b32 s50, {WS_FLG}
            buffer_load_dwordx4 {vr(PL,4)}, v{FS}, s[12:15], s50 offen sc1
            """)
        a(f"""
        s_branch K_scanned{tg}
        K_scan{tg}:
        ds_read_b128 {vr(c,4)}, v{T}
        ds_read_b128 {vr(c+4,4)}, v{T} offset:16
        s_setprio 1
        s_mov_b32 s51, 0xffe0ffe0
        s_waitcnt lgkmcnt(0)
        v_readlane_b32 s{sMORE}, v{c}, 62
        v_writelane_b32 v{c}, 0, 62
        """)
        for r in range(1, 8):
            a(f"v_add_u32 v{c+r}, v{c+r-1}, v{c+r}")
        for i in range(4):
            a(f"v_lshl_or_b32 v{Dd(i)}, v{c+2*i+1}, 16, v{c+2*i}")
        for i in range(4):
            a(f"v_add_u32 v{U+i}, 0x001f001f, v{Dd(i)}")
        for i in range(4):
            a(f"v_and_b32 v{U+i}, s51, v{U+i}")
        for i in range(4):
            a(f"v_lshlrev_b32 v{n}, 16, v{U}" if i == 0 else f"v_alignbit_b32 v{n+i}, v{U+i}, v{U+i-1}, 16")
        for i in range(4):
            a(f"v_sub_u32 v{I+i}, v{U+i}, v{n+i}")
        steps = [("row_shr:1", "0xf"), ("row_shr:2", "0xf"), ("row_shr:4", "0xf"), ("row_shr:8", "0xf"),
                 ("row_bcast:15", "0xa"), ("row_bcast:31", "0xc")]
        for ctl, m_ in steps:
            for i in range(4):
                a(f"v_add_u32_dpp v{I+i}, v{I+i}, v{I+i} {ctl} row_mask:{m_} bank_mask:0xf")
        side = [f"v_sub_u32 v{n+i}, v{U+i}, v{n+i}" for i in range(4)] + [f"v_sub_u32 v{X+i}, v{I+i}, v{n+i}" for i in range(4)]
        if first:
            a(f"""
            v_add_u32 v{t0}, v{I}, v{I+1}
            v_add3_u32 v{t0}, v{t0}, v{I+2}, v{I+3}
            v_add_u32_sdwa v{t0}, v{t0}, v{t0} {SDW} src0_sel:WORD_0 src1_sel:WORD_1
            v_lshrrev_b32 v{t1}, 16, v{U+3}
            v_readlane_b32 s50, v{t0}, 63
            v_lshlrev_b32 v{t0}, 1, v{t0}
            v_sub_u32 v{t0}, v{t0}, v{t1}
            v_cmp_ge_u32 vcc, s50, v{t0}
            """)
            emit(side[:4])
            a(f"""
            s_bcnt1_i32_b64 s50, vcc
            s_max_u32 s50, s50, 17
            s_min_u32 s{sVS}, s50, 32
            """)
            emit(side[4:])
        else:
            emit(side)
        for i in range(4):
            a(f"v_readlane_b32 s{84+i}, v{I+i}, 63")
        for i in range(4):
            a(f"v_readlane_b32 s{80+i}, v{X+i}, s{sVS}")
        a(f"v_cmp_le_u32 vcc, s{sVS}, v2")
        for i in range(4):
            a(f"v_sub_u32 v{Dd(i)}, v{U+i}, v{Dd(i)}")
        for i in range(4):
            a(f"v_mov_b32 v{L+i}, s{80+i}")
        for i in range(4):
            a(f"v_sub_u32 v{Z+i}, s{84+i}, v{L+i}")
            a(f"v_cndmask_b32 v{U+i}, 0, v{L+i}, vcc")
        a(f"v_mov_b32 v{t0}, {hex(LIST * 0x10001)}\nv_mov_b32 v{t1}, {hex((LIST + LSET) * 0x10001)}")
        for i in range(4):
            a(f"v_cndmask_b32 v{L+i}, v{L+i}, v{Z+i}, vcc")
        a(f"v_cndmask_b32 v{run}, v{t0}, v{t1}, vcc\ns_mov_b32 s51, 0x03020302")
        for i in range(4):
            a(f"v_lshlrev_b32 v{Tt(0)}, 16, v{Dd(0)}" if i == 0 else f"v_alignbit_b32 v{Tt(i)}, v{Dd(i)}, v{Dd(i-1)}, 16")
            a(f"v_sub_u32 v{X+i}, v{X+i}, v{U+i}")
        a(f"ds_write_b128 v{T}, {vr(W1,4)} offset:{TW1}\nds_write_b128 v{T}, {vr(W1+4,4)} offset:{TW1+16}")
        for i in range(4):
            a(f"v_lshl_add_u32 v{t0}, v{L+i}, 16, v{run}")
            a(f"v_pk_min_u16 v{Z+i}, v{n+i}, 1 op_sel_hi:[1,0]")
            a(f"v_add_u32 v{t1}, v{t0}, v{L+i}")
            a(f"v_add_u32 v{X+i}, v{X+i}, v{t0}")
            a(f"v_perm_b32 v{run}, v{t1}, v{t1}, s51")
        for i in range(4):
            a(f"v_add_u32 v{I+i}, v{X+i}, v{n+i}")
            a(f"v_sub_u32 v{c+2*i}, v{X+i}, v{Tt(i)}")
        a(f"v_readlane_b32 s56, v{run}, 0\nv_readlane_b32 s57, v{run}, 63")
        for i in range(4):
            a(f"v_pk_mul_lo_u16 v{Z+i}, v{Z+i}, v{I+i}")
            a(f"v_lshrrev_b32 v{c+2*i+1}, 16, v{c+2*i}")
        a(f"v_and_b32 v{t0}, 0xffff, v{Z}\ns_movk_i32 s51, {TRASH}")
        for r in range(1, 8):
            a(f"v_sub_u16_sdwa v{c+r}, v{t0}, v{W1+r} dst_sel:WORD_1 dst_unused:UNUSED_PRESERVE src0_sel:WORD_0 src1_sel:WORD_0")
            if r < 7:
                a(f"v_max_u32_sdwa v{t0}, v{t0}, v{Z+r//2} {SDW} src0_sel:DWORD src1_sel:WORD_{r % 2}")
        a(f"""
        v_writelane_b32 v{c}, s51, 62
        ds_write_b128 v{T}, {vr(c,4)} offset:{TW0}
        ds_write_b128 v{T}, {vr(c+4,4)} offset:{TW0+16}
        """)
        a(f"""
        s_lshr_b32 s56, s56, 16
        s_lshr_b32 s57, s57, 16
        s_sub_u32 s57, s57, {LSET}
        s_max_u32 s50, s56, s57
        v_mov_b32 v{Z}, s50
        v_mov_b32 v{Z+1}, s{sVS}
        v_mov_b32 v{Z+2}, s{sMORE}
        ds_write_b96 v{T+1}, {vr(Z,3)} offset:{63*32 - 8}
        s_setprio 0
        s_waitcnt lgkmcnt(0)
        K_scanned{tg}:
        s_cmp_lg_u32 s{sW}, 0
        s_barrier
        ds_read_b96 {vr(Z,3)}, v{T+1} offset:{63*32 - 8}
        """)
        if first:
            st(8)
        for k in range(8):
            a(f"ds_read2st64_b32 {vr(BB+2*k,2)}, v{CA+k} offset0:{TW0//256} offset1:{TW1//256}")
        a(f"s_cbranch_scc1 K_rest{tg}\ns_movk_i32 s50, {AST*4}")
        emit(lo + ew[20:])
        a(f"""
        K_rest{tg}:
        """)
        if first and opt.get("ppos", 0):
            a(f"""
            s_cmp_lg_u32 s{sW}, {PW}
            s_cbranch_scc1 K_nop2
            s_mov_b32 s50, {WS_FLG}
            buffer_load_dwordx4 {vr(PL,4)}, v{FS}, s[12:15], s50 offen sc1
            K_nop2:
            """)
        a(f"""
        s_waitcnt lgkmcnt(8)
        v_readfirstlane_b32 s50, v{Z}
        v_readfirstlane_b32 s{sVS}, v{Z+1}
        v_readfirstlane_b32 s{sMORE}, v{Z+2}
        s_cmp_le_u32 s50, {LIST + LIMIT}
        s_cbranch_scc0 K_over
        s_sub_u32 s50, s50, {LIST - 511}
        s_lshr_b32 s50, s50, 9
        s_max_u32 s{sS}, s50, 1
        """)
        for k0 in (0, 4):
            a(f"s_waitcnt lgkmcnt({4 - k0})")
            for k in range(k0, k0 + 4):
                a(f"v_cmp_lt_u32_sdwa {sr(80+2*(k % 4),2)}, v{RK+k}, v{BB+2*k+1} src0_sel:DWORD src1_sel:WORD_0")
                a(f"v_lshrrev_b32 v{BB+2*k+1}, 16, v{BB+2*k}")
            for k in range(k0, k0 + 4):
                a(f"v_cndmask_b32 v{BB+2*k}, v{BB+2*k}, v{BB+2*k+1}, {sr(80+2*(k % 4),2)}")
                a(f"v_add_u32_sdwa v{RK+k}, v{RK+k}, v{BB+2*k} {SDW} src0_sel:DWORD src1_sel:WORD_0")
        for k in range(8):
            a(f"s_mov_b64 exec, {sr(sM+2*k,2)}")
            a(f"ds_write_b64 v{RK+k}, {vr(EN+2*k,2)}")
        a("s_mov_b64 exec, -1")

    def idx_reads(blk, sub):
        o = 128*blk + 4*sub
        return [f"ds_read2_b32 {vr(IX,2)}, v{LI} offset0:{o} offset1:{o+32}",
                f"ds_read2_b32 {vr(IX+2,2)}, v{LI} offset0:{o+8} offset1:{o+40}"]
    def dma(slot):
        o = []
        for t in range(4):
            o.append(f"s_add_u32 m0, s{sRING}, {4096*slot + 1024*t}")
            o.append(f"v_mad_u32_u16 v{IX+t}, v{IX+t}, s{s512}, v{OF1 if t % 2 else OF0}")
            o.append(f"buffer_load_dwordx4 v{IX+t}, s[12:15], 0 offen {tfl} lds")
        return o
    def edma(step):
        return [f"s_add_u32 m0, s{sEM0}, {1024*(step % 4)}", "s_mov_b64 exec, 0xffff",
                f"buffer_load_dwordx4 {vr(EP,2)}, s[16:19], 0 idxen offen {opt.get('eflag','')} lds", "s_mov_b64 exec, -1"]
    def eid_read(step, dst=None):
        return [f"ds_read_b32 v{dst or EP}, v{LE} offset:{512*(step // 2) + 16*(step % 2) + 4}"]
    def pn_read(blk):
        return [f"ds_read2_b32 {vr(TA0,2)}, v{LP} offset0:{128*blk} offset1:{128*blk+8}"]
    ta = [f"v_add_u32_sdwa v{x}, v{x}, v{TC} {SDW} src0_sel:WORD_1 src1_sel:DWORD" for x in (TA0, TA1)]
    def reads(step):
        s = step % 2
        o = [f"ds_read_b128 {vr(OE,4)}, v{EA} offset:{1024*(step % 4)}"]
        o += [f"ds_read_b128 {vr(r,4)}, v{RA[i]} offset:{4096*s}" for i, r in enumerate((OB0, OB1, OH0, OH1))]
        return o
    def tr_reads(blk):
        i = IND[blk % 2]
        return [f"ds_read_b64_tr_b16 {vr(OA,2)}, v{TA0}", f"ds_read_b64_tr_b16 {vr(OA+2,2)}, v{TA1}",
                f"ds_read_b64_tr_b16 {vr(i,2)}, v{TA0} offset:64", f"ds_read_b64_tr_b16 {vr(i+2,2)}, v{TA1} offset:64"]
    mct = f"{MF} {vr(CT,16)}, {vr(PIND,4)}, {vr(OA,4)}, {vr(CI,16)}"
    def mf_g(g):
        d = vr(g, 16)
        return [f"{MF} {d}, {vr(OE,4)}, {vr(WC,4)}, {vr(CT,16)}",
                f"{MF} {d}, {vr(OB0,4)}, {vr(SEL0,4)}, {d}",
                f"{MF} {d}, {vr(OB1,4)}, {vr(SEL1,4)}, {d}"]
    mf_h = [f"{MF} {vr(H,16)}, {vr(OH0,4)}, {vr(SEL0,4)}, 0",
            f"{MF} {vr(H,16)}, {vr(OH1,4)}, {vr(SEL1,4)}, {vr(H,16)}"]
    def mf_red(i):
        return [f"{MF} {ar(ACD,16)}, {vr(IND[i],4)}, {vr(BD,4)}, {ar(ACD,16)}",
                f"{MF} {ar(ACN,16)}, {vr(IND[i],4)}, {vr(BN,4)}, {ar(ACN,16)}"]
    cvts = [f"v_cvt_pk_bf16_f32 v{BD+j}, v{AS+2*j}, v{AS+2*j+1}" for j in range(4)] + \
           [f"v_cvt_pk_bf16_f32 v{BN+j}, v{AM+2*j}, v{AM+2*j+1}" for j in range(4)]
    def pk(op, d, *s):
        return f"v_pk_{op}_f32 {vr(d,2)}, " + ", ".join(x if isinstance(x, str) else vr(x, 2) for x in s)
    def pk2(k):
        g = G[k % 2]
        o = []
        for dst, src in ((AS, SS), (AM, MM)):
            for j in range(4):
                if k % 2 == 0:
                    o.append(pk("mul", dst+2*j, src+2*j, g+4*j))
                else:
                    o.append(pk("fma", dst+2*j, src+2*j, g+4*j, dst+2*j))
        return o
    def load_seg(u):
        o = eid_read(u + 4) + idx_reads(*[(1, 1), (0, 0), (0, 1), (1, 0)][u])
        o += pn_read(u // 2) if u % 2 == 0 else tr_reads((u + 1) // 2)
        o += ["s_waitcnt vmcnt(5)"] + reads(u + 1)
        adv = {0: LI, 2: LP, 3: LE}.get(u)
        if adv:
            o += [f"v_add_u32 v{adv}, 0x400, v{adv}"]
        o += ["s_waitcnt lgkmcnt(5)"] + edma(u) + ["s_waitcnt lgkmcnt(0)"] + dma((u + 1) % 2)
        if u % 2 == 0:
            o += ta
        else:
            o += [f"s_add_u32 s{sK}, s{sK}, 1", f"s_cmp_ge_u32 s{sK}, s{sS}"]
        return o + ["s_setprio 0", "s_barrier"]
    def comp_seg(u, first=False):
        g, gn = G[u % 2], G[(u + 1) % 2]
        ex = [f"v_exp_f32 v{g+r}, v{g+r} clamp" for r in range(16)]
        mg = mf_g(gn)
        if first:
            o = [mg[0]] + ex[:3] + [mg[1]] + ex[3:6] + [mg[2]] + ex[6:]
        elif u % 2 == 0:
            mr = mf_red((u // 2 - 1) % 2)
            o = pk2(u - 1) + [mg[0]] + cvts[:6] + [mg[1]] + cvts[6:] + ex[:2] + [mg[2]] + ex[2:5] + \
                [mr[0]] + ex[5:8] + [mr[1]] + ex[8:]
        else:
            o = pk2(u - 1) + [mct] + ex[:3] + [mg[0]] + ex[3:6] + [mg[1]] + ex[6:9] + [mg[2]] + ex[9:]
        for j in range(4):
            b_ = g + 4*j
            o += [pk("add", b_, b_, sr(sCC, 2)), pk("add", b_+2, b_+2, sr(sCC, 2))]
        for j in range(4):
            b_, hh = g + 4*j, H + 4*j
            o += [pk("mul", MM+2*j, hh, b_+2), pk("add", SS+2*j, b_, b_+2), pk("fma", MM+2*j, hh+2, b_, MM+2*j), pk("mul", b_, b_, b_+2)]
        rc = [f"v_rcp_f32 v{g+4*j+i}, v{g+4*j+i}" for j in range(4) for i in range(2)]
        o += [mf_h[0]] + rc[:3] + [mf_h[1]] + rc[3:]
        pos = len(o) - opt.get("bpos", 2)
        return o[:pos] + ["s_setprio 1", "s_barrier"] + o[pos:]

    def fill_a():
        emit(eid_read(0) + eid_read(1, 1) + idx_reads(0, 0) + pn_read(0))
        a("s_waitcnt lgkmcnt(0)")
        emit(edma(0) + [f"v_mov_b32 v{EP}, v1"] + edma(1) + dma(0))
        emit(eid_read(2) + idx_reads(0, 1) + ta)
    def fill_b():
        a("s_waitcnt lgkmcnt(0)")
        emit(edma(2) + dma(1) + eid_read(3) + idx_reads(1, 0))
        a(f"v_add_u32 v{LP}, 0x200, v{LP}\ns_mov_b32 s{sK}, 0")
    sort(True)
    a("K_sorted:")
    consts2()
    poll_check("t", WS_FLG, FS, PW)
    a("s_waitcnt lgkmcnt(0)\ns_barrier")
    st(9)
    fill_a()
    st(13)
    consts3()
    m48 = (f32(-float(SHIFT)) >> 16) * 0x10001
    for i in range(4):
        a(f"v_mov_b32 v{68+i}, {hex(m48)}\nv_mov_b32 v{72+i}, 0")
    a(f"""
    v_xor_b32 v{RA[1]}, 32, v{RA[0]}
    v_xor_b32 v{RA[2]}, 64, v{RA[0]}
    v_xor_b32 v{RA[3]}, 0x60, v{RA[0]}
    {MF} {vr(CI,16)}, {vr(PIND,4)}, v[68:71], 0
    s_sub_u32 s51, {N*256}, s{sXO}
    s_min_u32 s34, s51, {SB*256}
    s_add_u32 s32, s10, s{sXO}
    s_addc_u32 s33, s11, 0
    {MF} {ar(ACD,16)}, v[72:75], v[72:75], 0
    s_mov_b32 s{sCC}, {hex(f32(2.0**-SHIFT))}
    s_mov_b32 s{sCC+1}, {hex(f32(2.0**-SHIFT))}
    {MF} {ar(ACN,16)}, v[72:75], v[72:75], 0
    K_fillb:
    """)
    emit(tr_reads(0))
    fill_b()
    a(f"{mct}\ns_waitcnt lgkmcnt(0)")
    st(14)
    a("s_waitcnt vmcnt(5)\ns_barrier")
    emit(reads(0) + edma(3))
    a("s_waitcnt lgkmcnt(0)")
    d0 = dma(0)
    mm = mf_g(G[0]) + mf_h
    for t in range(4):
        emit([mm[t]] + d0[3*t:3*t+3])
    a(mm[4])
    st(10)
    a(f"""
    s_cmp_eq_u32 s{sSET}, 0
    s_barrier
    s_cbranch_scc1 K_lead
    s_barrier
    s_setprio 1
    K_lead:
    """)
    emit(load_seg(0) + comp_seg(0, first=True))
    a("s_branch K_loop1")
    a.l.append(".p2align 6")
    a("K_loop:")
    for u in range(4):
        if u == 1:
            a("K_loop1:")
        emit(load_seg(u) + comp_seg(u))
        if u == 1:
            a("s_cbranch_scc1 K_drain0")
        if u == 3:
            a("s_cbranch_scc0 K_loop")
    a("s_branch K_drain\nK_drain0:")
    emit([f"v_mov_b32 v{IND[1]+j}, v{IND[0]+j}" for j in range(4)])
    a(f"""
    K_drain:
    s_setprio 0
    s_cmp_lg_u32 s{sSET}, 0
    s_cbranch_scc1 K_done
    s_barrier
    K_done:
    """)
    emit(pk2(1) + cvts + ["s_nop 1"] + mf_red(1))
    st(11)
    a(f"""
    s_cmp_lg_u32 s{sMORE}, 0
    s_cbranch_scc1 K_again
    v_lshrrev_b32 v40, 5, v2
    v_and_b32 v41, 31, v2
    v_lshlrev_b32 v42, 2, v41
    v_lshl_add_u32 v42, v40, 9, v42
    v_add_u32 v42, s{sRING}, v42
    v_lshrrev_b32 v44, 4, v0
    v_bfe_u32 v45, v0, 2, 2
    v_lshlrev_b32 v45, 13, v45
    v_lshl_add_u32 v45, v44, 7, v45
    v_and_b32 v46, 3, v0
    v_lshl_add_u32 v45, v46, 5, v45
    v_add_u32 v45, {RING}, v45
    v_add_u32 v46, 0x8000, v45
    v_cmp_gt_u32 vcc, s{sVS}, v44
    v_lshlrev_b32 v43, 4, v0
    s_mov_b32 s50, {hex(f32(1e-6 * 2.0**SHIFT))}
    v_cndmask_b32 v45, v46, v45, vcc
    """)
    for r in range(16):
        a(f"v_accvgpr_read_b32 v{48+r}, a{ACD+r}")
    for r in range(16):
        a(f"v_add_f32 v{48+r}, s50, v{48+r}")
    for r in range(16):
        a(f"v_rcp_f32 v{48+r}, v{48+r}")
        a(f"v_accvgpr_read_b32 v{64+r}, a{ACN+r}")
    a("s_waitcnt vmcnt(0)")
    for r in range(16):
        a(f"v_mul_f32 v{48+r}, v{48+r}, v{64+r}")
        a(f"ds_write_b32 v42, v{48+r} offset:{128*(8*(r//4) + r % 4)}")
    a("s_mov_b32 s50, 0xffff0000\ns_mov_b32 s51, 8192")
    for i in range(2):
        for j in range(4):
            x = XR + 4*i + j
            a(f"v_lshlrev_b32 v{64+8*i+2*j}, 16, v{x}")
            a(f"v_and_b32 v{64+8*i+2*j+1}, s50, v{x}")
            a(f"v_accvgpr_read_b32 v{x}, a{AU+4*i+j}")
            a(f"v_lshlrev_b32 v{96+8*i+2*j}, 16, v{x}")
            a(f"v_and_b32 v{96+8*i+2*j+1}, s50, v{x}")
    a("""
    s_waitcnt lgkmcnt(0)
    s_barrier
    ds_read_b128 v[48:51], v45
    ds_read_b128 v[52:55], v45 offset:16
    ds_read_b128 v[56:59], v46
    ds_read_b128 v[60:63], v46 offset:16
    """)
    for i in range(2):
        a(f"s_waitcnt lgkmcnt({2-2*i})")
        for j in range(8):
            a(f"v_add_f32 v{48+8*i+j}, v{48+8*i+j}, v{96+8*i+j}")
        for j in range(8):
            a(f"v_max_f32 v{48+8*i+j}, 0, v{48+8*i+j}")
        for j in range(8):
            a(f"v_add_f32 v{48+8*i+j}, v{48+8*i+j}, v{64+8*i+j}")
        for j in range(4):
            a(f"v_cvt_pk_bf16_f32 v{80+4*i+j}, v{48+8*i+2*j}, v{48+8*i+2*j+1}")
        a(f"buffer_store_dwordx4 {vr(80+4*i,4)}, v43, s[32:35], {'s51' if i else '0'} offen {opt.get('ost','nt')}")
    if st.on:
        a("s_waitcnt vmcnt(0)")
        a(f"s_lshl_b32 s50, s{sS}, 1")
        a("v_writelane_b32 v205, s50, 15")
    st(12)
    st.flush()
    a("K_end:\ns_endpgm")
    a(f"""
    K_clr:
    s_waitcnt lgkmcnt(0)
    s_mov_b32 s20, s52
    s_mov_b32 s21, s53
    s_mov_b32 s12, s78
    s_mov_b32 s13, s79
    s_mov_b32 s14, {WS_END}
    s_mov_b32 s15, 0x20000
    s_mov_b32 s28, s76
    s_mov_b32 s29, s77
    s_movk_i32 s30, 256
    s_mov_b32 s31, 0x20000
    v_mov_b32 v8, 0
    v_mov_b32 v9, 0
    v_mov_b32 v10, 0
    v_mov_b32 v11, 0
    v_lshlrev_b32 v4, 7, v2
    s_mov_b32 s50, {WS_FLG}
    buffer_store_dwordx4 v[8:11], v4, s[12:15], s50 offen sc1
    """)
    emit(xdma(XP, SB*256) + xdma(ERING, 0))
    a(f"""
    v_and_b32 v12, 4, v2
    v_cmp_eq_u32 vcc, 0, v12
    v_mov_b32 v13, 0x71807180
    v_and_b32 v5, 0x1f0, v1
    v_cndmask_b32 v12, 0, v13, vcc
    v_mov_b32 v13, v12
    v_mov_b32 v14, v12
    v_mov_b32 v15, v12
    s_mov_b32 s50, {DUMMY*512}
    buffer_store_dwordx4 v[12:15], v5, s[12:15], s50 offen sc1
    s_branch K_np1
    K_pub:
    s_mov_b64 exec, 1
    s_waitcnt vmcnt({5 + nw})
    buffer_store_dword v{ONE}, off, s[28:31], 0 sc1
    s_mov_b64 exec, -1
    s_waitcnt vmcnt({nw + 1})
    s_branch K_np2
    """)
    a(f"""
    K_prod:
    """)
    a(f"""
    s_mov_b32 s20, s52
    s_mov_b32 s21, s53
    v_lshlrev_b32 v4, 2, v0
    v_mov_b32 v62, 0
    ds_write_b32 v4, v62
    v_mov_b32 v40, -1
    v_mov_b32 v41, -1
    v_mov_b32 v42, -1
    v_mov_b32 v43, -1
    """)
    for i in range(4):
        a(f"ds_write_b128 v1, v[40:43] offset:{IMG + 8192*i}")
    wm = opt.get("warm", 1)
    if wm:
        a(f"""
        s_getpc_b64 s[96:97]
        K_pc:
        s_sub_u32 s96, s96, K_pc-K_np1
        s_subb_u32 s97, s97, 0
        s_mov_b32 s92, K_codeend-K_np1-4
        s_cmp_eq_u32 s{sW}, 0
        s_cselect_b64 s[96:97], s[66:67], s[96:97]
        s_cmp_eq_u32 s{sW}, 1
        s_cselect_b64 s[96:97], s[72:73], s[96:97]
        s_cmp_eq_u32 s{sW}, 2
        s_cselect_b64 s[96:97], s[64:65], s[96:97]
        s_cmp_eq_u32 s{sW}, 3
        s_cselect_b64 s[96:97], s[70:71], s[96:97]
        s_cmp_lt_u32 s{sW}, 4
        s_cselect_b32 s92, 32764, s92
        s_movk_i32 s50, 128
        """)
        if opt.get("tlb", 1):
            for w_, p_, sz in ((5, 78, WS_END), (6, 54, E*32), (7, 74, N*256)):
                a(f"""
                s_cmp_eq_u32 s{sW}, {w_}
                s_cselect_b64 s[96:97], s[{p_}:{p_+1}], s[96:97]
                s_cselect_b32 s50, {sz // 256}, s50
                """)
            a(f"s_cmp_gt_u32 s{sW}, 4\ns_cselect_b32 s92, -1, s92")
        a(f"""
        s_and_b32 s93, s2, 0xf0
        v_add_u32 v4, s93, v85
        v_mul_u32_u24 v4, s50, v4
        v_min_u32 v4, s92, v4
        s_mov_b64 exec, 0xffff
        global_load_dword v60, v4, s[96:97] sc1
        s_mov_b64 exec, -1
        """)
    common(64)
    a("s_waitcnt lgkmcnt(0)\ns_barrier")
    emit(xdma(ERING, 0))
    common2(a)
    emit(wcdma)
    a(f"""
    s_sub_u32 s90, s82, s88
    v_add_u32 v4, 8192, v1
    v_cmp_gt_u32 s[92:93], s90, v4
    s_lshl_b32 s56, s62, 7
    s_add_u32 s56, s56, {WS_SLOT}
    s_add_u32 s57, s56, {1 << 20}
    s_add_u32 s58, s56, {2 << 20}
    s_add_u32 s59, s56, {3 << 20}
    v_lshrrev_b32 v5, 3, v0
    v_and_b32 v61, 0x70, v1
    v_lshl_add_u32 v61, v5, 14, v61
    s_mov_b32 s91, {-SB & 0xffffffff}
    v_mov_b32 v6, 4
    v_lshlrev_b32 v7, 22, v0
    v_mov_b32 v36, 0
    v_mov_b32 v37, 0
    v_mov_b32 v38, 0
    v_mov_b32 v39, 0
    v_add_u32 v{FX}, {ERING}, v{FX}
    """)
    for k in range(8):
        a(f"v_add_u32 v{68+k}, {hex(((2048*(k//4) + k % 4) << 20) & 0xffffffff)}, v7")
    for g in range(2):
        a(f"s_waitcnt vmcnt({6 - g + wm})")
        if g == 0:
            st(1)
        for j in range(4):
            d, t = 8 + 4*g + j, 24 + 4*g + j
            a(f"v_mul_u32_u24 v{44+4*g+j}, 21400, v{d}")
            a(f"v_lshrrev_b32 v{44+4*g+j}, 20, v{44+4*g+j}")
            a(f"v_lshlrev_b32 v{t}, 2, v{44+4*g+j}")
        if g:
            a("s_mov_b64 exec, s[92:93]")
        for j in range(4):
            a(f"ds_add_rtn_u32 v{32+4*g+j}, v{24+4*g+j}, v6")
    a(f"s_mov_b64 exec, -1\ns_waitcnt vmcnt({3 + wm})")
    wp = wdma()
    for k in range(8):
        s_, d = 16 + k, 8 + k
        a(f"v_mad_i32_i24 v{d}, v{44+k}, s91, v{d}")
        a(f"v_and_b32 v4, 7, v{s_}")
        a(f"v_lshl_or_b32 v{d}, v{d}, 3, v4")
        a(f"v_lshrrev_b32 v{s_}, 3, v{s_}")
        a(f"v_lshl_or_b32 v{d}, v{d}, 11, v{68+k}")
        a(f"v_or_b32 v{s_}, v{d}, v{s_}")
    a("s_waitcnt lgkmcnt(0)")
    for k in range(8):
        if k == 4:
            a("s_mov_b64 exec, s[92:93]")
        a(f"v_add_u32 v4, v{32+k}, v{24+k}")
        a(f"v_and_b32 v4, 0x7f, v4")
        a(f"v_lshl_add_u32 v{44+k}, v{24+k}, 5, v4")
        a(f"ds_write_b32 v{44+k}, v{16+k} offset:{IMG}")
    a(f"""
    s_mov_b64 exec, -1
    v_or3_b32 v4, v32, v33, v34
    v_or3_b32 v5, v35, v36, v37
    v_or3_b32 v4, v4, v38, v39
    v_or_b32 v4, v4, v5
    v_cmp_lt_u32 vcc, 0x7f, v4
    s_mov_b64 exec, vcc
    ds_write_b32 v62, v6 offset:1024
    s_mov_b64 exec, -1
    s_waitcnt vmcnt(0) lgkmcnt(0)
    s_barrier
    ds_read_b32 v4, v62 offset:1024
    """)
    OUTR = [8, 12, 68, 72]
    def img_reads():
        for i in range(4):
            a(f"ds_read_b128 {vr(OUTR[i],4)}, v1 offset:{IMG + 8192*i}")
    img_reads()
    a(f"""
    {ready_load}
    s_waitcnt lgkmcnt(4)
    v_readfirstlane_b32 s50, v4
    s_cmp_lg_u32 s50, 0
    s_cbranch_scc1 K_slow
    K_out:
    """)
    for i in range(4):
        a(f"s_waitcnt lgkmcnt({3-i})")
        a(f"buffer_store_dwordx4 {vr(OUTR[i],4)}, v61, s[12:15], s{56+i} offen sc1")
    st(2)
    for q in range(8):
        emit(xfrag(q))
    wb = opt.get("wbefore", 3)
    emit(misc + wp[:3*wb])
    a(f"s_add_u32 s96, s97, {WS_FLG + 4096}\ns_mov_b32 s97, {OOB}\ns_waitcnt vmcnt({wb}) lgkmcnt(0)")
    ready_check("rp")
    a(f"""
    s_mov_b64 exec, 1
    s_barrier
    buffer_store_dword v{ONE}, off, s[12:15], s96 sc1
    s_mov_b64 exec, -1
    """)
    st(3)
    emit(wp[3*wb:])
    lds_reset(True)
    left = lambda q: 7 - q + (1 if q < wb else 0)
    emit([f"s_waitcnt vmcnt({left(0)})"] + wfrag(0))
    for q in range(8):
        if q < 7:
            emit([f"s_waitcnt vmcnt({left(q + 1)})"] + wfrag(q + 1))
        a(f"s_waitcnt lgkmcnt({2 if q < 7 else 0})")
        emit([gm(q, 0, D1), gm(q, 1, D1)])
    a("s_branch K_join")


    a("""
    K_slow:
    v_lshlrev_b32 v5, 4, v2
    s_waitcnt lgkmcnt(0)
    ds_read_b128 v[8:11], v5
    s_waitcnt lgkmcnt(0)
    v_add_u32 v13, v8, v9
    v_add_u32 v14, v13, v10
    v_add_u32 v15, v14, v11
    v_mov_b32 v4, v15
    """)
    scan64(a, [4])
    a("""
    v_sub_u32 v40, v4, v15
    v_add_u32 v41, v40, v8
    v_add_u32 v42, v40, v13
    v_add_u32 v43, v40, v14
    ds_write_b128 v5, v[40:43] offset:2048
    """)
    for k in range(8):
        a(f"ds_read_b32 v{24+k}, v{24+k} offset:2048")
    a("s_waitcnt lgkmcnt(0)")
    for k in range(8):
        a(f"s_mov_b64 exec, {'s[92:93]' if k >= 4 else '-1'}")
        a(f"v_add_u32 v{24+k}, v{24+k}, v{32+k}")
        a(f"ds_write_b32 v{24+k}, v{16+k} offset:{STG}")
        a(f"v_cmp_gt_u32 vcc, 0x80, v{32+k}")
        a("s_mov_b64 exec, vcc")
        a(f"ds_write_b32 v{44+k}, v{16+k} offset:{IMG}")
    a(f"""
    s_mov_b64 exec, -1
    s_waitcnt lgkmcnt(0)
    s_barrier
    v_mov_b32 v16, {62 << 14}
    """)
    for j in range(4):
        a(f"""
        v_add_u32 v12, {4*j}, v5
        v_add_u32 v13, 124, v12
        v_and_b32 v13, 0x7f, v13
        v_lshl_add_u32 v13, v12, 5, v13
        v_add_u32 v14, 120, v{40+j}
        v_lshl_or_b32 v14, v14, 18, v16
        v_add_u32 v15, -124, v{8+j}
        v_cmp_lt_u32 vcc, 0x80, v{8+j}
        s_mov_b64 exec, vcc
        ds_write_b32 v13, v14 offset:{IMG}
        ds_write_b32 v{40+j}, v15 offset:{STG + 120}
        s_mov_b64 exec, -1
        """)
    a(f"""
    ds_read_b128 v[16:19], v1 offset:{STG}
    ds_read_b128 v[20:23], v1 offset:{STG + 8192}
    s_add_u32 s50, s88, {WS_REC}
    s_add_u32 s80, s4, s50
    s_addc_u32 s81, s5, 0
    s_mov_b32 s82, s90
    s_movk_i32 s50, 8192
    s_waitcnt lgkmcnt(0)
    buffer_store_dwordx4 v[16:19], v1, s[80:83], 0 offen sc1
    buffer_store_dwordx4 v[20:23], v1, s[80:83], s50 offen sc1
    """)
    img_reads()
    a("s_branch K_out")

    zero_masks = lambda ks: [f"s_mov_b64 {sr(sM+2*k,2)}, 0" for k in ks]
    a("""
    K_again:
    s_waitcnt vmcnt(0) lgkmcnt(0)
    s_barrier
    """)
    lds_reset(True)
    a(f"""
    s_cmp_eq_u32 s{sMODE}, 3
    s_cbranch_scc1 K_next
    """)
    rec_loads()
    a(f"""
    s_waitcnt vmcnt(0)
    s_cmp_eq_u32 s{sMODE}, 1
    s_cbranch_scc0 K_marks
    s_mov_b32 s{sMODE}, 2
    s_mov_b64 s[56:57], 0
    """)
    classes(range(4, 8), True)
    emit(zero_masks(range(4)))
    a(f"""
    s_branch K_resort
    K_marks:
    s_mov_b32 s{sMODE}, 3
    v_mov_b32 v84, 0
    """)
    for k in range(8):
        a(f"""
        v_bfe_u32 v85, v{REC+k}, 14, 6
        v_cmp_eq_u32 vcc, 62, v85
        s_nop 1
        v_cndmask_b32 v84, v84, v{REC+k}, vcc
        """)
    a(f"""
    s_nop 1
    v_or_b32_dpp v84, v84, v84 quad_perm:[1,0,3,2] row_mask:0xf bank_mask:0xf
    s_nop 1
    v_or_b32_dpp v84, v84, v84 quad_perm:[2,3,0,1] row_mask:0xf bank_mask:0xf
    v_cmp_ne_u32 vcc, 0, v84
    v_lshrrev_b32 v84, 20, v84
    v_add_lshl_u32 v84, v84, v{PB}, 2
    s_mov_b32 s{sSTART}, {WS_REC}
    buffer_load_dword v{SLEN}, v84, s[12:15], s{sSTART} offen sc1
    v_add_u32 v{SEG}, v84, v{SIDX}
    s_mov_b32 s{sSTART}, {WS_REC + 4 - 64}
    s_waitcnt vmcnt(0)
    v_cndmask_b32 v{SLEN}, 0, v{SLEN}, vcc
    v_min_u32 v{SLEN}, {CH*4}, v{SLEN}
    v_add_u32 v{SLEN}, 64, v{SLEN}
    K_next:
    s_add_u32 s{sSTART}, s{sSTART}, 64
    v_add_u32 v{SLEN}, -64, v{SLEN}
    """)
    rec_loads(1)
    a(f"""
    v_cmp_lt_i32 s[56:57], 64, v{SLEN}
    v_sub_u32 v84, v{SLEN}, v{SIDX}
    """)
    for k in range(4):
        a(f"v_cmp_lt_i32 {sr(sM+2*k,2)}, {4*k}, v84")
    emit(zero_masks(range(4, 8)))
    a("K_resort:")
    list_ptrs()
    sort(False)
    a(f"""
    s_cmp_eq_u32 s{sMODE}, 2
    s_cselect_b32 s{sMORE}, s{sMARK}, s{sMORE}
    s_cmp_eq_u32 s{sMODE}, 1
    s_cselect_b32 s{sMORE}, 1, s{sMORE}
    s_cbranch_scc1 K_sorted
    s_waitcnt lgkmcnt(0)
    s_barrier
    """)
    fill_a()
    a(f"""
    s_branch K_fillb
    K_over:
    s_cmp_lg_u32 s{sMODE}, 0
    s_cbranch_scc1 K_end
    s_mov_b32 s{sMODE}, 1
    s_mov_b32 s{sMARK}, s{sMORE}
    s_mov_b64 s[56:57], 0
    s_waitcnt lgkmcnt(0)
    s_barrier
    """)
    lds_reset(False)
    emit(zero_masks(range(4, 8)))
    a("s_branch K_resort\nK_codeend:")
    d = desc(name, NV + 40, 100, NV)
    ln = f"; @launch grid=(256,1,1) block=(512,1,1) lds={LDS}\n"
    if opt.get("probe"):
        import gen
        ln = f"; @launch kernel={name} grid=(256,1,1) block=(512,1,1) lds={LDS}\n; @launch kernel=probe_kernel grid=(1,1,1) block=(64,1,1) lds=0\n"
        d += gen.gen_probe(a, opt)
    hdr = """; GatedGCN layer in one launch: each workgroup builds the table rows of its 49 nodes, half of them also
; partition a chunk of edges by destination bin; after two counted hand-offs every workgroup sorts its bin
; and runs the gate / aggregation loop.
""" + ln + '.amdgcn_target "amdgcn-amd-amdhsa--gfx950"\n.text\n'
    return hdr + a.text() + d

if __name__ == "__main__":
    opt = {}
    out = f"cdna_kernels/{NAME}.s"
    for x in sys.argv[1:]:
        k, v = x.split("=", 1)
        if k == "out":
            out = v
        else:
            opt[k] = int(v) if v.lstrip("-").isdigit() else v
    open(out, "w").write(generate(opt))
    print("wrote", out)
```

```python
import sys
from gen import (NAME, N, E, SB, CH, P, RG, DUMMY, WS_REC, WS_SLOT, WS_END, SHIFT, LOG2E, WS_STAMP, MF,
                 f32, Asm, vr, ar, sr, scan64, desc, head, Stamps)

TW0, TW1, TRASH = 2048, 4096, 6144
LIST = 7168
CAPS = 2560
LSET = CAPS * 8
ATAB = LIST + 2 * LSET
AST = 592
WCL = 77824
WS_FLG = 0xA00000
XP = ATAB
ERING = 81920
RING = 98304
LDS = RING + 65536
LIMIT = 2240 * 8
IMG, STG = 4096, 36864
SDW = "dst_sel:DWORD dst_unused:UNUSED_PAD"
OOB = 0x7000000

def generate(opt=None):
    opt = opt or {}
    a = Asm()
    name = NAME + "_kernel"
    cmask = {8: 0x7FC, 4: 0x7F8, 2: 0x7F0}[opt.get("R", 8)]
    tfl = opt.get("tfl", "sc1").replace("+", " ")
    tst = opt.get("tst", "sc1").replace("+", " ")
    head(a, name)
    st = Stamps(a, opt.get("stamp"), 205, WS_STAMP)
    SEL0, SEL1, PIND, WC, CT, RR = 4, 8, 12, 16, 84, 248
    G = [52, 68]; H = [20, 36]
    OE, RW, OB0, OB1, OA = 100, 104, 108, 112, 120
    HA = [116, 117, 118, 119]
    IND = [124, 128]
    SS, MM, AS, AM, BD, BN = 132, 140, 148, 156, 164, 168
    IX, OF0, OF1, EP = 172, 176, 177, 178
    RA = [180, 181]
    EA, LI, LE, LP, TA0, TA1, TC = 184, 185, 186, 187, 188, 189, 190
    XR = 192
    SEG, SLEN, SIDX, PB = 200, 201, 202, 203
    NV = 208
    ACD, ACN, AU = 0, 16, 32
    sW, sSET, sTILE, sBIN = 3, 36, 37, 38
    sRING, sEM0, sS, sK, sVS, sSTART, sLUT, sMORE, s512 = 39, 40, 41, 42, 43, 44, 45, 46, 47
    sCC, sM, sMODE, sMARK, sXO, sPROD = 48, 64, 7, 9, 8, 6
    REC, CA, RK, BB, EN, T = 36, 44, 52, 60, 100, 76
    XF, WA, DA, SO, WCR = 100, 0, 36, 68, 164
    VW, FW, FX, FS, FR, FG, FA, FB, FU = 168, 169, 170, 171, 172, 173, 207, 204, 191
    ONE, PL = 206, 164

    def emit(lst):
        for x in lst:
            a(x)
    ar = lambda b_, n_=1: vr(NV + b_, n_)

    a("s_cmp_ge_u32 s2, 256\ns_cbranch_scc1 K_end")
    st(0)
    a(f"""
    s_load_dwordx8 s[52:59], s[0:1], 0
    s_load_dwordx16 s[64:79], s[0:1], 32
    v_lshrrev_b32 v1, 6, v0
    v_and_b32 v2, 63, v0
    v_readfirstlane_b32 s{sW}, v1
    s_and_b32 s60, s2, 7
    s_lshr_b32 s61, s2, 3
    s_lshl_b32 s50, s60, 5
    s_add_u32 s{sBIN}, s50, s61
    v_lshrrev_b32 v84, 4, v2
    v_and_b32 v85, 15, v2
    v_bfe_u32 v3, v0, 4, 4
    v_xor_b32 v3, v3, v85
    v_lshlrev_b32 v3, 4, v3
    v_lshl_add_u32 v3, v84, 8, v3
    v_lshlrev_b32 v1, 4, v0
    s_mul_i32 s{sXO}, s{sBIN}, {SB*256}
    s_lshl_b32 s90, s{sW}, 10
    s_add_u32 s51, s{sXO}, s90
    s_add_u32 s91, s51, 8192
    s_cmp_lt_u32 s{sW}, 5
    s_cselect_b32 s91, s91, {OOB}
    s_mov_b32 s22, {N*256}
    s_mov_b32 s23, 0x20000
    v_lshrrev_b32 v86, 2, v2
    v_and_b32 v87, 3, v2
    v_lshlrev_b32 v{VW}, 4, v87
    v_lshl_add_u32 v{VW}, v86, 8, v{VW}
    v_mov_b32 v{ONE}, 1
    s_lshr_b32 s50, s2, 4
    s_lshl_b32 s50, s50, 3
    s_add_u32 s62, s50, s60
    s_lshr_b32 s{sSET}, s{sW}, 2
    s_and_b32 s{sTILE}, s{sW}, 3
    s_mov_b32 s83, 0x20000
    s_mov_b32 s87, 0x20000
    s_bitcmp1_b32 s2, 3
    s_cbranch_scc1 K_np
    s_mul_i32 s88, s62, {CH*4}
    s_add_u32 s89, s88, 8192
    s_add_u32 s82, s88, {CH*4}
    s_min_u32 s82, s82, {E*4}
    s_mov_b32 s86, s82
    s_waitcnt lgkmcnt(0)
    s_mov_b32 s80, s58
    s_mov_b32 s81, s59
    s_mov_b32 s84, s56
    s_mov_b32 s85, s57
    buffer_load_dwordx4 v[8:11], v1, s[80:83], s88 offen
    buffer_load_dwordx4 v[12:15], v1, s[80:83], s89 offen
    buffer_load_dwordx4 v[16:19], v1, s[84:87], s88 offen
    buffer_load_dwordx4 v[20:23], v1, s[84:87], s89 offen
    s_branch K_prod
    K_np:
    """)
    def xdma(base, delta):
        o = []
        for i, so in enumerate(("s51", "s91")):
            o.append(f"s_add_u32 m0, s90, {base + 8192*i}")
            o.append(f"s_sub_u32 s50, {so}, {delta}")
            o.append("buffer_load_dwordx4 v3, s[20:23], s50 offen lds")
        return o
    def wdma():
        o = []
        for q in range(8):
            o += [f"s_add_u32 m0, s{sRING}, {1024*q}", f"s_add_u32 s89, s63, {4096*q}",
                  f"buffer_load_dwordx4 v{VW}, s[24:27], s89 offen lds"]
        return o
    wcdma = [f"s_lshl_b32 s89, s{sTILE}, 10", f"s_add_u32 m0, s89, {WCL}", "s_nop 0",
             f"buffer_load_dwordx4 v{VW}, s[32:35], s63 offen lds"]
    def common(first):
        a(f"""
        s_lshl_b32 s{sRING}, s{sW}, 13
        s_add_u32 s{sRING}, s{sRING}, {RING}
        s_lshl_b32 s63, s{sTILE}, 6
        s_cmp_eq_u32 s{sSET}, 0
        s_cselect_b32 s64, s64, s70
        s_cselect_b32 s65, s65, s71
        s_cselect_b32 s66, s66, s72
        s_cselect_b32 s67, s67, s73
        s_mov_b32 s24, s{first}
        s_mov_b32 s25, s{first+1}
        s_mov_b32 s26, 32768
        s_mov_b32 s27, 0x20000
        """)
    def common2(x):
        x(f"""
        s_mov_b32 s32, s68
        s_mov_b32 s33, s69
        s_mov_b32 s34, 4096
        s_mov_b32 s35, 0x20000
        s_mov_b32 s14, {WS_END}
        s_mov_b32 s15, 0x20000
        s_movk_i32 s30, 256
        s_mov_b32 s31, 0x20000
        s_mov_b32 s4, s78
        s_mov_b32 s5, s79
        s_mov_b32 s12, s78
        s_mov_b32 s13, s79
        s_mov_b32 s10, s74
        s_mov_b32 s11, s75
        s_mov_b32 s28, s76
        s_mov_b32 s29, s77
        v_lshrrev_b32 v88, 5, v2
        v_and_b32 v89, 31, v2
        v_lshrrev_b32 v90, 2, v85
        v_lshl_add_u32 v90, v88, 3, v90
        v_and_b32 v91, 1, v84
        v_lshlrev_b32 v91, 5, v91
        v_lshl_add_u32 v91, v87, 3, v91
        v_lshl_add_u32 v90, v90, 6, v91
        v_add_u32 v{FW}, s{sRING}, v90
        s_lshl_b32 s50, s{sTILE}, 10
        s_add_u32 s50, s50, {WCL}
        v_add_u32 v{WCR}, s50, v90
        v_xor_b32 v90, v88, v85
        v_lshlrev_b32 v90, 4, v90
        v_lshl_add_u32 v{FX}, v89, 8, v90
        v_lshlrev_b32 v93, 3, v88
        v_lshrrev_b32 v94, 4, v0
        v_xor_b32 v90, v94, v0
        v_and_b32 v90, 15, v90
        v_lshlrev_b32 v90, 4, v90
        v_lshl_add_u32 v{FU}, v94, 8, v90
        s_mov_b32 s94, {hex(f32(-LOG2E))}
        s_mov_b32 s95, {hex(f32(-LOG2E))}
        s_lshr_b32 s50, s62, 2
        s_lshl_b32 s50, s50, 7
        s_and_b32 s97, s2, 3
        s_lshl_b32 s97, s97, 2
        s_add_u32 s97, s97, s50
        s_cmp_eq_u32 s{sW}, 0
        s_cselect_b32 s97, s97, {OOB}
        s_cselect_b32 s{sPROD}, 0, {OOB}
        """)
    def wfrag(q):
        return [f"ds_read_b64_tr_b16 {ar(WA+4*q+2*z,2)}, v{FW} offset:{1024*q+256*z}" for z in range(2)]
    def xfrag(q, off=0):
        return [f"v_xor_b32 v3, {32*q}, v{FX}", f"ds_read_b128 {vr(XF+8*q,4)}, v3 offset:{off}",
                f"ds_read_b128 {vr(XF+8*q+4,4)}, v3 offset:{off+8192}"]
    misc = [f"v_add_u32 v3, {ERING}, v{FU}", f"ds_read_b128 {vr(XR,4)}, v3", f"ds_read_b128 {vr(XR+4,4)}, v3 offset:8192",
            f"ds_read_b64_tr_b16 {vr(WCR+2,2)}, v{WCR} offset:256", f"ds_read_b64_tr_b16 {vr(WCR,2)}, v{WCR}"]
    def gm(q, rt, base=DA):
        d = vr(base + 16*rt, 16)
        return f"{MF} {d}, {ar(WA+4*q,4)}, {vr(XF+8*q+4*rt,4)}, {'0' if q == 0 else d}"
    RDY = 99
    ready_load = f"buffer_load_dword v{RDY}, off, s[28:31], s{sPROD} sc1"
    def ready_check(tag):
        a(f"""
        s_cmp_lg_u32 s{sW}, 0
        s_cbranch_scc1 K_{tag}
        s_mov_b32 s50, 0
        K_{tag}_spin:
        v_cmp_eq_u32 vcc, 0, v{RDY}
        s_cbranch_vccz K_{tag}
        {ready_load}
        s_add_u32 s50, s50, 1
        s_cmp_lt_u32 s50, 0x40000
        s_waitcnt vmcnt(0)
        s_cbranch_scc1 K_{tag}_spin
        K_{tag}:
        """)
    D1 = 4
    def conv(rt, addrs, base=DA, mul=None, off=lambda j: 0):
        o = []
        for j in range(4):
            b_ = base + 16*rt + 4*j
            if mul:
                o += [f"v_mul_f32 v{b_+i}, {mul}, v{b_+i}" for i in range(4)]
            o += [f"v_cvt_pk_bf16_f32 v{b_}, v{b_}, v{b_+1}", f"v_cvt_pk_bf16_f32 v{b_+1}, v{b_+2}, v{b_+3}",
                  f"ds_write_b64 v{addrs[j]}, {vr(b_,2)} offset:{off(j)}"]
        return o

    def lds_reset(prefill):
        a(f"""
        v_lshlrev_b32 v76, 2, v0
        v_mov_b32 v77, 0
        ds_write_b32 v76, v77
        """)
        if prefill:
            a(f"""
            v_mov_b32 v76, {hex(DUMMY | (SB*AST) << 16)}
            v_mov_b32 v77, {OOB}
            v_mov_b32 v78, v76
            v_mov_b32 v79, v77
            v_lshlrev_b32 v80, 4, v0
            """)
            for i in range(5):
                a(f"ds_write_b128 v80, v[76:79] offset:{LIST + 8192*i}")

    a(f"""
    s_or_b32 s50, s90, s2
    s_cmp_eq_u32 s50, {7*1024 + 8}
    s_cbranch_scc1 K_clr
    s_waitcnt lgkmcnt(0)
    s_mov_b32 s20, s52
    s_mov_b32 s21, s53
    """)
    emit(xdma(XP, SB*256) + xdma(ERING, 0))
    a("K_np1:")
    common(66)
    w1 = wdma()
    b = Asm()
    common2(b)
    b(f"""
    s_add_u32 s97, s97, {WS_FLG}
    """)
    FG1, FG3 = 174, 175
    b(f"""
    v_bfe_u32 v90, v2, 1, 2
    v_lshl_add_u32 v90, v90, 4, v93
    v_lshl_add_u32 v90, v89, 6, v90
    s_lshl_b32 s50, s{sW}, 11
    s_add_u32 s50, s50, {XP}
    v_add_u32 v{FS}, s50, v90
    v_bfe_u32 v90, v2, 3, 2
    v_xor_b32 v90, v90, v87
    v_lshl_add_u32 v90, v90, 4, s50
    v_lshl_add_u32 v{FR}, v86, 6, v90
    v_xor_b32 v95, 16, v{FS}
    v_xor_b32 v96, 32, v{FS}
    v_xor_b32 v97, 48, v{FS}
    s_lshl_b32 s56, s{sTILE}, 7
    s_lshl_b32 s51, s{sSET}, 6
    s_add_u32 s56, s56, s51
    s_mul_i32 s50, s{sBIN}, {SB}
    v_add_u32 v90, s50, v86
    v_and_b32 v98, 7, v90
    v_lshrrev_b32 v{FG1}, 3, v90
    v_lshl_or_b32 v{FG1}, v98, 11, v{FG1}
    v_lshl_add_u32 v{FG1}, v{FG1}, 5, v87
    v_lshlrev_b32 v{FG1}, 4, v{FG1}
    v_add_u32 v90, {-SB & 0xffffffff}, v90
    v_and_b32 v98, 7, v90
    v_lshrrev_b32 v{FG}, 3, v90
    v_lshl_or_b32 v{FG}, v98, 11, v{FG}
    v_lshl_add_u32 v{FG}, v{FG}, 5, v87
    v_lshlrev_b32 v{FG}, 4, v{FG}
    s_cmp_eq_u32 s{sSET}, 0
    s_cselect_b32 s96, s94, 1.0
    """)
    nw = opt.get("wearly", 3)
    a("s_barrier")
    emit(w1[:3*nw])
    lds_reset(True)
    cut = [i for i, l in enumerate(b.l) if f"v{FX}," in l][0] + 1
    a.l += b.l[:cut]
    later = [x.strip() for x in b.l[cut:]]
    a(f"""
    s_or_b32 s50, s90, s2
    s_cmp_eq_u32 s50, {7*1024 + 8}
    s_cbranch_scc1 K_pub
    s_waitcnt vmcnt({nw})
    K_np2:
    s_barrier
    """)
    st(1)
    emit(xfrag(0, XP) + xfrag(1, XP) + xfrag(2, XP) + xfrag(3, XP))
    w2 = wdma()
    ahead = opt.get("ahead", 5)
    seq = [w1[3*q:3*q+3] for q in range(8)] + [wcdma + ["s_mov_b32 s24, s64", "s_mov_b32 s25, s65"]] + \
          [w2[3*q:3*q+3] for q in range(8)]
    sent = [nw]
    def send(n):
        o = []
        while sent[0] < min(n, len(seq)):
            o += seq[sent[0]]
            sent[0] += 1
        return o
    landed = lambda i: f"s_waitcnt vmcnt({sent[0] - 1 - i})"
    SA = [FS, 95, 96, 97]
    emit(send(ahead))
    emit([landed(0)] + wfrag(0) + [landed(1)] + wfrag(1))
    for q in range(8):
        a(f"s_waitcnt lgkmcnt({[2, 4, 4, 4, 4, 4, 4, 2][q]})")
        a(gm(q, 0, D1))
        emit(send(ahead + q + 1))
        if q == 4:
            a(f"v_add_u32 v{FX}, {ERING}, v{FX}")
        emit(xfrag(q + 4, XP) if q < 4 else xfrag(q - 4))
        if q < 6:
            emit([landed(q + 2)] + wfrag(q + 2))
        a(gm(q, 1, D1))
        n_ = -(-len(later) // (8 - q))
        while n_ < len(later) and ("cselect" in later[n_] or "addc" in later[n_]):
            n_ += 1
        emit(later[:n_])
        later = later[n_:]
    st(2)
    a(landed(8))
    def stores(fg):
        o = [f"buffer_store_dwordx4 {vr(SO+4*i,4)}, v{fg}, s[12:15], s56 offen offset:{1024*i} {tst}" for i in range(4)]
        return o[:2], [o[2], "s_mov_b64 exec, 15", o[3], "s_mov_b64 exec, -1"]
    def cst(base):
        return conv(0, SA, base, "s96") + [f"ds_read_b128 {vr(SO+4*i,4)}, v{FR} offset:{1024*i}" for i in range(2)] + \
               conv(1, SA, base, "s96") + [f"ds_read_b128 {vr(SO+8+4*i,4)}, v{FR} offset:{1024*i}" for i in range(2)]
    slots = [[] for _ in range(16)]
    slots[0] = xfrag(4) + xfrag(5)
    slots[1] = xfrag(6) + xfrag(7)
    slots[2] = list(misc)
    slot3 = [[] for _ in range(16)]
    s1, s2_ = stores(FG), stores(FG1)
    c1, c2 = cst(D1), cst(DA)
    for i in range(10):
        slots[3 + i] = c1[6*i:6*i+6]
        slot3[1 + i] = c2[6*i:6*i+6]
    slots[9] += ["s_waitcnt lgkmcnt(1)"] + s1[0]
    slots[13] = ["s_waitcnt vmcnt(2)"] + wfrag(0) + wfrag(1) + wfrag(2) + wfrag(3)
    slots[14] = ["s_waitcnt lgkmcnt(8)"] + s1[1]
    slots[15] = wfrag(4) + wfrag(5) + wfrag(6)
    slot3[0] = wfrag(7) + ["s_nop 1"]
    slot3[7] += ["s_waitcnt lgkmcnt(1)"] + s2_[0]
    slot3[12] = ["s_waitcnt lgkmcnt(0)"] + s2_[1]
    w8, mid = 6, "s_waitcnt lgkmcnt(6)"
    for q in range(8):
        slots[q] += send(sent[0] + 1)
    assert sent[0] == len(seq)
    a("s_waitcnt lgkmcnt(0)\ns_barrier")
    for i in range(16):
        if i == 8:
            a(f"s_waitcnt lgkmcnt({w8})")
        a(gm(i // 2, i % 2))
        emit(slots[i])
    st(3)
    slot3[0] = [ready_load] + slot3[0]
    a(mid)
    for i in range(16):
        a(gm(i // 2, i % 2, D1))
        emit(slot3[i])
    a("s_waitcnt vmcnt(4)")
    ready_check("rn")
    a("K_join:")
    st(4)
    def poll_check(tag, base, lanes, wave=0):
        a(f"""
        s_cmp_lg_u32 s{sW}, {wave}
        s_cbranch_scc1 K_{tag}_done
        s_mov_b32 s50, 0
        s_mov_b32 s51, {base}
        K_{tag}_spin:
        s_waitcnt vmcnt(0)
        v_and_b32 v{PL}, v{PL}, v{PL+1}
        v_and_b32 v{PL+2}, v{PL+2}, v{PL+3}
        v_and_b32 v{PL}, v{PL}, v{PL+2}
        v_cmp_ne_u32 vcc, 1, v{PL}
        s_cbranch_vccz K_{tag}_done
        s_add_u32 s50, s50, 1
        s_cmp_lt_u32 s50, 0x40000
        buffer_load_dwordx4 {vr(PL,4)}, v{lanes}, s[12:15], s51 offen sc1
        s_cbranch_scc1 K_{tag}_spin
        K_{tag}_done:
        """)
    def list_ptrs():
        a(f"""
        s_mul_i32 s50, s{sSET}, {LSET}
        s_add_u32 s50, s50, {LIST}
        v_and_b32 v96, 0x28, v2
        v_bfe_u32 v97, v2, 4, 1
        v_add_u32 v96, v96, v97
        v_lshl_add_u32 v{LI}, v96, 3, s50
        v_and_b32 v96, 12, v2
        v_and_b32 v98, 32, v2
        v_lshl_add_u32 v96, v96, 1, v98
        v_lshl_add_u32 v{LP}, v96, 3, s50
        v_and_b32 v96, 10, v2
        v_bfe_u32 v99, v2, 2, 1
        v_lshl_add_u32 v96, v96, 2, v99
        s_lshr_b32 s51, s{sTILE}, 1
        s_lshl_b32 s51, s51, 5
        s_add_u32 s50, s50, s51
        s_and_b32 s51, s{sTILE}, 1
        s_lshl_b32 s51, s51, 7
        s_add_u32 s50, s50, s51
        v_lshl_add_u32 v{LE}, v96, 3, s50
        """)
    PL = 68
    def rec_loads(n=2):
        a(f"buffer_load_dwordx4 {vr(REC,4)}, v{SEG}, s[12:15], s{sSTART} offen sc1")
        if n == 2:
            a(f"buffer_load_dwordx4 {vr(REC+4,4)}, v{SEG}, s[12:15], s{sSTART} offen offset:64 sc1")
    a(f"""
    v_lshlrev_b32 v{FS}, 7, v89
    s_cmp_lg_u32 s{sW}, 0
    s_cbranch_scc1 K_nopoll
    s_mov_b32 s50, {WS_FLG + 4096}
    buffer_load_dwordx4 {vr(PL,4)}, v{FS}, s[12:15], s50 offen sc1
    K_nopoll:
    v_lshrrev_b32 v95, 2, v0
    v_lshlrev_b32 v{SIDX}, 4, v87
    v_lshl_add_u32 v{SEG}, v95, 7, v{SIDX}
    v_mul_u32_u24 v92, {AST}, v89
    v_mul_u32_u24 v{PB}, {CH}, v95
    s_lshl_b32 s{sSTART}, s{sBIN}, 14
    s_add_u32 s{sSTART}, s{sSTART}, {WS_SLOT}
    s_mov_b32 s16, s54
    s_mov_b32 s17, s55
    s_mov_b32 s18, {opt.get('erows', E) * 32}
    s_mov_b32 s19, 0x20000
    s_mov_b32 s{sMODE}, 0
    """)
    a(f"""
    s_cmp_lg_u32 s{sSET}, 0
    s_cbranch_scc1 K_uaddr
    v_cmp_gt_u32 s[72:73], {SB - 31}, v89
    s_lshl_b32 s51, s{sTILE}, 7
    s_add_u32 s51, s51, {ATAB}
    v_add3_u32 v52, v92, v93, s51
    """)
    for i in range(16):
        a(f"v_pk_mul_f32 {vr(D1+2*i,2)}, {vr(D1+2*i,2)}, s[94:95]")
    ca = conv(0, [52]*4, D1, None, lambda j: 16*j) + conv(1, [52]*4, D1, None, lambda j: 16*j + 32*AST)
    emit([x for x in ca if x.startswith("v_")])
    a(f"""
    s_branch K_conv
    K_uaddr:
    v_bfe_u32 v52, v2, 1, 2
    v_lshl_add_u32 v52, v52, 4, v93
    v_lshl_add_u32 v52, v89, 6, v52
    v_add_u32 v52, s{sRING}, v52
    """)
    for j in range(1, 4):
        a(f"v_xor_b32 v{52+j}, {16*j}, v52")
    emit(conv(0, [52, 53, 54, 55], D1) + conv(1, [52, 53, 54, 55], D1, None, lambda j: 2048))
    a(f"""
    v_and_b32 v45, 63, v95
    v_and_b32 v46, 31, v95
    v_lshlrev_b32 v47, 3, v87
    v_sub_u32 v46, v46, v47
    v_cmp_eq_u32 s[90:91], {SB}, v45
    v_mov_b32 v47, 64
    v_cmp_ge_u32 s[92:93], {SB}, v45
    v_cndmask_b32 v46, v46, v47, s[90:91]
    v_and_b32 v47, 1, v46
    v_lshlrev_b32 v47, 4, v47
    v_mov_b32 v48, 0x3f80
    v_lshlrev_b32 v47, v47, v48
    v_ashrrev_i32 v46, 1, v46
    v_cmp_eq_u32 s[64:65], 0, v46
    v_cmp_eq_u32 s[66:67], 1, v46
    v_cmp_eq_u32 s[68:69], 2, v46
    v_cmp_eq_u32 s[70:71], 3, v46
    v_cndmask_b32 v48, 0, v47, s[64:65]
    v_cndmask_b32 v49, 0, v47, s[66:67]
    v_cndmask_b32 v50, 0, v47, s[68:69]
    v_cndmask_b32 v51, 0, v47, s[70:71]
    v_mul_u32_u24 v46, {AST}, v45
    v_add_u32 v46, v46, v{SIDX}
    K_conv:
    """)
    st(5)
    poll_check("s", WS_FLG + 4096, FS)
    a("s_waitcnt vmcnt(0) lgkmcnt(0)\ns_barrier")
    rec_loads()
    a(f"""
    s_mov_b64 exec, 1
    buffer_store_dword v{ONE}, off, s[12:15], s97 sc1
    s_mov_b64 exec, -1
    """)
    st(6)
    PL = 156
    wa = [x for x in ca if x.startswith("ds_")]
    a(f"s_cmp_lg_u32 s{sSET}, 0\ns_cbranch_scc1 K_oh")
    emit(wa[:4] + ["s_mov_b64 exec, s[72:73]"] + wa[4:])
    a("s_branch K_tab\nK_oh:\ns_mov_b64 exec, s[92:93]")
    for t in range(4):
        a(f"ds_write_b128 v46, v[48:51] offset:{ATAB+128*t+64}")
    a("K_tab:\ns_mov_b64 exec, -1")
    a(f"""
    s_lshl_b32 s50, s{sTILE}, 7
    s_add_u32 s51, s50, {ATAB}
    v_add_u32 v{TC}, s51, v91
    v_and_b32 v90, 7, v2
    v_xor_b32 v90, v90, v84
    v_lshl_add_u32 v{OF0}, v90, 4, s50
    v_xor_b32 v{OF1}, 64, v{OF0}
    v_bfe_u32 v90, v0, 2, 2
    v_lshlrev_b32 v90, 13, v90
    v_lshl_add_u32 v90, v94, 6, v90
    v_bfe_u32 v96, v0, 5, 2
    v_xor_b32 v96, v96, v87
    v_lshl_add_u32 v90, v96, 4, v90
    v_add_u32 v3, {RING + 32768}, v90
    ds_read_b128 {ar(AU,4)}, v3
    ds_read_b128 {ar(AU+4,4)}, v3 offset:2048
    s_lshr_b32 s51, s{sTILE}, 1
    v_xor_b32 v84, s51, v2
    v_and_b32 v84, 1, v84
    v_lshlrev_b32 v{EP+1}, 4, v84
    s_mov_b32 s{s512}, 512
    s_lshl_b32 s50, s{sSET}, 12
    s_add_u32 s93, s50, {ERING}
    s_lshl_b32 s51, s{sTILE}, 8
    s_add_u32 s{sEM0}, s93, s51
    """)
    list_ptrs()
    def consts2():
        a(f"""
        v_lshl_add_u32 v3, v88, 4, v92
        ds_read_b128 {vr(SEL0,4)}, v3 offset:{ATAB + 64}
        ds_read_b128 {vr(SEL1,4)}, v3 offset:{ATAB + 96}
        v_lshrrev_b32 v90, 3, v89
        v_and_b32 v96, 1, v89
        v_lshl_add_u32 v90, v90, 1, v96
        v_and_b32 v96, 4, v89
        v_lshl_add_u32 v90, v96, 1, v90
        v_mul_u32_u24 v90, {AST}, v90
        v_lshl_add_u32 v3, v88, 4, v90
        ds_read_b128 {vr(PIND,4)}, v3 offset:{ATAB + 64}
        """)
    def consts3():
        a("s_mov_b32 s51, 0xffff0000")
        for j in range(4):
            a(f"""
            v_lshlrev_b32 v76, 16, v{WCR+j}
            v_and_b32 v77, s51, v{WCR+j}
            v_pk_mul_f32 v[76:77], v[76:77], s[94:95]
            v_cvt_pk_bf16_f32 v{WC+j}, v76, v77
            """)
        a(f"""
        v_bfe_u32 v90, v89, 1, 3
        v_xor_b32 v90, v90, v88
        v_lshlrev_b32 v90, 4, v90
        v_lshl_add_u32 v90, v89, 7, v90
        v_add_u32 v{RA[0]}, s{sRING}, v90
        v_xor_b32 v{RA[1]}, 32, v{RA[0]}
        v_lshlrev_b32 v90, 1, v89
        v_and_b32 v91, 32, v2
        v_xor_b32 v90, v90, v91
        v_lshl_add_u32 v90, v88, 9, v90
        v_add3_u32 v182, v90, s{sRING}, 64
        v_xor_b32 v84, v97, v88
        v_lshlrev_b32 v84, 4, v84
        v_lshl_add_u32 v84, v89, 5, v84
        v_add_u32 v{EA}, s93, v84
        """)

    def classes(ks, with_masks):
        a(f"s_movk_i32 s51, {63*32}\ns_movk_i32 s50, {cmask}")
        for k in ks:
            a(f"v_lshrrev_b32 v{CA+k}, 9, v{REC+k}")
            a(f"v_and_b32 v{CA+k}, s50, v{CA+k}")
            if with_masks:
                a(f"v_cmp_gt_u32 {sr(sM+2*k,2)}, s51, v{CA+k}")

    PW = 7
    def sort(first):
        tg = "a" if first else "b"
        a(f"""
        v_mov_b32 v{T+1}, 8
        v_lshlrev_b32 v{T}, 5, v2
        """)
        if first:
            a("s_waitcnt vmcnt(1)")
            st(7)
        else:
            a(f"""
            v_mov_b32 v{T+2}, 0
            s_waitcnt vmcnt(0) lgkmcnt(0)
            s_barrier
            s_mov_b64 exec, s[56:57]
            ds_write_b32 v{T+2}, v{T+1} offset:{62*32}
            s_mov_b64 exec, -1
            """)
        classes(range(8), first)
        for k in range(8):
            a(f"s_mov_b64 exec, {sr(sM+2*k,2)}")
            a(f"ds_add_rtn_u32 v{RK+k}, v{CA+k}, v{T+1}")
        a(f"s_mov_b64 exec, -1\ns_movk_i32 s50, {AST*4}")
        hi, lo, ew = [], [], []
        for k in range(8):
            e = EN + 2*k
            hi += [f"v_lshrrev_b32 v{e+1}, 20, v{REC+k}", f"v_add_lshl_u32 v{e+1}, v{e+1}, v{PB}, 5"]
            lo += [f"v_and_b32 v{e}, 0x3fff, v{REC+k}", f"v_and_b32 v3, 0xfc000, v{REC+k}", f"v_mad_u32_u24 v{e}, v3, s50, v{e}"]
            ew += [f"v_and_b32 v3, 28, v{CA+k}", f"v_cmp_gt_u32 vcc, {4*opt.get('ewarm', 2)}, v3",
                   f"s_and_b64 exec, vcc, {sr(sM+2*k,2)}", f"buffer_load_dword v{SLEN}, v{e+1}, s[16:19], 0 offen",
                   "s_mov_b64 exec, -1"]
        if not (first and opt.get("ewarm", 2)):
            ew = []
        c, W1, U, n, I, X, L, Z = 116, 124, 132, 136, 140, 144, 148, 152
        Tt = lambda i: W1 + 2*i
        Dd = lambda i: W1 + 2*i + 1
        t0, t1, run = T+2, T+3, T+4
        emit(hi + ew[:20])
        a(f"""
        s_cmp_eq_u32 s{sW}, 0
        s_waitcnt lgkmcnt(0)
        s_barrier
        s_cbranch_scc1 K_scan{tg}
        """)
        emit(ew[20:] + lo)
        if first and not opt.get("ppos", 0):
            a(f"""
            s_cmp_lg_u32 s{sW}, {PW}
            s_cbranch_scc1 K_scanned{tg}
            s_mov_b32 s50, {WS_FLG}
            buffer_load_dwordx4 {vr(PL,4)}, v{FS}, s[12:15], s50 offen sc1
            """)
        a(f"""
        s_branch K_scanned{tg}
        K_scan{tg}:
        ds_read_b128 {vr(c,4)}, v{T}
        ds_read_b128 {vr(c+4,4)}, v{T} offset:16
        s_setprio 1
        s_mov_b32 s51, 0xffe0ffe0
        s_waitcnt lgkmcnt(0)
        v_readlane_b32 s{sMORE}, v{c}, 62
        v_writelane_b32 v{c}, 0, 62
        """)
        for r in range(1, 8):
            a(f"v_add_u32 v{c+r}, v{c+r-1}, v{c+r}")
        for i in range(4):
            a(f"v_lshl_or_b32 v{Dd(i)}, v{c+2*i+1}, 16, v{c+2*i}")
        for i in range(4):
            a(f"v_add_u32 v{U+i}, 0x001f001f, v{Dd(i)}")
        for i in range(4):
            a(f"v_and_b32 v{U+i}, s51, v{U+i}")
        for i in range(4):
            a(f"v_lshlrev_b32 v{n}, 16, v{U}" if i == 0 else f"v_alignbit_b32 v{n+i}, v{U+i}, v{U+i-1}, 16")
        for i in range(4):
            a(f"v_sub_u32 v{I+i}, v{U+i}, v{n+i}")
        steps = [("row_shr:1", "0xf"), ("row_shr:2", "0xf"), ("row_shr:4", "0xf"), ("row_shr:8", "0xf"),
                 ("row_bcast:15", "0xa"), ("row_bcast:31", "0xc")]
        for ctl, m_ in steps:
            for i in range(4):
                a(f"v_add_u32_dpp v{I+i}, v{I+i}, v{I+i} {ctl} row_mask:{m_} bank_mask:0xf")
        side = [f"v_sub_u32 v{n+i}, v{U+i}, v{n+i}" for i in range(4)] + [f"v_sub_u32 v{X+i}, v{I+i}, v{n+i}" for i in range(4)]
        if first:
            a(f"""
            v_add_u32 v{t0}, v{I}, v{I+1}
            v_add3_u32 v{t0}, v{t0}, v{I+2}, v{I+3}
            v_add_u32_sdwa v{t0}, v{t0}, v{t0} {SDW} src0_sel:WORD_0 src1_sel:WORD_1
            v_lshrrev_b32 v{t1}, 16, v{U+3}
            v_readlane_b32 s50, v{t0}, 63
            v_lshlrev_b32 v{t0}, 1, v{t0}
            v_sub_u32 v{t0}, v{t0}, v{t1}
            v_cmp_ge_u32 vcc, s50, v{t0}
            """)
            emit(side[:4])
            a(f"""
            s_bcnt1_i32_b64 s50, vcc
            s_max_u32 s50, s50, 17
            s_min_u32 s{sVS}, s50, 32
            """)
            emit(side[4:])
        else:
            emit(side)
        for i in range(4):
            a(f"v_readlane_b32 s{84+i}, v{I+i}, 63")
        for i in range(4):
            a(f"v_readlane_b32 s{80+i}, v{X+i}, s{sVS}")
        a(f"v_cmp_le_u32 vcc, s{sVS}, v2")
        for i in range(4):
            a(f"v_sub_u32 v{Dd(i)}, v{U+i}, v{Dd(i)}")
        for i in range(4):
            a(f"v_mov_b32 v{L+i}, s{80+i}")
        for i in range(4):
            a(f"v_sub_u32 v{Z+i}, s{84+i}, v{L+i}")
            a(f"v_cndmask_b32 v{U+i}, 0, v{L+i}, vcc")
        a(f"v_mov_b32 v{t0}, {hex(LIST * 0x10001)}\nv_mov_b32 v{t1}, {hex((LIST + LSET) * 0x10001)}")
        for i in range(4):
            a(f"v_cndmask_b32 v{L+i}, v{L+i}, v{Z+i}, vcc")
        a(f"v_cndmask_b32 v{run}, v{t0}, v{t1}, vcc\ns_mov_b32 s51, 0x03020302")
        for i in range(4):
            a(f"v_lshlrev_b32 v{Tt(0)}, 16, v{Dd(0)}" if i == 0 else f"v_alignbit_b32 v{Tt(i)}, v{Dd(i)}, v{Dd(i-1)}, 16")
            a(f"v_sub_u32 v{X+i}, v{X+i}, v{U+i}")
        a(f"ds_write_b128 v{T}, {vr(W1,4)} offset:{TW1}\nds_write_b128 v{T}, {vr(W1+4,4)} offset:{TW1+16}")
        for i in range(4):
            a(f"v_lshl_add_u32 v{t0}, v{L+i}, 16, v{run}")
            a(f"v_pk_min_u16 v{Z+i}, v{n+i}, 1 op_sel_hi:[1,0]")
            a(f"v_add_u32 v{t1}, v{t0}, v{L+i}")
            a(f"v_add_u32 v{X+i}, v{X+i}, v{t0}")
            a(f"v_perm_b32 v{run}, v{t1}, v{t1}, s51")
        for i in range(4):
            a(f"v_add_u32 v{I+i}, v{X+i}, v{n+i}")
            a(f"v_sub_u32 v{c+2*i}, v{X+i}, v{Tt(i)}")
        a(f"v_readlane_b32 s56, v{run}, 0\nv_readlane_b32 s57, v{run}, 63")
        for i in range(4):
            a(f"v_pk_mul_lo_u16 v{Z+i}, v{Z+i}, v{I+i}")
            a(f"v_lshrrev_b32 v{c+2*i+1}, 16, v{c+2*i}")
        a(f"v_and_b32 v{t0}, 0xffff, v{Z}\ns_movk_i32 s51, {TRASH}")
        for r in range(1, 8):
            a(f"v_sub_u16_sdwa v{c+r}, v{t0}, v{W1+r} dst_sel:WORD_1 dst_unused:UNUSED_PRESERVE src0_sel:WORD_0 src1_sel:WORD_0")
            if r < 7:
                a(f"v_max_u32_sdwa v{t0}, v{t0}, v{Z+r//2} {SDW} src0_sel:DWORD src1_sel:WORD_{r % 2}")
        a(f"""
        v_writelane_b32 v{c}, s51, 62
        ds_write_b128 v{T}, {vr(c,4)} offset:{TW0}
        ds_write_b128 v{T}, {vr(c+4,4)} offset:{TW0+16}
        """)
        a(f"""
        s_lshr_b32 s56, s56, 16
        s_lshr_b32 s57, s57, 16
        s_sub_u32 s57, s57, {LSET}
        s_max_u32 s50, s56, s57
        v_mov_b32 v{Z}, s50
        v_mov_b32 v{Z+1}, s{sVS}
        v_mov_b32 v{Z+2}, s{sMORE}
        ds_write_b96 v{T+1}, {vr(Z,3)} offset:{63*32 - 8}
        s_setprio 0
        s_waitcnt lgkmcnt(0)
        K_scanned{tg}:
        s_cmp_lg_u32 s{sW}, 0
        s_barrier
        ds_read_b96 {vr(Z,3)}, v{T+1} offset:{63*32 - 8}
        """)
        if first:
            st(8)
        for k in range(8):
            a(f"ds_read2st64_b32 {vr(BB+2*k,2)}, v{CA+k} offset0:{TW0//256} offset1:{TW1//256}")
        a(f"s_cbranch_scc1 K_rest{tg}\ns_movk_i32 s50, {AST*4}")
        emit(lo + ew[20:])
        a(f"""
        K_rest{tg}:
        """)
        if first and opt.get("ppos", 0):
            a(f"""
            s_cmp_lg_u32 s{sW}, {PW}
            s_cbranch_scc1 K_nop2
            s_mov_b32 s50, {WS_FLG}
            buffer_load_dwordx4 {vr(PL,4)}, v{FS}, s[12:15], s50 offen sc1
            K_nop2:
            """)
        a(f"""
        s_waitcnt lgkmcnt(8)
        v_readfirstlane_b32 s50, v{Z}
        v_readfirstlane_b32 s{sVS}, v{Z+1}
        v_readfirstlane_b32 s{sMORE}, v{Z+2}
        s_cmp_le_u32 s50, {LIST + LIMIT}
        s_cbranch_scc0 K_over
        s_sub_u32 s50, s50, {LIST - 511}
        s_lshr_b32 s50, s50, 9
        s_max_u32 s{sS}, s50, 1
        """)
        for k0 in (0, 4):
            a(f"s_waitcnt lgkmcnt({4 - k0})")
            for k in range(k0, k0 + 4):
                a(f"v_cmp_lt_u32_sdwa {sr(80+2*(k % 4),2)}, v{RK+k}, v{BB+2*k+1} src0_sel:DWORD src1_sel:WORD_0")
                a(f"v_lshrrev_b32 v{BB+2*k+1}, 16, v{BB+2*k}")
            for k in range(k0, k0 + 4):
                a(f"v_cndmask_b32 v{BB+2*k}, v{BB+2*k}, v{BB+2*k+1}, {sr(80+2*(k % 4),2)}")
                a(f"v_add_u32_sdwa v{RK+k}, v{RK+k}, v{BB+2*k} {SDW} src0_sel:DWORD src1_sel:WORD_0")
        for k in range(8):
            a(f"s_mov_b64 exec, {sr(sM+2*k,2)}")
            a(f"ds_write_b64 v{RK+k}, {vr(EN+2*k,2)}")
        a("s_mov_b64 exec, -1")

    def idx_reads(blk, sub):
        o = 128*blk + 4*sub
        return [f"ds_read2_b32 {vr(RW,2)}, v{LI} offset0:{o} offset1:{o+32}",
                f"ds_read2_b32 {vr(RW+2,2)}, v{LI} offset0:{o+8} offset1:{o+40}"]
    mads = [f"v_mad_u32_u16 v{IX+t}, v{RW+t}, s{s512}, v{OF1 if t % 2 else OF0}" for t in range(4)]
    def dma(slot, mid):
        o = []
        for t in range(4):
            o += [f"s_add_u32 m0, s{sRING}, {4096*slot + 1024*t}"] + mid[t] + \
                 [f"buffer_load_dwordx4 v{IX+t}, s[12:15], 0 offen {tfl} lds"]
        return o
    def edma(step, src=EP):
        return [f"s_add_u32 m0, s{sEM0}, {1024*(step % 4)}", "s_mov_b64 exec, 0xffff", f"v_or_b32 v{src}, v{src}, v{EP+1}",
                f"buffer_load_dwordx4 v{src}, s[16:19], 0 offen {opt.get('eflag','')} lds", "s_mov_b64 exec, -1"]
    def eid_read(step, dst=None):
        return [f"ds_read_b32 v{dst or EP}, v{LE} offset:{512*(step // 2) + 16*(step % 2) + 4}"]
    def pn_read(blk):
        return [f"ds_read2_b32 {vr(TA0,2)}, v{LP} offset0:{128*blk} offset1:{128*blk+8}"]
    ta = [f"v_add_u32_sdwa v{x}, v{x}, v{TC} {SDW} src0_sel:WORD_1 src1_sel:DWORD" for x in (TA0, TA1)]
    def reads(step):
        s = step % 2
        o = [f"ds_read_b128 {vr(OE,4)}, v{EA} offset:{1024*(step % 4)}"]
        o += [f"ds_read_b128 {vr(r,4)}, v{RA[i]} offset:{4096*s}" for i, r in enumerate((OB0, OB1))]
        o += [f"ds_read_u16_d16_hi v{H[s]+r}, v{HA[2*((r//4) % 2) + (r % 4)//2]} offset:{4096*s + 128*(8*(r//4) + r % 4)}"
              for r in range(16)]
        return o
    def tr_reads(blk):
        i = IND[blk % 2]
        return [f"ds_read_b64_tr_b16 {vr(OA,2)}, v{TA0}", f"ds_read_b64_tr_b16 {vr(OA+2,2)}, v{TA1}",
                f"ds_read_b64_tr_b16 {vr(i,2)}, v{TA0} offset:64", f"ds_read_b64_tr_b16 {vr(i+2,2)}, v{TA1} offset:64"]
    mct = f"{MF} {vr(CT,16)}, {vr(PIND,4)}, {vr(OA,4)}, 0"
    def mf_g(g):
        d = vr(g, 16)
        return [f"{MF} {d}, {vr(OE,4)}, {vr(WC,4)}, {vr(CT,16)}",
                f"{MF} {d}, {vr(OB0,4)}, {vr(SEL0,4)}, {d}",
                f"{MF} {d}, {vr(OB1,4)}, {vr(SEL1,4)}, {d}"]
    def mf_red(i):
        return [f"{MF} {ar(ACD,16)}, {vr(IND[i],4)}, {vr(BD,4)}, {ar(ACD,16)}",
                f"{MF} {ar(ACN,16)}, {vr(IND[i],4)}, {vr(BN,4)}, {ar(ACN,16)}"]
    cvts = [f"v_cvt_pk_bf16_f32 v{BD+j}, v{AS+2*j}, v{AS+2*j+1}" for j in range(4)] + \
           [f"v_cvt_pk_bf16_f32 v{BN+j}, v{AM+2*j}, v{AM+2*j+1}" for j in range(4)]
    def pk(op, d, *s):
        return f"v_pk_{op}_f32 {vr(d,2)}, " + ", ".join(x if isinstance(x, str) else vr(x, 2) for x in s)
    def pk2(k):
        o = []
        for dst, src in ((AS, SS), (AM, MM)):
            for j in range(4):
                if k % 2 == 0:
                    o.append(pk("mul", dst+2*j, src+2*j, RR+2*j))
                else:
                    o.append(pk("fma", dst+2*j, src+2*j, RR+2*j, dst+2*j))
        return o
    RE = 183
    def load_seg(u):
        side = eid_read(u + 5, RE) + idx_reads(*[(1, 1), (0, 0), (0, 1), (1, 0)][u])
        side += pn_read(u // 2) if u % 2 == 0 else tr_reads((u + 1) // 2)
        rd = reads(u + 1)
        va = mads + [f"v_or_b32 v{EP}, v{RE}, v{EP+1}"] + (ta if u % 2 == 0 else [])
        adv = {0: LI, 2: LP, 3: LE}.get(u)
        if adv:
            va = va + [f"v_add_u32 v{adv}, 0x400, v{adv}"]
        ed = [x for x in edma(u) if not x.startswith("v_or")]
        n_ = -(-len(side) // 4)
        dd = dma(u % 2, [side[n_*t:n_*t+n_] for t in range(4)])
        mode = opt.get("lmode", 0)
        if mode == 0:
            o = dd + ed + ["s_waitcnt vmcnt(6)"]
        else:
            o = ed + dd + ["s_waitcnt vmcnt(5)"]
        o += rd + ["s_waitcnt lgkmcnt(15)"] + va
        if u % 2:
            o += [f"s_add_u32 s{sK}, s{sK}, 1", f"s_cmp_ge_u32 s{sK}, s{sS}"]
        return o + ["s_setprio 0", "s_waitcnt lgkmcnt(0)", "s_barrier"]
    def comp_seg(u, first=False):
        g, gn, h = G[u % 2], G[(u + 1) % 2], H[u % 2]
        ex = [f"v_exp_f32 v{g+r}, v{g+r}" for r in range(16)]
        mg = mf_g(gn)
        if first:
            o = [mg[0]] + ex[:3] + [mg[1]] + ex[3:6] + [mg[2]] + ex[6:]
        elif u % 2 == 0:
            mr = mf_red((u // 2 - 1) % 2)
            o = pk2(u - 1) + [mg[0]] + cvts[:6] + [mg[1]] + cvts[6:] + ex[:2] + [mg[2]] + ex[2:5] + \
                [mr[0]] + ex[5:8] + [mr[1]] + ex[8:]
        else:
            o = pk2(u - 1) + [mct] + ex[:3] + [mg[0]] + ex[3:6] + [mg[1]] + ex[6:9] + [mg[2]] + ex[9:]
        for j in range(4):
            b_ = g + 4*j
            o += [pk("fma", x, x, sr(sCC, 2), sr(sCC, 2)) + " clamp" for x in (b_, b_+2)]
        for j in range(4):
            b_, hh = g + 4*j, h + 4*j
            o += [pk("mul", RR+2*j, b_, b_+2), pk("mul", MM+2*j, hh, b_+2), f"v_rcp_f32 v{RR+2*j}, v{RR+2*j}",
                  pk("add", SS+2*j, b_, b_+2), f"v_rcp_f32 v{RR+2*j+1}, v{RR+2*j+1}", pk("fma", MM+2*j, hh+2, b_, MM+2*j)]
        return o + ["s_setprio 1", "s_barrier"]

    one = lambda l: [[x] for x in l]
    def fill_a():
        emit(eid_read(0) + eid_read(1, 1) + idx_reads(0, 0) + pn_read(0))
        a("s_waitcnt lgkmcnt(0)")
        emit(edma(0) + edma(1, 1) + dma(0, one(mads)))
        emit(eid_read(2) + idx_reads(0, 1) + ta)
    def fill_b():
        a("s_waitcnt lgkmcnt(0)")
        emit(edma(2) + dma(1, one(mads)) + eid_read(3) + idx_reads(1, 0))
        a(f"v_add_u32 v{LP}, 0x200, v{LP}\ns_mov_b32 s{sK}, 0")
    sort(True)
    a("K_sorted:")
    consts2()
    poll_check("t", WS_FLG, FS, PW)
    a("s_waitcnt lgkmcnt(0)\ns_barrier")
    st(9)
    fill_a()
    st(13)
    consts3()
    for i in range(4):
        a(f"v_mov_b32 v{108+i}, 0")
    a(f"""
    s_sub_u32 s51, {N*256}, s{sXO}
    s_min_u32 s34, s51, {SB*256}
    s_add_u32 s32, s10, s{sXO}
    s_addc_u32 s33, s11, 0
    {MF} {ar(ACD,16)}, v[108:111], v[108:111], 0
    s_mov_b32 s{sCC}, {hex(f32(2.0**-SHIFT))}
    s_mov_b32 s{sCC+1}, {hex(f32(2.0**-SHIFT))}
    {MF} {ar(ACN,16)}, v[108:111], v[108:111], 0
    K_fillb:
    v_mov_b32 v{HA[0]}, v182
    v_xor_b32 v{HA[1]}, 16, v182
    v_xor_b32 v{HA[2]}, 64, v182
    v_xor_b32 v{HA[3]}, 0x50, v182
    """)
    emit(tr_reads(0))
    fill_b()
    a(f"{mct}\ns_waitcnt lgkmcnt(0)")
    emit(mads)
    st(14)
    a("s_waitcnt vmcnt(5)\ns_barrier")
    r0 = reads(0)
    emit(r0[:11] + edma(3) + r0[11:18])
    a("s_waitcnt lgkmcnt(15)")
    emit(mf_g(G[0]) + r0[18:] + eid_read(4))
    a(f"s_waitcnt lgkmcnt(0)\nv_or_b32 v{EP}, v{EP}, v{EP+1}")
    st(10)
    a(f"""
    s_cmp_eq_u32 s{sSET}, 0
    s_barrier
    s_cbranch_scc1 K_lead
    s_barrier
    s_setprio 1
    K_lead:
    """)
    emit(load_seg(0) + comp_seg(0, first=True))
    a("s_branch K_loop1")
    a.l.append(".p2align 6")
    a("K_loop:")
    for u in range(4):
        if u == 1:
            a("K_loop1:")
        emit(load_seg(u) + comp_seg(u))
        if u == 1:
            a("s_cbranch_scc1 K_drain0")
        if u == 3:
            a("s_cbranch_scc0 K_loop")
    a("s_branch K_drain\nK_drain0:")
    emit([f"v_mov_b32 v{IND[1]+j}, v{IND[0]+j}" for j in range(4)])
    a(f"""
    K_drain:
    s_setprio 0
    s_cmp_lg_u32 s{sSET}, 0
    s_cbranch_scc1 K_done
    s_barrier
    K_done:
    """)
    emit(pk2(1) + cvts + ["s_nop 1"] + mf_red(1))
    st(11)
    a(f"""
    s_cmp_lg_u32 s{sMORE}, 0
    s_cbranch_scc1 K_again
    v_and_b32 v41, 31, v2
    s_and_b32 s50, s{sW}, 1
    s_lshl_b32 s50, s50, 7
    s_add_u32 s50, s50, s{sRING}
    v_lshl_add_u32 v42, v41, 2, s50
    v_and_b32 v40, 32, v2
    v_lshl_add_u32 v42, v40, 5, v42
    s_mov_b32 s50, {hex(f32(1e-6 * 2.0**SHIFT))}
    s_mov_b32 s51, s50
    s_mov_b32 s56, 0xffff0000
    """)
    Dn, Nn, Uu = NV + ACD, NV + ACN, NV + AU
    un = []
    for k in range(8):
        un += [f"v_lshlrev_b32 v{64+2*k}, 16, v{XR+k}", f"v_and_b32 v{65+2*k}, s56, v{XR+k}",
               f"v_lshlrev_b32 v{96+2*k}, 16, v{Uu+k}", f"v_and_b32 v{97+2*k}, s56, v{Uu+k}"]
    emit(un[:8])
    for r in range(0, 16, 2):
        a(pk("add", Dn+r, Dn+r, "s[50:51]"))
    for r in range(16):
        a(f"v_rcp_f32 v{Dn+r}, v{Dn+r}")
    a("s_waitcnt vmcnt(0)")
    for r in range(0, 16, 2):
        a(pk("mul", Dn+r, Dn+r, Nn+r))
        row = 8*(r//4) + r % 4
        a(f"ds_write2st64_b32 v42, v{Dn+r}, v{Dn+r+1} offset0:{row} offset1:{row+1}")
    emit(un[8:])
    a(f"""
    v_lshrrev_b32 v44, 4, v0
    v_bfe_u32 v45, v0, 2, 2
    v_lshlrev_b32 v45, 13, v45
    v_lshl_add_u32 v45, v44, 8, v45
    v_and_b32 v46, 7, v0
    v_lshl_add_u32 v45, v46, 5, v45
    v_add_u32 v45, {RING}, v45
    v_add_u32 v46, 0x8000, v45
    v_cmp_gt_u32 vcc, s{sVS}, v44
    v_lshlrev_b32 v43, 4, v0
    s_movk_i32 s51, 8192
    v_cndmask_b32 v45, v46, v45, vcc
    s_waitcnt lgkmcnt(0)
    s_barrier
    ds_read_b128 v[48:51], v45
    ds_read_b128 v[52:55], v45 offset:16
    ds_read_b128 v[56:59], v46
    ds_read_b128 v[60:63], v46 offset:16
    """)
    for k in range(8):
        a(pk("add", 96+2*k, 96+2*k, 64+2*k))
    for i in range(2):
        a(f"s_waitcnt lgkmcnt({2-2*i})")
        for j in range(0, 8, 2):
            a(pk("add", 48+8*i+j, 48+8*i+j, 96+8*i+j))
        for j in range(8):
            a(f"v_max_f32 v{48+8*i+j}, v{64+8*i+j}, v{48+8*i+j}")
        for j in range(4):
            a(f"v_cvt_pk_bf16_f32 v{80+4*i+j}, v{48+8*i+2*j}, v{48+8*i+2*j+1}")
        a(f"buffer_store_dwordx4 {vr(80+4*i,4)}, v43, s[32:35], {'s51' if i else '0'} offen {opt.get('ost','sc1')}")
    if st.on:
        a("s_waitcnt vmcnt(0)")
        a(f"s_lshl_b32 s50, s{sS}, 1")
        a("v_writelane_b32 v205, s50, 15")
    st(12)
    st.flush()
    a("K_end:\ns_endpgm")
    a(f"""
    K_clr:
    s_waitcnt lgkmcnt(0)
    s_mov_b32 s20, s52
    s_mov_b32 s21, s53
    s_mov_b32 s12, s78
    s_mov_b32 s13, s79
    s_mov_b32 s14, {WS_END}
    s_mov_b32 s15, 0x20000
    s_mov_b32 s28, s76
    s_mov_b32 s29, s77
    s_movk_i32 s30, 256
    s_mov_b32 s31, 0x20000
    v_mov_b32 v8, 0
    v_mov_b32 v9, 0
    v_mov_b32 v10, 0
    v_mov_b32 v11, 0
    v_lshlrev_b32 v4, 7, v2
    s_mov_b32 s50, {WS_FLG}
    buffer_store_dwordx4 v[8:11], v4, s[12:15], s50 offen sc1
    """)
    emit(xdma(XP, SB*256) + xdma(ERING, 0))
    a(f"""
    v_and_b32 v12, 4, v2
    v_cmp_eq_u32 vcc, 0, v12
    v_mov_b32 v13, 0x71807180
    v_and_b32 v5, 0x1f0, v1
    v_cndmask_b32 v12, 0, v13, vcc
    v_mov_b32 v13, v12
    v_mov_b32 v14, v12
    v_mov_b32 v15, v12
    s_mov_b32 s50, {DUMMY*512}
    buffer_store_dwordx4 v[12:15], v5, s[12:15], s50 offen sc1
    s_branch K_np1
    K_pub:
    s_mov_b64 exec, 1
    s_waitcnt vmcnt({5 + nw})
    buffer_store_dword v{ONE}, off, s[28:31], 0 sc1
    s_mov_b64 exec, -1
    s_waitcnt vmcnt({nw + 1})
    s_branch K_np2
    """)
    a(f"""
    K_prod:
    """)
    a(f"""
    s_mov_b32 s20, s52
    s_mov_b32 s21, s53
    v_lshlrev_b32 v4, 2, v0
    v_mov_b32 v62, 0
    ds_write_b32 v4, v62
    v_mov_b32 v40, -1
    v_mov_b32 v41, -1
    v_mov_b32 v42, -1
    v_mov_b32 v43, -1
    """)
    for i in range(4):
        a(f"ds_write_b128 v1, v[40:43] offset:{IMG + 8192*i}")
    wm = opt.get("warm", 1)
    if wm:
        a(f"""
        s_getpc_b64 s[96:97]
        K_pc:
        s_sub_u32 s96, s96, K_pc-K_np1
        s_subb_u32 s97, s97, 0
        s_mov_b32 s92, K_codeend-K_np1-4
        s_cmp_eq_u32 s{sW}, 0
        s_cselect_b64 s[96:97], s[66:67], s[96:97]
        s_cmp_eq_u32 s{sW}, 1
        s_cselect_b64 s[96:97], s[72:73], s[96:97]
        s_cmp_eq_u32 s{sW}, 2
        s_cselect_b64 s[96:97], s[64:65], s[96:97]
        s_cmp_eq_u32 s{sW}, 3
        s_cselect_b64 s[96:97], s[70:71], s[96:97]
        s_cmp_lt_u32 s{sW}, 4
        s_cselect_b32 s92, 32764, s92
        s_movk_i32 s50, 128
        """)
        if opt.get("tlb", 1):
            for w_, p_, sz in ((5, 78, WS_END), (6, 54, E*32), (7, 74, N*256)):
                a(f"""
                s_cmp_eq_u32 s{sW}, {w_}
                s_cselect_b64 s[96:97], s[{p_}:{p_+1}], s[96:97]
                s_cselect_b32 s50, {sz // 256}, s50
                """)
            a(f"s_cmp_gt_u32 s{sW}, 4\ns_cselect_b32 s92, -1, s92")
        a(f"""
        s_and_b32 s93, s2, 0xf0
        v_add_u32 v4, s93, v85
        v_mul_u32_u24 v4, s50, v4
        v_min_u32 v4, s92, v4
        s_mov_b64 exec, 0xffff
        global_load_dword v60, v4, s[96:97] sc1
        s_mov_b64 exec, -1
        """)
    common(64)
    a("s_waitcnt lgkmcnt(0)\ns_barrier")
    emit(xdma(ERING, 0))
    common2(a)
    emit(wcdma)
    a(f"""
    s_sub_u32 s90, s82, s88
    v_add_u32 v4, 8192, v1
    v_cmp_gt_u32 s[92:93], s90, v4
    s_lshl_b32 s56, s62, 7
    s_add_u32 s56, s56, {WS_SLOT}
    s_add_u32 s57, s56, {1 << 20}
    s_add_u32 s58, s56, {2 << 20}
    s_add_u32 s59, s56, {3 << 20}
    v_lshrrev_b32 v5, 3, v0
    v_and_b32 v61, 0x70, v1
    v_lshl_add_u32 v61, v5, 14, v61
    s_mov_b32 s91, {-SB & 0xffffffff}
    v_mov_b32 v6, 4
    v_lshlrev_b32 v7, 22, v0
    v_mov_b32 v36, 0
    v_mov_b32 v37, 0
    v_mov_b32 v38, 0
    v_mov_b32 v39, 0
    v_add_u32 v{FX}, {ERING}, v{FX}
    """)
    for k in range(8):
        a(f"v_add_u32 v{68+k}, {hex(((2048*(k//4) + k % 4) << 20) & 0xffffffff)}, v7")
    for g in range(2):
        a(f"s_waitcnt vmcnt({6 - g + wm})")
        if g == 0:
            st(1)
        for j in range(4):
            d, t = 8 + 4*g + j, 24 + 4*g + j
            a(f"v_mul_u32_u24 v{44+4*g+j}, 21400, v{d}")
            a(f"v_lshrrev_b32 v{44+4*g+j}, 20, v{44+4*g+j}")
            a(f"v_lshlrev_b32 v{t}, 2, v{44+4*g+j}")
        if g:
            a("s_mov_b64 exec, s[92:93]")
        for j in range(4):
            a(f"ds_add_rtn_u32 v{32+4*g+j}, v{24+4*g+j}, v6")
    a(f"s_mov_b64 exec, -1\ns_waitcnt vmcnt({3 + wm})")
    wp = wdma()
    for k in range(8):
        s_, d = 16 + k, 8 + k
        a(f"v_mad_i32_i24 v{d}, v{44+k}, s91, v{d}")
        a(f"v_and_b32 v4, 7, v{s_}")
        a(f"v_lshl_or_b32 v{d}, v{d}, 3, v4")
        a(f"v_lshrrev_b32 v{s_}, 3, v{s_}")
        a(f"v_lshl_or_b32 v{d}, v{d}, 11, v{68+k}")
        a(f"v_or_b32 v{s_}, v{d}, v{s_}")
    a("s_waitcnt lgkmcnt(0)")
    for k in range(8):
        if k == 4:
            a("s_mov_b64 exec, s[92:93]")
        a(f"v_add_u32 v4, v{32+k}, v{24+k}")
        a(f"v_and_b32 v4, 0x7f, v4")
        a(f"v_lshl_add_u32 v{44+k}, v{24+k}, 5, v4")
        a(f"ds_write_b32 v{44+k}, v{16+k} offset:{IMG}")
    a(f"""
    s_mov_b64 exec, -1
    v_or3_b32 v4, v32, v33, v34
    v_or3_b32 v5, v35, v36, v37
    v_or3_b32 v4, v4, v38, v39
    v_or_b32 v4, v4, v5
    v_cmp_lt_u32 vcc, 0x7f, v4
    s_mov_b64 exec, vcc
    ds_write_b32 v62, v6 offset:1024
    s_mov_b64 exec, -1
    s_waitcnt vmcnt(0) lgkmcnt(0)
    s_barrier
    ds_read_b32 v4, v62 offset:1024
    """)
    OUTR = [8, 12, 68, 72]
    def img_reads():
        for i in range(4):
            a(f"ds_read_b128 {vr(OUTR[i],4)}, v1 offset:{IMG + 8192*i}")
    img_reads()
    a(f"""
    {ready_load}
    s_waitcnt lgkmcnt(4)
    v_readfirstlane_b32 s50, v4
    s_cmp_lg_u32 s50, 0
    s_cbranch_scc1 K_slow
    K_out:
    """)
    for i in range(4):
        a(f"s_waitcnt lgkmcnt({3-i})")
        a(f"buffer_store_dwordx4 {vr(OUTR[i],4)}, v61, s[12:15], s{56+i} offen sc1")
    st(2)
    for q in range(8):
        emit(xfrag(q))
    wb = opt.get("wbefore", 3)
    emit(misc + wp[:3*wb])
    a(f"s_add_u32 s96, s97, {WS_FLG + 4096}\ns_mov_b32 s97, {OOB}\ns_waitcnt vmcnt({wb}) lgkmcnt(0)")
    ready_check("rp")
    a(f"""
    s_mov_b64 exec, 1
    s_barrier
    buffer_store_dword v{ONE}, off, s[12:15], s96 sc1
    s_mov_b64 exec, -1
    """)
    st(3)
    emit(wp[3*wb:])
    lds_reset(True)
    left = lambda q: 7 - q + (1 if q < wb else 0)
    emit([f"s_waitcnt vmcnt({left(0)})"] + wfrag(0))
    for q in range(8):
        if q < 7:
            emit([f"s_waitcnt vmcnt({left(q + 1)})"] + wfrag(q + 1))
        a(f"s_waitcnt lgkmcnt({2 if q < 7 else 0})")
        emit([gm(q, 0, D1), gm(q, 1, D1)])
    a("s_branch K_join")


    a("""
    K_slow:
    v_lshlrev_b32 v5, 4, v2
    s_waitcnt lgkmcnt(0)
    ds_read_b128 v[8:11], v5
    s_waitcnt lgkmcnt(0)
    v_add_u32 v13, v8, v9
    v_add_u32 v14, v13, v10
    v_add_u32 v15, v14, v11
    v_mov_b32 v4, v15
    """)
    scan64(a, [4])
    a("""
    v_sub_u32 v40, v4, v15
    v_add_u32 v41, v40, v8
    v_add_u32 v42, v40, v13
    v_add_u32 v43, v40, v14
    ds_write_b128 v5, v[40:43] offset:2048
    """)
    for k in range(8):
        a(f"ds_read_b32 v{24+k}, v{24+k} offset:2048")
    a("s_waitcnt lgkmcnt(0)")
    for k in range(8):
        a(f"s_mov_b64 exec, {'s[92:93]' if k >= 4 else '-1'}")
        a(f"v_add_u32 v{24+k}, v{24+k}, v{32+k}")
        a(f"ds_write_b32 v{24+k}, v{16+k} offset:{STG}")
        a(f"v_cmp_gt_u32 vcc, 0x80, v{32+k}")
        a("s_mov_b64 exec, vcc")
        a(f"ds_write_b32 v{44+k}, v{16+k} offset:{IMG}")
    a(f"""
    s_mov_b64 exec, -1
    s_waitcnt lgkmcnt(0)
    s_barrier
    v_mov_b32 v16, {62 << 14}
    """)
    for j in range(4):
        a(f"""
        v_add_u32 v12, {4*j}, v5
        v_add_u32 v13, 124, v12
        v_and_b32 v13, 0x7f, v13
        v_lshl_add_u32 v13, v12, 5, v13
        v_add_u32 v14, 120, v{40+j}
        v_lshl_or_b32 v14, v14, 18, v16
        v_add_u32 v15, -124, v{8+j}
        v_cmp_lt_u32 vcc, 0x80, v{8+j}
        s_mov_b64 exec, vcc
        ds_write_b32 v13, v14 offset:{IMG}
        ds_write_b32 v{40+j}, v15 offset:{STG + 120}
        s_mov_b64 exec, -1
        """)
    a(f"""
    ds_read_b128 v[16:19], v1 offset:{STG}
    ds_read_b128 v[20:23], v1 offset:{STG + 8192}
    s_add_u32 s50, s88, {WS_REC}
    s_add_u32 s80, s4, s50
    s_addc_u32 s81, s5, 0
    s_mov_b32 s82, s90
    s_movk_i32 s50, 8192
    s_waitcnt lgkmcnt(0)
    buffer_store_dwordx4 v[16:19], v1, s[80:83], 0 offen sc1
    buffer_store_dwordx4 v[20:23], v1, s[80:83], s50 offen sc1
    """)
    img_reads()
    a("s_branch K_out")

    zero_masks = lambda ks: [f"s_mov_b64 {sr(sM+2*k,2)}, 0" for k in ks]
    a("""
    K_again:
    s_waitcnt vmcnt(0) lgkmcnt(0)
    s_barrier
    """)
    lds_reset(True)
    a(f"""
    s_cmp_eq_u32 s{sMODE}, 3
    s_cbranch_scc1 K_next
    """)
    rec_loads()
    a(f"""
    s_waitcnt vmcnt(0)
    s_cmp_eq_u32 s{sMODE}, 1
    s_cbranch_scc0 K_marks
    s_mov_b32 s{sMODE}, 2
    s_mov_b64 s[56:57], 0
    """)
    classes(range(4, 8), True)
    emit(zero_masks(range(4)))
    a(f"""
    s_branch K_resort
    K_marks:
    s_mov_b32 s{sMODE}, 3
    v_mov_b32 v84, 0
    """)
    for k in range(8):
        a(f"""
        v_bfe_u32 v85, v{REC+k}, 14, 6
        v_cmp_eq_u32 vcc, 62, v85
        s_nop 1
        v_cndmask_b32 v84, v84, v{REC+k}, vcc
        """)
    a(f"""
    s_nop 1
    v_or_b32_dpp v84, v84, v84 quad_perm:[1,0,3,2] row_mask:0xf bank_mask:0xf
    s_nop 1
    v_or_b32_dpp v84, v84, v84 quad_perm:[2,3,0,1] row_mask:0xf bank_mask:0xf
    v_cmp_ne_u32 vcc, 0, v84
    v_lshrrev_b32 v84, 20, v84
    v_add_lshl_u32 v84, v84, v{PB}, 2
    s_mov_b32 s{sSTART}, {WS_REC}
    buffer_load_dword v{SLEN}, v84, s[12:15], s{sSTART} offen sc1
    v_add_u32 v{SEG}, v84, v{SIDX}
    s_mov_b32 s{sSTART}, {WS_REC + 4 - 64}
    s_waitcnt vmcnt(0)
    v_cndmask_b32 v{SLEN}, 0, v{SLEN}, vcc
    v_min_u32 v{SLEN}, {CH*4}, v{SLEN}
    v_add_u32 v{SLEN}, 64, v{SLEN}
    K_next:
    s_add_u32 s{sSTART}, s{sSTART}, 64
    v_add_u32 v{SLEN}, -64, v{SLEN}
    """)
    rec_loads(1)
    a(f"""
    v_cmp_lt_i32 s[56:57], 64, v{SLEN}
    v_sub_u32 v84, v{SLEN}, v{SIDX}
    """)
    for k in range(4):
        a(f"v_cmp_lt_i32 {sr(sM+2*k,2)}, {4*k}, v84")
    emit(zero_masks(range(4, 8)))
    a("K_resort:")
    list_ptrs()
    sort(False)
    a(f"""
    s_cmp_eq_u32 s{sMODE}, 2
    s_cselect_b32 s{sMORE}, s{sMARK}, s{sMORE}
    s_cmp_eq_u32 s{sMODE}, 1
    s_cselect_b32 s{sMORE}, 1, s{sMORE}
    s_cbranch_scc1 K_sorted
    s_waitcnt lgkmcnt(0)
    s_barrier
    """)
    fill_a()
    a(f"""
    s_branch K_fillb
    K_over:
    s_cmp_lg_u32 s{sMODE}, 0
    s_cbranch_scc1 K_end
    s_mov_b32 s{sMODE}, 1
    s_mov_b32 s{sMARK}, s{sMORE}
    s_mov_b64 s[56:57], 0
    s_waitcnt lgkmcnt(0)
    s_barrier
    """)
    lds_reset(False)
    emit(zero_masks(range(4, 8)))
    a("s_branch K_resort\nK_codeend:")
    d = desc(name, 256, 100, 256)
    ln = f"; @launch grid=(256,1,1) block=(512,1,1) lds={LDS}\n"
    if opt.get("probe"):
        import gen
        ln = f"; @launch kernel={name} grid=(256,1,1) block=(512,1,1) lds={LDS}\n; @launch kernel=probe_kernel grid=(1,1,1) block=(64,1,1) lds=0\n"
        d += gen.gen_probe(a, opt)
    hdr = """; GatedGCN layer in one launch: each workgroup builds the table rows of its 49 nodes, half of them also
; partition a chunk of edges by destination bin; after two counted hand-offs every workgroup sorts its bin
; and runs the gate / aggregation loop.
""" + ln + '.amdgcn_target "amdgcn-amd-amdhsa--gfx950"\n.text\n'
    return hdr + a.text() + d

if __name__ == "__main__":
    opt = {}
    out = f"cdna_kernels/{NAME}.s"
    for x in sys.argv[1:]:
        k, v = x.split("=", 1)
        if k == "out":
            out = v
        else:
            opt[k] = int(v) if v.lstrip("-").isdigit() else v
    open(out, "w").write(generate(opt))
    print("wrote", out)
```

```python
import sys
from gen import (NAME, N, E, SB, CH, P, RG, DUMMY, WS_REC, WS_SLOT, WS_END, SHIFT, LOG2E, WS_STAMP, MF,
                 f32, Asm, vr, ar, sr, scan64, desc, head, Stamps)

TW0, TW1, TRASH = 2048, 4096, 6144
LIST = 7168
CAPS = 2560
LSET = CAPS * 8
ATAB = LIST + 2 * LSET
AST = 576
WCL = 77824
WS_FLG = 0xA00000
XP = ATAB
ERING = 81920
RING = 98304
LDS = RING + 65536
LIMIT = 2240 * 8
IMG, STG = 4096, 36864
SDW = "dst_sel:DWORD dst_unused:UNUSED_PAD"
OOB = 0x7000000

def generate(opt=None):
    opt = opt or {}
    a = Asm()
    name = NAME + "_kernel"
    cmask = {8: 0x7FC, 4: 0x7F8, 2: 0x7F0}[opt.get("R", 8)]
    tfl = opt.get("tfl", "sc1").replace("+", " ")
    tst = opt.get("tst", "sc1").replace("+", " ")
    head(a, name)
    st = Stamps(a, opt.get("stamp"), 205, WS_STAMP)
    SEL0, SEL1, PIND, WC, CT, RR = 4, 8, 12, 16, 84, 248
    G = [52, 68]; H = [20, 36]
    OE, RW, OB0, OB1, OA = 100, 104, 108, 112, 120
    HA = [116, 117, 118, 119]
    IND = [124, 128]
    SS, MM, AS, AM, BD, BN = 132, 140, 148, 156, 164, 168
    IX, OF0, OF1, EP = 172, 176, 177, 178
    RA = [180, 181]
    EA, LI, LE, LP, TA0, TA1, TC = 184, 185, 186, 187, 188, 189, 190
    XR = 192
    SEG, SLEN, SIDX, PB = 200, 201, 202, 203
    NV = 208
    ACD, ACN, AU = 0, 16, 32
    sW, sSET, sTILE, sBIN = 3, 36, 37, 38
    sRING, sEM0, sS, sK, sVS, sSTART, sLUT, sMORE, s512 = 39, 40, 41, 42, 43, 44, 45, 46, 47
    sCC, sM, sMODE, sMARK, sXO, sPROD = 48, 64, 7, 9, 8, 6
    REC, CA, RK, BB, EN, T = 36, 44, 52, 60, 100, 76
    XF, WA, DA, SO, WCR = 100, 0, 36, 68, 164
    VW, FW, FX, FS, FR, FG, FA, FB, FU = 168, 169, 170, 171, 172, 173, 207, 204, 191
    ONE, PL = 206, 164

    def emit(lst):
        for x in lst:
            a(x)
    ar = lambda b_, n_=1: vr(NV + b_, n_)

    cw = opt.get("cw", 8)
    a("s_cmp_ge_u32 s2, 256\ns_cbranch_scc1 K_end")
    st(0)
    a(f"""
    s_load_dwordx8 s[52:59], s[0:1], 0
    s_load_dwordx16 s[64:79], s[0:1], 32
    s_getpc_b64 s[92:93]
    K_pc:
    s_and_b32 s50, s2, {0xf8 if cw == 8 else 0x78}
    s_lshl_b32 s50, s50, {0 if cw == 8 else 1}
    v_add_u32 v4, s50, v0
    v_mul_u32_u24 v4, (K_codeend-K_pc)/1024*4, v4
    v_cmp_gt_u32 vcc, {cw}, v0
    s_and_saveexec_b64 s[90:91], vcc
    s_cbranch_execz K_nocw
    global_load_dword v63, v4, s[92:93]
    K_nocw:
    s_mov_b64 exec, -1
    v_lshrrev_b32 v1, 6, v0
    v_and_b32 v2, 63, v0
    v_readfirstlane_b32 s{sW}, v1
    s_and_b32 s60, s2, 7
    s_lshr_b32 s61, s2, 3
    s_lshl_b32 s50, s60, 5
    s_add_u32 s{sBIN}, s50, s61
    v_lshrrev_b32 v84, 4, v2
    v_and_b32 v85, 15, v2
    v_bfe_u32 v3, v0, 4, 4
    v_xor_b32 v3, v3, v85
    v_lshlrev_b32 v3, 4, v3
    v_lshl_add_u32 v3, v84, 8, v3
    v_lshlrev_b32 v1, 4, v0
    s_mul_i32 s{sXO}, s{sBIN}, {SB*256}
    s_lshl_b32 s90, s{sW}, 10
    s_add_u32 s51, s{sXO}, s90
    s_add_u32 s91, s51, 8192
    s_cmp_lt_u32 s{sW}, 5
    s_cselect_b32 s91, s91, {OOB}
    s_mov_b32 s22, {N*256}
    s_mov_b32 s23, 0x20000
    v_lshrrev_b32 v86, 2, v2
    v_and_b32 v87, 3, v2
    v_lshlrev_b32 v{VW}, 4, v87
    v_lshl_add_u32 v{VW}, v86, 8, v{VW}
    v_mov_b32 v{ONE}, 1
    s_lshr_b32 s50, s2, 4
    s_lshl_b32 s50, s50, 3
    s_add_u32 s62, s50, s60
    s_lshr_b32 s{sSET}, s{sW}, 2
    s_and_b32 s{sTILE}, s{sW}, 3
    s_mov_b32 s83, 0x20000
    s_mov_b32 s87, 0x20000
    s_bitcmp1_b32 s2, 3
    s_cbranch_scc1 K_np
    s_mul_i32 s88, s62, {CH*4}
    s_add_u32 s89, s88, 8192
    s_add_u32 s82, s88, {CH*4}
    s_min_u32 s82, s82, {E*4}
    s_mov_b32 s86, s82
    s_waitcnt lgkmcnt(0)
    s_mov_b32 s80, s58
    s_mov_b32 s81, s59
    s_mov_b32 s84, s56
    s_mov_b32 s85, s57
    buffer_load_dwordx4 v[8:11], v1, s[80:83], s88 offen
    buffer_load_dwordx4 v[12:15], v1, s[80:83], s89 offen
    buffer_load_dwordx4 v[16:19], v1, s[84:87], s88 offen
    buffer_load_dwordx4 v[20:23], v1, s[84:87], s89 offen
    s_branch K_prod
    K_np:
    """)
    def xdma(base, delta):
        o = []
        for i, so in enumerate(("s51", "s91")):
            o.append(f"s_add_u32 m0, s90, {base + 8192*i}")
            o.append(f"s_sub_u32 s50, {so}, {delta}")
            o.append("buffer_load_dwordx4 v3, s[20:23], s50 offen lds")
        return o
    def wdma():
        o = []
        for q in range(8):
            o += [f"s_add_u32 m0, s{sRING}, {1024*q}", f"s_add_u32 s89, s63, {4096*q}",
                  f"buffer_load_dwordx4 v{VW}, s[24:27], s89 offen lds"]
        return o
    wcdma = [f"s_lshl_b32 s89, s{sTILE}, 10", f"s_add_u32 m0, s89, {WCL}", "s_nop 0",
             f"buffer_load_dwordx4 v{VW}, s[32:35], s63 offen lds"]
    def common(first):
        a(f"""
        s_lshl_b32 s{sRING}, s{sW}, 13
        s_add_u32 s{sRING}, s{sRING}, {RING}
        s_lshl_b32 s63, s{sTILE}, 6
        s_cmp_eq_u32 s{sSET}, 0
        s_cselect_b32 s64, s64, s70
        s_cselect_b32 s65, s65, s71
        s_cselect_b32 s66, s66, s72
        s_cselect_b32 s67, s67, s73
        s_mov_b32 s24, s{first}
        s_mov_b32 s25, s{first+1}
        s_mov_b32 s26, 32768
        s_mov_b32 s27, 0x20000
        """)
    def common2(x):
        x(f"""
        s_mov_b32 s32, s68
        s_mov_b32 s33, s69
        s_mov_b32 s34, 4096
        s_mov_b32 s35, 0x20000
        s_mov_b32 s14, {WS_END}
        s_mov_b32 s15, 0x20000
        s_movk_i32 s30, 256
        s_mov_b32 s31, 0x20000
        s_mov_b32 s4, s78
        s_mov_b32 s5, s79
        s_mov_b32 s12, s78
        s_mov_b32 s13, s79
        s_mov_b32 s10, s74
        s_mov_b32 s11, s75
        s_mov_b32 s28, s76
        s_mov_b32 s29, s77
        v_lshrrev_b32 v88, 5, v2
        v_and_b32 v89, 31, v2
        v_lshrrev_b32 v90, 2, v85
        v_lshl_add_u32 v90, v88, 3, v90
        v_and_b32 v91, 1, v84
        v_lshlrev_b32 v91, 5, v91
        v_lshl_add_u32 v91, v87, 3, v91
        v_lshl_add_u32 v90, v90, 6, v91
        v_add_u32 v{FW}, s{sRING}, v90
        s_lshl_b32 s50, s{sTILE}, 10
        s_add_u32 s50, s50, {WCL}
        v_add_u32 v{WCR}, s50, v90
        v_xor_b32 v90, v88, v85
        v_lshlrev_b32 v90, 4, v90
        v_lshl_add_u32 v{FX}, v89, 8, v90
        v_lshlrev_b32 v93, 3, v88
        v_lshrrev_b32 v94, 4, v0
        v_xor_b32 v90, v94, v0
        v_and_b32 v90, 15, v90
        v_lshlrev_b32 v90, 4, v90
        v_lshl_add_u32 v{FU}, v94, 8, v90
        s_mov_b32 s94, {hex(f32(-LOG2E))}
        s_mov_b32 s95, {hex(f32(-LOG2E))}
        s_lshr_b32 s50, s62, 2
        s_lshl_b32 s50, s50, 7
        s_and_b32 s97, s2, 3
        s_lshl_b32 s97, s97, 2
        s_add_u32 s97, s97, s50
        s_cmp_eq_u32 s{sW}, 0
        s_cselect_b32 s97, s97, {OOB}
        s_cselect_b32 s{sPROD}, 0, {OOB}
        """)
    def wfrag(q):
        return [f"ds_read_b64_tr_b16 {ar(WA+4*q+2*z,2)}, v{FW} offset:{1024*q+256*z}" for z in range(2)]
    def xfrag(q, off=0):
        return [f"v_xor_b32 v3, {32*q}, v{FX}", f"ds_read_b128 {vr(XF+8*q,4)}, v3 offset:{off}",
                f"ds_read_b128 {vr(XF+8*q+4,4)}, v3 offset:{off+8192}"]
    misc = [f"v_add_u32 v3, {ERING}, v{FU}", f"ds_read_b128 {vr(XR,4)}, v3", f"ds_read_b128 {vr(XR+4,4)}, v3 offset:8192",
            f"ds_read_b64_tr_b16 {vr(WCR+2,2)}, v{WCR} offset:256", f"ds_read_b64_tr_b16 {vr(WCR,2)}, v{WCR}"]
    def gm(q, rt, base=DA):
        d = vr(base + 16*rt, 16)
        return f"{MF} {d}, {ar(WA+4*q,4)}, {vr(XF+8*q+4*rt,4)}, {'0' if q == 0 else d}"
    RDY = 99
    ready_load = f"buffer_load_dword v{RDY}, off, s[28:31], s{sPROD} sc1"
    def ready_check(tag):
        a(f"""
        s_cmp_lg_u32 s{sW}, 0
        s_cbranch_scc1 K_{tag}
        s_mov_b32 s50, 0
        K_{tag}_spin:
        v_cmp_eq_u32 vcc, 0, v{RDY}
        s_cbranch_vccz K_{tag}
        {ready_load}
        s_add_u32 s50, s50, 1
        s_cmp_lt_u32 s50, 0x40000
        s_waitcnt vmcnt(0)
        s_cbranch_scc1 K_{tag}_spin
        K_{tag}:
        """)
    D1 = 4
    def conv(rt, addrs, base=DA, mul=None, off=lambda j: 0):
        o = []
        for j in range(4):
            b_ = base + 16*rt + 4*j
            if mul:
                o += [f"v_mul_f32 v{b_+i}, {mul}, v{b_+i}" for i in range(4)]
            o += [f"v_cvt_pk_bf16_f32 v{b_}, v{b_}, v{b_+1}", f"v_cvt_pk_bf16_f32 v{b_+1}, v{b_+2}, v{b_+3}",
                  f"ds_write_b64 v{addrs[j]}, {vr(b_,2)} offset:{off(j)}"]
        return o

    def lds_reset(prefill):
        a(f"""
        v_lshlrev_b32 v76, 2, v0
        v_mov_b32 v77, 0
        ds_write_b32 v76, v77
        """)
        if prefill:
            a(f"""
            v_mov_b32 v76, {hex(DUMMY | (SB*AST) << 16)}
            v_mov_b32 v77, {OOB}
            v_mov_b32 v78, v76
            v_mov_b32 v79, v77
            v_lshlrev_b32 v80, 4, v0
            """)
            for i in range(5):
                a(f"ds_write_b128 v80, v[76:79] offset:{LIST + 8192*i}")

    a(f"""
    s_or_b32 s50, s90, s2
    s_cmp_eq_u32 s50, {7*1024 + 8}
    s_cbranch_scc1 K_clr
    s_waitcnt lgkmcnt(0)
    s_mov_b32 s20, s52
    s_mov_b32 s21, s53
    """)
    emit(xdma(XP, SB*256) + xdma(ERING, 0))
    a("K_np1:")
    common(66)
    w1 = wdma()
    b = Asm()
    common2(b)
    b(f"""
    s_add_u32 s97, s97, {WS_FLG}
    """)
    FG1, FG3 = 174, 175
    b(f"""
    v_bfe_u32 v90, v2, 1, 2
    v_lshl_add_u32 v90, v90, 4, v93
    v_lshl_add_u32 v90, v89, 6, v90
    s_lshl_b32 s50, s{sW}, 11
    s_add_u32 s50, s50, {XP}
    v_add_u32 v{FS}, s50, v90
    v_bfe_u32 v90, v2, 3, 2
    v_xor_b32 v90, v90, v87
    v_lshl_add_u32 v90, v90, 4, s50
    v_lshl_add_u32 v{FR}, v86, 6, v90
    v_xor_b32 v95, 16, v{FS}
    v_xor_b32 v96, 32, v{FS}
    v_xor_b32 v97, 48, v{FS}
    s_lshl_b32 s56, s{sTILE}, 7
    s_lshl_b32 s51, s{sSET}, 6
    s_add_u32 s56, s56, s51
    s_mul_i32 s50, s{sBIN}, {SB}
    v_add_u32 v90, s50, v86
    v_and_b32 v98, 7, v90
    v_lshrrev_b32 v{FG1}, 3, v90
    v_lshl_or_b32 v{FG1}, v98, 11, v{FG1}
    v_lshl_add_u32 v{FG1}, v{FG1}, 5, v87
    v_lshlrev_b32 v{FG1}, 4, v{FG1}
    v_add_u32 v90, {-SB & 0xffffffff}, v90
    v_and_b32 v98, 7, v90
    v_lshrrev_b32 v{FG}, 3, v90
    v_lshl_or_b32 v{FG}, v98, 11, v{FG}
    v_lshl_add_u32 v{FG}, v{FG}, 5, v87
    v_lshlrev_b32 v{FG}, 4, v{FG}
    s_cmp_eq_u32 s{sSET}, 0
    s_cselect_b32 s96, s94, 1.0
    """)
    nw = opt.get("wearly", 3)
    a("s_barrier")
    emit(w1[:3*nw])
    lds_reset(True)
    cut = [i for i, l in enumerate(b.l) if f"v{FX}," in l][0] + 1
    a.l += b.l[:cut]
    later = [x.strip() for x in b.l[cut:]]
    a(f"""
    s_or_b32 s50, s90, s2
    s_cmp_eq_u32 s50, {7*1024 + 8}
    s_cbranch_scc1 K_pub
    s_waitcnt vmcnt({nw})
    K_np2:
    s_barrier
    """)
    st(1)
    emit(xfrag(0, XP) + xfrag(1, XP) + xfrag(2, XP) + xfrag(3, XP))
    w2 = wdma()
    ahead = opt.get("ahead", 5)
    seq = [w1[3*q:3*q+3] for q in range(8)] + [wcdma + ["s_mov_b32 s24, s64", "s_mov_b32 s25, s65"]] + \
          [w2[3*q:3*q+3] for q in range(8)]
    sent = [nw]
    def send(n):
        o = []
        while sent[0] < min(n, len(seq)):
            o += seq[sent[0]]
            sent[0] += 1
        return o
    landed = lambda i: f"s_waitcnt vmcnt({sent[0] - 1 - i})"
    SA = [FS, 95, 96, 97]
    emit(send(ahead))
    emit([landed(0)] + wfrag(0) + [landed(1)] + wfrag(1))
    for q in range(8):
        a(f"s_waitcnt lgkmcnt({[2, 4, 4, 4, 4, 4, 4, 2][q]})")
        a(gm(q, 0, D1))
        emit(send(ahead + q + 1))
        if q == 4:
            a(f"v_add_u32 v{FX}, {ERING}, v{FX}")
        emit(xfrag(q + 4, XP) if q < 4 else xfrag(q - 4))
        if q < 6:
            emit([landed(q + 2)] + wfrag(q + 2))
        a(gm(q, 1, D1))
        n_ = -(-len(later) // (8 - q))
        while n_ < len(later) and ("cselect" in later[n_] or "addc" in later[n_]):
            n_ += 1
        emit(later[:n_])
        later = later[n_:]
    st(2)
    a(landed(8))
    def stores(fg, so):
        o = [f"buffer_store_dwordx4 {vr(so+4*i,4)}, v{fg}, s[12:15], s56 offen offset:{1024*i} {tst}" for i in range(4)]
        return o[:2], [o[2], "s_mov_b64 exec, 15", o[3], "s_mov_b64 exec, -1"]
    def cst(base, so):
        return conv(0, SA, base, "s96") + [f"ds_read_b128 {vr(so+4*i,4)}, v{FR} offset:{1024*i}" for i in range(2)] + \
               conv(1, SA, base, "s96") + [f"ds_read_b128 {vr(so+8+4*i,4)}, v{FR} offset:{1024*i}" for i in range(2)]
    slots = [[] for _ in range(16)]
    slots[0] = xfrag(4) + xfrag(5)
    slots[1] = xfrag(6) + xfrag(7)
    slots[2] = list(misc)
    slot3 = [[] for _ in range(16)]
    SO2 = 176
    s1, s2_ = stores(FG, SO), stores(FG1, SO2)
    c1, c2 = cst(D1, SO), cst(DA, SO2)
    for i in range(10):
        slots[3 + i] = c1[6*i:6*i+6]
        slot3[1 + i] = c2[6*i:6*i+6]
    sm = opt.get("smode", 1)
    slot3[0] = wfrag(7) + ["s_nop 1"]
    if sm == 0:
        slots[9] += ["s_waitcnt lgkmcnt(1)"] + s1[0]
        slots[13] = ["s_waitcnt vmcnt(2)"] + wfrag(0) + wfrag(1) + wfrag(2) + wfrag(3)
        slots[14] = ["s_waitcnt lgkmcnt(8)"] + s1[1]
        slots[15] = wfrag(4) + wfrag(5) + wfrag(6)
    else:
        slots[13] = ["s_waitcnt vmcnt(0)"] + wfrag(0) + wfrag(1) + wfrag(2) + wfrag(3)
        slots[15] = ["s_waitcnt lgkmcnt(8)"] + s1[0] + wfrag(4) + wfrag(5) + wfrag(6)
        slot3[0] = s1[1] + slot3[0]
    if sm < 2:
        slot3[7] += ["s_waitcnt lgkmcnt(1)"] + s2_[0]
        slot3[12] = ["s_waitcnt lgkmcnt(0)"] + s2_[1]
    else:
        slot3[7] += ["s_waitcnt lgkmcnt(1)"]
        slot3[15] = ["s_waitcnt lgkmcnt(0)"] + s2_[0] + s2_[1]
    w8, mid = 6, "s_waitcnt lgkmcnt(6)"
    for q in range(8):
        slots[q] += send(sent[0] + 1)
    assert sent[0] == len(seq)
    a("s_waitcnt lgkmcnt(0)\ns_barrier")
    for i in range(16):
        if i == 8:
            a(f"s_waitcnt lgkmcnt({w8})")
        a(gm(i // 2, i % 2))
        emit(slots[i])
    st(3)
    slot3[1] = [ready_load] + slot3[1]
    a(mid)
    for i in range(16):
        a(gm(i // 2, i % 2, D1))
        emit(slot3[i])
    a("s_waitcnt vmcnt(4)")
    ready_check("rn")
    a("K_join:")
    st(4)
    def poll_check(tag, base, lanes, wave=0):
        a(f"""
        s_cmp_lg_u32 s{sW}, {wave}
        s_cbranch_scc1 K_{tag}_done
        s_mov_b32 s50, 0
        s_mov_b32 s51, {base}
        K_{tag}_spin:
        s_waitcnt vmcnt(0)
        v_and_b32 v{PL}, v{PL}, v{PL+1}
        v_and_b32 v{PL+2}, v{PL+2}, v{PL+3}
        v_and_b32 v{PL}, v{PL}, v{PL+2}
        v_cmp_ne_u32 vcc, 1, v{PL}
        s_cbranch_vccz K_{tag}_done
        s_add_u32 s50, s50, 1
        s_cmp_lt_u32 s50, 0x40000
        buffer_load_dwordx4 {vr(PL,4)}, v{lanes}, s[12:15], s51 offen sc1
        s_cbranch_scc1 K_{tag}_spin
        K_{tag}_done:
        """)
    def list_ptrs():
        a(f"""
        s_mul_i32 s50, s{sSET}, {LSET}
        s_add_u32 s50, s50, {LIST}
        v_and_b32 v98, 32, v2
        v_bfe_u32 v97, v2, 4, 1
        v_bfe_u32 v96, v2, 3, 1
        v_lshl_add_u32 v96, v96, 2, v97
        v_add_u32 v96, v96, v98
        v_lshl_add_u32 v{LI}, v96, 3, s50
        v_and_b32 v96, 0x2c, v2
        v_lshl_add_u32 v{LP}, v96, 3, s50
        v_and_b32 v96, 2, v2
        v_bfe_u32 v99, v2, 2, 1
        v_lshl_add_u32 v96, v96, 1, v99
        v_and_or_b32 v96, v2, 8, v96
        s_lshr_b32 s51, s{sTILE}, 1
        s_lshl_b32 s51, s51, 7
        s_add_u32 s50, s50, s51
        s_and_b32 s51, s{sTILE}, 1
        s_lshl_b32 s51, s51, 8
        s_add_u32 s50, s50, s51
        v_lshl_add_u32 v{LE}, v96, 3, s50
        """)
    PL = 68
    def rec_loads(n=2):
        a(f"buffer_load_dwordx4 {vr(REC,4)}, v{SEG}, s[12:15], s{sSTART} offen sc1")
        if n == 2:
            a(f"buffer_load_dwordx4 {vr(REC+4,4)}, v{SEG}, s[12:15], s{sSTART} offen offset:64 sc1")
    a(f"""
    v_lshlrev_b32 v{FS}, 7, v89
    s_cmp_lg_u32 s{sW}, 0
    s_cbranch_scc1 K_nopoll
    s_mov_b32 s50, {WS_FLG + 4096}
    buffer_load_dwordx4 {vr(PL,4)}, v{FS}, s[12:15], s50 offen sc1
    K_nopoll:
    v_lshrrev_b32 v95, 2, v0
    v_lshlrev_b32 v{SIDX}, 4, v87
    v_lshl_add_u32 v{SEG}, v95, 7, v{SIDX}
    v_mul_u32_u24 v92, {AST}, v89
    v_mul_u32_u24 v{PB}, {CH}, v95
    s_lshl_b32 s{sSTART}, s{sBIN}, 14
    s_add_u32 s{sSTART}, s{sSTART}, {WS_SLOT}
    s_mov_b32 s16, s54
    s_mov_b32 s17, s55
    s_mov_b32 s18, {opt.get('erows', E) * 32}
    s_mov_b32 s19, 0x20000
    s_mov_b32 s{sMODE}, 0
    """)
    a(f"""
    s_cmp_lg_u32 s{sSET}, 0
    s_cbranch_scc1 K_uaddr
    v_cmp_gt_u32 s[90:91], {SB - 31}, v89
    s_lshl_b32 s51, s{sTILE}, 7
    s_add_u32 s51, s51, {ATAB}
    v_add3_u32 v81, v92, v93, s51
    """)
    for i in range(16):
        a(f"v_pk_mul_f32 {vr(D1+2*i,2)}, {vr(D1+2*i,2)}, s[94:95]")
    ca = conv(0, [81]*4, D1, None, lambda j: 16*j) + conv(1, [81]*4, D1, None, lambda j: 16*j + 32*AST)
    emit([x for x in ca if x.startswith("v_")])
    a(f"""
    s_branch K_conv
    K_uaddr:
    v_bfe_u32 v52, v2, 1, 2
    v_lshl_add_u32 v52, v52, 4, v93
    v_lshl_add_u32 v52, v89, 6, v52
    v_add_u32 v52, s{sRING}, v52
    """)
    for j in range(1, 4):
        a(f"v_xor_b32 v{52+j}, {16*j}, v52")
    emit(conv(0, [52, 53, 54, 55], D1) + conv(1, [52, 53, 54, 55], D1, None, lambda j: 2048))
    a(f"""
    v_and_b32 v45, 63, v95
    v_and_b32 v46, 31, v95
    v_lshlrev_b32 v47, 3, v87
    v_sub_u32 v46, v46, v47
    v_cmp_eq_u32 s[90:91], {SB}, v45
    v_mov_b32 v47, 64
    v_cmp_ge_u32 s[92:93], {SB}, v45
    v_cndmask_b32 v46, v46, v47, s[90:91]
    v_and_b32 v47, 1, v46
    v_lshlrev_b32 v47, 4, v47
    v_mov_b32 v48, 0x3f80
    v_lshlrev_b32 v47, v47, v48
    v_ashrrev_i32 v46, 1, v46
    v_cmp_eq_u32 s[64:65], 0, v46
    v_cmp_eq_u32 s[66:67], 1, v46
    v_cmp_eq_u32 s[68:69], 2, v46
    v_cmp_eq_u32 s[70:71], 3, v46
    v_cndmask_b32 v48, 0, v47, s[64:65]
    v_cndmask_b32 v49, 0, v47, s[66:67]
    v_cndmask_b32 v50, 0, v47, s[68:69]
    v_cndmask_b32 v51, 0, v47, s[70:71]
    v_mul_u32_u24 v46, {AST}, v45
    v_add_u32 v46, v46, v{SIDX}
    K_conv:
    """)
    st(5)
    poll_check("s", WS_FLG + 4096, FS)
    a("s_waitcnt vmcnt(0) lgkmcnt(0)\ns_barrier")
    rec_loads()
    a(f"""
    s_mov_b64 exec, 1
    buffer_store_dword v{ONE}, off, s[12:15], s97 sc1
    s_mov_b64 exec, -1
    """)
    st(6)
    PL = 156
    wa = [x for x in ca if x.startswith("ds_")]
    a(f"s_cmp_eq_u32 s{sSET}, 0\ns_cbranch_scc1 K_tab\ns_mov_b64 exec, s[92:93]")
    for t in range(4):
        a(f"ds_write_b128 v46, v[48:51] offset:{ATAB+128*t+64}")
    a("K_tab:\ns_mov_b64 exec, -1")
    a(f"""
    s_lshl_b32 s50, s{sTILE}, 7
    s_add_u32 s51, s50, {ATAB}
    v_add_u32 v{TC}, s51, v91
    v_and_b32 v90, 7, v2
    v_xor_b32 v90, v90, v84
    v_lshl_add_u32 v{OF0}, v90, 4, s50
    v_xor_b32 v{OF1}, 64, v{OF0}
    v_bfe_u32 v90, v0, 2, 2
    v_lshlrev_b32 v90, 13, v90
    v_lshl_add_u32 v90, v94, 6, v90
    v_bfe_u32 v96, v0, 5, 2
    v_xor_b32 v96, v96, v87
    v_lshl_add_u32 v90, v96, 4, v90
    v_add_u32 v3, {RING + 32768}, v90
    ds_read_b128 {ar(AU,4)}, v3
    ds_read_b128 {ar(AU+4,4)}, v3 offset:2048
    s_lshr_b32 s51, s{sTILE}, 1
    v_xor_b32 v84, s51, v2
    v_and_b32 v84, 1, v84
    v_lshlrev_b32 v{EP+1}, 4, v84
    s_mov_b32 s{s512}, 512
    s_lshl_b32 s50, s{sSET}, 12
    s_add_u32 s93, s50, {ERING}
    s_lshl_b32 s51, s{sTILE}, 8
    s_add_u32 s{sEM0}, s93, s51
    """)
    list_ptrs()
    def consts2():
        a(f"""
        v_lshl_add_u32 v3, v88, 4, v92
        ds_read_b128 {vr(SEL0,4)}, v3 offset:{ATAB + 64}
        ds_read_b128 {vr(SEL1,4)}, v3 offset:{ATAB + 96}
        v_lshrrev_b32 v90, 3, v89
        v_and_b32 v96, 1, v89
        v_lshl_add_u32 v90, v90, 1, v96
        v_and_b32 v96, 4, v89
        v_lshl_add_u32 v90, v96, 1, v90
        v_mul_u32_u24 v90, {AST}, v90
        v_lshl_add_u32 v3, v88, 4, v90
        ds_read_b128 {vr(PIND,4)}, v3 offset:{ATAB + 64}
        """)
    def consts3():
        a("s_mov_b32 s51, 0xffff0000")
        for j in range(4):
            a(f"""
            v_lshlrev_b32 v76, 16, v{WCR+j}
            v_and_b32 v77, s51, v{WCR+j}
            v_pk_mul_f32 v[76:77], v[76:77], s[94:95]
            v_cvt_pk_bf16_f32 v{WC+j}, v76, v77
            """)
        a(f"""
        v_bfe_u32 v90, v89, 1, 3
        v_xor_b32 v90, v90, v88
        v_lshlrev_b32 v90, 4, v90
        v_lshl_add_u32 v90, v89, 7, v90
        v_add_u32 v{RA[0]}, s{sRING}, v90
        v_xor_b32 v{RA[1]}, 32, v{RA[0]}
        v_lshlrev_b32 v90, 1, v89
        v_and_b32 v91, 32, v2
        v_xor_b32 v90, v90, v91
        v_lshl_add_u32 v90, v88, 9, v90
        v_add3_u32 v182, v90, s{sRING}, 64
        v_xor_b32 v84, v97, v88
        v_lshlrev_b32 v84, 4, v84
        v_and_b32 v90, 0x13, v2
        v_lshl_add_u32 v84, v90, 5, v84
        v_and_b32 v90, 4, v2
        v_lshl_add_u32 v84, v90, 6, v84
        v_and_b32 v90, 8, v2
        v_lshl_add_u32 v84, v90, 4, v84
        v_add_u32 v{EA}, s93, v84
        """)

    def classes(ks, with_masks):
        a(f"s_movk_i32 s51, {63*32}\ns_movk_i32 s50, {cmask}")
        for k in ks:
            a(f"v_lshrrev_b32 v{CA+k}, 9, v{REC+k}")
            a(f"v_and_b32 v{CA+k}, s50, v{CA+k}")
            if with_masks:
                a(f"v_cmp_gt_u32 {sr(sM+2*k,2)}, s51, v{CA+k}")

    PW, SW = 7, 4
    def sort(first):
        tg = "a" if first else "b"
        a(f"""
        v_mov_b32 v{T+1}, 8
        v_lshlrev_b32 v{T}, 5, v2
        """)
        if first:
            a("s_waitcnt vmcnt(1)")
            st(7)
        else:
            a(f"""
            v_mov_b32 v{T+2}, 0
            s_waitcnt vmcnt(0) lgkmcnt(0)
            s_barrier
            s_mov_b64 exec, s[56:57]
            ds_write_b32 v{T+2}, v{T+1} offset:{62*32}
            s_mov_b64 exec, -1
            """)
        classes(range(8), first)
        for k in range(8):
            a(f"s_mov_b64 exec, {sr(sM+2*k,2)}")
            a(f"ds_add_rtn_u32 v{RK+k}, v{CA+k}, v{T+1}")
        a(f"s_mov_b64 exec, -1\ns_movk_i32 s50, {AST*4}")
        hi, lo, ew = [], [], []
        for k in range(8):
            e = EN + 2*k
            hi += [f"v_lshrrev_b32 v{e+1}, 20, v{REC+k}", f"v_add_lshl_u32 v{e+1}, v{e+1}, v{PB}, 5"]
            lo += [f"v_and_b32 v{e}, 0x3fff, v{REC+k}", f"v_and_b32 v3, 0xfc000, v{REC+k}", f"v_mad_u32_u24 v{e}, v3, s50, v{e}"]
            ew += [f"v_and_b32 v3, 28, v{CA+k}", f"v_cmp_gt_u32 vcc, {4*opt.get('ewarm', 2)}, v3",
                   f"s_and_b64 exec, vcc, {sr(sM+2*k,2)}", f"buffer_load_dword v{SLEN}, v{e+1}, s[16:19], 0 offen",
                   "s_mov_b64 exec, -1"]
        if not (first and opt.get("ewarm", 2)):
            ew = []
        c, W1, U, n, I, X, L, Z = 116, 124, 132, 136, 140, 144, 148, 152
        Tt = lambda i: W1 + 2*i
        Dd = lambda i: W1 + 2*i + 1
        t0, t1, run = T+2, T+3, T+4
        emit(hi + ew[:20])
        a(f"""
        s_cmp_eq_u32 s{sW}, {SW}
        s_waitcnt lgkmcnt(0)
        s_barrier
        s_cbranch_scc1 K_scan{tg}
        """)
        emit(ew[20:])
        if first:
            a(f"s_cmp_lg_u32 s{sSET}, 0\ns_cbranch_scc1 K_noa")
            emit(wa[:4] + ["s_mov_b64 exec, s[90:91]"] + wa[4:])
            a("s_mov_b64 exec, -1\nK_noa:")
        emit(lo)
        if first and not opt.get("ppos", 0):
            a(f"""
            s_cmp_lg_u32 s{sW}, {PW}
            s_cbranch_scc1 K_scanned{tg}
            s_mov_b32 s50, {WS_FLG}
            buffer_load_dwordx4 {vr(PL,4)}, v{FS}, s[12:15], s50 offen sc1
            """)
        a(f"""
        s_branch K_scanned{tg}
        K_scan{tg}:
        ds_read_b128 {vr(c,4)}, v{T}
        ds_read_b128 {vr(c+4,4)}, v{T} offset:16
        s_setprio 1
        s_mov_b32 s51, 0xffe0ffe0
        s_waitcnt lgkmcnt(0)
        v_readlane_b32 s{sMORE}, v{c}, 62
        v_writelane_b32 v{c}, 0, 62
        """)
        for r in range(1, 8):
            a(f"v_add_u32 v{c+r}, v{c+r-1}, v{c+r}")
        for i in range(4):
            a(f"v_lshl_or_b32 v{Dd(i)}, v{c+2*i+1}, 16, v{c+2*i}")
        for i in range(4):
            a(f"v_add_u32 v{U+i}, 0x001f001f, v{Dd(i)}")
        for i in range(4):
            a(f"v_and_b32 v{U+i}, s51, v{U+i}")
        for i in range(4):
            a(f"v_lshlrev_b32 v{n}, 16, v{U}" if i == 0 else f"v_alignbit_b32 v{n+i}, v{U+i}, v{U+i-1}, 16")
        for i in range(4):
            a(f"v_sub_u32 v{I+i}, v{U+i}, v{n+i}")
        steps = [("row_shr:1", "0xf"), ("row_shr:2", "0xf"), ("row_shr:4", "0xf"), ("row_shr:8", "0xf"),
                 ("row_bcast:15", "0xa"), ("row_bcast:31", "0xc")]
        for ctl, m_ in steps:
            for i in range(4):
                a(f"v_add_u32_dpp v{I+i}, v{I+i}, v{I+i} {ctl} row_mask:{m_} bank_mask:0xf")
        side = [f"v_sub_u32 v{n+i}, v{U+i}, v{n+i}" for i in range(4)] + [f"v_sub_u32 v{X+i}, v{I+i}, v{n+i}" for i in range(4)]
        if first:
            a(f"""
            v_add_u32 v{t0}, v{I}, v{I+1}
            v_add3_u32 v{t0}, v{t0}, v{I+2}, v{I+3}
            v_add_u32_sdwa v{t0}, v{t0}, v{t0} {SDW} src0_sel:WORD_0 src1_sel:WORD_1
            v_lshrrev_b32 v{t1}, 16, v{U+3}
            v_readlane_b32 s50, v{t0}, 63
            v_lshlrev_b32 v{t0}, 1, v{t0}
            v_sub_u32 v{t0}, v{t0}, v{t1}
            v_cmp_ge_u32 vcc, s50, v{t0}
            """)
            emit(side[:4])
            a(f"""
            s_bcnt1_i32_b64 s50, vcc
            s_max_u32 s50, s50, 17
            s_min_u32 s{sVS}, s50, 32
            """)
            emit(side[4:])
        else:
            emit(side)
        for i in range(4):
            a(f"v_readlane_b32 s{84+i}, v{I+i}, 63")
        for i in range(4):
            a(f"v_readlane_b32 s{80+i}, v{X+i}, s{sVS}")
        a(f"v_cmp_le_u32 vcc, s{sVS}, v2")
        for i in range(4):
            a(f"v_sub_u32 v{Dd(i)}, v{U+i}, v{Dd(i)}")
        for i in range(4):
            a(f"v_mov_b32 v{L+i}, s{80+i}")
        for i in range(4):
            a(f"v_sub_u32 v{Z+i}, s{84+i}, v{L+i}")
            a(f"v_cndmask_b32 v{U+i}, 0, v{L+i}, vcc")
        a(f"v_mov_b32 v{t0}, {hex(LIST * 0x10001)}\nv_mov_b32 v{t1}, {hex((LIST + LSET) * 0x10001)}")
        for i in range(4):
            a(f"v_cndmask_b32 v{L+i}, v{L+i}, v{Z+i}, vcc")
        a(f"v_cndmask_b32 v{run}, v{t0}, v{t1}, vcc\ns_mov_b32 s51, 0x03020302")
        for i in range(4):
            a(f"v_lshlrev_b32 v{Tt(0)}, 16, v{Dd(0)}" if i == 0 else f"v_alignbit_b32 v{Tt(i)}, v{Dd(i)}, v{Dd(i-1)}, 16")
            a(f"v_sub_u32 v{X+i}, v{X+i}, v{U+i}")
        a(f"ds_write_b128 v{T}, {vr(W1,4)} offset:{TW1}\nds_write_b128 v{T}, {vr(W1+4,4)} offset:{TW1+16}")
        for i in range(4):
            a(f"v_lshl_add_u32 v{t0}, v{L+i}, 16, v{run}")
            a(f"v_pk_min_u16 v{Z+i}, v{n+i}, 1 op_sel_hi:[1,0]")
            a(f"v_add_u32 v{t1}, v{t0}, v{L+i}")
            a(f"v_add_u32 v{X+i}, v{X+i}, v{t0}")
            a(f"v_perm_b32 v{run}, v{t1}, v{t1}, s51")
        for i in range(4):
            a(f"v_add_u32 v{I+i}, v{X+i}, v{n+i}")
            a(f"v_sub_u32 v{c+2*i}, v{X+i}, v{Tt(i)}")
        a(f"v_readlane_b32 s56, v{run}, 0\nv_readlane_b32 s57, v{run}, 63")
        for i in range(4):
            a(f"v_pk_mul_lo_u16 v{Z+i}, v{Z+i}, v{I+i}")
            a(f"v_lshrrev_b32 v{c+2*i+1}, 16, v{c+2*i}")
        a(f"v_and_b32 v{t0}, 0xffff, v{Z}\ns_movk_i32 s51, {TRASH}")
        for r in range(1, 8):
            a(f"v_sub_u16_sdwa v{c+r}, v{t0}, v{W1+r} dst_sel:WORD_1 dst_unused:UNUSED_PRESERVE src0_sel:WORD_0 src1_sel:WORD_0")
            if r < 7:
                a(f"v_max_u32_sdwa v{t0}, v{t0}, v{Z+r//2} {SDW} src0_sel:DWORD src1_sel:WORD_{r % 2}")
        a(f"""
        v_writelane_b32 v{c}, s51, 62
        ds_write_b128 v{T}, {vr(c,4)} offset:{TW0}
        ds_write_b128 v{T}, {vr(c+4,4)} offset:{TW0+16}
        """)
        a(f"""
        s_lshr_b32 s56, s56, 16
        s_lshr_b32 s57, s57, 16
        s_sub_u32 s57, s57, {LSET}
        s_max_u32 s50, s56, s57
        v_mov_b32 v{Z}, s50
        v_mov_b32 v{Z+1}, s{sVS}
        v_mov_b32 v{Z+2}, s{sMORE}
        ds_write_b96 v{T+1}, {vr(Z,3)} offset:{63*32 - 8}
        s_setprio 0
        s_waitcnt lgkmcnt(0)
        K_scanned{tg}:
        s_cmp_lg_u32 s{sW}, {SW}
        s_barrier
        ds_read_b96 {vr(Z,3)}, v{T+1} offset:{63*32 - 8}
        """)
        if first:
            st(8)
        for k in range(8):
            a(f"ds_read2st64_b32 {vr(BB+2*k,2)}, v{CA+k} offset0:{TW0//256} offset1:{TW1//256}")
        a(f"s_cbranch_scc1 K_rest{tg}\ns_movk_i32 s50, {AST*4}")
        emit(lo + ew[20:])
        a(f"""
        K_rest{tg}:
        """)
        if first and opt.get("ppos", 0):
            a(f"""
            s_cmp_lg_u32 s{sW}, {PW}
            s_cbranch_scc1 K_nop2
            s_mov_b32 s50, {WS_FLG}
            buffer_load_dwordx4 {vr(PL,4)}, v{FS}, s[12:15], s50 offen sc1
            K_nop2:
            """)
        a(f"""
        s_waitcnt lgkmcnt(8)
        v_readfirstlane_b32 s50, v{Z}
        v_readfirstlane_b32 s{sVS}, v{Z+1}
        v_readfirstlane_b32 s{sMORE}, v{Z+2}
        s_cmp_le_u32 s50, {LIST + LIMIT}
        s_cbranch_scc0 K_over
        s_sub_u32 s50, s50, {LIST - 255}
        s_lshr_b32 s50, s50, 8
        s_max_u32 s{sS}, s50, 1
        """)
        if not opt.get("odd", 1):
            a(f"s_add_u32 s{sS}, s{sS}, 1\ns_and_b32 s{sS}, s{sS}, -2")
        for k0 in (0, 4):
            a(f"s_waitcnt lgkmcnt({4 - k0})")
            for k in range(k0, k0 + 4):
                a(f"v_cmp_lt_u32_sdwa {sr(80+2*(k % 4),2)}, v{RK+k}, v{BB+2*k+1} src0_sel:DWORD src1_sel:WORD_0")
                a(f"v_lshrrev_b32 v{BB+2*k+1}, 16, v{BB+2*k}")
            for k in range(k0, k0 + 4):
                a(f"v_cndmask_b32 v{BB+2*k}, v{BB+2*k}, v{BB+2*k+1}, {sr(80+2*(k % 4),2)}")
                a(f"v_add_u32_sdwa v{RK+k}, v{RK+k}, v{BB+2*k} {SDW} src0_sel:DWORD src1_sel:WORD_0")
        a(f"""
        s_bitcmp1_b32 s{sS}, 0
        s_cbranch_scc0 K_even{tg}
        s_lshl_b32 s50, s{sS}, 8
        s_add_u32 s51, s50, {LIST + LSET - 256}
        s_add_u32 s50, s50, {LIST - 256}
        s_movk_i32 s56, 256
        """)
        for k in range(8):
            a(f"""
            v_subrev_u32 v{BB}, s50, v{RK+k}
            v_subrev_u32 v{BB+1}, s51, v{RK+k}
            v_min3_u32 v{BB}, v{BB}, v{BB+1}, s56
            v_and_b32 v{BB}, 0xf0, v{BB}
            v_add_u32 v{RK+k}, v{RK+k}, v{BB}
            """)
        a(f"K_even{tg}:")
        for k in range(8):
            a(f"s_mov_b64 exec, {sr(sM+2*k,2)}")
            a(f"ds_write_b64 v{RK+k}, {vr(EN+2*k,2)}")
        a("s_mov_b64 exec, -1")

    def idx_reads(blk, sub):
        o = 128*blk + 4*sub
        return [f"ds_read2_b32 {vr(RW,2)}, v{LI} offset0:{o} offset1:{o+16}",
                f"ds_read2_b32 {vr(RW+2,2)}, v{LI} offset0:{o+32} offset1:{o+48}"]
    mads = [f"v_mad_u32_u16 v{IX+t}, v{RW+t}, s{s512}, v{OF1 if t % 2 else OF0}" for t in range(4)]
    def dma(slot, mid):
        o = []
        for t in range(4):
            o += [f"s_add_u32 m0, s{sRING}, {4096*slot + 1024*t}"] + mid[t] + \
                 [f"buffer_load_dwordx4 v{IX+t}, s[12:15], 0 offen {tfl} lds"]
        return o
    def edma(step, src=EP):
        return [f"s_add_u32 m0, s{sEM0}, {1024*(step % 4)}", "s_mov_b64 exec, 0xffff", f"v_or_b32 v{src}, v{src}, v{EP+1}",
                f"buffer_load_dwordx4 v{src}, s[16:19], 0 offen {opt.get('eflag','')} lds", "s_mov_b64 exec, -1"]
    def eid_read(step, dst=None):
        return [f"ds_read_b32 v{dst or EP}, v{LE} offset:{512*(step // 2) + 16*(step % 2) + 4}"]
    def pn_read(blk):
        return [f"ds_read2_b32 {vr(TA0,2)}, v{LP} offset0:{128*blk} offset1:{128*blk+32}"]
    ta = [f"v_add_u32_sdwa v{x}, v{x}, v{TC} {SDW} src0_sel:WORD_1 src1_sel:DWORD" for x in (TA0, TA1)]
    def reads(step):
        s = step % 2
        o = [f"ds_read_b128 {vr(OE,4)}, v{EA} offset:{1024*(step % 4)}"]
        o += [f"ds_read_b128 {vr(r,4)}, v{RA[i]} offset:{4096*s}" for i, r in enumerate((OB0, OB1))]
        o += [f"ds_read_u16_d16_hi v{H[s]+r}, v{HA[2*((r//4) % 2) + (r % 4)//2]} offset:{4096*s + 128*(8*(r//4) + r % 4)}"
              for r in range(16)]
        return o
    def tr_reads(blk):
        i = IND[blk % 2]
        return [f"ds_read_b64_tr_b16 {vr(OA,2)}, v{TA0}", f"ds_read_b64_tr_b16 {vr(OA+2,2)}, v{TA1}",
                f"ds_read_b64_tr_b16 {vr(i,2)}, v{TA0} offset:64", f"ds_read_b64_tr_b16 {vr(i+2,2)}, v{TA1} offset:64"]
    mct = f"{MF} {vr(CT,16)}, {vr(PIND,4)}, {vr(OA,4)}, 0"
    def mf_g(g):
        d = vr(g, 16)
        return [f"{MF} {d}, {vr(OE,4)}, {vr(WC,4)}, {vr(CT,16)}",
                f"{MF} {d}, {vr(OB0,4)}, {vr(SEL0,4)}, {d}",
                f"{MF} {d}, {vr(OB1,4)}, {vr(SEL1,4)}, {d}"]
    def mf_red(i):
        return [f"{MF} {ar(ACD,16)}, {vr(IND[i],4)}, {vr(BD,4)}, {ar(ACD,16)}",
                f"{MF} {ar(ACN,16)}, {vr(IND[i],4)}, {vr(BN,4)}, {ar(ACN,16)}"]
    cvts = [f"v_cvt_pk_bf16_f32 v{BD+j}, v{AS+2*j}, v{AS+2*j+1}" for j in range(4)] + \
           [f"v_cvt_pk_bf16_f32 v{BN+j}, v{AM+2*j}, v{AM+2*j+1}" for j in range(4)]
    def pk(op, d, *s):
        return f"v_pk_{op}_f32 {vr(d,2)}, " + ", ".join(x if isinstance(x, str) else vr(x, 2) for x in s)
    def pk2(k):
        o = []
        for dst, src in ((AS, SS), (AM, MM)):
            for j in range(4):
                if k % 2 == 0:
                    o.append(pk("mul", dst+2*j, src+2*j, RR+2*j))
                else:
                    o.append(pk("fma", dst+2*j, src+2*j, RR+2*j, dst+2*j))
        return o
    RE = 183
    def load_seg(u):
        side = eid_read(u + 5, RE) + idx_reads(*[(1, 1), (0, 0), (0, 1), (1, 0)][u])
        side += pn_read(u // 2) if u % 2 == 0 else tr_reads((u + 1) // 2)
        rd = reads(u + 1)
        va = mads + [f"v_or_b32 v{EP}, v{RE}, v{EP+1}"] + (ta if u % 2 == 0 else [])
        adv = {0: LI, 2: LP, 3: LE}.get(u)
        if adv:
            va = va + [f"v_add_u32 v{adv}, 0x400, v{adv}"]
        ed = [x for x in edma(u) if not x.startswith("v_or")]
        n_ = -(-len(side) // 4)
        dd = dma(u % 2, [side[n_*t:n_*t+n_] for t in range(4)])
        mode = opt.get("lmode", 0)
        if mode == 0:
            o = dd + ed + ["s_waitcnt vmcnt(6)"]
        else:
            o = ed + dd + ["s_waitcnt vmcnt(5)"]
        o += rd + ["s_waitcnt lgkmcnt(15)"] + va
        o += [f"s_add_u32 s{sK}, s{sK}, 1", f"s_cmp_ge_u32 s{sK}, s{sS}"]
        return o + ["s_setprio 0", "s_waitcnt lgkmcnt(0)", "s_barrier"]
    def comp_seg(u, first=False):
        g, gn, h = G[u % 2], G[(u + 1) % 2], H[u % 2]
        ex = [f"v_exp_f32 v{g+r}, v{g+r}" for r in range(16)]
        mg = mf_g(gn)
        if first:
            o = [mg[0]] + ex[:3] + [mg[1]] + ex[3:6] + [mg[2]] + ex[6:]
        elif u % 2 == 0:
            mr = mf_red((u // 2 - 1) % 2)
            o = pk2(u - 1) + [mg[0]] + cvts[:6] + [mg[1]] + cvts[6:] + ex[:2] + [mg[2]] + ex[2:5] + \
                [mr[0]] + ex[5:8] + [mr[1]] + ex[8:]
        else:
            o = pk2(u - 1) + [mct] + ex[:3] + [mg[0]] + ex[3:6] + [mg[1]] + ex[6:9] + [mg[2]] + ex[9:]
        for j in range(4):
            b_ = g + 4*j
            o += [pk("fma", x, x, sr(sCC, 2), sr(sCC, 2)) + " clamp" for x in (b_, b_+2)]
        for j in range(4):
            b_, hh = g + 4*j, h + 4*j
            o += [pk("mul", RR+2*j, b_, b_+2), pk("mul", MM+2*j, hh, b_+2), f"v_rcp_f32 v{RR+2*j}, v{RR+2*j}",
                  pk("add", SS+2*j, b_, b_+2), f"v_rcp_f32 v{RR+2*j+1}, v{RR+2*j+1}", pk("fma", MM+2*j, hh+2, b_, MM+2*j)]
        return o + ["s_setprio 1", "s_barrier"]

    one = lambda l: [[x] for x in l]
    def fill_a():
        emit(eid_read(0) + eid_read(1, 1) + idx_reads(0, 0) + pn_read(0))
        a("s_waitcnt lgkmcnt(0)")
        emit(edma(0) + edma(1, 1) + dma(0, one(mads)))
        emit(eid_read(2) + idx_reads(0, 1) + ta)
    def fill_b():
        a("s_waitcnt lgkmcnt(0)")
        emit(edma(2) + dma(1, one(mads)) + eid_read(3) + idx_reads(1, 0))
        a(f"v_add_u32 v{LP}, 0x200, v{LP}\ns_mov_b32 s{sK}, 0")
    sort(True)
    a("K_sorted:")
    consts2()
    poll_check("t", WS_FLG, FS, PW)
    a("s_waitcnt lgkmcnt(0)\ns_barrier")
    st(9)
    fill_a()
    st(13)
    consts3()
    for i in range(4):
        a(f"v_mov_b32 v{108+i}, 0")
    a(f"""
    s_sub_u32 s51, {N*256}, s{sXO}
    s_min_u32 s34, s51, {SB*256}
    s_add_u32 s32, s10, s{sXO}
    s_addc_u32 s33, s11, 0
    {MF} {ar(ACD,16)}, v[108:111], v[108:111], 0
    s_mov_b32 s{sCC}, {hex(f32(2.0**-SHIFT))}
    s_mov_b32 s{sCC+1}, {hex(f32(2.0**-SHIFT))}
    {MF} {ar(ACN,16)}, v[108:111], v[108:111], 0
    K_fillb:
    v_mov_b32 v{HA[0]}, v182
    v_xor_b32 v{HA[1]}, 16, v182
    v_xor_b32 v{HA[2]}, 64, v182
    v_xor_b32 v{HA[3]}, 0x50, v182
    """)
    emit(tr_reads(0))
    fill_b()
    a(f"{mct}\ns_waitcnt lgkmcnt(0)")
    emit(mads)
    st(14)
    a("s_waitcnt vmcnt(5)\ns_barrier")
    r0 = reads(0)
    emit(r0[:11] + edma(3) + r0[11:18])
    a("s_waitcnt lgkmcnt(15)")
    emit(mf_g(G[0]) + r0[18:] + eid_read(4))
    a(f"s_waitcnt lgkmcnt(0)\nv_or_b32 v{EP}, v{EP}, v{EP+1}")
    st(10)
    a(f"""
    s_cmp_eq_u32 s{sSET}, 0
    s_barrier
    s_cbranch_scc1 K_lead
    s_barrier
    s_setprio 1
    K_lead:
    """)
    emit(load_seg(0) + comp_seg(0, first=True))
    a("s_cbranch_scc1 K_drain0\ns_branch K_loop1")
    a.l.append(".p2align 6")
    a("K_loop:")
    for u in range(4):
        if u == 1:
            a("K_loop1:")
        emit(load_seg(u) + comp_seg(u))
        a(f"s_cbranch_scc1 K_drain{0 if u < 2 else ''}" if u < 3 else "s_cbranch_scc0 K_loop")
    a("s_branch K_drain\nK_drain0:")
    emit([f"v_mov_b32 v{IND[1]+j}, v{IND[0]+j}" for j in range(4)])
    a(f"""
    K_drain:
    s_setprio 0
    s_cmp_lg_u32 s{sSET}, 0
    s_cbranch_scc1 K_done
    s_barrier
    K_done:
    s_bitcmp1_b32 s{sS}, 0
    s_cbranch_scc1 K_half
    """)
    emit(pk2(1))
    a("K_last:")
    emit(cvts + ["s_nop 1"] + mf_red(1))
    st(11)
    a(f"""
    s_cmp_lg_u32 s{sMORE}, 0
    s_cbranch_scc1 K_again
    v_and_b32 v41, 31, v2
    s_and_b32 s50, s{sW}, 1
    s_lshl_b32 s50, s50, 7
    s_add_u32 s50, s50, s{sRING}
    v_lshl_add_u32 v42, v41, 2, s50
    v_and_b32 v40, 32, v2
    v_lshl_add_u32 v42, v40, 5, v42
    s_mov_b32 s50, {hex(f32(1e-6 * 2.0**SHIFT))}
    s_mov_b32 s51, s50
    s_mov_b32 s56, 0xffff0000
    """)
    Dn, Nn, Uu = NV + ACD, NV + ACN, NV + AU
    un = []
    for k in range(8):
        un += [f"v_lshlrev_b32 v{64+2*k}, 16, v{XR+k}", f"v_and_b32 v{65+2*k}, s56, v{XR+k}",
               f"v_lshlrev_b32 v{96+2*k}, 16, v{Uu+k}", f"v_and_b32 v{97+2*k}, s56, v{Uu+k}"]
    emit(un[:8])
    for r in range(0, 16, 2):
        a(pk("add", Dn+r, Dn+r, "s[50:51]"))
    for r in range(16):
        a(f"v_rcp_f32 v{Dn+r}, v{Dn+r}")
    a("s_waitcnt vmcnt(0)")
    for r in range(0, 16, 2):
        a(pk("mul", Dn+r, Dn+r, Nn+r))
        row = 8*(r//4) + r % 4
        a(f"ds_write2st64_b32 v42, v{Dn+r}, v{Dn+r+1} offset0:{row} offset1:{row+1}")
    emit(un[8:])
    a(f"""
    v_lshrrev_b32 v44, 4, v0
    v_bfe_u32 v45, v0, 2, 2
    v_lshlrev_b32 v45, 13, v45
    v_lshl_add_u32 v45, v44, 8, v45
    v_and_b32 v46, 7, v0
    v_lshl_add_u32 v45, v46, 5, v45
    v_add_u32 v45, {RING}, v45
    v_add_u32 v46, 0x8000, v45
    v_cmp_gt_u32 vcc, s{sVS}, v44
    v_lshlrev_b32 v43, 4, v0
    s_movk_i32 s51, 8192
    v_cndmask_b32 v45, v46, v45, vcc
    s_waitcnt lgkmcnt(0)
    s_barrier
    ds_read_b128 v[48:51], v45
    ds_read_b128 v[52:55], v45 offset:16
    ds_read_b128 v[56:59], v46
    ds_read_b128 v[60:63], v46 offset:16
    """)
    for k in range(8):
        a(pk("add", 96+2*k, 96+2*k, 64+2*k))
    for i in range(2):
        a(f"s_waitcnt lgkmcnt({2-2*i})")
        for j in range(0, 8, 2):
            a(pk("add", 48+8*i+j, 48+8*i+j, 96+8*i+j))
        for j in range(8):
            a(f"v_max_f32 v{48+8*i+j}, v{64+8*i+j}, v{48+8*i+j}")
        for j in range(4):
            a(f"v_cvt_pk_bf16_f32 v{80+4*i+j}, v{48+8*i+2*j}, v{48+8*i+2*j+1}")
        a(f"buffer_store_dwordx4 {vr(80+4*i,4)}, v43, s[32:35], {'s51' if i else '0'} offen {opt.get('ost','sc1')}")
    if st.on:
        a("s_waitcnt vmcnt(0)")
        a(f"v_writelane_b32 v205, s{sS}, 15")
    st(12)
    st.flush()
    a("K_end:\ns_endpgm\nK_half:")
    emit(pk2(0))
    a("s_branch K_last")
    a(f"""
    K_clr:
    s_waitcnt lgkmcnt(0)
    s_mov_b32 s20, s52
    s_mov_b32 s21, s53
    s_mov_b32 s12, s78
    s_mov_b32 s13, s79
    s_mov_b32 s14, {WS_END}
    s_mov_b32 s15, 0x20000
    s_mov_b32 s28, s76
    s_mov_b32 s29, s77
    s_movk_i32 s30, 256
    s_mov_b32 s31, 0x20000
    v_mov_b32 v8, 0
    v_mov_b32 v9, 0
    v_mov_b32 v10, 0
    v_mov_b32 v11, 0
    v_lshlrev_b32 v4, 7, v2
    s_mov_b32 s50, {WS_FLG}
    buffer_store_dwordx4 v[8:11], v4, s[12:15], s50 offen sc1
    """)
    emit(xdma(XP, SB*256) + xdma(ERING, 0))
    a(f"""
    v_and_b32 v12, 4, v2
    v_cmp_eq_u32 vcc, 0, v12
    v_mov_b32 v13, 0x71807180
    v_and_b32 v5, 0x1f0, v1
    v_cndmask_b32 v12, 0, v13, vcc
    v_mov_b32 v13, v12
    v_mov_b32 v14, v12
    v_mov_b32 v15, v12
    s_mov_b32 s50, {DUMMY*512}
    buffer_store_dwordx4 v[12:15], v5, s[12:15], s50 offen sc1
    s_branch K_np1
    K_pub:
    s_mov_b64 exec, 1
    s_waitcnt vmcnt({5 + nw})
    buffer_store_dword v{ONE}, off, s[28:31], 0 sc1
    s_mov_b64 exec, -1
    s_waitcnt vmcnt({nw + 1})
    s_branch K_np2
    """)
    koff = sum(o << (8*i) for i, o in enumerate((40, 64, 32, 56, 48, 88, 8, 72)))
    a(f"""
    K_prod:
    s_lshl_b32 s50, s{sW}, 3
    s_mov_b32 s92, {hex(koff & 0xffffffff)}
    s_mov_b32 s93, {hex(koff >> 32)}
    s_lshr_b64 s[92:93], s[92:93], s50
    s_and_b32 s92, s92, 0xff
    s_load_dwordx2 s[96:97], s[0:1], s92
    s_mov_b32 s20, s52
    s_mov_b32 s21, s53
    v_lshlrev_b32 v4, 2, v0
    v_mov_b32 v62, 0
    ds_write_b32 v4, v62
    v_mov_b32 v40, -1
    v_mov_b32 v41, -1
    v_mov_b32 v42, -1
    v_mov_b32 v43, -1
    """)
    for i in range(4):
        a(f"ds_write_b128 v1, v[40:43] offset:{IMG + 8192*i}")
    a(f"""
    v_mov_b32 v5, 128
    v_writelane_b32 v5, 16, 4
    s_mov_b32 s50, {WS_END // 256}
    v_writelane_b32 v5, s50, 5
    s_mov_b32 s50, {E*32 // 256}
    v_writelane_b32 v5, s50, 6
    s_mov_b32 s50, {N}
    v_writelane_b32 v5, s50, 7
    s_and_b32 s93, s2, 0xf0
    v_readlane_b32 s50, v5, s{sW}
    v_add_u32 v4, s93, v85
    s_waitcnt lgkmcnt(0)
    v_mul_u32_u24 v4, s50, v4
    s_barrier
    """)
    wm = 0
    emit(xdma(ERING, 0))
    a(f"""
    s_mov_b64 exec, 0xffff
    global_load_dword v60, v4, s[96:97] sc1
    s_mov_b64 exec, -1
    s_sub_u32 s90, s82, s88
    v_add_u32 v4, 8192, v1
    v_cmp_gt_u32 s[92:93], s90, v4
    s_mov_b32 s91, {-SB & 0xffffffff}
    v_mov_b32 v6, 4
    v_lshlrev_b32 v7, 22, v0
    v_mov_b32 v36, 0
    v_mov_b32 v37, 0
    v_mov_b32 v38, 0
    v_mov_b32 v39, 0
    """)
    for k in range(8):
        a(f"v_add_u32 v{68+k}, {hex(((2048*(k//4) + k % 4) << 20) & 0xffffffff)}, v7")
    for g in range(2):
        a(f"s_waitcnt vmcnt({6 - g + wm})")
        if g == 0:
            st(1)
        for j in range(4):
            d, t = 8 + 4*g + j, 24 + 4*g + j
            a(f"v_mul_u32_u24 v{44+4*g+j}, 21400, v{d}")
            a(f"v_lshrrev_b32 v{44+4*g+j}, 20, v{44+4*g+j}")
            a(f"v_lshlrev_b32 v{t}, 2, v{44+4*g+j}")
        if g:
            a("s_mov_b64 exec, s[92:93]")
        for j in range(4):
            a(f"ds_add_rtn_u32 v{32+4*g+j}, v{24+4*g+j}, v6")
    a(f"""
    s_mov_b64 exec, -1
    s_lshl_b32 s56, s62, 7
    s_add_u32 s56, s56, {WS_SLOT}
    s_add_u32 s57, s56, {1 << 20}
    s_add_u32 s58, s56, {2 << 20}
    s_add_u32 s59, s56, {3 << 20}
    v_lshrrev_b32 v5, 3, v0
    v_and_b32 v61, 0x70, v1
    v_lshl_add_u32 v61, v5, 14, v61
    s_mov_b32 s4, s78
    s_mov_b32 s5, s79
    s_mov_b32 s12, s78
    s_mov_b32 s13, s79
    s_mov_b32 s14, {WS_END}
    s_mov_b32 s15, 0x20000
    s_waitcnt vmcnt(3)
    """)
    wp = wdma()
    for k in range(8):
        s_, d = 16 + k, 8 + k
        a(f"v_mad_i32_i24 v{d}, v{44+k}, s91, v{d}")
        a(f"v_and_b32 v4, 7, v{s_}")
        a(f"v_lshl_or_b32 v{d}, v{d}, 3, v4")
        a(f"v_lshrrev_b32 v{s_}, 3, v{s_}")
        a(f"v_lshl_or_b32 v{d}, v{d}, 11, v{68+k}")
        a(f"v_or_b32 v{s_}, v{d}, v{s_}")
    a("s_waitcnt lgkmcnt(0)")
    for k in range(8):
        if k == 4:
            a("s_mov_b64 exec, s[92:93]")
        a(f"v_add_u32 v4, v{32+k}, v{24+k}")
        a(f"v_and_b32 v4, 0x7f, v4")
        a(f"v_lshl_add_u32 v{44+k}, v{24+k}, 5, v4")
        a(f"ds_write_b32 v{44+k}, v{16+k} offset:{IMG}")
    a(f"""
    s_mov_b64 exec, -1
    v_or3_b32 v4, v32, v33, v34
    v_or3_b32 v5, v35, v36, v37
    v_or3_b32 v4, v4, v38, v39
    v_or_b32 v4, v4, v5
    v_cmp_lt_u32 vcc, 0x7f, v4
    s_mov_b64 exec, vcc
    ds_write_b32 v62, v6 offset:1024
    s_mov_b64 exec, -1
    s_waitcnt vmcnt(1) lgkmcnt(0)
    s_barrier
    ds_read_b32 v4, v62 offset:1024
    """)
    OUTR = [8, 12, 68, 72]
    def img_reads():
        for i in range(4):
            a(f"ds_read_b128 {vr(OUTR[i],4)}, v1 offset:{IMG + 8192*i}")
    img_reads()
    a(f"""
    s_waitcnt lgkmcnt(4)
    v_readfirstlane_b32 s50, v4
    s_cmp_lg_u32 s50, 0
    s_cbranch_scc1 K_slow
    K_out:
    """)
    for i in range(4):
        a(f"s_waitcnt lgkmcnt({3-i})")
        a(f"buffer_store_dwordx4 {vr(OUTR[i],4)}, v61, s[12:15], s{56+i} offen sc1")
    st(2)
    common(64)
    common2(a)
    wb = opt.get("wbefore", 2)
    emit([ready_load] + wcdma + wp[:3*wb])
    a(f"v_add_u32 v{FX}, {ERING}, v{FX}")
    for q in range(8):
        emit(xfrag(q))
    emit(misc[:3])
    a(f"s_add_u32 s96, s97, {WS_FLG + 4096}\ns_mov_b32 s97, {OOB}\ns_waitcnt vmcnt({wb + 1})")
    ready_check("rp")
    a(f"""
    s_mov_b64 exec, 1
    s_barrier
    buffer_store_dword v{ONE}, off, s[12:15], s96 sc1
    s_mov_b64 exec, -1
    """)
    st(3)
    emit(wp[3*wb:])
    lds_reset(True)
    left = lambda q: 7 - q + (1 if q < wb else 0)
    emit([f"s_waitcnt vmcnt({left(0)})"] + misc[3:] + wfrag(0))
    for q in range(8):
        if q < 7:
            emit([f"s_waitcnt vmcnt({left(q + 1)})"] + wfrag(q + 1))
        a(f"s_waitcnt lgkmcnt({2 if q < 7 else 0})")
        emit([gm(q, 0, D1), gm(q, 1, D1)])
    a("s_branch K_join")


    a("""
    K_slow:
    v_lshlrev_b32 v5, 4, v2
    s_waitcnt lgkmcnt(0)
    ds_read_b128 v[8:11], v5
    s_waitcnt lgkmcnt(0)
    v_add_u32 v13, v8, v9
    v_add_u32 v14, v13, v10
    v_add_u32 v15, v14, v11
    v_mov_b32 v4, v15
    """)
    scan64(a, [4])
    a("""
    v_sub_u32 v40, v4, v15
    v_add_u32 v41, v40, v8
    v_add_u32 v42, v40, v13
    v_add_u32 v43, v40, v14
    ds_write_b128 v5, v[40:43] offset:2048
    """)
    for k in range(8):
        a(f"ds_read_b32 v{24+k}, v{24+k} offset:2048")
    a("s_waitcnt lgkmcnt(0)")
    for k in range(8):
        a(f"s_mov_b64 exec, {'s[92:93]' if k >= 4 else '-1'}")
        a(f"v_add_u32 v{24+k}, v{24+k}, v{32+k}")
        a(f"ds_write_b32 v{24+k}, v{16+k} offset:{STG}")
        a(f"v_cmp_gt_u32 vcc, 0x80, v{32+k}")
        a("s_mov_b64 exec, vcc")
        a(f"ds_write_b32 v{44+k}, v{16+k} offset:{IMG}")
    a(f"""
    s_mov_b64 exec, -1
    s_waitcnt lgkmcnt(0)
    s_barrier
    v_mov_b32 v16, {62 << 14}
    """)
    for j in range(4):
        a(f"""
        v_add_u32 v12, {4*j}, v5
        v_add_u32 v13, 124, v12
        v_and_b32 v13, 0x7f, v13
        v_lshl_add_u32 v13, v12, 5, v13
        v_add_u32 v14, 120, v{40+j}
        v_lshl_or_b32 v14, v14, 18, v16
        v_add_u32 v15, -124, v{8+j}
        v_cmp_lt_u32 vcc, 0x80, v{8+j}
        s_mov_b64 exec, vcc
        ds_write_b32 v13, v14 offset:{IMG}
        ds_write_b32 v{40+j}, v15 offset:{STG + 120}
        s_mov_b64 exec, -1
        """)
    a(f"""
    ds_read_b128 v[16:19], v1 offset:{STG}
    ds_read_b128 v[20:23], v1 offset:{STG + 8192}
    s_add_u32 s50, s88, {WS_REC}
    s_add_u32 s80, s4, s50
    s_addc_u32 s81, s5, 0
    s_mov_b32 s82, s90
    s_movk_i32 s50, 8192
    s_waitcnt lgkmcnt(0)
    buffer_store_dwordx4 v[16:19], v1, s[80:83], 0 offen sc1
    buffer_store_dwordx4 v[20:23], v1, s[80:83], s50 offen sc1
    """)
    img_reads()
    a("s_branch K_out")

    zero_masks = lambda ks: [f"s_mov_b64 {sr(sM+2*k,2)}, 0" for k in ks]
    a("""
    K_again:
    s_waitcnt vmcnt(0) lgkmcnt(0)
    s_barrier
    """)
    lds_reset(True)
    a(f"""
    s_cmp_eq_u32 s{sMODE}, 3
    s_cbranch_scc1 K_next
    """)
    rec_loads()
    a(f"""
    s_waitcnt vmcnt(0)
    s_cmp_eq_u32 s{sMODE}, 1
    s_cbranch_scc0 K_marks
    s_mov_b32 s{sMODE}, 2
    s_mov_b64 s[56:57], 0
    """)
    classes(range(4, 8), True)
    emit(zero_masks(range(4)))
    a(f"""
    s_branch K_resort
    K_marks:
    s_mov_b32 s{sMODE}, 3
    v_mov_b32 v84, 0
    """)
    for k in range(8):
        a(f"""
        v_bfe_u32 v85, v{REC+k}, 14, 6
        v_cmp_eq_u32 vcc, 62, v85
        s_nop 1
        v_cndmask_b32 v84, v84, v{REC+k}, vcc
        """)
    a(f"""
    s_nop 1
    v_or_b32_dpp v84, v84, v84 quad_perm:[1,0,3,2] row_mask:0xf bank_mask:0xf
    s_nop 1
    v_or_b32_dpp v84, v84, v84 quad_perm:[2,3,0,1] row_mask:0xf bank_mask:0xf
    v_cmp_ne_u32 vcc, 0, v84
    v_lshrrev_b32 v84, 20, v84
    v_add_lshl_u32 v84, v84, v{PB}, 2
    s_mov_b32 s{sSTART}, {WS_REC}
    buffer_load_dword v{SLEN}, v84, s[12:15], s{sSTART} offen sc1
    v_add_u32 v{SEG}, v84, v{SIDX}
    s_mov_b32 s{sSTART}, {WS_REC + 4 - 64}
    s_waitcnt vmcnt(0)
    v_cndmask_b32 v{SLEN}, 0, v{SLEN}, vcc
    v_min_u32 v{SLEN}, {CH*4}, v{SLEN}
    v_add_u32 v{SLEN}, 64, v{SLEN}
    K_next:
    s_add_u32 s{sSTART}, s{sSTART}, 64
    v_add_u32 v{SLEN}, -64, v{SLEN}
    """)
    rec_loads(1)
    a(f"""
    v_cmp_lt_i32 s[56:57], 64, v{SLEN}
    v_sub_u32 v84, v{SLEN}, v{SIDX}
    """)
    for k in range(4):
        a(f"v_cmp_lt_i32 {sr(sM+2*k,2)}, {4*k}, v84")
    emit(zero_masks(range(4, 8)))
    a("K_resort:")
    list_ptrs()
    sort(False)
    a(f"""
    s_cmp_eq_u32 s{sMODE}, 2
    s_cselect_b32 s{sMORE}, s{sMARK}, s{sMORE}
    s_cmp_eq_u32 s{sMODE}, 1
    s_cselect_b32 s{sMORE}, 1, s{sMORE}
    s_cbranch_scc1 K_sorted
    s_waitcnt lgkmcnt(0)
    s_barrier
    """)
    fill_a()
    a(f"""
    s_branch K_fillb
    K_over:
    s_cmp_lg_u32 s{sMODE}, 0
    s_cbranch_scc1 K_end
    s_mov_b32 s{sMODE}, 1
    s_mov_b32 s{sMARK}, s{sMORE}
    s_mov_b64 s[56:57], 0
    s_waitcnt lgkmcnt(0)
    s_barrier
    """)
    lds_reset(False)
    emit(zero_masks(range(4, 8)))
    a("s_branch K_resort\nK_codeend:")
    d = desc(name, 256, 100, 256)
    ln = f"; @launch grid=(256,1,1) block=(512,1,1) lds={LDS}\n"
    if opt.get("probe"):
        import gen
        ln = f"; @launch kernel={name} grid=(256,1,1) block=(512,1,1) lds={LDS}\n; @launch kernel=probe_kernel grid=(1,1,1) block=(64,1,1) lds=0\n"
        d += gen.gen_probe(a, opt)
    hdr = """; GatedGCN layer in one launch: each workgroup builds the table rows of its 49 nodes, half of them also
; partition a chunk of edges by destination bin; after two counted hand-offs every workgroup sorts its bin
; and runs the gate / aggregation loop.
""" + ln + '.amdgcn_target "amdgcn-amd-amdhsa--gfx950"\n.text\n'
    return hdr + a.text() + d

if __name__ == "__main__":
    opt = {}
    out = f"cdna_kernels/{NAME}.s"
    for x in sys.argv[1:]:
        k, v = x.split("=", 1)
        if k == "out":
            out = v
        else:
            opt[k] = int(v) if v.lstrip("-").isdigit() else v
    open(out, "w").write(generate(opt))
    print("wrote", out)
```

```python
import sys
from gen import (NAME, N, E, SB, CH, P, RG, DUMMY, WS_REC, WS_SLOT, WS_END, SHIFT, LOG2E, WS_STAMP, MF,
                 f32, Asm, vr, ar, sr, scan64, desc, head, Stamps)

TW0, TW1, TRASH = 2048, 4096, 6144
LIST = 7168
CAPS = 2560
LSET = CAPS * 8
ATAB = LIST + 2 * LSET
AST = 576
WCL = 77824
WS_FLG = 0xA00000
XP = ATAB
ERING = 81920
RING = 98304
LDS = RING + 65536
LIMIT = 2240 * 8
IMG, STG = 4096, 36864
SDW = "dst_sel:DWORD dst_unused:UNUSED_PAD"
OOB = 0x7000000

def generate(opt=None):
    opt = opt or {}
    a = Asm()
    name = NAME + "_kernel"
    cmask = {8: 0x7FC, 4: 0x7F8, 2: 0x7F0}[opt.get("R", 8)]
    tfl = opt.get("tfl", "sc1").replace("+", " ")
    tst = opt.get("tst", "sc1").replace("+", " ")
    head(a, name)
    st = Stamps(a, opt.get("stamp"), 205, WS_STAMP)
    SEL0, SEL1, PIND, WC, CT, RR = 4, 8, 12, 16, 84, 248
    G = [52, 68]; H = [20, 36]
    OE, RW, OB0, OB1, OA = 100, 104, 108, 112, 120
    HA = [116, 117, 118, 119]
    IND = [124, 128]
    SS, MM, AS, AM, BD, BN = 132, 140, 148, 156, 164, 168
    IX, OF0, OF1, EP = 172, 176, 177, 178
    RA = [180, 181]
    EA, LI, LE, LP, TA0, TA1, TC = 184, 185, 186, 187, 188, 189, 190
    XR = 192
    SEG, SLEN, SIDX, PB = 200, 201, 202, 203
    NV = 208
    ACD, ACN, AU = 0, 16, 32
    sW, sSET, sTILE, sBIN = 3, 36, 37, 38
    sRING, sEM0, sS, sK, sVS, sSTART, sLUT, sMORE, s512 = 39, 40, 41, 42, 43, 44, 45, 46, 47
    sCC, sM, sMODE, sMARK, sXO, sPROD = 48, 64, 7, 9, 8, 6
    REC, CA, RK, BB, EN, T = 36, 44, 52, 60, 100, 76
    XF, WA, DA, SO, WCR = 100, 0, 36, 68, 164
    VW, FW, FX, FS, FR, FG, FA, FB, FU = 168, 169, 170, 171, 172, 173, 207, 204, 191
    ONE, PL = 206, 164

    def emit(lst):
        for x in lst:
            a(x)
    ar = lambda b_, n_=1: vr(NV + b_, n_)

    cw = opt.get("cw", 8)
    a("s_cmp_ge_u32 s2, 256\ns_cbranch_scc1 K_end")
    st(0)
    a(f"""
    s_load_dwordx8 s[52:59], s[0:1], 0
    s_load_dwordx16 s[64:79], s[0:1], 32
    s_getpc_b64 s[92:93]
    K_pc:
    s_and_b32 s50, s2, {0xf8 if cw == 8 else 0x78}
    s_lshl_b32 s50, s50, {0 if cw == 8 else 1}
    v_add_u32 v4, s50, v0
    v_mul_u32_u24 v4, (K_codeend-K_pc)/1024*4, v4
    v_cmp_gt_u32 vcc, {cw}, v0
    s_and_saveexec_b64 s[90:91], vcc
    s_cbranch_execz K_nocw
    global_load_dword v63, v4, s[92:93]
    K_nocw:
    s_mov_b64 exec, -1
    v_lshrrev_b32 v1, 6, v0
    v_and_b32 v2, 63, v0
    v_readfirstlane_b32 s{sW}, v1
    s_and_b32 s60, s2, 7
    s_lshr_b32 s61, s2, 3
    s_lshl_b32 s50, s60, 5
    s_add_u32 s{sBIN}, s50, s61
    v_lshrrev_b32 v84, 4, v2
    v_and_b32 v85, 15, v2
    v_bfe_u32 v3, v0, 4, 4
    v_xor_b32 v3, v3, v85
    v_lshlrev_b32 v3, 4, v3
    v_lshl_add_u32 v3, v84, 8, v3
    v_lshlrev_b32 v1, 4, v0
    s_mul_i32 s{sXO}, s{sBIN}, {SB*256}
    s_lshl_b32 s90, s{sW}, 10
    s_add_u32 s51, s{sXO}, s90
    s_add_u32 s91, s51, 8192
    s_cmp_lt_u32 s{sW}, 5
    s_cselect_b32 s91, s91, {OOB}
    s_mov_b32 s22, {N*256}
    s_mov_b32 s23, 0x20000
    v_lshrrev_b32 v86, 2, v2
    v_and_b32 v87, 3, v2
    v_lshlrev_b32 v{VW}, 4, v87
    v_lshl_add_u32 v{VW}, v86, 8, v{VW}
    v_mov_b32 v{ONE}, 1
    s_lshr_b32 s50, s2, 4
    s_lshl_b32 s50, s50, 3
    s_add_u32 s62, s50, s60
    s_lshr_b32 s{sSET}, s{sW}, 2
    s_and_b32 s{sTILE}, s{sW}, 3
    s_mov_b32 s83, 0x20000
    s_mov_b32 s87, 0x20000
    s_bitcmp1_b32 s2, 3
    s_cbranch_scc1 K_np
    s_mul_i32 s88, s62, {CH*4}
    s_add_u32 s89, s88, 8192
    s_add_u32 s82, s88, {CH*4}
    s_min_u32 s82, s82, {E*4}
    s_mov_b32 s86, s82
    s_waitcnt lgkmcnt(0)
    s_mov_b32 s80, s58
    s_mov_b32 s81, s59
    s_mov_b32 s84, s56
    s_mov_b32 s85, s57
    buffer_load_dwordx4 v[8:11], v1, s[80:83], s88 offen
    buffer_load_dwordx4 v[12:15], v1, s[80:83], s89 offen
    buffer_load_dwordx4 v[16:19], v1, s[84:87], s88 offen
    buffer_load_dwordx4 v[20:23], v1, s[84:87], s89 offen
    s_branch K_prod
    K_np:
    """)
    def xdma(base, delta):
        o = []
        for i, so in enumerate(("s51", "s91")):
            o.append(f"s_add_u32 m0, s90, {base + 8192*i}")
            o.append(f"s_sub_u32 s50, {so}, {delta}")
            o.append("buffer_load_dwordx4 v3, s[20:23], s50 offen lds")
        return o
    def wdma():
        o = []
        for q in range(8):
            o += [f"s_add_u32 m0, s{sRING}, {1024*q}", f"s_add_u32 s89, s63, {4096*q}",
                  f"buffer_load_dwordx4 v{VW}, s[24:27], s89 offen lds"]
        return o
    wcdma = [f"s_lshl_b32 s89, s{sTILE}, 10", f"s_add_u32 m0, s89, {WCL}", "s_nop 0",
             f"buffer_load_dwordx4 v{VW}, s[32:35], s63 offen lds"]
    def common(first):
        a(f"""
        s_lshl_b32 s{sRING}, s{sW}, 13
        s_add_u32 s{sRING}, s{sRING}, {RING}
        s_lshl_b32 s63, s{sTILE}, 6
        s_cmp_eq_u32 s{sSET}, 0
        s_cselect_b32 s64, s64, s70
        s_cselect_b32 s65, s65, s71
        s_cselect_b32 s66, s66, s72
        s_cselect_b32 s67, s67, s73
        s_mov_b32 s24, s{first}
        s_mov_b32 s25, s{first+1}
        s_mov_b32 s26, 32768
        s_mov_b32 s27, 0x20000
        """)
    def common2(x):
        x(f"""
        s_mov_b32 s32, s68
        s_mov_b32 s33, s69
        s_mov_b32 s34, 4096
        s_mov_b32 s35, 0x20000
        s_mov_b32 s14, {WS_END}
        s_mov_b32 s15, 0x20000
        s_movk_i32 s30, 256
        s_mov_b32 s31, 0x20000
        s_mov_b32 s4, s78
        s_mov_b32 s5, s79
        s_mov_b32 s12, s78
        s_mov_b32 s13, s79
        s_mov_b32 s10, s74
        s_mov_b32 s11, s75
        s_mov_b32 s28, s76
        s_mov_b32 s29, s77
        v_lshrrev_b32 v88, 5, v2
        v_and_b32 v89, 31, v2
        v_lshrrev_b32 v90, 2, v85
        v_lshl_add_u32 v90, v88, 3, v90
        v_and_b32 v91, 1, v84
        v_lshlrev_b32 v91, 5, v91
        v_lshl_add_u32 v91, v87, 3, v91
        v_lshl_add_u32 v90, v90, 6, v91
        v_add_u32 v{FW}, s{sRING}, v90
        s_lshl_b32 s50, s{sTILE}, 10
        s_add_u32 s50, s50, {WCL}
        v_add_u32 v{WCR}, s50, v90
        v_xor_b32 v90, v88, v85
        v_lshlrev_b32 v90, 4, v90
        v_lshl_add_u32 v{FX}, v89, 8, v90
        v_lshlrev_b32 v93, 3, v88
        v_lshrrev_b32 v94, 4, v0
        v_xor_b32 v90, v94, v0
        v_and_b32 v90, 15, v90
        v_lshlrev_b32 v90, 4, v90
        v_lshl_add_u32 v{FU}, v94, 8, v90
        s_mov_b32 s94, {hex(f32(-LOG2E))}
        s_mov_b32 s95, {hex(f32(-LOG2E))}
        s_lshr_b32 s50, s62, 2
        s_lshl_b32 s50, s50, 7
        s_and_b32 s97, s2, 3
        s_lshl_b32 s97, s97, 2
        s_add_u32 s97, s97, s50
        s_cmp_eq_u32 s{sW}, 0
        s_cselect_b32 s97, s97, {OOB}
        s_cselect_b32 s{sPROD}, 0, {OOB}
        """)
    def wfrag(q):
        return [f"ds_read_b64_tr_b16 {ar(WA+4*q+2*z,2)}, v{FW} offset:{1024*q+256*z}" for z in range(2)]
    def xfrag(q, off=0):
        return [f"v_xor_b32 v3, {32*q}, v{FX}", f"ds_read_b128 {vr(XF+8*q,4)}, v3 offset:{off}",
                f"ds_read_b128 {vr(XF+8*q+4,4)}, v3 offset:{off+8192}"]
    misc = [f"v_add_u32 v3, {ERING}, v{FU}", f"ds_read_b128 {vr(XR,4)}, v3", f"ds_read_b128 {vr(XR+4,4)}, v3 offset:8192",
            f"ds_read_b64_tr_b16 {vr(WCR+2,2)}, v{WCR} offset:256", f"ds_read_b64_tr_b16 {vr(WCR,2)}, v{WCR}"]
    def gm(q, rt, base=DA):
        d = vr(base + 16*rt, 16)
        return f"{MF} {d}, {ar(WA+4*q,4)}, {vr(XF+8*q+4*rt,4)}, {'0' if q == 0 else d}"
    RDY = 99
    ready_load = f"buffer_load_dword v{RDY}, off, s[28:31], s{sPROD} sc1"
    def ready_check(tag):
        a(f"""
        s_cmp_lg_u32 s{sW}, 0
        s_cbranch_scc1 K_{tag}
        s_mov_b32 s50, 0
        K_{tag}_spin:
        v_cmp_eq_u32 vcc, 0, v{RDY}
        s_cbranch_vccz K_{tag}
        {ready_load}
        s_add_u32 s50, s50, 1
        s_cmp_lt_u32 s50, 0x40000
        s_waitcnt vmcnt(0)
        s_cbranch_scc1 K_{tag}_spin
        K_{tag}:
        """)
    D1 = 4
    def conv(rt, addrs, base=DA, mul=None, off=lambda j: 0):
        o = []
        for j in range(4):
            b_ = base + 16*rt + 4*j
            if mul:
                o += [f"v_mul_f32 v{b_+i}, {mul}, v{b_+i}" for i in range(4)]
            o += [f"v_cvt_pk_bf16_f32 v{b_}, v{b_}, v{b_+1}", f"v_cvt_pk_bf16_f32 v{b_+1}, v{b_+2}, v{b_+3}",
                  f"ds_write_b64 v{addrs[j]}, {vr(b_,2)} offset:{off(j)}"]
        return o

    def lds_reset(prefill):
        a(f"""
        v_lshlrev_b32 v76, 2, v0
        v_mov_b32 v77, 0
        ds_write_b32 v76, v77
        """)
        if prefill:
            a(f"""
            v_mov_b32 v76, {hex(DUMMY | (SB*AST) << 16)}
            v_mov_b32 v77, {OOB}
            v_mov_b32 v78, v76
            v_mov_b32 v79, v77
            v_lshlrev_b32 v80, 4, v0
            """)
            for i in range(5):
                a(f"ds_write_b128 v80, v[76:79] offset:{LIST + 8192*i}")

    a(f"""
    s_or_b32 s50, s90, s2
    s_cmp_eq_u32 s50, {7*1024 + 8}
    s_cbranch_scc1 K_clr
    s_waitcnt lgkmcnt(0)
    s_mov_b32 s20, s52
    s_mov_b32 s21, s53
    """)
    emit(xdma(XP, SB*256) + xdma(ERING, 0))
    a("K_np1:")
    common(66)
    w1 = wdma()
    b = Asm()
    common2(b)
    b(f"""
    s_add_u32 s97, s97, {WS_FLG}
    """)
    FG1 = 174
    b(f"""
    s_lshl_b32 s50, s{sTILE}, 3
    s_lshl_b32 s51, s{sSET}, 2
    s_add_u32 s50, s50, s51
    v_and_b32 v90, 7, v2
    v_xor_b32 v90, s50, v90
    v_lshl_add_u32 v90, v90, 4, v93
    v_lshl_add_u32 v90, v89, 9, v90
    v_add_u32 v{FS}, {XP}, v90
    v_bfe_u32 v90, v0, 5, 3
    v_lshlrev_b32 v90, 4, v90
    v_xor_b32 v90, v90, v1
    v_add_u32 v{FR}, {XP}, v90
    v_xor_b32 v95, 16, v{FS}
    v_xor_b32 v96, 32, v{FS}
    v_xor_b32 v97, 48, v{FS}
    s_mul_i32 s50, s{sBIN}, {SB}
    v_lshrrev_b32 v90, 5, v0
    v_add_u32 v90, s50, v90
    v_and_b32 v98, 7, v90
    v_lshrrev_b32 v{FG1}, 3, v90
    v_lshl_or_b32 v{FG1}, v98, 11, v{FG1}
    v_lshl_add_u32 v{FG1}, v{FG1}, 5, v89
    v_lshlrev_b32 v{FG1}, 4, v{FG1}
    v_add_u32 v90, {-SB & 0xffffffff}, v90
    v_and_b32 v98, 7, v90
    v_lshrrev_b32 v{FG}, 3, v90
    v_lshl_or_b32 v{FG}, v98, 11, v{FG}
    v_lshl_add_u32 v{FG}, v{FG}, 5, v89
    v_lshlrev_b32 v{FG}, 4, v{FG}
    v_cmp_gt_u32 s[56:57], {SB - 32}, v89
    s_cmp_eq_u32 s{sSET}, 0
    s_cselect_b32 s96, s94, 1.0
    """)
    nw = opt.get("wearly", 3)
    a("s_barrier")
    emit(w1[:3*nw])
    lds_reset(True)
    cut = [i for i, l in enumerate(b.l) if f"v{FX}," in l][0] + 1
    a.l += b.l[:cut]
    later = [x.strip() for x in b.l[cut:]]
    a(f"""
    s_or_b32 s50, s90, s2
    s_cmp_eq_u32 s50, {7*1024 + 8}
    s_cbranch_scc1 K_pub
    s_waitcnt vmcnt({nw})
    K_np2:
    s_barrier
    """)
    st(1)
    emit(xfrag(0, XP) + xfrag(1, XP) + xfrag(2, XP) + xfrag(3, XP))
    w2 = wdma()
    ahead = opt.get("ahead", 5)
    seq = [w1[3*q:3*q+3] for q in range(8)] + [wcdma + ["s_mov_b32 s24, s64", "s_mov_b32 s25, s65"]] + \
          [w2[3*q:3*q+3] for q in range(8)]
    sent = [nw]
    def send(n):
        o = []
        while sent[0] < min(n, len(seq)):
            o += seq[sent[0]]
            sent[0] += 1
        return o
    landed = lambda i: f"s_waitcnt vmcnt({sent[0] - 1 - i})"
    SA = [FS, 95, 96, 97]
    emit(send(ahead))
    emit([landed(0)] + wfrag(0) + [landed(1)] + wfrag(1))
    for q in range(8):
        a(f"s_waitcnt lgkmcnt({[2, 4, 4, 4, 4, 4, 4, 2][q]})")
        a(gm(q, 0, D1))
        emit(send(ahead + q + 1))
        if q == 4:
            a(f"v_add_u32 v{FX}, {ERING}, v{FX}")
        emit(xfrag(q + 4, XP) if q < 4 else xfrag(q - 4))
        if q < 6:
            emit([landed(q + 2)] + wfrag(q + 2))
        a(gm(q, 1, D1))
        n_ = -(-len(later) // (8 - q))
        while n_ < len(later) and ("cselect" in later[n_] or "addc" in later[n_]):
            n_ += 1
        emit(later[:n_])
        later = later[n_:]
    st(2)
    a(landed(8))
    B2, SO2 = SB * 512, 176
    def stores(fg, so):
        o = []
        for i in range(3):
            o += [f"s_waitcnt lgkmcnt({3-i})", f"buffer_store_dwordx4 {vr(so+4*i,4)}, v{fg}, s[12:15], 0 offen offset:{1024*i} {tst}"]
        return o + ["s_mov_b32 exec_hi, 0", "s_waitcnt lgkmcnt(0)",
                    f"buffer_store_dwordx4 {vr(so+12,4)}, v{fg}, s[12:15], s{sPROD} offen offset:3072 {tst}", "s_mov_b32 exec_hi, -1"]
    back = lambda o, so: [f"ds_read_b128 {vr(so+4*i,4)}, v{FR} offset:{o + 8192*i}" for i in range(4)]
    slots = [[] for _ in range(16)]
    slots[0] = xfrag(4) + xfrag(5)
    slots[1] = xfrag(6) + xfrag(7)
    slots[2] = misc[:3]
    c1 = conv(0, SA, D1, "s96") + conv(1, SA, D1, "s96", lambda j: 16384)
    for i in range(8):
        slots[3 + i] = c1[7*i:7*i+7]
    for q in range(8):
        slots[q] += send(sent[0] + 1)
    assert sent[0] == len(seq)
    slots[8] += [ready_load]
    bp = opt.get("backpos", 15)
    slots[bp] += ["s_waitcnt lgkmcnt(0)", "s_barrier"] + back(0, SO)
    emit(misc[3:])
    a("s_waitcnt lgkmcnt(0)\ns_barrier")
    for i in range(16):
        if i == 8:
            a("s_waitcnt lgkmcnt(5)")
        a(gm(i // 2, i % 2))
        emit(slots[i])
    emit(stores(FG, SO))
    st(3)
    a(f"s_cmp_lg_u32 s{sSET}, 0\ns_cbranch_scc1 K_ns1")
    for i in range(16):
        a(f"v_pk_mul_f32 {vr(DA+2*i,2)}, {vr(DA+2*i,2)}, s[94:95]")
    a("K_ns1:")
    emit(conv(0, SA, DA, None, lambda j: B2) + ["s_mov_b64 exec, s[56:57]"] + conv(1, SA, DA, None, lambda j: B2 + 16384))
    a("s_mov_b64 exec, -1\ns_waitcnt lgkmcnt(0)\ns_barrier")
    emit(back(B2, SO2) + stores(FG1, SO2))
    a("s_waitcnt vmcnt(8)")
    for q in range(8):
        emit(wfrag(q))
    for q in range(8):
        a(f"s_waitcnt lgkmcnt({14 - 2*q})")
        emit([gm(q, 0, D1), gm(q, 1, D1)])
    ready_check("rn")
    a("K_join:")
    st(4)
    def poll_check(tag, base, lanes, wave=0):
        a(f"""
        s_cmp_lg_u32 s{sW}, {wave}
        s_cbranch_scc1 K_{tag}_done
        s_mov_b32 s50, 0
        s_mov_b32 s51, {base}
        K_{tag}_spin:
        s_waitcnt vmcnt(0)
        v_and_b32 v{PL}, v{PL}, v{PL+1}
        v_and_b32 v{PL+2}, v{PL+2}, v{PL+3}
        v_and_b32 v{PL}, v{PL}, v{PL+2}
        v_cmp_ne_u32 vcc, 1, v{PL}
        s_cbranch_vccz K_{tag}_done
        s_add_u32 s50, s50, 1
        s_cmp_lt_u32 s50, 0x40000
        buffer_load_dwordx4 {vr(PL,4)}, v{lanes}, s[12:15], s51 offen sc1
        s_cbranch_scc1 K_{tag}_spin
        K_{tag}_done:
        """)
    def list_ptrs():
        a(f"""
        s_mul_i32 s50, s{sSET}, {LSET}
        s_add_u32 s50, s50, {LIST}
        v_and_b32 v98, 32, v2
        v_bfe_u32 v97, v2, 4, 1
        v_bfe_u32 v96, v2, 3, 1
        v_lshl_add_u32 v96, v96, 2, v97
        v_add_u32 v96, v96, v98
        v_lshl_add_u32 v{LI}, v96, 3, s50
        v_and_b32 v96, 0x2c, v2
        v_lshl_add_u32 v{LP}, v96, 3, s50
        v_and_b32 v96, 2, v2
        v_bfe_u32 v99, v2, 2, 1
        v_lshl_add_u32 v96, v96, 1, v99
        v_and_or_b32 v96, v2, 8, v96
        s_lshr_b32 s51, s{sTILE}, 1
        s_lshl_b32 s51, s51, 7
        s_add_u32 s50, s50, s51
        s_and_b32 s51, s{sTILE}, 1
        s_lshl_b32 s51, s51, 8
        s_add_u32 s50, s50, s51
        v_lshl_add_u32 v{LE}, v96, 3, s50
        """)
    PL = 68
    def rec_loads(n=2):
        a(f"buffer_load_dwordx4 {vr(REC,4)}, v{SEG}, s[12:15], s{sSTART} offen sc1")
        if n == 2:
            a(f"buffer_load_dwordx4 {vr(REC+4,4)}, v{SEG}, s[12:15], s{sSTART} offen offset:64 sc1")
    a(f"""
    v_lshlrev_b32 v{FS}, 7, v89
    s_cmp_lg_u32 s{sW}, 0
    s_cbranch_scc1 K_nopoll
    s_mov_b32 s50, {WS_FLG + 4096}
    buffer_load_dwordx4 {vr(PL,4)}, v{FS}, s[12:15], s50 offen sc1
    K_nopoll:
    v_lshrrev_b32 v95, 2, v0
    v_lshlrev_b32 v{SIDX}, 4, v87
    v_lshl_add_u32 v{SEG}, v95, 7, v{SIDX}
    v_mul_u32_u24 v92, {AST}, v89
    v_mul_u32_u24 v{PB}, {CH}, v95
    s_lshl_b32 s{sSTART}, s{sBIN}, 14
    s_add_u32 s{sSTART}, s{sSTART}, {WS_SLOT}
    s_mov_b32 s16, s54
    s_mov_b32 s17, s55
    s_mov_b32 s18, {opt.get('erows', E) * 32}
    s_mov_b32 s19, 0x20000
    s_mov_b32 s{sMODE}, 0
    """)
    a(f"""
    s_cmp_lg_u32 s{sSET}, 0
    s_cbranch_scc1 K_uaddr
    v_cmp_gt_u32 s[90:91], {SB - 31}, v89
    s_lshl_b32 s51, s{sTILE}, 7
    s_add_u32 s51, s51, {ATAB}
    v_add3_u32 v81, v92, v93, s51
    """)
    for i in range(16):
        a(f"v_pk_mul_f32 {vr(D1+2*i,2)}, {vr(D1+2*i,2)}, s[94:95]")
    ca = conv(0, [81]*4, D1, None, lambda j: 16*j) + conv(1, [81]*4, D1, None, lambda j: 16*j + 32*AST)
    emit([x for x in ca if x.startswith("v_")])
    a(f"""
    s_branch K_conv
    K_uaddr:
    v_bfe_u32 v52, v2, 1, 2
    v_lshl_add_u32 v52, v52, 4, v93
    v_lshl_add_u32 v52, v89, 6, v52
    v_add_u32 v52, s{sRING}, v52
    """)
    for j in range(1, 4):
        a(f"v_xor_b32 v{52+j}, {16*j}, v52")
    emit(conv(0, [52, 53, 54, 55], D1) + conv(1, [52, 53, 54, 55], D1, None, lambda j: 2048))
    a(f"""
    v_and_b32 v45, 63, v95
    v_and_b32 v46, 31, v95
    v_lshlrev_b32 v47, 3, v87
    v_sub_u32 v46, v46, v47
    v_cmp_eq_u32 s[90:91], {SB}, v45
    v_mov_b32 v47, 64
    v_cmp_ge_u32 s[92:93], {SB}, v45
    v_cndmask_b32 v46, v46, v47, s[90:91]
    v_and_b32 v47, 1, v46
    v_lshlrev_b32 v47, 4, v47
    v_mov_b32 v48, 0x3f80
    v_lshlrev_b32 v47, v47, v48
    v_ashrrev_i32 v46, 1, v46
    v_cmp_eq_u32 s[64:65], 0, v46
    v_cmp_eq_u32 s[66:67], 1, v46
    v_cmp_eq_u32 s[68:69], 2, v46
    v_cmp_eq_u32 s[70:71], 3, v46
    v_cndmask_b32 v48, 0, v47, s[64:65]
    v_cndmask_b32 v49, 0, v47, s[66:67]
    v_cndmask_b32 v50, 0, v47, s[68:69]
    v_cndmask_b32 v51, 0, v47, s[70:71]
    v_mul_u32_u24 v46, {AST}, v45
    v_add_u32 v46, v46, v{SIDX}
    K_conv:
    """)
    st(5)
    poll_check("s", WS_FLG + 4096, FS)
    a("s_waitcnt vmcnt(0) lgkmcnt(0)\ns_barrier")
    rec_loads()
    a(f"""
    s_mov_b64 exec, 1
    buffer_store_dword v{ONE}, off, s[12:15], s97 sc1
    s_mov_b64 exec, -1
    """)
    st(6)
    PL = 156
    wa = [x for x in ca if x.startswith("ds_")]
    a(f"s_cmp_eq_u32 s{sSET}, 0\ns_cbranch_scc1 K_tab\ns_mov_b64 exec, s[92:93]")
    for t in range(4):
        a(f"ds_write_b128 v46, v[48:51] offset:{ATAB+128*t+64}")
    a("K_tab:\ns_mov_b64 exec, -1")
    a(f"""
    s_lshl_b32 s50, s{sTILE}, 7
    s_add_u32 s51, s50, {ATAB}
    v_add_u32 v{TC}, s51, v91
    v_and_b32 v90, 7, v2
    v_xor_b32 v90, v90, v84
    v_lshl_add_u32 v{OF0}, v90, 4, s50
    v_xor_b32 v{OF1}, 64, v{OF0}
    v_bfe_u32 v90, v0, 2, 2
    v_lshlrev_b32 v90, 13, v90
    v_lshl_add_u32 v90, v94, 6, v90
    v_bfe_u32 v96, v0, 5, 2
    v_xor_b32 v96, v96, v87
    v_lshl_add_u32 v90, v96, 4, v90
    v_add_u32 v3, {RING + 32768}, v90
    ds_read_b128 {ar(AU,4)}, v3
    ds_read_b128 {ar(AU+4,4)}, v3 offset:2048
    s_lshr_b32 s51, s{sTILE}, 1
    v_xor_b32 v84, s51, v2
    v_and_b32 v84, 1, v84
    v_lshlrev_b32 v{EP+1}, 4, v84
    s_mov_b32 s{s512}, 512
    s_lshl_b32 s50, s{sSET}, 12
    s_add_u32 s93, s50, {ERING}
    s_lshl_b32 s51, s{sTILE}, 8
    s_add_u32 s{sEM0}, s93, s51
    """)
    list_ptrs()
    def consts2():
        a(f"""
        v_lshl_add_u32 v3, v88, 4, v92
        ds_read_b128 {vr(SEL0,4)}, v3 offset:{ATAB + 64}
        ds_read_b128 {vr(SEL1,4)}, v3 offset:{ATAB + 96}
        v_lshrrev_b32 v90, 3, v89
        v_and_b32 v96, 1, v89
        v_lshl_add_u32 v90, v90, 1, v96
        v_and_b32 v96, 4, v89
        v_lshl_add_u32 v90, v96, 1, v90
        v_mul_u32_u24 v90, {AST}, v90
        v_lshl_add_u32 v3, v88, 4, v90
        ds_read_b128 {vr(PIND,4)}, v3 offset:{ATAB + 64}
        """)
    def consts3():
        a("s_mov_b32 s51, 0xffff0000")
        for j in range(4):
            a(f"""
            v_lshlrev_b32 v76, 16, v{WCR+j}
            v_and_b32 v77, s51, v{WCR+j}
            v_pk_mul_f32 v[76:77], v[76:77], s[94:95]
            v_cvt_pk_bf16_f32 v{WC+j}, v76, v77
            """)
        a(f"""
        v_bfe_u32 v90, v89, 1, 3
        v_xor_b32 v90, v90, v88
        v_lshlrev_b32 v90, 4, v90
        v_lshl_add_u32 v90, v89, 7, v90
        v_add_u32 v{RA[0]}, s{sRING}, v90
        v_xor_b32 v{RA[1]}, 32, v{RA[0]}
        v_lshlrev_b32 v90, 1, v89
        v_and_b32 v91, 32, v2
        v_xor_b32 v90, v90, v91
        v_lshl_add_u32 v90, v88, 9, v90
        v_add3_u32 v182, v90, s{sRING}, 64
        v_xor_b32 v84, v97, v88
        v_lshlrev_b32 v84, 4, v84
        v_and_b32 v90, 0x13, v2
        v_lshl_add_u32 v84, v90, 5, v84
        v_and_b32 v90, 4, v2
        v_lshl_add_u32 v84, v90, 6, v84
        v_and_b32 v90, 8, v2
        v_lshl_add_u32 v84, v90, 4, v84
        v_add_u32 v{EA}, s93, v84
        """)

    def classes(ks, with_masks):
        a(f"s_movk_i32 s51, {63*32}\ns_movk_i32 s50, {cmask}")
        for k in ks:
            a(f"v_lshrrev_b32 v{CA+k}, 9, v{REC+k}")
            a(f"v_and_b32 v{CA+k}, s50, v{CA+k}")
            if with_masks:
                a(f"v_cmp_gt_u32 {sr(sM+2*k,2)}, s51, v{CA+k}")

    PW, SW = 7, 4
    def sort(first):
        tg = "a" if first else "b"
        a(f"""
        v_mov_b32 v{T+1}, 8
        v_lshlrev_b32 v{T}, 5, v2
        """)
        if first:
            a("s_waitcnt vmcnt(1)")
            st(7)
        else:
            a(f"""
            v_mov_b32 v{T+2}, 0
            s_waitcnt vmcnt(0) lgkmcnt(0)
            s_barrier
            s_mov_b64 exec, s[56:57]
            ds_write_b32 v{T+2}, v{T+1} offset:{62*32}
            s_mov_b64 exec, -1
            """)
        classes(range(8), first)
        for k in range(8):
            a(f"s_mov_b64 exec, {sr(sM+2*k,2)}")
            a(f"ds_add_rtn_u32 v{RK+k}, v{CA+k}, v{T+1}")
        a(f"s_mov_b64 exec, -1\ns_movk_i32 s50, {AST*4}")
        hi, lo, ew = [], [], []
        for k in range(8):
            e = EN + 2*k
            hi += [f"v_lshrrev_b32 v{e+1}, 20, v{REC+k}", f"v_add_lshl_u32 v{e+1}, v{e+1}, v{PB}, 5"]
            lo += [f"v_and_b32 v{e}, 0x3fff, v{REC+k}", f"v_and_b32 v3, 0xfc000, v{REC+k}", f"v_mad_u32_u24 v{e}, v3, s50, v{e}"]
            ew += [f"v_and_b32 v3, 28, v{CA+k}", f"v_cmp_gt_u32 vcc, {4*opt.get('ewarm', 2)}, v3",
                   f"s_and_b64 exec, vcc, {sr(sM+2*k,2)}", f"buffer_load_dword v{SLEN}, v{e+1}, s[16:19], 0 offen",
                   "s_mov_b64 exec, -1"]
        if not (first and opt.get("ewarm", 2)):
            ew = []
        c, W1, U, n, I, X, L, Z = 116, 124, 132, 136, 140, 144, 148, 152
        Tt = lambda i: W1 + 2*i
        Dd = lambda i: W1 + 2*i + 1
        t0, t1, run = T+2, T+3, T+4
        emit(hi + ew[:20])
        a(f"""
        s_cmp_eq_u32 s{sW}, {SW}
        s_waitcnt lgkmcnt(0)
        s_barrier
        s_cbranch_scc1 K_scan{tg}
        """)
        emit(ew[20:])
        if first:
            a(f"s_cmp_lg_u32 s{sSET}, 0\ns_cbranch_scc1 K_noa")
            emit(wa[:4] + ["s_mov_b64 exec, s[90:91]"] + wa[4:])
            a("s_mov_b64 exec, -1\nK_noa:")
        emit(lo)
        if first and not opt.get("ppos", 0):
            a(f"""
            s_cmp_lg_u32 s{sW}, {PW}
            s_cbranch_scc1 K_scanned{tg}
            s_mov_b32 s50, {WS_FLG}
            buffer_load_dwordx4 {vr(PL,4)}, v{FS}, s[12:15], s50 offen sc1
            """)
        a(f"""
        s_branch K_scanned{tg}
        K_scan{tg}:
        ds_read_b128 {vr(c,4)}, v{T}
        ds_read_b128 {vr(c+4,4)}, v{T} offset:16
        s_setprio 1
        s_mov_b32 s51, 0xffe0ffe0
        s_waitcnt lgkmcnt(0)
        v_readlane_b32 s{sMORE}, v{c}, 62
        v_writelane_b32 v{c}, 0, 62
        """)
        for r in range(1, 8):
            a(f"v_add_u32 v{c+r}, v{c+r-1}, v{c+r}")
        for i in range(4):
            a(f"v_lshl_or_b32 v{Dd(i)}, v{c+2*i+1}, 16, v{c+2*i}")
        for i in range(4):
            a(f"v_add_u32 v{U+i}, 0x001f001f, v{Dd(i)}")
        for i in range(4):
            a(f"v_and_b32 v{U+i}, s51, v{U+i}")
        for i in range(4):
            a(f"v_lshlrev_b32 v{n}, 16, v{U}" if i == 0 else f"v_alignbit_b32 v{n+i}, v{U+i}, v{U+i-1}, 16")
        for i in range(4):
            a(f"v_sub_u32 v{I+i}, v{U+i}, v{n+i}")
        steps = [("row_shr:1", "0xf"), ("row_shr:2", "0xf"), ("row_shr:4", "0xf"), ("row_shr:8", "0xf"),
                 ("row_bcast:15", "0xa"), ("row_bcast:31", "0xc")]
        for ctl, m_ in steps:
            for i in range(4):
                a(f"v_add_u32_dpp v{I+i}, v{I+i}, v{I+i} {ctl} row_mask:{m_} bank_mask:0xf")
        side = [f"v_sub_u32 v{n+i}, v{U+i}, v{n+i}" for i in range(4)] + [f"v_sub_u32 v{X+i}, v{I+i}, v{n+i}" for i in range(4)]
        if first:
            a(f"""
            v_add_u32 v{t0}, v{I}, v{I+1}
            v_add3_u32 v{t0}, v{t0}, v{I+2}, v{I+3}
            v_add_u32_sdwa v{t0}, v{t0}, v{t0} {SDW} src0_sel:WORD_0 src1_sel:WORD_1
            v_lshrrev_b32 v{t1}, 16, v{U+3}
            v_readlane_b32 s50, v{t0}, 63
            v_lshlrev_b32 v{t0}, 1, v{t0}
            v_sub_u32 v{t0}, v{t0}, v{t1}
            v_cmp_ge_u32 vcc, s50, v{t0}
            """)
            emit(side[:4])
            a(f"""
            s_bcnt1_i32_b64 s50, vcc
            s_max_u32 s50, s50, 17
            s_min_u32 s{sVS}, s50, 32
            """)
            emit(side[4:])
        else:
            emit(side)
        for i in range(4):
            a(f"v_readlane_b32 s{84+i}, v{I+i}, 63")
        for i in range(4):
            a(f"v_readlane_b32 s{80+i}, v{X+i}, s{sVS}")
        a(f"v_cmp_le_u32 vcc, s{sVS}, v2")
        for i in range(4):
            a(f"v_sub_u32 v{Dd(i)}, v{U+i}, v{Dd(i)}")
        for i in range(4):
            a(f"v_mov_b32 v{L+i}, s{80+i}")
        for i in range(4):
            a(f"v_sub_u32 v{Z+i}, s{84+i}, v{L+i}")
            a(f"v_cndmask_b32 v{U+i}, 0, v{L+i}, vcc")
        a(f"v_mov_b32 v{t0}, {hex(LIST * 0x10001)}\nv_mov_b32 v{t1}, {hex((LIST + LSET) * 0x10001)}")
        for i in range(4):
            a(f"v_cndmask_b32 v{L+i}, v{L+i}, v{Z+i}, vcc")
        a(f"v_cndmask_b32 v{run}, v{t0}, v{t1}, vcc\ns_mov_b32 s51, 0x03020302")
        for i in range(4):
            a(f"v_lshlrev_b32 v{Tt(0)}, 16, v{Dd(0)}" if i == 0 else f"v_alignbit_b32 v{Tt(i)}, v{Dd(i)}, v{Dd(i-1)}, 16")
            a(f"v_sub_u32 v{X+i}, v{X+i}, v{U+i}")
        a(f"ds_write_b128 v{T}, {vr(W1,4)} offset:{TW1}\nds_write_b128 v{T}, {vr(W1+4,4)} offset:{TW1+16}")
        for i in range(4):
            a(f"v_lshl_add_u32 v{t0}, v{L+i}, 16, v{run}")
            a(f"v_pk_min_u16 v{Z+i}, v{n+i}, 1 op_sel_hi:[1,0]")
            a(f"v_add_u32 v{t1}, v{t0}, v{L+i}")
            a(f"v_add_u32 v{X+i}, v{X+i}, v{t0}")
            a(f"v_perm_b32 v{run}, v{t1}, v{t1}, s51")
        for i in range(4):
            a(f"v_add_u32 v{I+i}, v{X+i}, v{n+i}")
            a(f"v_sub_u32 v{c+2*i}, v{X+i}, v{Tt(i)}")
        a(f"v_readlane_b32 s56, v{run}, 0\nv_readlane_b32 s57, v{run}, 63")
        for i in range(4):
            a(f"v_pk_mul_lo_u16 v{Z+i}, v{Z+i}, v{I+i}")
            a(f"v_lshrrev_b32 v{c+2*i+1}, 16, v{c+2*i}")
        a(f"v_and_b32 v{t0}, 0xffff, v{Z}\ns_movk_i32 s51, {TRASH}")
        for r in range(1, 8):
            a(f"v_sub_u16_sdwa v{c+r}, v{t0}, v{W1+r} dst_sel:WORD_1 dst_unused:UNUSED_PRESERVE src0_sel:WORD_0 src1_sel:WORD_0")
            if r < 7:
                a(f"v_max_u32_sdwa v{t0}, v{t0}, v{Z+r//2} {SDW} src0_sel:DWORD src1_sel:WORD_{r % 2}")
        a(f"""
        v_writelane_b32 v{c}, s51, 62
        ds_write_b128 v{T}, {vr(c,4)} offset:{TW0}
        ds_write_b128 v{T}, {vr(c+4,4)} offset:{TW0+16}
        """)
        a(f"""
        s_lshr_b32 s56, s56, 16
        s_lshr_b32 s57, s57, 16
        s_sub_u32 s57, s57, {LSET}
        s_max_u32 s50, s56, s57
        v_mov_b32 v{Z}, s50
        v_mov_b32 v{Z+1}, s{sVS}
        v_mov_b32 v{Z+2}, s{sMORE}
        ds_write_b96 v{T+1}, {vr(Z,3)} offset:{63*32 - 8}
        s_setprio 0
        s_waitcnt lgkmcnt(0)
        K_scanned{tg}:
        s_cmp_lg_u32 s{sW}, {SW}
        s_barrier
        ds_read_b96 {vr(Z,3)}, v{T+1} offset:{63*32 - 8}
        """)
        if first:
            st(8)
        for k in range(8):
            a(f"ds_read2st64_b32 {vr(BB+2*k,2)}, v{CA+k} offset0:{TW0//256} offset1:{TW1//256}")
        a(f"s_cbranch_scc1 K_rest{tg}\ns_movk_i32 s50, {AST*4}")
        emit(lo + ew[20:])
        a(f"""
        K_rest{tg}:
        """)
        if first and opt.get("ppos", 0):
            a(f"""
            s_cmp_lg_u32 s{sW}, {PW}
            s_cbranch_scc1 K_nop2
            s_mov_b32 s50, {WS_FLG}
            buffer_load_dwordx4 {vr(PL,4)}, v{FS}, s[12:15], s50 offen sc1
            K_nop2:
            """)
        a(f"""
        s_waitcnt lgkmcnt(8)
        v_readfirstlane_b32 s50, v{Z}
        v_readfirstlane_b32 s{sVS}, v{Z+1}
        v_readfirstlane_b32 s{sMORE}, v{Z+2}
        s_cmp_le_u32 s50, {LIST + LIMIT}
        s_cbranch_scc0 K_over
        s_sub_u32 s50, s50, {LIST - 255}
        s_lshr_b32 s50, s50, 8
        s_max_u32 s{sS}, s50, 1
        """)
        if not opt.get("odd", 1):
            a(f"s_add_u32 s{sS}, s{sS}, 1\ns_and_b32 s{sS}, s{sS}, -2")
        for k0 in (0, 4):
            a(f"s_waitcnt lgkmcnt({4 - k0})")
            for k in range(k0, k0 + 4):
                a(f"v_cmp_lt_u32_sdwa {sr(80+2*(k % 4),2)}, v{RK+k}, v{BB+2*k+1} src0_sel:DWORD src1_sel:WORD_0")
                a(f"v_lshrrev_b32 v{BB+2*k+1}, 16, v{BB+2*k}")
            for k in range(k0, k0 + 4):
                a(f"v_cndmask_b32 v{BB+2*k}, v{BB+2*k}, v{BB+2*k+1}, {sr(80+2*(k % 4),2)}")
                a(f"v_add_u32_sdwa v{RK+k}, v{RK+k}, v{BB+2*k} {SDW} src0_sel:DWORD src1_sel:WORD_0")
        a(f"""
        s_bitcmp1_b32 s{sS}, 0
        s_cbranch_scc0 K_even{tg}
        s_lshl_b32 s50, s{sS}, 8
        s_add_u32 s51, s50, {LIST + LSET - 256}
        s_add_u32 s50, s50, {LIST - 256}
        s_movk_i32 s56, 256
        """)
        for k in range(8):
            a(f"""
            v_subrev_u32 v{BB}, s50, v{RK+k}
            v_subrev_u32 v{BB+1}, s51, v{RK+k}
            v_min3_u32 v{BB}, v{BB}, v{BB+1}, s56
            v_and_b32 v{BB}, 0xf0, v{BB}
            v_add_u32 v{RK+k}, v{RK+k}, v{BB}
            """)
        a(f"K_even{tg}:")
        for k in range(8):
            a(f"s_mov_b64 exec, {sr(sM+2*k,2)}")
            a(f"ds_write_b64 v{RK+k}, {vr(EN+2*k,2)}")
        a("s_mov_b64 exec, -1")

    def idx_reads(blk, sub):
        o = 128*blk + 4*sub
        return [f"ds_read2_b32 {vr(RW,2)}, v{LI} offset0:{o} offset1:{o+16}",
                f"ds_read2_b32 {vr(RW+2,2)}, v{LI} offset0:{o+32} offset1:{o+48}"]
    mads = [f"v_mad_u32_u16 v{IX+t}, v{RW+t}, s{s512}, v{OF1 if t % 2 else OF0}" for t in range(4)]
    def dma(slot, mid):
        o = []
        for t in range(4):
            o += [f"s_add_u32 m0, s{sRING}, {4096*slot + 1024*t}"] + mid[t] + \
                 [f"buffer_load_dwordx4 v{IX+t}, s[12:15], 0 offen {tfl} lds"]
        return o
    def edma(step, src=EP):
        return [f"s_add_u32 m0, s{sEM0}, {1024*(step % 4)}", "s_mov_b64 exec, 0xffff", f"v_or_b32 v{src}, v{src}, v{EP+1}",
                f"buffer_load_dwordx4 v{src}, s[16:19], 0 offen {opt.get('eflag','')} lds", "s_mov_b64 exec, -1"]
    def eid_read(step, dst=None):
        return [f"ds_read_b32 v{dst or EP}, v{LE} offset:{512*(step // 2) + 16*(step % 2) + 4}"]
    def pn_read(blk):
        return [f"ds_read2_b32 {vr(TA0,2)}, v{LP} offset0:{128*blk} offset1:{128*blk+32}"]
    ta = [f"v_add_u32_sdwa v{x}, v{x}, v{TC} {SDW} src0_sel:WORD_1 src1_sel:DWORD" for x in (TA0, TA1)]
    def reads(step):
        s = step % 2
        o = [f"ds_read_b128 {vr(OE,4)}, v{EA} offset:{1024*(step % 4)}"]
        o += [f"ds_read_b128 {vr(r,4)}, v{RA[i]} offset:{4096*s}" for i, r in enumerate((OB0, OB1))]
        o += [f"ds_read_u16_d16_hi v{H[s]+r}, v{HA[2*((r//4) % 2) + (r % 4)//2]} offset:{4096*s + 128*(8*(r//4) + r % 4)}"
              for r in range(16)]
        return o
    def tr_reads(blk):
        i = IND[blk % 2]
        return [f"ds_read_b64_tr_b16 {vr(OA,2)}, v{TA0}", f"ds_read_b64_tr_b16 {vr(OA+2,2)}, v{TA1}",
                f"ds_read_b64_tr_b16 {vr(i,2)}, v{TA0} offset:64", f"ds_read_b64_tr_b16 {vr(i+2,2)}, v{TA1} offset:64"]
    mct = f"{MF} {vr(CT,16)}, {vr(PIND,4)}, {vr(OA,4)}, 0"
    def mf_g(g):
        d = vr(g, 16)
        return [f"{MF} {d}, {vr(OE,4)}, {vr(WC,4)}, {vr(CT,16)}",
                f"{MF} {d}, {vr(OB0,4)}, {vr(SEL0,4)}, {d}",
                f"{MF} {d}, {vr(OB1,4)}, {vr(SEL1,4)}, {d}"]
    def mf_red(i):
        return [f"{MF} {ar(ACD,16)}, {vr(IND[i],4)}, {vr(BD,4)}, {ar(ACD,16)}",
                f"{MF} {ar(ACN,16)}, {vr(IND[i],4)}, {vr(BN,4)}, {ar(ACN,16)}"]
    cvts = [f"v_cvt_pk_bf16_f32 v{BD+j}, v{AS+2*j}, v{AS+2*j+1}" for j in range(4)] + \
           [f"v_cvt_pk_bf16_f32 v{BN+j}, v{AM+2*j}, v{AM+2*j+1}" for j in range(4)]
    def pk(op, d, *s):
        return f"v_pk_{op}_f32 {vr(d,2)}, " + ", ".join(x if isinstance(x, str) else vr(x, 2) for x in s)
    def pk2(k):
        o = []
        for dst, src in ((AS, SS), (AM, MM)):
            for j in range(4):
                if k % 2 == 0:
                    o.append(pk("mul", dst+2*j, src+2*j, RR+2*j))
                else:
                    o.append(pk("fma", dst+2*j, src+2*j, RR+2*j, dst+2*j))
        return o
    RE = 183
    def load_seg(u):
        side = eid_read(u + 5, RE) + idx_reads(*[(1, 1), (0, 0), (0, 1), (1, 0)][u])
        side += pn_read(u // 2) if u % 2 == 0 else tr_reads((u + 1) // 2)
        rd = reads(u + 1)
        va = mads + [f"v_or_b32 v{EP}, v{RE}, v{EP+1}"] + (ta if u % 2 == 0 else [])
        adv = {0: LI, 2: LP, 3: LE}.get(u)
        if adv:
            va = va + [f"v_add_u32 v{adv}, 0x400, v{adv}"]
        ed = [x for x in edma(u) if not x.startswith("v_or")]
        n_ = -(-len(side) // 4)
        dd = dma(u % 2, [side[n_*t:n_*t+n_] for t in range(4)])
        mode = opt.get("lmode", 0)
        if mode == 0:
            o = dd + ed + ["s_waitcnt vmcnt(6)"]
        else:
            o = ed + dd + ["s_waitcnt vmcnt(5)"]
        o += rd + ["s_waitcnt lgkmcnt(15)"] + va
        o += [f"s_add_u32 s{sK}, s{sK}, 1", f"s_cmp_ge_u32 s{sK}, s{sS}"]
        return o + ["s_setprio 0", "s_waitcnt lgkmcnt(0)", "s_barrier"]
    def comp_seg(u, first=False):
        g, gn, h = G[u % 2], G[(u + 1) % 2], H[u % 2]
        ex = [f"v_exp_f32 v{g+r}, v{g+r}" for r in range(16)]
        mg = mf_g(gn)
        if first:
            o = [mg[0]] + ex[:3] + [mg[1]] + ex[3:6] + [mg[2]] + ex[6:]
        elif u % 2 == 0:
            mr = mf_red((u // 2 - 1) % 2)
            o = pk2(u - 1) + [mg[0]] + cvts[:6] + [mg[1]] + cvts[6:] + ex[:2] + [mg[2]] + ex[2:5] + \
                [mr[0]] + ex[5:8] + [mr[1]] + ex[8:]
        else:
            o = pk2(u - 1) + [mct] + ex[:3] + [mg[0]] + ex[3:6] + [mg[1]] + ex[6:9] + [mg[2]] + ex[9:]
        for j in range(4):
            b_ = g + 4*j
            o += [pk("fma", x, x, sr(sCC, 2), sr(sCC, 2)) + " clamp" for x in (b_, b_+2)]
        for j in range(4):
            b_, hh = g + 4*j, h + 4*j
            o += [pk("mul", RR+2*j, b_, b_+2), pk("mul", MM+2*j, hh, b_+2), f"v_rcp_f32 v{RR+2*j}, v{RR+2*j}",
                  pk("add", SS+2*j, b_, b_+2), f"v_rcp_f32 v{RR+2*j+1}, v{RR+2*j+1}", pk("fma", MM+2*j, hh+2, b_, MM+2*j)]
        return o + ["s_setprio 1", "s_barrier"]

    one = lambda l: [[x] for x in l]
    def fill_a():
        emit(eid_read(0) + eid_read(1, 1) + idx_reads(0, 0) + pn_read(0))
        a("s_waitcnt lgkmcnt(0)")
        emit(edma(0) + edma(1, 1) + dma(0, one(mads)))
        emit(eid_read(2) + idx_reads(0, 1) + ta)
    def fill_b():
        a("s_waitcnt lgkmcnt(0)")
        emit(edma(2) + dma(1, one(mads)) + eid_read(3) + idx_reads(1, 0))
        a(f"v_add_u32 v{LP}, 0x200, v{LP}\ns_mov_b32 s{sK}, 0")
    sort(True)
    a("K_sorted:")
    consts2()
    poll_check("t", WS_FLG, FS, PW)
    a("s_waitcnt lgkmcnt(0)\ns_barrier")
    st(9)
    fill_a()
    st(13)
    consts3()
    for i in range(4):
        a(f"v_mov_b32 v{108+i}, 0")
    a(f"""
    s_sub_u32 s51, {N*256}, s{sXO}
    s_min_u32 s34, s51, {SB*256}
    s_add_u32 s32, s10, s{sXO}
    s_addc_u32 s33, s11, 0
    {MF} {ar(ACD,16)}, v[108:111], v[108:111], 0
    s_mov_b32 s{sCC}, {hex(f32(2.0**-SHIFT))}
    s_mov_b32 s{sCC+1}, {hex(f32(2.0**-SHIFT))}
    {MF} {ar(ACN,16)}, v[108:111], v[108:111], 0
    K_fillb:
    v_mov_b32 v{HA[0]}, v182
    v_xor_b32 v{HA[1]}, 16, v182
    v_xor_b32 v{HA[2]}, 64, v182
    v_xor_b32 v{HA[3]}, 0x50, v182
    """)
    emit(tr_reads(0))
    fill_b()
    a(f"{mct}\ns_waitcnt lgkmcnt(0)")
    emit(mads)
    st(14)
    a("s_waitcnt vmcnt(5)\ns_barrier")
    r0 = reads(0)
    emit(r0[:11] + edma(3) + r0[11:18])
    a("s_waitcnt lgkmcnt(15)")
    emit(mf_g(G[0]) + r0[18:] + eid_read(4))
    a(f"s_waitcnt lgkmcnt(0)\nv_or_b32 v{EP}, v{EP}, v{EP+1}")
    st(10)
    a(f"""
    s_cmp_eq_u32 s{sSET}, 0
    s_barrier
    s_cbranch_scc1 K_lead
    s_barrier
    s_setprio 1
    K_lead:
    """)
    emit(load_seg(0) + comp_seg(0, first=True))
    a("s_cbranch_scc1 K_drain0\ns_branch K_loop1")
    a.l.append(".p2align 6")
    a("K_loop:")
    for u in range(4):
        if u == 1:
            a("K_loop1:")
        emit(load_seg(u) + comp_seg(u))
        a(f"s_cbranch_scc1 K_drain{0 if u < 2 else ''}" if u < 3 else "s_cbranch_scc0 K_loop")
    a("s_branch K_drain\nK_drain0:")
    emit([f"v_mov_b32 v{IND[1]+j}, v{IND[0]+j}" for j in range(4)])
    a(f"""
    K_drain:
    s_setprio 0
    s_cmp_lg_u32 s{sSET}, 0
    s_cbranch_scc1 K_done
    s_barrier
    K_done:
    s_bitcmp1_b32 s{sS}, 0
    s_cbranch_scc1 K_half
    """)
    emit(pk2(1))
    a("K_last:")
    emit(cvts + ["s_nop 1"] + mf_red(1))
    st(11)
    a(f"""
    s_cmp_lg_u32 s{sMORE}, 0
    s_cbranch_scc1 K_again
    v_and_b32 v41, 31, v2
    s_and_b32 s50, s{sW}, 1
    s_lshl_b32 s50, s50, 7
    s_add_u32 s50, s50, s{sRING}
    v_lshl_add_u32 v42, v41, 2, s50
    v_and_b32 v40, 32, v2
    v_lshl_add_u32 v42, v40, 5, v42
    s_mov_b32 s50, {hex(f32(1e-6 * 2.0**SHIFT))}
    s_mov_b32 s51, s50
    s_mov_b32 s56, 0xffff0000
    """)
    Dn, Nn, Uu = NV + ACD, NV + ACN, NV + AU
    un = []
    for k in range(8):
        un += [f"v_lshlrev_b32 v{64+2*k}, 16, v{XR+k}", f"v_and_b32 v{65+2*k}, s56, v{XR+k}",
               f"v_lshlrev_b32 v{96+2*k}, 16, v{Uu+k}", f"v_and_b32 v{97+2*k}, s56, v{Uu+k}"]
    emit(un[:8])
    for r in range(0, 16, 2):
        a(pk("add", Dn+r, Dn+r, "s[50:51]"))
    for r in range(16):
        a(f"v_rcp_f32 v{Dn+r}, v{Dn+r}")
    a("s_waitcnt vmcnt(0)")
    for r in range(0, 16, 2):
        a(pk("mul", Dn+r, Dn+r, Nn+r))
        row = 8*(r//4) + r % 4
        a(f"ds_write2st64_b32 v42, v{Dn+r}, v{Dn+r+1} offset0:{row} offset1:{row+1}")
    emit(un[8:])
    a(f"""
    v_lshrrev_b32 v44, 4, v0
    v_bfe_u32 v45, v0, 2, 2
    v_lshlrev_b32 v45, 13, v45
    v_lshl_add_u32 v45, v44, 8, v45
    v_and_b32 v46, 7, v0
    v_lshl_add_u32 v45, v46, 5, v45
    v_add_u32 v45, {RING}, v45
    v_add_u32 v46, 0x8000, v45
    v_cmp_gt_u32 vcc, s{sVS}, v44
    v_lshlrev_b32 v43, 4, v0
    s_movk_i32 s51, 8192
    v_cndmask_b32 v45, v46, v45, vcc
    s_waitcnt lgkmcnt(0)
    s_barrier
    ds_read_b128 v[48:51], v45
    ds_read_b128 v[52:55], v45 offset:16
    ds_read_b128 v[56:59], v46
    ds_read_b128 v[60:63], v46 offset:16
    """)
    for k in range(8):
        a(pk("add", 96+2*k, 96+2*k, 64+2*k))
    for i in range(2):
        a(f"s_waitcnt lgkmcnt({2-2*i})")
        for j in range(0, 8, 2):
            a(pk("add", 48+8*i+j, 48+8*i+j, 96+8*i+j))
        for j in range(8):
            a(f"v_max_f32 v{48+8*i+j}, v{64+8*i+j}, v{48+8*i+j}")
        for j in range(4):
            a(f"v_cvt_pk_bf16_f32 v{80+4*i+j}, v{48+8*i+2*j}, v{48+8*i+2*j+1}")
        a(f"buffer_store_dwordx4 {vr(80+4*i,4)}, v43, s[32:35], {'s51' if i else '0'} offen {opt.get('ost','sc1')}")
    if st.on:
        a("s_waitcnt vmcnt(0)")
        a(f"v_writelane_b32 v205, s{sS}, 15")
    st(12)
    st.flush()
    a("K_end:\ns_endpgm\nK_half:")
    emit(pk2(0))
    a("s_branch K_last")
    a(f"""
    K_clr:
    s_waitcnt lgkmcnt(0)
    s_mov_b32 s20, s52
    s_mov_b32 s21, s53
    s_mov_b32 s12, s78
    s_mov_b32 s13, s79
    s_mov_b32 s14, {WS_END}
    s_mov_b32 s15, 0x20000
    s_mov_b32 s28, s76
    s_mov_b32 s29, s77
    s_movk_i32 s30, 256
    s_mov_b32 s31, 0x20000
    v_mov_b32 v8, 0
    v_mov_b32 v9, 0
    v_mov_b32 v10, 0
    v_mov_b32 v11, 0
    v_lshlrev_b32 v4, 7, v2
    s_mov_b32 s50, {WS_FLG}
    buffer_store_dwordx4 v[8:11], v4, s[12:15], s50 offen sc1
    """)
    emit(xdma(XP, SB*256) + xdma(ERING, 0))
    a(f"""
    v_and_b32 v12, 4, v2
    v_cmp_eq_u32 vcc, 0, v12
    v_mov_b32 v13, 0x71807180
    v_and_b32 v5, 0x1f0, v1
    v_cndmask_b32 v12, 0, v13, vcc
    v_mov_b32 v13, v12
    v_mov_b32 v14, v12
    v_mov_b32 v15, v12
    s_mov_b32 s50, {DUMMY*512}
    buffer_store_dwordx4 v[12:15], v5, s[12:15], s50 offen sc1
    s_branch K_np1
    K_pub:
    s_mov_b64 exec, 1
    s_waitcnt vmcnt({5 + nw})
    buffer_store_dword v{ONE}, off, s[28:31], 0 sc1
    s_mov_b64 exec, -1
    s_waitcnt vmcnt({nw + 1})
    s_branch K_np2
    """)
    koff = sum(o << (8*i) for i, o in enumerate((40, 64, 32, 56, 48, 88, 8, 72)))
    a(f"""
    K_prod:
    s_lshl_b32 s50, s{sW}, 3
    s_mov_b32 s92, {hex(koff & 0xffffffff)}
    s_mov_b32 s93, {hex(koff >> 32)}
    s_lshr_b64 s[92:93], s[92:93], s50
    s_and_b32 s92, s92, 0xff
    s_load_dwordx2 s[96:97], s[0:1], s92
    s_mov_b32 s20, s52
    s_mov_b32 s21, s53
    v_lshlrev_b32 v4, 2, v0
    v_mov_b32 v62, 0
    ds_write_b32 v4, v62
    v_mov_b32 v40, -1
    v_mov_b32 v41, -1
    v_mov_b32 v42, -1
    v_mov_b32 v43, -1
    """)
    for i in range(4):
        a(f"ds_write_b128 v1, v[40:43] offset:{IMG + 8192*i}")
    a(f"""
    v_mov_b32 v5, 128
    v_writelane_b32 v5, 16, 4
    s_mov_b32 s50, {WS_END // 256}
    v_writelane_b32 v5, s50, 5
    s_mov_b32 s50, {E*32 // 256}
    v_writelane_b32 v5, s50, 6
    s_mov_b32 s50, {N}
    v_writelane_b32 v5, s50, 7
    s_and_b32 s93, s2, 0xf0
    v_readlane_b32 s50, v5, s{sW}
    v_add_u32 v4, s93, v85
    s_waitcnt lgkmcnt(0)
    v_mul_u32_u24 v4, s50, v4
    s_barrier
    """)
    wm = 0
    emit(xdma(ERING, 0))
    a(f"""
    s_mov_b64 exec, 0xffff
    global_load_dword v60, v4, s[96:97] sc1
    s_mov_b64 exec, -1
    s_sub_u32 s90, s82, s88
    v_add_u32 v4, 8192, v1
    v_cmp_gt_u32 s[92:93], s90, v4
    s_mov_b32 s91, {-SB & 0xffffffff}
    v_mov_b32 v6, 4
    v_lshlrev_b32 v7, 22, v0
    v_mov_b32 v36, 0
    v_mov_b32 v37, 0
    v_mov_b32 v38, 0
    v_mov_b32 v39, 0
    """)
    for k in range(8):
        a(f"v_add_u32 v{68+k}, {hex(((2048*(k//4) + k % 4) << 20) & 0xffffffff)}, v7")
    for g in range(2):
        a(f"s_waitcnt vmcnt({6 - g + wm})")
        if g == 0:
            st(1)
        for j in range(4):
            d, t = 8 + 4*g + j, 24 + 4*g + j
            a(f"v_mul_u32_u24 v{44+4*g+j}, 21400, v{d}")
            a(f"v_lshrrev_b32 v{44+4*g+j}, 20, v{44+4*g+j}")
            a(f"v_lshlrev_b32 v{t}, 2, v{44+4*g+j}")
        if g:
            a("s_mov_b64 exec, s[92:93]")
        for j in range(4):
            a(f"ds_add_rtn_u32 v{32+4*g+j}, v{24+4*g+j}, v6")
    a(f"""
    s_mov_b64 exec, -1
    s_lshl_b32 s56, s62, 7
    s_add_u32 s56, s56, {WS_SLOT}
    s_add_u32 s57, s56, {1 << 20}
    s_add_u32 s58, s56, {2 << 20}
    s_add_u32 s59, s56, {3 << 20}
    v_lshrrev_b32 v5, 3, v0
    v_and_b32 v61, 0x70, v1
    v_lshl_add_u32 v61, v5, 14, v61
    s_mov_b32 s4, s78
    s_mov_b32 s5, s79
    s_mov_b32 s12, s78
    s_mov_b32 s13, s79
    s_mov_b32 s14, {WS_END}
    s_mov_b32 s15, 0x20000
    s_waitcnt vmcnt(3)
    """)
    wp = wdma()
    for k in range(8):
        s_, d = 16 + k, 8 + k
        a(f"v_mad_i32_i24 v{d}, v{44+k}, s91, v{d}")
        a(f"v_and_b32 v4, 7, v{s_}")
        a(f"v_lshl_or_b32 v{d}, v{d}, 3, v4")
        a(f"v_lshrrev_b32 v{s_}, 3, v{s_}")
        a(f"v_lshl_or_b32 v{d}, v{d}, 11, v{68+k}")
        a(f"v_or_b32 v{s_}, v{d}, v{s_}")
    a("s_waitcnt lgkmcnt(0)")
    for k in range(8):
        if k == 4:
            a("s_mov_b64 exec, s[92:93]")
        a(f"v_add_u32 v4, v{32+k}, v{24+k}")
        a(f"v_and_b32 v4, 0x7f, v4")
        a(f"v_lshl_add_u32 v{44+k}, v{24+k}, 5, v4")
        a(f"ds_write_b32 v{44+k}, v{16+k} offset:{IMG}")
    a(f"""
    s_mov_b64 exec, -1
    v_or3_b32 v4, v32, v33, v34
    v_or3_b32 v5, v35, v36, v37
    v_or3_b32 v4, v4, v38, v39
    v_or_b32 v4, v4, v5
    v_cmp_lt_u32 vcc, 0x7f, v4
    s_mov_b64 exec, vcc
    ds_write_b32 v62, v6 offset:1024
    s_mov_b64 exec, -1
    s_waitcnt vmcnt(1) lgkmcnt(0)
    s_barrier
    ds_read_b32 v4, v62 offset:1024
    """)
    OUTR = [8, 12, 68, 72]
    def img_reads():
        for i in range(4):
            a(f"ds_read_b128 {vr(OUTR[i],4)}, v1 offset:{IMG + 8192*i}")
    img_reads()
    a(f"""
    s_waitcnt lgkmcnt(4)
    v_readfirstlane_b32 s50, v4
    s_cmp_lg_u32 s50, 0
    s_cbranch_scc1 K_slow
    K_out:
    """)
    for i in range(4):
        a(f"s_waitcnt lgkmcnt({3-i})")
        a(f"buffer_store_dwordx4 {vr(OUTR[i],4)}, v61, s[12:15], s{56+i} offen sc1")
    st(2)
    common(64)
    common2(a)
    wb = opt.get("wbefore", 2)
    emit([ready_load] + wcdma + wp[:3*wb])
    a(f"v_add_u32 v{FX}, {ERING}, v{FX}")
    for q in range(8):
        emit(xfrag(q))
    emit(misc[:3])
    a(f"s_add_u32 s96, s97, {WS_FLG + 4096}\ns_mov_b32 s97, {OOB}\ns_waitcnt vmcnt({wb + 1})")
    ready_check("rp")
    a(f"""
    s_mov_b64 exec, 1
    s_barrier
    buffer_store_dword v{ONE}, off, s[12:15], s96 sc1
    s_mov_b64 exec, -1
    """)
    st(3)
    emit(wp[3*wb:])
    lds_reset(True)
    left = lambda q: 7 - q + (1 if q < wb else 0)
    emit([f"s_waitcnt vmcnt({left(0)})"] + misc[3:] + wfrag(0))
    for q in range(8):
        if q < 7:
            emit([f"s_waitcnt vmcnt({left(q + 1)})"] + wfrag(q + 1))
        a(f"s_waitcnt lgkmcnt({2 if q < 7 else 0})")
        emit([gm(q, 0, D1), gm(q, 1, D1)])
    a("s_branch K_join")


    a("""
    K_slow:
    v_lshlrev_b32 v5, 4, v2
    s_waitcnt lgkmcnt(0)
    ds_read_b128 v[8:11], v5
    s_waitcnt lgkmcnt(0)
    v_add_u32 v13, v8, v9
    v_add_u32 v14, v13, v10
    v_add_u32 v15, v14, v11
    v_mov_b32 v4, v15
    """)
    scan64(a, [4])
    a("""
    v_sub_u32 v40, v4, v15
    v_add_u32 v41, v40, v8
    v_add_u32 v42, v40, v13
    v_add_u32 v43, v40, v14
    ds_write_b128 v5, v[40:43] offset:2048
    """)
    for k in range(8):
        a(f"ds_read_b32 v{24+k}, v{24+k} offset:2048")
    a("s_waitcnt lgkmcnt(0)")
    for k in range(8):
        a(f"s_mov_b64 exec, {'s[92:93]' if k >= 4 else '-1'}")
        a(f"v_add_u32 v{24+k}, v{24+k}, v{32+k}")
        a(f"ds_write_b32 v{24+k}, v{16+k} offset:{STG}")
        a(f"v_cmp_gt_u32 vcc, 0x80, v{32+k}")
        a("s_mov_b64 exec, vcc")
        a(f"ds_write_b32 v{44+k}, v{16+k} offset:{IMG}")
    a(f"""
    s_mov_b64 exec, -1
    s_waitcnt lgkmcnt(0)
    s_barrier
    v_mov_b32 v16, {62 << 14}
    """)
    for j in range(4):
        a(f"""
        v_add_u32 v12, {4*j}, v5
        v_add_u32 v13, 124, v12
        v_and_b32 v13, 0x7f, v13
        v_lshl_add_u32 v13, v12, 5, v13
        v_add_u32 v14, 120, v{40+j}
        v_lshl_or_b32 v14, v14, 18, v16
        v_add_u32 v15, -124, v{8+j}
        v_cmp_lt_u32 vcc, 0x80, v{8+j}
        s_mov_b64 exec, vcc
        ds_write_b32 v13, v14 offset:{IMG}
        ds_write_b32 v{40+j}, v15 offset:{STG + 120}
        s_mov_b64 exec, -1
        """)
    a(f"""
    ds_read_b128 v[16:19], v1 offset:{STG}
    ds_read_b128 v[20:23], v1 offset:{STG + 8192}
    s_add_u32 s50, s88, {WS_REC}
    s_add_u32 s80, s4, s50
    s_addc_u32 s81, s5, 0
    s_mov_b32 s82, s90
    s_movk_i32 s50, 8192
    s_waitcnt lgkmcnt(0)
    buffer_store_dwordx4 v[16:19], v1, s[80:83], 0 offen sc1
    buffer_store_dwordx4 v[20:23], v1, s[80:83], s50 offen sc1
    """)
    img_reads()
    a("s_branch K_out")

    zero_masks = lambda ks: [f"s_mov_b64 {sr(sM+2*k,2)}, 0" for k in ks]
    a("""
    K_again:
    s_waitcnt vmcnt(0) lgkmcnt(0)
    s_barrier
    """)
    lds_reset(True)
    a(f"""
    s_cmp_eq_u32 s{sMODE}, 3
    s_cbranch_scc1 K_next
    """)
    rec_loads()
    a(f"""
    s_waitcnt vmcnt(0)
    s_cmp_eq_u32 s{sMODE}, 1
    s_cbranch_scc0 K_marks
    s_mov_b32 s{sMODE}, 2
    s_mov_b64 s[56:57], 0
    """)
    classes(range(4, 8), True)
    emit(zero_masks(range(4)))
    a(f"""
    s_branch K_resort
    K_marks:
    s_mov_b32 s{sMODE}, 3
    v_mov_b32 v84, 0
    """)
    for k in range(8):
        a(f"""
        v_bfe_u32 v85, v{REC+k}, 14, 6
        v_cmp_eq_u32 vcc, 62, v85
        s_nop 1
        v_cndmask_b32 v84, v84, v{REC+k}, vcc
        """)
    a(f"""
    s_nop 1
    v_or_b32_dpp v84, v84, v84 quad_perm:[1,0,3,2] row_mask:0xf bank_mask:0xf
    s_nop 1
    v_or_b32_dpp v84, v84, v84 quad_perm:[2,3,0,1] row_mask:0xf bank_mask:0xf
    v_cmp_ne_u32 vcc, 0, v84
    v_lshrrev_b32 v84, 20, v84
    v_add_lshl_u32 v84, v84, v{PB}, 2
    s_mov_b32 s{sSTART}, {WS_REC}
    buffer_load_dword v{SLEN}, v84, s[12:15], s{sSTART} offen sc1
    v_add_u32 v{SEG}, v84, v{SIDX}
    s_mov_b32 s{sSTART}, {WS_REC + 4 - 64}
    s_waitcnt vmcnt(0)
    v_cndmask_b32 v{SLEN}, 0, v{SLEN}, vcc
    v_min_u32 v{SLEN}, {CH*4}, v{SLEN}
    v_add_u32 v{SLEN}, 64, v{SLEN}
    K_next:
    s_add_u32 s{sSTART}, s{sSTART}, 64
    v_add_u32 v{SLEN}, -64, v{SLEN}
    """)
    rec_loads(1)
    a(f"""
    v_cmp_lt_i32 s[56:57], 64, v{SLEN}
    v_sub_u32 v84, v{SLEN}, v{SIDX}
    """)
    for k in range(4):
        a(f"v_cmp_lt_i32 {sr(sM+2*k,2)}, {4*k}, v84")
    emit(zero_masks(range(4, 8)))
    a("K_resort:")
    list_ptrs()
    sort(False)
    a(f"""
    s_cmp_eq_u32 s{sMODE}, 2
    s_cselect_b32 s{sMORE}, s{sMARK}, s{sMORE}
    s_cmp_eq_u32 s{sMODE}, 1
    s_cselect_b32 s{sMORE}, 1, s{sMORE}
    s_cbranch_scc1 K_sorted
    s_waitcnt lgkmcnt(0)
    s_barrier
    """)
    fill_a()
    a(f"""
    s_branch K_fillb
    K_over:
    s_cmp_lg_u32 s{sMODE}, 0
    s_cbranch_scc1 K_end
    s_mov_b32 s{sMODE}, 1
    s_mov_b32 s{sMARK}, s{sMORE}
    s_mov_b64 s[56:57], 0
    s_waitcnt lgkmcnt(0)
    s_barrier
    """)
    lds_reset(False)
    emit(zero_masks(range(4, 8)))
    a("s_branch K_resort\nK_codeend:")
    d = desc(name, 256, 100, 256)
    ln = f"; @launch grid=(256,1,1) block=(512,1,1) lds={LDS}\n"
    if opt.get("probe"):
        import gen
        ln = f"; @launch kernel={name} grid=(256,1,1) block=(512,1,1) lds={LDS}\n; @launch kernel=probe_kernel grid=(1,1,1) block=(64,1,1) lds=0\n"
        d += gen.gen_probe(a, opt)
    hdr = """; GatedGCN layer in one launch: each workgroup builds the table rows of its 49 nodes, half of them also
; partition a chunk of edges by destination bin; after two counted hand-offs every workgroup sorts its bin
; and runs the gate / aggregation loop.
""" + ln + '.amdgcn_target "amdgcn-amd-amdhsa--gfx950"\n.text\n'
    return hdr + a.text() + d

if __name__ == "__main__":
    opt = {}
    out = f"cdna_kernels/{NAME}.s"
    for x in sys.argv[1:]:
        k, v = x.split("=", 1)
        if k == "out":
            out = v
        else:
            opt[k] = int(v) if v.lstrip("-").isdigit() else v
    open(out, "w").write(generate(opt))
    print("wrote", out)
```

```python
import sys
from gen import (NAME, N, E, SB, CH, P, RG, DUMMY, WS_REC, WS_SLOT, WS_END, SHIFT, LOG2E, WS_STAMP, MF,
                 f32, Asm, vr, ar, sr, scan64, desc, head, Stamps)

TW0, TW1, TRASH = 2048, 4096, 6144
LIST = 7168
CAPS = 2560
LSET = CAPS * 8
ATAB = LIST + 2 * LSET
AST = 576
WCL = 77824
WS_FLG = 0xA00000
XP = ATAB
ERING = 81920
RING = 98304
LDS = RING + 65536
LIMIT = 2240 * 8
IMG, STG = 4096, 36864
SDW = "dst_sel:DWORD dst_unused:UNUSED_PAD"
OOB = 0x7000000

def generate(opt=None):
    opt = opt or {}
    a = Asm()
    name = NAME + "_kernel"
    cmask = {8: 0x7FC, 4: 0x7F8, 2: 0x7F0}[opt.get("R", 8)]
    tfl = opt.get("tfl", "sc1").replace("+", " ")
    tst = opt.get("tst", "sc1").replace("+", " ")
    head(a, name)
    st = Stamps(a, opt.get("stamp"), 205, WS_STAMP)
    SEL0, SEL1, PIND, WC, CT, RR = 4, 8, 12, 16, 84, 248
    G = [52, 68]; H = [20, 36]
    OE, RW, OB0, OB1, OA = 100, 104, 108, 112, 120
    HA = [116, 117, 118, 119]
    IND = [124, 128]
    SS, MM, AS, AM, BD, BN = 132, 140, 148, 156, 164, 168
    IX, OF0, OF1, EP = 172, 176, 177, 178
    RA = [180, 181]
    EA, LI, LE, LP, TA0, TA1, TC = 184, 185, 186, 187, 188, 189, 190
    XR = 192
    SEG, SLEN, SIDX, PB = 200, 201, 202, 203
    NV = 208
    ACD, ACN, AU = 0, 16, 32
    sW, sSET, sTILE, sBIN = 3, 36, 37, 38
    sRING, sEM0, sS, sK, sVS, sSTART, sLUT, sMORE, s512 = 39, 40, 41, 42, 43, 44, 45, 46, 47
    sCC, sM, sMODE, sMARK, sXO, sPROD, sXB = 48, 64, 7, 9, 8, 6, 61
    REC, CA, RK, BB, EN, T = 36, 44, 52, 60, 100, 76
    XF, WA, DA, SO, WCR = 100, 0, 36, 68, 164
    VW, FW, FX, FS, FR, FG, FA, FB, FU = 168, 169, 170, 171, 172, 173, 207, 204, 191
    ONE, PL = 206, 164

    def emit(lst):
        for x in lst:
            a(x)
    ar = lambda b_, n_=1: vr(NV + b_, n_)

    cw = opt.get("cw", 8)
    a("s_cmp_ge_u32 s2, 256\ns_cbranch_scc1 K_end")
    if opt.get("perm"):
        a(f"s_mul_i32 s2, s2, {opt['perm']}\ns_lshr_b32 s3, s2, 3\ns_and_b32 s3, s3, 7\ns_xor_b32 s2, s2, s3\ns_and_b32 s2, s2, 255")
    st(0)
    a(f"""
    s_load_dwordx8 s[52:59], s[0:1], 0
    s_load_dwordx16 s[64:79], s[0:1], 32
    s_getpc_b64 s[92:93]
    K_pc:
    s_and_b32 s50, s2, {0xf8 if cw == 8 else 0x78}
    s_lshl_b32 s50, s50, {0 if cw == 8 else 1}
    v_add_u32 v4, s50, v0
    v_mul_u32_u24 v4, (K_codeend-K_pc)/1024*4, v4
    v_cmp_gt_u32 vcc, {cw}, v0
    s_and_saveexec_b64 s[90:91], vcc
    s_cbranch_execz K_nocw
    global_load_dword v63, v4, s[92:93]
    K_nocw:
    s_mov_b64 exec, -1
    v_lshrrev_b32 v1, 6, v0
    v_and_b32 v2, 63, v0
    v_readfirstlane_b32 s{sW}, v1
    s_and_b32 s60, s2, 7
    s_lshr_b32 s61, s2, 3
    s_lshl_b32 s50, s60, 5
    s_add_u32 s{sBIN}, s50, s61
    v_lshrrev_b32 v84, 4, v2
    v_and_b32 v85, 15, v2
    v_bfe_u32 v3, v0, 4, 4
    v_xor_b32 v3, v3, v85
    v_lshlrev_b32 v3, 4, v3
    v_lshl_add_u32 v3, v84, 8, v3
    v_lshlrev_b32 v1, 4, v0
    s_mul_i32 s{sXO}, s{sBIN}, {SB*256}
    s_lshl_b32 s90, s{sW}, 10
    s_add_u32 s51, s{sXO}, s90
    s_add_u32 s91, s51, 8192
    s_cmp_lt_u32 s{sW}, 5
    s_cselect_b32 s91, s91, {OOB}
    s_mov_b32 s22, {N*256}
    s_mov_b32 s23, 0x20000
    v_lshrrev_b32 v86, 2, v2
    v_and_b32 v87, 3, v2
    v_lshlrev_b32 v{VW}, 4, v87
    v_lshl_add_u32 v{VW}, v86, 8, v{VW}
    v_mov_b32 v{ONE}, 1
    s_lshr_b32 s50, s2, 4
    s_lshl_b32 s50, s50, 3
    s_add_u32 s62, s50, s60
    s_lshr_b32 s{sSET}, s{sW}, 2
    s_and_b32 s{sTILE}, s{sW}, 3
    s_mov_b32 s83, 0x20000
    s_mov_b32 s87, 0x20000
    s_bitcmp1_b32 s2, 3
    s_cbranch_scc1 K_np
    s_mul_i32 s88, s62, {CH*4}
    s_add_u32 s89, s88, 8192
    s_add_u32 s82, s88, {CH*4}
    s_min_u32 s82, s82, {E*4}
    s_mov_b32 s86, s82
    s_waitcnt lgkmcnt(0)
    s_mov_b32 s80, s58
    s_mov_b32 s81, s59
    s_mov_b32 s84, s56
    s_mov_b32 s85, s57
    buffer_load_dwordx4 v[8:11], v1, s[80:83], s88 offen
    buffer_load_dwordx4 v[12:15], v1, s[80:83], s89 offen
    buffer_load_dwordx4 v[16:19], v1, s[84:87], s88 offen
    buffer_load_dwordx4 v[20:23], v1, s[84:87], s89 offen
    s_branch K_prod
    K_np:
    """)
    def xdma(base, delta):
        o = []
        for i, so in enumerate(("s51", "s91")):
            o.append(f"s_add_u32 m0, s90, {base + 8192*i}")
            o.append(f"s_sub_u32 s50, {so}, {delta}")
            o.append("buffer_load_dwordx4 v3, s[20:23], s50 offen lds")
        return o
    def wdma():
        o = []
        for q in range(8):
            o += [f"s_add_u32 m0, s{sRING}, {1024*q}", f"s_add_u32 s89, s63, {4096*q}",
                  f"buffer_load_dwordx4 v{VW}, s[24:27], s89 offen lds"]
        return o
    wcdma = [f"s_lshl_b32 s89, s{sTILE}, 10", f"s_add_u32 m0, s89, {WCL}", "s_nop 0",
             f"buffer_load_dwordx4 v{VW}, s[32:35], s63 offen lds"]
    def common(first):
        a(f"""
        s_lshl_b32 s{sRING}, s{sW}, 13
        s_add_u32 s{sRING}, s{sRING}, {RING}
        s_lshl_b32 s63, s{sTILE}, 6
        s_cmp_eq_u32 s{sSET}, 0
        s_cselect_b32 s64, s64, s70
        s_cselect_b32 s65, s65, s71
        s_cselect_b32 s66, s66, s72
        s_cselect_b32 s67, s67, s73
        s_mov_b32 s24, s{first}
        s_mov_b32 s25, s{first+1}
        s_mov_b32 s26, 32768
        s_mov_b32 s27, 0x20000
        """)
    def common2(x):
        x(f"""
        s_mov_b32 s32, s68
        s_mov_b32 s33, s69
        s_mov_b32 s34, 4096
        s_mov_b32 s35, 0x20000
        s_mov_b32 s14, {WS_END}
        s_mov_b32 s15, 0x20000
        s_movk_i32 s30, 256
        s_mov_b32 s31, 0x20000
        s_mov_b32 s4, s78
        s_mov_b32 s5, s79
        s_mov_b32 s12, s78
        s_mov_b32 s13, s79
        s_mov_b32 s10, s74
        s_mov_b32 s11, s75
        s_mov_b32 s28, s76
        s_mov_b32 s29, s77
        v_lshrrev_b32 v88, 5, v2
        v_and_b32 v89, 31, v2
        v_lshrrev_b32 v90, 2, v85
        v_lshl_add_u32 v90, v88, 3, v90
        v_and_b32 v91, 1, v84
        v_lshlrev_b32 v91, 5, v91
        v_lshl_add_u32 v91, v87, 3, v91
        v_lshl_add_u32 v90, v90, 6, v91
        v_add_u32 v{FW}, s{sRING}, v90
        s_lshl_b32 s50, s{sTILE}, 10
        s_add_u32 s50, s50, {WCL}
        v_add_u32 v{WCR}, s50, v90
        v_xor_b32 v90, v88, v85
        v_lshlrev_b32 v90, 4, v90
        v_lshl_add_u32 v{FX}, v89, 8, v90
        v_lshlrev_b32 v93, 3, v88
        v_lshrrev_b32 v94, 4, v0
        v_xor_b32 v90, v94, v0
        v_and_b32 v90, 15, v90
        v_lshlrev_b32 v90, 4, v90
        v_lshl_add_u32 v{FU}, v94, 8, v90
        s_mov_b32 s94, {hex(f32(-LOG2E))}
        s_mov_b32 s95, {hex(f32(-LOG2E))}
        s_lshr_b32 s50, s62, 2
        s_lshl_b32 s50, s50, 7
        s_and_b32 s97, s2, 3
        s_lshl_b32 s97, s97, 2
        s_add_u32 s97, s97, s50
        s_cmp_eq_u32 s{sW}, 0
        s_cselect_b32 s97, s97, {OOB}
        s_cselect_b32 s{sPROD}, 0, {OOB}
        """)
    def wfrag(q):
        return [f"ds_read_b64_tr_b16 {ar(WA+4*q+2*z,2)}, v{FW} offset:{1024*q+256*z}" for z in range(2)]
    def xfrag(q, off=0):
        return [f"v_xor_b32 v3, {32*q}, v{FX}", f"ds_read_b128 {vr(XF+8*q,4)}, v3 offset:{off}",
                f"ds_read_b128 {vr(XF+8*q+4,4)}, v3 offset:{off+8192}"]
    misc = [f"v_add_u32 v3, {ERING}, v{FU}", f"ds_read_b128 {vr(XR,4)}, v3", f"ds_read_b128 {vr(XR+4,4)}, v3 offset:8192",
            f"ds_read_b64_tr_b16 {vr(WCR+2,2)}, v{WCR} offset:256", f"ds_read_b64_tr_b16 {vr(WCR,2)}, v{WCR}"]
    def gm(q, rt, base=DA):
        d = vr(base + 16*rt, 16)
        return f"{MF} {d}, {ar(WA+4*q,4)}, {vr(XF+8*q+4*rt,4)}, {'0' if q == 0 else d}"
    RDY = 99
    ready_load = f"buffer_load_dword v{RDY}, off, s[28:31], s{sPROD} sc1"
    def ready_check(tag):
        a(f"""
        s_cmp_lg_u32 s{sW}, 0
        s_cbranch_scc1 K_{tag}
        s_mov_b32 s50, 0
        K_{tag}_spin:
        v_cmp_eq_u32 vcc, 0, v{RDY}
        s_cbranch_vccz K_{tag}
        {ready_load}
        s_add_u32 s50, s50, 1
        s_cmp_lt_u32 s50, 0x40000
        s_waitcnt vmcnt(0)
        s_cbranch_scc1 K_{tag}_spin
        K_{tag}:
        """)
    D1 = 4
    def conv(rt, addrs, base=DA, mul=None, off=lambda j: 0):
        o = []
        for j in range(4):
            b_ = base + 16*rt + 4*j
            if mul:
                o += [f"v_mul_f32 v{b_+i}, {mul}, v{b_+i}" for i in range(4)]
            o += [f"v_cvt_pk_bf16_f32 v{b_}, v{b_}, v{b_+1}", f"v_cvt_pk_bf16_f32 v{b_+1}, v{b_+2}, v{b_+3}",
                  f"ds_write_b64 v{addrs[j]}, {vr(b_,2)} offset:{off(j)}"]
        return o

    def lds_reset(prefill):
        a(f"""
        v_lshlrev_b32 v76, 2, v0
        v_mov_b32 v77, 0
        ds_write_b32 v76, v77
        """)
        if prefill:
            a(f"""
            v_mov_b32 v76, {hex(DUMMY | (SB*AST) << 16)}
            v_mov_b32 v77, {OOB}
            v_mov_b32 v78, v76
            v_mov_b32 v79, v77
            v_lshlrev_b32 v80, 4, v0
            """)
            for i in range(5):
                a(f"ds_write_b128 v80, v[76:79] offset:{LIST + 8192*i}")

    a(f"""
    s_or_b32 s50, s90, s2
    s_cmp_eq_u32 s50, {7*1024 + 8}
    s_cbranch_scc1 K_clr
    s_waitcnt lgkmcnt(0)
    s_mov_b32 s20, s52
    s_mov_b32 s21, s53
    """)
    emit(xdma(XP, SB*256) + xdma(ERING, 0))
    a("K_np1:")
    common(66)
    w1 = wdma()
    b = Asm()
    common2(b)
    b(f"""
    s_add_u32 s97, s97, {WS_FLG}
    """)
    FG1 = 174
    b(f"""
    s_lshl_b32 s50, s{sTILE}, 3
    s_lshl_b32 s51, s{sSET}, 2
    s_add_u32 s50, s50, s51
    v_and_b32 v90, 7, v2
    v_xor_b32 v90, s50, v90
    v_lshl_add_u32 v90, v90, 4, v93
    v_lshl_add_u32 v90, v89, 9, v90
    v_add_u32 v{FS}, {XP}, v90
    v_bfe_u32 v90, v0, 5, 3
    v_lshlrev_b32 v90, 4, v90
    v_xor_b32 v90, v90, v1
    v_add_u32 v{FR}, {XP}, v90
    v_xor_b32 v95, 16, v{FS}
    v_xor_b32 v96, 32, v{FS}
    v_xor_b32 v97, 48, v{FS}
    s_mul_i32 s50, s{sBIN}, {SB}
    v_lshrrev_b32 v90, 5, v0
    v_add_u32 v90, s50, v90
    v_and_b32 v98, 7, v90
    v_lshrrev_b32 v{FG1}, 3, v90
    v_lshl_or_b32 v{FG1}, v98, 11, v{FG1}
    v_lshl_add_u32 v{FG1}, v{FG1}, 5, v89
    v_lshlrev_b32 v{FG1}, 4, v{FG1}
    v_add_u32 v90, {-SB & 0xffffffff}, v90
    v_and_b32 v98, 7, v90
    v_lshrrev_b32 v{FG}, 3, v90
    v_lshl_or_b32 v{FG}, v98, 11, v{FG}
    v_lshl_add_u32 v{FG}, v{FG}, 5, v89
    v_lshlrev_b32 v{FG}, 4, v{FG}
    v_cmp_gt_u32 s[56:57], {SB - 32}, v89
    s_cmp_eq_u32 s{sSET}, 0
    s_cselect_b32 s96, s94, 1.0
    """)
    nw = opt.get("wearly", 3)
    a("s_barrier")
    emit(w1[:3*nw])
    lds_reset(True)
    cut = [i for i, l in enumerate(b.l) if f"v{FX}," in l][0] + 1
    a.l += b.l[:cut]
    later = [x.strip() for x in b.l[cut:]]
    a(f"""
    s_or_b32 s50, s90, s2
    s_cmp_eq_u32 s50, {7*1024 + 8}
    s_cbranch_scc1 K_pub
    s_waitcnt vmcnt({nw})
    K_np2:
    s_barrier
    """)
    st(1)
    emit(xfrag(0, XP) + xfrag(1, XP) + xfrag(2, XP) + xfrag(3, XP))
    w2 = wdma()
    ahead = opt.get("ahead", 5)
    seq = [w1[3*q:3*q+3] for q in range(8)] + [wcdma + ["s_mov_b32 s24, s64", "s_mov_b32 s25, s65"]] + \
          [w2[3*q:3*q+3] for q in range(8)]
    sent = [nw]
    def send(n):
        o = []
        while sent[0] < min(n, len(seq)):
            o += seq[sent[0]]
            sent[0] += 1
        return o
    landed = lambda i: f"s_waitcnt vmcnt({sent[0] - 1 - i})"
    SA = [FS, 95, 96, 97]
    emit(send(ahead))
    emit([landed(0)] + wfrag(0) + [landed(1)] + wfrag(1))
    for q in range(8):
        a(f"s_waitcnt lgkmcnt({[2, 4, 4, 4, 4, 4, 4, 2][q]})")
        a(gm(q, 0, D1))
        emit(send(ahead + q + 1))
        if q == 4:
            a(f"v_add_u32 v{FX}, {ERING}, v{FX}")
        emit(xfrag(q + 4, XP) if q < 4 else xfrag(q - 4))
        if q < 6:
            emit([landed(q + 2)] + wfrag(q + 2))
        a(gm(q, 1, D1))
        n_ = -(-len(later) // (8 - q))
        while n_ < len(later) and ("cselect" in later[n_] or "addc" in later[n_]):
            n_ += 1
        emit(later[:n_])
        later = later[n_:]
    st(2)
    a(landed(8))
    B2, SO2 = SB * 512, 176
    def stores(fg, so):
        o = []
        for i in range(3):
            o += [f"s_waitcnt lgkmcnt({3-i})", f"buffer_store_dwordx4 {vr(so+4*i,4)}, v{fg}, s[12:15], 0 offen offset:{1024*i} {tst}"]
        return o + ["s_mov_b32 exec_hi, 0", "s_waitcnt lgkmcnt(0)",
                    f"buffer_store_dwordx4 {vr(so+12,4)}, v{fg}, s[12:15], s{sPROD} offen offset:3072 {tst}", "s_mov_b32 exec_hi, -1"]
    back = lambda o, so: [f"ds_read_b128 {vr(so+4*i,4)}, v{FR} offset:{o + 8192*i}" for i in range(4)]
    slots = [[] for _ in range(16)]
    slots[0] = xfrag(4) + xfrag(5)
    slots[1] = xfrag(6) + xfrag(7)
    slots[2] = misc[:3]
    c1 = conv(0, SA, D1, "s96") + conv(1, SA, D1, "s96", lambda j: 16384)
    for i in range(8):
        slots[3 + i] = c1[7*i:7*i+7]
    for q in range(8):
        slots[q] += send(sent[0] + 1)
    assert sent[0] == len(seq)
    slots[8] += [ready_load]
    bp = opt.get("backpos", 15)
    slots[bp] += ["s_waitcnt lgkmcnt(0)", "s_barrier"] + back(0, SO)
    emit(misc[3:])
    a("s_waitcnt lgkmcnt(0)\ns_barrier")
    for i in range(16):
        if i == 8:
            a("s_waitcnt lgkmcnt(5)")
        a(gm(i // 2, i % 2))
        emit(slots[i])
    emit(stores(FG, SO))
    st(3)
    a(f"s_cmp_lg_u32 s{sSET}, 0\ns_cbranch_scc1 K_ns1")
    for i in range(16):
        a(f"v_pk_mul_f32 {vr(DA+2*i,2)}, {vr(DA+2*i,2)}, s[94:95]")
    a("K_ns1:")
    emit(conv(0, SA, DA, None, lambda j: B2) + ["s_mov_b64 exec, s[56:57]"] + conv(1, SA, DA, None, lambda j: B2 + 16384))
    a("s_mov_b64 exec, -1\ns_waitcnt lgkmcnt(0)\ns_barrier")
    emit(back(B2, SO2) + stores(FG1, SO2))
    a("s_waitcnt vmcnt(8)")
    for q in range(8):
        emit(wfrag(q))
    for q in range(8):
        a(f"s_waitcnt lgkmcnt({14 - 2*q})")
        emit([gm(q, 0, D1), gm(q, 1, D1)])
    ready_check("rn")
    a("K_join:")
    st(4)
    def poll_check(tag, base, lanes, wave=0):
        a(f"""
        s_cmp_lg_u32 s{sW}, {wave}
        s_cbranch_scc1 K_{tag}_done
        s_mov_b32 s50, 0
        s_mov_b32 s51, {base}
        K_{tag}_spin:
        s_waitcnt vmcnt(0)
        v_and_b32 v{PL}, v{PL}, v{PL+1}
        v_and_b32 v{PL+2}, v{PL+2}, v{PL+3}
        v_and_b32 v{PL}, v{PL}, v{PL+2}
        v_cmp_ne_u32 vcc, 1, v{PL}
        s_cbranch_vccz K_{tag}_done
        s_add_u32 s50, s50, 1
        s_cmp_lt_u32 s50, 0x40000
        buffer_load_dwordx4 {vr(PL,4)}, v{lanes}, s[12:15], s51 offen sc1
        s_cbranch_scc1 K_{tag}_spin
        K_{tag}_done:
        """)
    def list_ptrs():
        a(f"""
        s_mul_i32 s50, s{sSET}, {LSET}
        s_add_u32 s50, s50, {LIST}
        v_and_b32 v98, 32, v2
        v_bfe_u32 v97, v2, 4, 1
        v_bfe_u32 v96, v2, 3, 1
        v_lshl_add_u32 v96, v96, 2, v97
        v_add_u32 v96, v96, v98
        v_lshl_add_u32 v{LI}, v96, 3, s50
        v_and_b32 v96, 0x2c, v2
        v_lshl_add_u32 v{LP}, v96, 3, s50
        v_and_b32 v96, 2, v2
        v_bfe_u32 v99, v2, 2, 1
        v_lshl_add_u32 v96, v96, 1, v99
        v_and_or_b32 v96, v2, 8, v96
        s_lshr_b32 s51, s{sTILE}, 1
        s_lshl_b32 s51, s51, 7
        s_add_u32 s50, s50, s51
        s_and_b32 s51, s{sTILE}, 1
        s_lshl_b32 s51, s51, 8
        s_add_u32 s50, s50, s51
        v_lshl_add_u32 v{LE}, v96, 3, s50
        """)
    PL = 68
    def rec_loads(n=2):
        a(f"buffer_load_dwordx4 {vr(REC,4)}, v{SEG}, s[12:15], s{sSTART} offen sc1")
        if n == 2:
            a(f"buffer_load_dwordx4 {vr(REC+4,4)}, v{SEG}, s[12:15], s{sSTART} offen offset:64 sc1")
    a(f"""
    v_lshlrev_b32 v{FS}, 7, v89
    s_cmp_lg_u32 s{sW}, 0
    s_cbranch_scc1 K_nopoll
    s_mov_b32 s50, {WS_FLG + 4096}
    buffer_load_dwordx4 {vr(PL,4)}, v{FS}, s[12:15], s50 offen sc1
    K_nopoll:
    v_lshrrev_b32 v95, 2, v0
    v_lshlrev_b32 v{SIDX}, 4, v87
    v_lshl_add_u32 v{SEG}, v95, 7, v{SIDX}
    v_mul_u32_u24 v92, {AST}, v89
    v_mul_u32_u24 v{PB}, {CH}, v95
    s_lshl_b32 s{sSTART}, s{sBIN}, 14
    s_add_u32 s{sSTART}, s{sSTART}, {WS_SLOT}
    s_mov_b32 s16, s54
    s_mov_b32 s17, s55
    s_mov_b32 s18, {opt.get('erows', E) * 32}
    s_mov_b32 s19, 0x20000
    s_mov_b32 s{sMODE}, 0
    s_bitcmp1_b32 s2, 3
    s_cselect_b32 s60, {4*opt.get('ewarm', 2)}, {4*opt.get('ewarmp', opt.get('ewarm', 2))}
    """)
    a(f"""
    s_cmp_lg_u32 s{sSET}, 0
    s_cbranch_scc1 K_uaddr
    v_cmp_gt_u32 s[90:91], {SB - 31}, v89
    s_lshl_b32 s51, s{sTILE}, 7
    s_add_u32 s51, s51, {ATAB}
    v_add3_u32 v81, v92, v93, s51
    """)
    for i in range(16):
        a(f"v_pk_mul_f32 {vr(D1+2*i,2)}, {vr(D1+2*i,2)}, s[94:95]")
    ca = conv(0, [81]*4, D1, None, lambda j: 16*j) + conv(1, [81]*4, D1, None, lambda j: 16*j + 32*AST)
    emit([x for x in ca if x.startswith("v_")])
    a(f"""
    s_branch K_conv
    K_uaddr:
    v_bfe_u32 v52, v2, 1, 2
    v_lshl_add_u32 v52, v52, 4, v93
    v_lshl_add_u32 v52, v89, 6, v52
    v_add_u32 v52, s{sRING}, v52
    """)
    for j in range(1, 4):
        a(f"v_xor_b32 v{52+j}, {16*j}, v52")
    emit(conv(0, [52, 53, 54, 55], D1) + conv(1, [52, 53, 54, 55], D1, None, lambda j: 2048))
    a(f"""
    v_and_b32 v45, 63, v95
    v_and_b32 v46, 31, v95
    v_lshlrev_b32 v47, 3, v87
    v_sub_u32 v46, v46, v47
    v_cmp_eq_u32 s[90:91], {SB}, v45
    v_mov_b32 v47, 64
    v_cmp_ge_u32 s[92:93], {SB}, v45
    v_cndmask_b32 v46, v46, v47, s[90:91]
    v_and_b32 v47, 1, v46
    v_lshlrev_b32 v47, 4, v47
    v_mov_b32 v48, 0x3f80
    v_lshlrev_b32 v47, v47, v48
    v_ashrrev_i32 v46, 1, v46
    v_cmp_eq_u32 s[64:65], 0, v46
    v_cmp_eq_u32 s[66:67], 1, v46
    v_cmp_eq_u32 s[68:69], 2, v46
    v_cmp_eq_u32 s[70:71], 3, v46
    v_cndmask_b32 v48, 0, v47, s[64:65]
    v_cndmask_b32 v49, 0, v47, s[66:67]
    v_cndmask_b32 v50, 0, v47, s[68:69]
    v_cndmask_b32 v51, 0, v47, s[70:71]
    v_mul_u32_u24 v46, {AST}, v45
    v_add_u32 v46, v46, v{SIDX}
    K_conv:
    """)
    st(5)
    poll_check("s", WS_FLG + 4096, FS)
    a("s_waitcnt vmcnt(0) lgkmcnt(0)\ns_barrier")
    rec_loads()
    a(f"""
    s_mov_b64 exec, 1
    buffer_store_dword v{ONE}, off, s[12:15], s97 sc1
    s_mov_b64 exec, -1
    """)
    st(6)
    PL = 156
    wa = [x for x in ca if x.startswith("ds_")]
    a(f"s_cmp_eq_u32 s{sSET}, 0\ns_cbranch_scc1 K_tab\ns_mov_b64 exec, s[92:93]")
    for t in range(4):
        a(f"ds_write_b128 v46, v[48:51] offset:{ATAB+128*t+64}")
    a("K_tab:\ns_mov_b64 exec, -1")
    a(f"""
    s_lshl_b32 s50, s{sTILE}, 7
    s_add_u32 s51, s50, {ATAB}
    v_add_u32 v{TC}, s51, v91
    v_and_b32 v90, 7, v2
    v_xor_b32 v90, v90, v84
    v_lshl_add_u32 v{OF0}, v90, 4, s50
    v_xor_b32 v{OF1}, 64, v{OF0}
    v_bfe_u32 v90, v0, 2, 2
    v_lshlrev_b32 v90, 13, v90
    v_lshl_add_u32 v90, v94, 6, v90
    v_bfe_u32 v96, v0, 5, 2
    v_xor_b32 v96, v96, v87
    v_lshl_add_u32 v90, v96, 4, v90
    v_add_u32 v3, {RING + 32768}, v90
    ds_read_b128 {ar(AU,4)}, v3
    ds_read_b128 {ar(AU+4,4)}, v3 offset:2048
    s_lshr_b32 s51, s{sTILE}, 1
    v_xor_b32 v84, s51, v2
    v_and_b32 v84, 1, v84
    v_lshlrev_b32 v{EP+1}, 4, v84
    s_mov_b32 s{s512}, 512
    s_lshl_b32 s50, s{sSET}, 12
    s_add_u32 s93, s50, {ERING}
    s_lshl_b32 s51, s{sTILE}, 8
    s_add_u32 s{sEM0}, s93, s51
    """)
    list_ptrs()
    def consts2():
        a(f"""
        v_lshl_add_u32 v3, v88, 4, v92
        ds_read_b128 {vr(SEL0,4)}, v3 offset:{ATAB + 64}
        ds_read_b128 {vr(SEL1,4)}, v3 offset:{ATAB + 96}
        v_lshrrev_b32 v90, 3, v89
        v_and_b32 v96, 1, v89
        v_lshl_add_u32 v90, v90, 1, v96
        v_and_b32 v96, 4, v89
        v_lshl_add_u32 v90, v96, 1, v90
        v_mul_u32_u24 v90, {AST}, v90
        v_lshl_add_u32 v3, v88, 4, v90
        ds_read_b128 {vr(PIND,4)}, v3 offset:{ATAB + 64}
        """)
    def consts3():
        a("s_mov_b32 s51, 0xffff0000")
        for j in range(4):
            a(f"""
            v_lshlrev_b32 v76, 16, v{WCR+j}
            v_and_b32 v77, s51, v{WCR+j}
            v_pk_mul_f32 v[76:77], v[76:77], s[94:95]
            v_cvt_pk_bf16_f32 v{WC+j}, v76, v77
            """)
        a(f"""
        v_bfe_u32 v90, v89, 1, 3
        v_xor_b32 v90, v90, v88
        v_lshlrev_b32 v90, 4, v90
        v_lshl_add_u32 v90, v89, 7, v90
        v_add_u32 v{RA[0]}, s{sRING}, v90
        v_xor_b32 v{RA[1]}, 32, v{RA[0]}
        v_lshlrev_b32 v90, 1, v89
        v_and_b32 v91, 32, v2
        v_xor_b32 v90, v90, v91
        v_lshl_add_u32 v90, v88, 9, v90
        v_add3_u32 v182, v90, s{sRING}, 64
        v_xor_b32 v84, v97, v88
        v_lshlrev_b32 v84, 4, v84
        v_and_b32 v90, 0x13, v2
        v_lshl_add_u32 v84, v90, 5, v84
        v_and_b32 v90, 4, v2
        v_lshl_add_u32 v84, v90, 6, v84
        v_and_b32 v90, 8, v2
        v_lshl_add_u32 v84, v90, 4, v84
        v_add_u32 v{EA}, s93, v84
        """)

    def classes(ks, with_masks):
        a(f"s_movk_i32 s51, {63*32}\ns_movk_i32 s50, {cmask}")
        for k in ks:
            a(f"v_lshrrev_b32 v{CA+k}, 9, v{REC+k}")
            a(f"v_and_b32 v{CA+k}, s50, v{CA+k}")
            if with_masks:
                a(f"v_cmp_gt_u32 {sr(sM+2*k,2)}, s51, v{CA+k}")

    PW, SW = 7, 4
    def sort(first):
        tg = "a" if first else "b"
        a(f"""
        v_mov_b32 v{T+1}, 8
        v_lshlrev_b32 v{T}, 5, v2
        """)
        if first:
            a("s_waitcnt vmcnt(1)")
            st(7)
        else:
            a(f"""
            v_mov_b32 v{T+2}, 0
            s_waitcnt vmcnt(0) lgkmcnt(0)
            s_barrier
            s_mov_b64 exec, s[56:57]
            ds_write_b32 v{T+2}, v{T+1} offset:{62*32}
            s_mov_b64 exec, -1
            """)
        classes(range(8), first)
        for k in range(8):
            a(f"s_mov_b64 exec, {sr(sM+2*k,2)}")
            a(f"ds_add_rtn_u32 v{RK+k}, v{CA+k}, v{T+1}")
        a(f"s_mov_b64 exec, -1\ns_movk_i32 s50, {AST*4}")
        hi, lo, ew = [], [], []
        for k in range(8):
            e = EN + 2*k
            hi += [f"v_lshrrev_b32 v{e+1}, 20, v{REC+k}", f"v_add_lshl_u32 v{e+1}, v{e+1}, v{PB}, 5"]
            lo += [f"v_and_b32 v{e}, 0x3fff, v{REC+k}", f"v_and_b32 v3, 0xfc000, v{REC+k}", f"v_mad_u32_u24 v{e}, v3, s50, v{e}"]
            ew += [f"v_and_b32 v3, 28, v{CA+k}", f"v_cmp_gt_u32 vcc, s60, v3",
                   f"s_and_b64 exec, vcc, {sr(sM+2*k,2)}", f"buffer_load_dword v{SLEN}, v{e+1}, s[16:19], 0 offen",
                   "s_mov_b64 exec, -1"]
        if not (first and opt.get("ewarm", 2)):
            ew = []
        c, W1, U, n, I, X, L, Z = 116, 124, 132, 136, 140, 144, 148, 152
        Tt = lambda i: W1 + 2*i
        Dd = lambda i: W1 + 2*i + 1
        t0, t1, run = T+2, T+3, T+4
        emit(hi + ew[:20])
        a(f"""
        s_cmp_eq_u32 s{sW}, {SW}
        s_waitcnt lgkmcnt(0)
        s_barrier
        s_cbranch_scc1 K_scan{tg}
        """)
        emit(ew[20:])
        if first:
            a(f"s_cmp_lg_u32 s{sSET}, 0\ns_cbranch_scc1 K_noa")
            emit(wa[:4] + ["s_mov_b64 exec, s[90:91]"] + wa[4:])
            a("s_mov_b64 exec, -1\nK_noa:")
        emit(lo)
        if first and not opt.get("ppos", 0):
            a(f"""
            s_cmp_lg_u32 s{sW}, {PW}
            s_cbranch_scc1 K_scanned{tg}
            s_mov_b32 s50, {WS_FLG}
            buffer_load_dwordx4 {vr(PL,4)}, v{FS}, s[12:15], s50 offen sc1
            """)
        a(f"""
        s_branch K_scanned{tg}
        K_scan{tg}:
        ds_read_b128 {vr(c,4)}, v{T}
        ds_read_b128 {vr(c+4,4)}, v{T} offset:16
        s_setprio 1
        s_mov_b32 s51, 0xffe0ffe0
        s_waitcnt lgkmcnt(0)
        v_readlane_b32 s{sMORE}, v{c}, 62
        v_writelane_b32 v{c}, 0, 62
        """)
        for r in range(1, 8):
            a(f"v_add_u32 v{c+r}, v{c+r-1}, v{c+r}")
        for i in range(4):
            a(f"v_lshl_or_b32 v{Dd(i)}, v{c+2*i+1}, 16, v{c+2*i}")
        for i in range(4):
            a(f"v_add_u32 v{U+i}, 0x001f001f, v{Dd(i)}")
        for i in range(4):
            a(f"v_and_b32 v{U+i}, s51, v{U+i}")
        for i in range(4):
            a(f"v_lshlrev_b32 v{n}, 16, v{U}" if i == 0 else f"v_alignbit_b32 v{n+i}, v{U+i}, v{U+i-1}, 16")
        for i in range(4):
            a(f"v_sub_u32 v{I+i}, v{U+i}, v{n+i}")
        steps = [("row_shr:1", "0xf"), ("row_shr:2", "0xf"), ("row_shr:4", "0xf"), ("row_shr:8", "0xf"),
                 ("row_bcast:15", "0xa"), ("row_bcast:31", "0xc")]
        for ctl, m_ in steps:
            for i in range(4):
                a(f"v_add_u32_dpp v{I+i}, v{I+i}, v{I+i} {ctl} row_mask:{m_} bank_mask:0xf")
        side = [f"v_sub_u32 v{n+i}, v{U+i}, v{n+i}" for i in range(4)] + [f"v_sub_u32 v{X+i}, v{I+i}, v{n+i}" for i in range(4)]
        if first:
            a(f"""
            v_add_u32 v{t0}, v{I}, v{I+1}
            v_add3_u32 v{t0}, v{t0}, v{I+2}, v{I+3}
            v_add_u32_sdwa v{t0}, v{t0}, v{t0} {SDW} src0_sel:WORD_0 src1_sel:WORD_1
            v_lshrrev_b32 v{t1}, 16, v{U+3}
            v_readlane_b32 s50, v{t0}, 63
            v_sub_u32 v{t0}, v{t0}, v{t1}
            v_lshlrev_b32 v{t1}, 1, v{t0}
            v_cmp_gt_u32 vcc, s50, v{t1}
            v_sub_u32 v{t1}, s50, v{t0}
            v_add_u32 v{t0}, 0xff, v{t0}
            v_add_u32 v{t1}, 0xff, v{t1}
            s_bcnt1_i32_b64 s50, vcc
            v_lshrrev_b32 v{t0}, 8, v{t0}
            s_max_u32 s50, s50, 18
            v_lshrrev_b32 v{t1}, 8, v{t1}
            s_min_u32 s50, s50, 32
            v_lshl_add_u32 v{t0}, v{t0}, 1, -1
            s_sub_u32 s51, s50, 1
            v_lshlrev_b32 v{t1}, 1, v{t1}
            v_max_i32 v{t0}, v{t0}, v{t1}
            """)
            emit(side[:4])
            a(f"""
            v_readlane_b32 s56, v{t0}, s50
            v_readlane_b32 s57, v{t0}, s51
            s_cmp_le_i32 s56, s57
            s_cselect_b32 s{sVS}, s50, s51
            """)
            emit(side[4:])
        else:
            emit(side)
        for i in range(4):
            a(f"v_readlane_b32 s{84+i}, v{I+i}, 63")
        for i in range(4):
            a(f"v_readlane_b32 s{80+i}, v{X+i}, s{sVS}")
        a(f"v_cmp_le_u32 vcc, s{sVS}, v2")
        for i in range(4):
            a(f"v_sub_u32 v{Dd(i)}, v{U+i}, v{Dd(i)}")
        for i in range(4):
            a(f"v_mov_b32 v{L+i}, s{80+i}")
        for i in range(4):
            a(f"v_sub_u32 v{Z+i}, s{84+i}, v{L+i}")
            a(f"v_cndmask_b32 v{U+i}, 0, v{L+i}, vcc")
        a(f"v_mov_b32 v{t0}, {hex(LIST * 0x10001)}\nv_mov_b32 v{t1}, {hex((LIST + LSET) * 0x10001)}")
        for i in range(4):
            a(f"v_cndmask_b32 v{L+i}, v{L+i}, v{Z+i}, vcc")
        a(f"v_cndmask_b32 v{run}, v{t0}, v{t1}, vcc\ns_mov_b32 s51, 0x03020302")
        for i in range(4):
            a(f"v_lshlrev_b32 v{Tt(0)}, 16, v{Dd(0)}" if i == 0 else f"v_alignbit_b32 v{Tt(i)}, v{Dd(i)}, v{Dd(i-1)}, 16")
            a(f"v_sub_u32 v{X+i}, v{X+i}, v{U+i}")
        a(f"ds_write_b128 v{T}, {vr(W1,4)} offset:{TW1}\nds_write_b128 v{T}, {vr(W1+4,4)} offset:{TW1+16}")
        for i in range(4):
            a(f"v_lshl_add_u32 v{t0}, v{L+i}, 16, v{run}")
            a(f"v_pk_min_u16 v{Z+i}, v{n+i}, 1 op_sel_hi:[1,0]")
            a(f"v_add_u32 v{t1}, v{t0}, v{L+i}")
            a(f"v_add_u32 v{X+i}, v{X+i}, v{t0}")
            a(f"v_perm_b32 v{run}, v{t1}, v{t1}, s51")
        for i in range(4):
            a(f"v_add_u32 v{I+i}, v{X+i}, v{n+i}")
            a(f"v_sub_u32 v{c+2*i}, v{X+i}, v{Tt(i)}")
        a(f"v_readlane_b32 s56, v{run}, 0\nv_readlane_b32 s57, v{run}, 63")
        for i in range(4):
            a(f"v_pk_mul_lo_u16 v{Z+i}, v{Z+i}, v{I+i}")
            a(f"v_lshrrev_b32 v{c+2*i+1}, 16, v{c+2*i}")
        a(f"v_and_b32 v{t0}, 0xffff, v{Z}\ns_movk_i32 s51, {TRASH}")
        for r in range(1, 8):
            a(f"v_sub_u16_sdwa v{c+r}, v{t0}, v{W1+r} dst_sel:WORD_1 dst_unused:UNUSED_PRESERVE src0_sel:WORD_0 src1_sel:WORD_0")
            if r < 7:
                a(f"v_max_u32_sdwa v{t0}, v{t0}, v{Z+r//2} {SDW} src0_sel:DWORD src1_sel:WORD_{r % 2}")
        a(f"""
        v_writelane_b32 v{c}, s51, 62
        ds_write_b128 v{T}, {vr(c,4)} offset:{TW0}
        ds_write_b128 v{T}, {vr(c+4,4)} offset:{TW0+16}
        """)
        a(f"""
        s_pack_hh_b32_b16 s50, s56, s57
        s_sub_u32 s50, s50, {hex((LIST - 255) + ((LIST + LSET - 255) << 16))}
        v_mov_b32 v{Z}, s50
        v_mov_b32 v{Z+1}, s{sVS}
        v_mov_b32 v{Z+2}, s{sMORE}
        ds_write_b96 v{T+1}, {vr(Z,3)} offset:{63*32 - 8}
        s_setprio 0
        s_waitcnt lgkmcnt(0)
        K_scanned{tg}:
        s_cmp_lg_u32 s{sW}, {SW}
        s_barrier
        ds_read_b96 {vr(Z,3)}, v{T+1} offset:{63*32 - 8}
        """)
        if first:
            st(8)
        for k in range(8):
            a(f"ds_read2st64_b32 {vr(BB+2*k,2)}, v{CA+k} offset0:{TW0//256} offset1:{TW1//256}")
        a(f"s_cbranch_scc1 K_rest{tg}\ns_movk_i32 s50, {AST*4}")
        emit(lo + ew[20:])
        a(f"""
        K_rest{tg}:
        """)
        if first and opt.get("ppos", 0):
            a(f"""
            s_cmp_lg_u32 s{sW}, {PW}
            s_cbranch_scc1 K_nop2
            s_mov_b32 s50, {WS_FLG}
            buffer_load_dwordx4 {vr(PL,4)}, v{FS}, s[12:15], s50 offen sc1
            K_nop2:
            """)
        a(f"""
        s_waitcnt lgkmcnt(8)
        v_readfirstlane_b32 s50, v{Z}
        v_readfirstlane_b32 s{sVS}, v{Z+1}
        v_readfirstlane_b32 s{sMORE}, v{Z+2}
        s_bfe_u32 s56, s50, {hex(8 | 8 << 16)}
        s_lshr_b32 s57, s50, 24
        s_max_u32 s57, s57, 1
        s_max_u32 s58, s56, s57
        s_cmp_le_u32 s58, {LIMIT // 256}
        s_cbranch_scc0 K_over
        s_sub_u32 s59, s58, {1 if opt.get("half", 1) else 0}
        s_max_u32 s59, s59, s57
        s_sub_u32 s{sXB}, s58, s59
        s_cmp_eq_u32 s{sSET}, 0
        s_cselect_b32 s{sS}, s58, s59
        """)
        for k0 in (0, 4):
            a(f"s_waitcnt lgkmcnt({4 - k0})")
            for k in range(k0, k0 + 4):
                a(f"v_cmp_lt_u32_sdwa {sr(80+2*(k % 4),2)}, v{RK+k}, v{BB+2*k+1} src0_sel:DWORD src1_sel:WORD_0")
                a(f"v_lshrrev_b32 v{BB+2*k+1}, 16, v{BB+2*k}")
            for k in range(k0, k0 + 4):
                a(f"v_cndmask_b32 v{BB+2*k}, v{BB+2*k}, v{BB+2*k+1}, {sr(80+2*(k % 4),2)}")
                a(f"v_add_u32_sdwa v{RK+k}, v{RK+k}, v{BB+2*k} {SDW} src0_sel:DWORD src1_sel:WORD_0")
        a(f"""
        s_or_b32 s50, s58, s59
        s_bitcmp1_b32 s50, 0
        s_cbranch_scc0 K_even{tg}
        s_or_b32 s50, s58, 1
        s_or_b32 s51, s59, 1
        s_lshl_b32 s50, s50, 8
        s_lshl_b32 s51, s51, 8
        s_add_u32 s50, s50, {LIST - 256}
        s_add_u32 s51, s51, {LIST + LSET - 256}
        s_movk_i32 s56, 256
        """)
        for k in range(8):
            a(f"""
            v_subrev_u32 v{BB}, s50, v{RK+k}
            v_subrev_u32 v{BB+1}, s51, v{RK+k}
            v_min3_u32 v{BB}, v{BB}, v{BB+1}, s56
            v_and_b32 v{BB}, 0xf0, v{BB}
            v_add_u32 v{RK+k}, v{RK+k}, v{BB}
            """)
        a(f"K_even{tg}:")
        for k in range(8):
            a(f"s_mov_b64 exec, {sr(sM+2*k,2)}")
            a(f"ds_write_b64 v{RK+k}, {vr(EN+2*k,2)}")
        a("s_mov_b64 exec, -1")

    def idx_reads(blk, sub):
        o = 128*blk + 4*sub
        return [f"ds_read2_b32 {vr(RW,2)}, v{LI} offset0:{o} offset1:{o+16}",
                f"ds_read2_b32 {vr(RW+2,2)}, v{LI} offset0:{o+32} offset1:{o+48}"]
    mads = [f"v_mad_u32_u16 v{IX+t}, v{RW+t}, s{s512}, v{OF1 if t % 2 else OF0}" for t in range(4)]
    def dma(slot, mid):
        o = []
        for t in range(4):
            o += [f"s_add_u32 m0, s{sRING}, {4096*slot + 1024*t}"] + mid[t] + \
                 [f"buffer_load_dwordx4 v{IX+t}, s[24:27], 0 offen {tfl} lds"]
        return o
    def edma(step, src=EP):
        return [f"s_add_u32 m0, s{sEM0}, {1024*(step % 4)}", "s_mov_b64 exec, 0xffff", f"v_or_b32 v{src}, v{src}, v{EP+1}",
                f"buffer_load_dwordx4 v{src}, s[16:19], 0 offen {opt.get('eflag','')} lds", "s_mov_b64 exec, -1"]
    def eid_read(step, dst=None):
        return [f"ds_read_b32 v{dst or EP}, v{LE} offset:{512*(step // 2) + 16*(step % 2) + 4}"]
    def pn_read(blk):
        return [f"ds_read2_b32 {vr(TA0,2)}, v{LP} offset0:{128*blk} offset1:{128*blk+32}"]
    ta = [f"v_add_u32_sdwa v{x}, v{x}, v{TC} {SDW} src0_sel:WORD_1 src1_sel:DWORD" for x in (TA0, TA1)]
    def reads(step):
        s = step % 2
        o = [f"ds_read_b128 {vr(OE,4)}, v{EA} offset:{1024*(step % 4)}"]
        o += [f"ds_read_b128 {vr(r,4)}, v{RA[i]} offset:{4096*s}" for i, r in enumerate((OB0, OB1))]
        o += [f"ds_read_u16_d16_hi v{H[s]+r}, v{HA[2*((r//4) % 2) + (r % 4)//2]} offset:{4096*s + 128*(8*(r//4) + r % 4)}"
              for r in range(16)]
        return o
    def tr_reads(blk):
        i = IND[blk % 2]
        return [f"ds_read_b64_tr_b16 {vr(OA,2)}, v{TA0}", f"ds_read_b64_tr_b16 {vr(OA+2,2)}, v{TA1}",
                f"ds_read_b64_tr_b16 {vr(i,2)}, v{TA0} offset:64", f"ds_read_b64_tr_b16 {vr(i+2,2)}, v{TA1} offset:64"]
    mct = f"{MF} {vr(CT,16)}, {vr(PIND,4)}, {vr(OA,4)}, 0"
    def mf_g(g):
        d = vr(g, 16)
        return [f"{MF} {d}, {vr(OE,4)}, {vr(WC,4)}, {vr(CT,16)}",
                f"{MF} {d}, {vr(OB0,4)}, {vr(SEL0,4)}, {d}",
                f"{MF} {d}, {vr(OB1,4)}, {vr(SEL1,4)}, {d}"]
    def mf_red(i):
        return [f"{MF} {ar(ACD,16)}, {vr(IND[i],4)}, {vr(BD,4)}, {ar(ACD,16)}",
                f"{MF} {ar(ACN,16)}, {vr(IND[i],4)}, {vr(BN,4)}, {ar(ACN,16)}"]
    cvts = [f"v_cvt_pk_bf16_f32 v{BD+j}, v{AS+2*j}, v{AS+2*j+1}" for j in range(4)] + \
           [f"v_cvt_pk_bf16_f32 v{BN+j}, v{AM+2*j}, v{AM+2*j+1}" for j in range(4)]
    def pk(op, d, *s):
        return f"v_pk_{op}_f32 {vr(d,2)}, " + ", ".join(x if isinstance(x, str) else vr(x, 2) for x in s)
    def pk2(k):
        o = []
        for dst, src in ((AS, SS), (AM, MM)):
            for j in range(4):
                if k % 2 == 0:
                    o.append(pk("mul", dst+2*j, src+2*j, RR+2*j))
                else:
                    o.append(pk("fma", dst+2*j, src+2*j, RR+2*j, dst+2*j))
        return o
    RE = 183
    cut = opt.get("cut", 1)
    def load_seg(u):
        side = eid_read(u + 5, RE) + idx_reads(*[(1, 1), (0, 0), (0, 1), (1, 0)][u])
        side += pn_read(u // 2) if u % 2 == 0 else tr_reads((u + 1) // 2)
        rd = reads(u + 1)
        va = mads + [f"v_or_b32 v{EP}, v{RE}, v{EP+1}"] + (ta if u % 2 == 0 else [])
        adv = {0: LI, 2: LP, 3: LE}.get(u)
        if adv:
            va = va + [f"v_add_u32 v{adv}, 0x400, v{adv}"]
        ed = [x for x in edma(u) if not x.startswith("v_or")]
        n_ = -(-len(side) // 4)
        dd = dma(u % 2, [side[n_*t:n_*t+n_] for t in range(4)])
        mode = opt.get("lmode", 0)
        if mode == 0:
            o = dd + ed + [f"s_waitcnt vmcnt({opt.get('vmtest', 6)})"]
        else:
            o = ed + dd + ["s_waitcnt vmcnt(5)"]
        o += rd + ["s_waitcnt lgkmcnt(15)"] + va
        if cut:
            o += [f"s_cmp_lt_i32 s{sK}, s{sLUT}", "s_cselect_b32 s26, s14, 0"]
        o += [f"s_add_u32 s{sK}, s{sK}, 1", f"s_cmp_ge_u32 s{sK}, s{sS}"]
        return o + ["s_setprio 0", "s_waitcnt lgkmcnt(0)", "s_barrier"]
    def comp_seg(u, first=False):
        g, gn, h = G[u % 2], G[(u + 1) % 2], H[u % 2]
        ex = [f"v_exp_f32 v{g+r}, v{g+r}" for r in range(16)]
        mg = mf_g(gn)
        if first:
            o = [mg[0]] + ex[:3] + [mg[1]] + ex[3:6] + [mg[2]] + ex[6:]
        elif u % 2 == 0:
            mr = mf_red((u // 2 - 1) % 2)
            o = pk2(u - 1) + [mg[0]] + cvts[:6] + [mg[1]] + cvts[6:] + ex[:2] + [mg[2]] + ex[2:5] + \
                [mr[0]] + ex[5:8] + [mr[1]] + ex[8:]
        else:
            o = pk2(u - 1) + [mct] + ex[:3] + [mg[0]] + ex[3:6] + [mg[1]] + ex[6:9] + [mg[2]] + ex[9:]
        for j in range(4):
            b_ = g + 4*j
            o += [pk("fma", x, x, sr(sCC, 2), sr(sCC, 2)) + " clamp" for x in (b_, b_+2)]
        for j in range(4):
            b_, hh = g + 4*j, h + 4*j
            o += [pk("mul", RR+2*j, b_, b_+2), pk("mul", MM+2*j, hh, b_+2), f"v_rcp_f32 v{RR+2*j}, v{RR+2*j}",
                  pk("add", SS+2*j, b_, b_+2), f"v_rcp_f32 v{RR+2*j+1}, v{RR+2*j+1}", pk("fma", MM+2*j, hh+2, b_, MM+2*j)]
        return o + ["s_setprio 1", "s_barrier"]

    one = lambda l: [[x] for x in l]
    def fill_a():
        a(f"s_mov_b32 s24, s4\ns_mov_b32 s25, s5\ns_mov_b32 s26, s14\ns_sub_u32 s{sLUT}, s{sS}, 3")
        emit(eid_read(0) + eid_read(1, 1) + idx_reads(0, 0) + pn_read(0))
        a("s_waitcnt lgkmcnt(0)")
        emit(edma(0) + edma(1, 1) + dma(0, one(mads)))
        emit(eid_read(2) + idx_reads(0, 1) + ta)
    def fill_b():
        a("s_waitcnt lgkmcnt(0)")
        emit(edma(2) + dma(1, one(mads)) + eid_read(3) + idx_reads(1, 0))
        a(f"v_add_u32 v{LP}, 0x200, v{LP}\ns_mov_b32 s{sK}, 0")
    sort(True)
    a("K_sorted:")
    consts2()
    if opt.get("c3", 1) == 2:
        consts3()
    poll_check("t", WS_FLG, FS, PW)
    a("s_waitcnt lgkmcnt(0)\ns_barrier")
    st(9)
    if opt.get("c3", 1) == 2:
        fill_a()
    elif opt.get("c3", 1):
        a(f"s_cmp_eq_u32 s{sSET}, 0\ns_cbranch_scc1 K_f0")
        consts3()
        a("K_f0:")
        fill_a()
        a(f"s_cmp_lg_u32 s{sSET}, 0\ns_cbranch_scc1 K_f1")
        consts3()
        a("K_f1:")
    else:
        fill_a()
        consts3()
    st(13)
    for i in range(4):
        a(f"v_mov_b32 v{108+i}, 0")
    a(f"""
    s_sub_u32 s51, {N*256}, s{sXO}
    s_min_u32 s34, s51, {SB*256}
    s_add_u32 s32, s10, s{sXO}
    s_addc_u32 s33, s11, 0
    {MF} {ar(ACD,16)}, v[108:111], v[108:111], 0
    s_mov_b32 s{sCC}, {hex(f32(2.0**-SHIFT))}
    s_mov_b32 s{sCC+1}, {hex(f32(2.0**-SHIFT))}
    {MF} {ar(ACN,16)}, v[108:111], v[108:111], 0
    K_fillb:
    v_mov_b32 v{HA[0]}, v182
    v_xor_b32 v{HA[1]}, 16, v182
    v_xor_b32 v{HA[2]}, 64, v182
    v_xor_b32 v{HA[3]}, 0x50, v182
    """)
    emit(tr_reads(0))
    fill_b()
    a(f"{mct}\ns_waitcnt lgkmcnt(0)")
    emit(mads)
    st(14)
    stag = opt.get("stag", 1)
    if stag:
        a(f"s_cmp_eq_u32 s{sSET}, 0\ns_cbranch_scc1 K_lead\ns_barrier\nK_lead:")
    a("s_waitcnt vmcnt(5)\ns_barrier")
    r0 = reads(0)
    emit(r0[:11] + edma(3) + r0[11:18])
    a("s_waitcnt lgkmcnt(15)")
    emit(mf_g(G[0]) + r0[18:] + eid_read(4))
    a(f"s_waitcnt lgkmcnt(0)\nv_or_b32 v{EP}, v{EP}, v{EP+1}")
    st(10)
    if stag:
        a("s_setprio 1\ns_barrier")
    else:
        a(f"""
        s_cmp_eq_u32 s{sSET}, 0
        s_barrier
        s_cbranch_scc1 K_lead
        s_barrier
        s_setprio 1
        K_lead:
        """)
    emit(load_seg(0) + comp_seg(0, first=True))
    a("s_cbranch_scc1 K_drain0\ns_branch K_loop1")
    a.l.append(".p2align 6")
    a("K_loop:")
    for u in range(4):
        if u == 1:
            a("K_loop1:")
        emit(load_seg(u) + comp_seg(u))
        a(f"s_cbranch_scc1 K_drain{0 if u < 2 else ''}" if u < 3 else "s_cbranch_scc0 K_loop")
    a("s_branch K_drain\nK_drain0:")
    emit([f"v_mov_b32 v{IND[1]+j}, v{IND[0]+j}" for j in range(4)])
    a(f"""
    K_drain:
    s_setprio 0
    s_cmp_lg_u32 s{sSET}, s{sXB}
    s_cbranch_scc1 K_done
    s_barrier
    K_done:
    s_bitcmp1_b32 s{sS}, 0
    s_cbranch_scc1 K_half
    """)
    emit(pk2(1))
    a("K_last:")
    emit(cvts + ["s_nop 1"] + mf_red(1))
    st(11)
    a(f"""
    s_cmp_lg_u32 s{sMORE}, 0
    s_cbranch_scc1 K_again
    v_and_b32 v41, 31, v2
    s_and_b32 s50, s{sW}, 1
    s_lshl_b32 s50, s50, 7
    s_add_u32 s50, s50, s{sRING}
    v_lshl_add_u32 v42, v41, 2, s50
    v_and_b32 v40, 32, v2
    v_lshl_add_u32 v42, v40, 5, v42
    s_mov_b32 s50, {hex(f32(1e-6 * 2.0**SHIFT))}
    s_mov_b32 s51, s50
    s_mov_b32 s56, 0xffff0000
    """)
    Dn, Nn, Uu = NV + ACD, NV + ACN, NV + AU
    un = []
    for k in range(8):
        un += [f"v_lshlrev_b32 v{64+2*k}, 16, v{XR+k}", f"v_and_b32 v{65+2*k}, s56, v{XR+k}",
               f"v_lshlrev_b32 v{96+2*k}, 16, v{Uu+k}", f"v_and_b32 v{97+2*k}, s56, v{Uu+k}"]
    emit(un[:8])
    for r in range(0, 16, 2):
        a(pk("add", Dn+r, Dn+r, "s[50:51]"))
    for r in range(16):
        a(f"v_rcp_f32 v{Dn+r}, v{Dn+r}")
    a("s_waitcnt vmcnt(0)")
    for r in range(0, 16, 2):
        a(pk("mul", Dn+r, Dn+r, Nn+r))
        row = 8*(r//4) + r % 4
        a(f"ds_write2st64_b32 v42, v{Dn+r}, v{Dn+r+1} offset0:{row} offset1:{row+1}")
    emit(un[8:])
    a(f"""
    v_lshrrev_b32 v44, 4, v0
    v_bfe_u32 v45, v0, 2, 2
    v_lshlrev_b32 v45, 13, v45
    v_lshl_add_u32 v45, v44, 8, v45
    v_and_b32 v46, 7, v0
    v_lshl_add_u32 v45, v46, 5, v45
    v_add_u32 v45, {RING}, v45
    v_add_u32 v46, 0x8000, v45
    v_cmp_gt_u32 vcc, s{sVS}, v44
    v_lshlrev_b32 v43, 4, v0
    s_movk_i32 s51, 8192
    v_cndmask_b32 v45, v46, v45, vcc
    s_waitcnt lgkmcnt(0)
    s_barrier
    ds_read_b128 v[48:51], v45
    ds_read_b128 v[52:55], v45 offset:16
    ds_read_b128 v[56:59], v46
    ds_read_b128 v[60:63], v46 offset:16
    """)
    for k in range(8):
        a(pk("add", 96+2*k, 96+2*k, 64+2*k))
    for i in range(2):
        a(f"s_waitcnt lgkmcnt({2-2*i})")
        for j in range(0, 8, 2):
            a(pk("add", 48+8*i+j, 48+8*i+j, 96+8*i+j))
        for j in range(8):
            a(f"v_max_f32 v{48+8*i+j}, v{64+8*i+j}, v{48+8*i+j}")
        for j in range(4):
            a(f"v_cvt_pk_bf16_f32 v{80+4*i+j}, v{48+8*i+2*j}, v{48+8*i+2*j+1}")
        a(f"buffer_store_dwordx4 {vr(80+4*i,4)}, v43, s[32:35], {'s51' if i else '0'} offen {opt.get('ost','sc1')}")
    if st.on:
        a("s_waitcnt vmcnt(0)")
        a(f"v_writelane_b32 v205, s{sS}, 15")
    st(12)
    st.flush()
    a("K_end:\ns_endpgm\nK_half:")
    emit(pk2(0))
    a("s_branch K_last")
    a(f"""
    K_clr:
    s_waitcnt lgkmcnt(0)
    s_mov_b32 s20, s52
    s_mov_b32 s21, s53
    s_mov_b32 s12, s78
    s_mov_b32 s13, s79
    s_mov_b32 s14, {WS_END}
    s_mov_b32 s15, 0x20000
    s_mov_b32 s28, s76
    s_mov_b32 s29, s77
    s_movk_i32 s30, 256
    s_mov_b32 s31, 0x20000
    v_mov_b32 v8, 0
    v_mov_b32 v9, 0
    v_mov_b32 v10, 0
    v_mov_b32 v11, 0
    v_lshlrev_b32 v4, 7, v2
    s_mov_b32 s50, {WS_FLG}
    buffer_store_dwordx4 v[8:11], v4, s[12:15], s50 offen sc1
    """)
    emit(xdma(XP, SB*256) + xdma(ERING, 0))
    a(f"""
    v_and_b32 v12, 4, v2
    v_cmp_eq_u32 vcc, 0, v12
    v_mov_b32 v13, 0x71807180
    v_and_b32 v5, 0x1f0, v1
    v_cndmask_b32 v12, 0, v13, vcc
    v_mov_b32 v13, v12
    v_mov_b32 v14, v12
    v_mov_b32 v15, v12
    s_mov_b32 s50, {DUMMY*512}
    buffer_store_dwordx4 v[12:15], v5, s[12:15], s50 offen sc1
    s_branch K_np1
    K_pub:
    s_mov_b64 exec, 1
    s_waitcnt vmcnt({5 + nw})
    buffer_store_dword v{ONE}, off, s[28:31], 0 sc1
    s_mov_b64 exec, -1
    s_waitcnt vmcnt({nw + 1})
    s_branch K_np2
    """)
    koff = sum(o << (8*i) for i, o in enumerate((40, 64, 32, 56, 48, 88, 8, 72)))
    a(f"""
    K_prod:
    s_lshl_b32 s50, s{sW}, 3
    s_mov_b32 s92, {hex(koff & 0xffffffff)}
    s_mov_b32 s93, {hex(koff >> 32)}
    s_lshr_b64 s[92:93], s[92:93], s50
    s_and_b32 s92, s92, 0xff
    s_load_dwordx2 s[96:97], s[0:1], s92
    s_mov_b32 s20, s52
    s_mov_b32 s21, s53
    v_lshlrev_b32 v4, 2, v0
    v_mov_b32 v62, 0
    ds_write_b32 v4, v62
    v_mov_b32 v40, -1
    v_mov_b32 v41, -1
    v_mov_b32 v42, -1
    v_mov_b32 v43, -1
    """)
    for i in range(4):
        a(f"ds_write_b128 v1, v[40:43] offset:{IMG + 8192*i}")
    a(f"""
    v_mov_b32 v5, 128
    v_writelane_b32 v5, 16, 4
    s_mov_b32 s50, {WS_END // 256}
    v_writelane_b32 v5, s50, 5
    s_mov_b32 s50, {E*32 // 256}
    v_writelane_b32 v5, s50, 6
    s_mov_b32 s50, {N}
    v_writelane_b32 v5, s50, 7
    s_and_b32 s93, s2, 0xf0
    v_readlane_b32 s50, v5, s{sW}
    v_add_u32 v4, s93, v85
    s_waitcnt lgkmcnt(0)
    v_mul_u32_u24 v4, s50, v4
    s_barrier
    """)
    wm = 0
    emit(xdma(ERING, 0))
    a(f"""
    s_mov_b64 exec, 0xffff
    global_load_dword v60, v4, s[96:97] sc1
    s_mov_b64 exec, -1
    s_sub_u32 s90, s82, s88
    v_add_u32 v4, 8192, v1
    v_cmp_gt_u32 s[92:93], s90, v4
    s_mov_b32 s91, {-SB & 0xffffffff}
    v_mov_b32 v6, 4
    v_lshlrev_b32 v7, 22, v0
    v_mov_b32 v36, 0
    v_mov_b32 v37, 0
    v_mov_b32 v38, 0
    v_mov_b32 v39, 0
    """)
    for k in range(8):
        a(f"v_add_u32 v{68+k}, {hex(((2048*(k//4) + k % 4) << 20) & 0xffffffff)}, v7")
    for g in range(2):
        a(f"s_waitcnt vmcnt({6 - g + wm})")
        if g == 0:
            st(1)
        for j in range(4):
            d, t = 8 + 4*g + j, 24 + 4*g + j
            a(f"v_mul_u32_u24 v{44+4*g+j}, 21400, v{d}")
            a(f"v_lshrrev_b32 v{44+4*g+j}, 20, v{44+4*g+j}")
            a(f"v_lshlrev_b32 v{t}, 2, v{44+4*g+j}")
        if g:
            a("s_mov_b64 exec, s[92:93]")
        for j in range(4):
            a(f"ds_add_rtn_u32 v{32+4*g+j}, v{24+4*g+j}, v6")
    a(f"""
    s_mov_b64 exec, -1
    s_lshl_b32 s56, s62, 7
    s_add_u32 s56, s56, {WS_SLOT}
    s_add_u32 s57, s56, {1 << 20}
    s_add_u32 s58, s56, {2 << 20}
    s_add_u32 s59, s56, {3 << 20}
    v_lshrrev_b32 v5, 3, v0
    v_and_b32 v61, 0x70, v1
    v_lshl_add_u32 v61, v5, 14, v61
    s_mov_b32 s4, s78
    s_mov_b32 s5, s79
    s_mov_b32 s12, s78
    s_mov_b32 s13, s79
    s_mov_b32 s14, {WS_END}
    s_mov_b32 s15, 0x20000
    s_waitcnt vmcnt(3)
    """)
    wp = wdma()
    for k in range(8):
        s_, d = 16 + k, 8 + k
        a(f"v_mad_i32_i24 v{d}, v{44+k}, s91, v{d}")
        a(f"v_and_b32 v4, 7, v{s_}")
        a(f"v_lshl_or_b32 v{d}, v{d}, 3, v4")
        a(f"v_lshrrev_b32 v{s_}, 3, v{s_}")
        a(f"v_lshl_or_b32 v{d}, v{d}, 11, v{68+k}")
        a(f"v_or_b32 v{s_}, v{d}, v{s_}")
    a("s_waitcnt lgkmcnt(0)")
    for k in range(8):
        if k == 4:
            a("s_mov_b64 exec, s[92:93]")
        a(f"v_add_u32 v4, v{32+k}, v{24+k}")
        a(f"v_and_b32 v4, 0x7f, v4")
        a(f"v_lshl_add_u32 v{44+k}, v{24+k}, 5, v4")
        a(f"ds_write_b32 v{44+k}, v{16+k} offset:{IMG}")
    a(f"""
    s_mov_b64 exec, -1
    v_or3_b32 v4, v32, v33, v34
    v_or3_b32 v5, v35, v36, v37
    v_or3_b32 v4, v4, v38, v39
    v_or_b32 v4, v4, v5
    v_cmp_lt_u32 vcc, 0x7f, v4
    s_mov_b64 exec, vcc
    ds_write_b32 v62, v6 offset:1024
    s_mov_b64 exec, -1
    s_waitcnt vmcnt(1) lgkmcnt(0)
    s_barrier
    ds_read_b32 v4, v62 offset:1024
    """)
    OUTR = [8, 12, 68, 72]
    def img_reads():
        for i in range(4):
            a(f"ds_read_b128 {vr(OUTR[i],4)}, v1 offset:{IMG + 8192*i}")
    img_reads()
    a(f"""
    s_waitcnt lgkmcnt(4)
    v_readfirstlane_b32 s50, v4
    s_cmp_lg_u32 s50, 0
    s_cbranch_scc1 K_slow
    K_out:
    """)
    for i in range(4):
        a(f"s_waitcnt lgkmcnt({3-i})")
        a(f"buffer_store_dwordx4 {vr(OUTR[i],4)}, v61, s[12:15], s{56+i} offen sc1")
    st(2)
    common(64)
    common2(a)
    wb = opt.get("wbefore", 2)
    emit([ready_load] + wcdma + wp[:3*wb])
    a(f"v_add_u32 v{FX}, {ERING}, v{FX}")
    for q in range(8):
        emit(xfrag(q))
    emit(misc[:3])
    a(f"s_add_u32 s96, s97, {WS_FLG + 4096}\ns_mov_b32 s97, {OOB}\ns_waitcnt vmcnt({wb + 1})")
    ready_check("rp")
    a(f"""
    s_mov_b64 exec, 1
    s_barrier
    buffer_store_dword v{ONE}, off, s[12:15], s96 sc1
    s_mov_b64 exec, -1
    """)
    st(3)
    emit(wp[3*wb:])
    lds_reset(True)
    left = lambda q: 7 - q + (1 if q < wb else 0)
    emit([f"s_waitcnt vmcnt({left(0)})"] + misc[3:] + wfrag(0))
    for q in range(8):
        if q < 7:
            emit([f"s_waitcnt vmcnt({left(q + 1)})"] + wfrag(q + 1))
        a(f"s_waitcnt lgkmcnt({2 if q < 7 else 0})")
        emit([gm(q, 0, D1), gm(q, 1, D1)])
    a("s_branch K_join")


    a("""
    K_slow:
    v_lshlrev_b32 v5, 4, v2
    s_waitcnt lgkmcnt(0)
    ds_read_b128 v[8:11], v5
    s_waitcnt lgkmcnt(0)
    v_add_u32 v13, v8, v9
    v_add_u32 v14, v13, v10
    v_add_u32 v15, v14, v11
    v_mov_b32 v4, v15
    """)
    scan64(a, [4])
    a("""
    v_sub_u32 v40, v4, v15
    v_add_u32 v41, v40, v8
    v_add_u32 v42, v40, v13
    v_add_u32 v43, v40, v14
    ds_write_b128 v5, v[40:43] offset:2048
    """)
    for k in range(8):
        a(f"ds_read_b32 v{24+k}, v{24+k} offset:2048")
    a("s_waitcnt lgkmcnt(0)")
    for k in range(8):
        a(f"s_mov_b64 exec, {'s[92:93]' if k >= 4 else '-1'}")
        a(f"v_add_u32 v{24+k}, v{24+k}, v{32+k}")
        a(f"ds_write_b32 v{24+k}, v{16+k} offset:{STG}")
        a(f"v_cmp_gt_u32 vcc, 0x80, v{32+k}")
        a("s_mov_b64 exec, vcc")
        a(f"ds_write_b32 v{44+k}, v{16+k} offset:{IMG}")
    a(f"""
    s_mov_b64 exec, -1
    s_waitcnt lgkmcnt(0)
    s_barrier
    v_mov_b32 v16, {62 << 14}
    """)
    for j in range(4):
        a(f"""
        v_add_u32 v12, {4*j}, v5
        v_add_u32 v13, 124, v12
        v_and_b32 v13, 0x7f, v13
        v_lshl_add_u32 v13, v12, 5, v13
        v_add_u32 v14, 120, v{40+j}
        v_lshl_or_b32 v14, v14, 18, v16
        v_add_u32 v15, -124, v{8+j}
        v_cmp_lt_u32 vcc, 0x80, v{8+j}
        s_mov_b64 exec, vcc
        ds_write_b32 v13, v14 offset:{IMG}
        ds_write_b32 v{40+j}, v15 offset:{STG + 120}
        s_mov_b64 exec, -1
        """)
    a(f"""
    ds_read_b128 v[16:19], v1 offset:{STG}
    ds_read_b128 v[20:23], v1 offset:{STG + 8192}
    s_add_u32 s50, s88, {WS_REC}
    s_add_u32 s80, s4, s50
    s_addc_u32 s81, s5, 0
    s_mov_b32 s82, s90
    s_movk_i32 s50, 8192
    s_waitcnt lgkmcnt(0)
    buffer_store_dwordx4 v[16:19], v1, s[80:83], 0 offen sc1
    buffer_store_dwordx4 v[20:23], v1, s[80:83], s50 offen sc1
    """)
    img_reads()
    a("s_branch K_out")

    zero_masks = lambda ks: [f"s_mov_b64 {sr(sM+2*k,2)}, 0" for k in ks]
    a("""
    K_again:
    s_waitcnt vmcnt(0) lgkmcnt(0)
    s_barrier
    """)
    lds_reset(True)
    a(f"""
    s_cmp_eq_u32 s{sMODE}, 3
    s_cbranch_scc1 K_next
    """)
    rec_loads()
    a(f"""
    s_waitcnt vmcnt(0)
    s_cmp_eq_u32 s{sMODE}, 1
    s_cbranch_scc0 K_marks
    s_mov_b32 s{sMODE}, 2
    s_mov_b64 s[56:57], 0
    """)
    classes(range(4, 8), True)
    emit(zero_masks(range(4)))
    a(f"""
    s_branch K_resort
    K_marks:
    s_mov_b32 s{sMODE}, 3
    v_mov_b32 v84, 0
    """)
    for k in range(8):
        a(f"""
        v_bfe_u32 v85, v{REC+k}, 14, 6
        v_cmp_eq_u32 vcc, 62, v85
        s_nop 1
        v_cndmask_b32 v84, v84, v{REC+k}, vcc
        """)
    a(f"""
    s_nop 1
    v_or_b32_dpp v84, v84, v84 quad_perm:[1,0,3,2] row_mask:0xf bank_mask:0xf
    s_nop 1
    v_or_b32_dpp v84, v84, v84 quad_perm:[2,3,0,1] row_mask:0xf bank_mask:0xf
    v_cmp_ne_u32 vcc, 0, v84
    v_lshrrev_b32 v84, 20, v84
    v_add_lshl_u32 v84, v84, v{PB}, 2
    s_mov_b32 s{sSTART}, {WS_REC}
    buffer_load_dword v{SLEN}, v84, s[12:15], s{sSTART} offen sc1
    v_add_u32 v{SEG}, v84, v{SIDX}
    s_mov_b32 s{sSTART}, {WS_REC + 4 - 64}
    s_waitcnt vmcnt(0)
    v_cndmask_b32 v{SLEN}, 0, v{SLEN}, vcc
    v_min_u32 v{SLEN}, {CH*4}, v{SLEN}
    v_add_u32 v{SLEN}, 64, v{SLEN}
    K_next:
    s_add_u32 s{sSTART}, s{sSTART}, 64
    v_add_u32 v{SLEN}, -64, v{SLEN}
    """)
    rec_loads(1)
    a(f"""
    v_cmp_lt_i32 s[56:57], 64, v{SLEN}
    v_sub_u32 v84, v{SLEN}, v{SIDX}
    """)
    for k in range(4):
        a(f"v_cmp_lt_i32 {sr(sM+2*k,2)}, {4*k}, v84")
    emit(zero_masks(range(4, 8)))
    a("K_resort:")
    list_ptrs()
    sort(False)
    a(f"""
    s_cmp_eq_u32 s{sMODE}, 2
    s_cselect_b32 s{sMORE}, s{sMARK}, s{sMORE}
    s_cmp_eq_u32 s{sMODE}, 1
    s_cselect_b32 s{sMORE}, 1, s{sMORE}
    s_cbranch_scc1 K_sorted
    s_waitcnt lgkmcnt(0)
    s_barrier
    """)
    fill_a()
    a(f"""
    s_branch K_fillb
    K_over:
    s_cmp_lg_u32 s{sMODE}, 0
    s_cbranch_scc1 K_end
    s_mov_b32 s{sMODE}, 1
    s_mov_b32 s{sMARK}, s{sMORE}
    s_mov_b64 s[56:57], 0
    s_waitcnt lgkmcnt(0)
    s_barrier
    """)
    lds_reset(False)
    emit(zero_masks(range(4, 8)))
    a("s_branch K_resort\nK_codeend:")
    d = desc(name, 256, 100, 256)
    ln = f"; @launch grid=(256,1,1) block=(512,1,1) lds={LDS}\n"
    if opt.get("probe"):
        import gen
        ln = f"; @launch kernel={name} grid=(256,1,1) block=(512,1,1) lds={LDS}\n; @launch kernel=probe_kernel grid=(1,1,1) block=(64,1,1) lds=0\n"
        d += gen.gen_probe(a, opt)
    hdr = """; GatedGCN layer in one launch: each workgroup builds the table rows of its 49 nodes, half of them also
; partition a chunk of edges by destination bin; after two counted hand-offs every workgroup sorts its bin
; and runs the gate / aggregation loop.
""" + ln + '.amdgcn_target "amdgcn-amd-amdhsa--gfx950"\n.text\n'
    return hdr + a.text() + d

if __name__ == "__main__":
    opt = {}
    out = f"cdna_kernels/{NAME}.s"
    for x in sys.argv[1:]:
        k, v = x.split("=", 1)
        if k == "out":
            out = v
        else:
            opt[k] = int(v) if v.lstrip("-").isdigit() else v
    open(out, "w").write(generate(opt))
    print("wrote", out)
```

```python
import sys
from gen import (NAME, N, E, SB, CH, P, RG, DUMMY, WS_REC, WS_SLOT, WS_END, SHIFT, LOG2E, WS_STAMP, MF,
                 f32, Asm, vr, ar, sr, scan64, desc, head, Stamps)

TW0, TW1, TRASH = 2048, 4096, 6144
LIST = 7168
CAPS = 2560
LSET = CAPS * 8
ATAB = LIST + 2 * LSET
AST = 576
WCL = 77824
WS_FLG = 0xA00000
XP = ATAB
ERING = 81920
RING = 98304
LDS = RING + 65536
LIMIT = 2304 * 8
IMG, STG = 4096, 36864
SDW = "dst_sel:DWORD dst_unused:UNUSED_PAD"
OOB = 0x7000000

def generate(opt=None):
    opt = opt or {}
    a = Asm()
    name = NAME + "_kernel"
    cmask = {8: 0x7FC, 4: 0x7F8, 2: 0x7F0}[opt.get("R", 8)]
    tfl = opt.get("tfl", "sc1").replace("+", " ")
    tst = opt.get("tst", "sc1").replace("+", " ")
    head(a, name)
    st = Stamps(a, opt.get("stamp"), 205, WS_STAMP)
    SEL0, SEL1, PIND, WC, CT, RR = 4, 8, 12, 16, 84, 248
    G = [52, 68]; H = [20, 36]
    OE, RW, OB0, OB1, OA = 100, 104, 108, 112, 120
    HA = [116, 117, 118, 119]
    IND = [124, 128]
    SS, MM, AS, AM, BD, BN = 132, 140, 148, 156, 164, 168
    IX, OF0, OF1, EP = 172, 176, 177, 178
    RA = [180, 181]
    EA, LI, LE, LP, TA0, TA1, TC = 184, 185, 186, 187, 188, 189, 190
    XR = 192
    SEG, SLEN, SIDX, PB = 200, 201, 202, 203
    NV = 208
    ACD, ACN, AU = 0, 16, 32
    sW, sSET, sTILE, sBIN = 3, 36, 37, 38
    sRING, sEM0, sS, sK, sVS, sSTART, sLUT, sMORE, s512 = 39, 40, 41, 42, 43, 44, 45, 46, 47
    sCC, sM, sMODE, sMARK, sXO, sPROD, sXB = 48, 64, 7, 9, 8, 6, 61
    REC, CA, RK, BB, EN, T = 36, 44, 52, 60, 100, 76
    XF, WA, DA, SO, WCR = 100, 0, 36, 68, 164
    VW, FW, FX, FS, FR, FG, FA, FB, FU = 168, 169, 170, 171, 172, 173, 207, 204, 191
    ONE, PL = 206, 164

    def emit(lst):
        for x in lst:
            a(x)
    ar = lambda b_, n_=1: vr(NV + b_, n_)

    cw = opt.get("cw", 8)
    a("s_cmp_ge_u32 s2, 256\ns_cbranch_scc1 K_end")
    if opt.get("perm"):
        a(f"s_mul_i32 s2, s2, {opt['perm']}\ns_lshr_b32 s3, s2, 3\ns_and_b32 s3, s3, 7\ns_xor_b32 s2, s2, s3\ns_and_b32 s2, s2, 255")
    st(0)
    a(f"""
    s_load_dwordx8 s[52:59], s[0:1], 0
    s_load_dwordx16 s[64:79], s[0:1], 32
    s_getpc_b64 s[92:93]
    K_pc:
    s_and_b32 s50, s2, {0xf8 if cw == 8 else 0x78}
    s_lshl_b32 s50, s50, {0 if cw == 8 else 1}
    v_add_u32 v4, s50, v0
    v_mul_u32_u24 v4, (K_codeend-K_pc)/1024*4, v4
    v_cmp_gt_u32 vcc, {cw}, v0
    s_and_saveexec_b64 s[90:91], vcc
    s_cbranch_execz K_nocw
    global_load_dword v63, v4, s[92:93]
    K_nocw:
    s_mov_b64 exec, -1
    v_lshrrev_b32 v1, 6, v0
    v_and_b32 v2, 63, v0
    v_readfirstlane_b32 s{sW}, v1
    s_and_b32 s60, s2, 7
    s_lshr_b32 s61, s2, 3
    s_lshl_b32 s50, s60, 5
    s_add_u32 s{sBIN}, s50, s61
    v_lshrrev_b32 v84, 4, v2
    v_and_b32 v85, 15, v2
    v_bfe_u32 v3, v0, 4, 4
    v_xor_b32 v3, v3, v85
    v_lshlrev_b32 v3, 4, v3
    v_lshl_add_u32 v3, v84, 8, v3
    v_lshlrev_b32 v1, 4, v0
    s_mul_i32 s{sXO}, s{sBIN}, {SB*256}
    s_lshl_b32 s90, s{sW}, 10
    s_add_u32 s51, s{sXO}, s90
    s_add_u32 s91, s51, 8192
    s_cmp_lt_u32 s{sW}, 5
    s_cselect_b32 s91, s91, {OOB}
    s_mov_b32 s22, {N*256}
    s_mov_b32 s23, 0x20000
    v_lshrrev_b32 v86, 2, v2
    v_and_b32 v87, 3, v2
    v_lshlrev_b32 v{VW}, 4, v87
    v_lshl_add_u32 v{VW}, v86, 8, v{VW}
    v_mov_b32 v{ONE}, 1
    s_lshr_b32 s50, s2, 4
    s_lshl_b32 s50, s50, 3
    s_add_u32 s62, s50, s60
    s_lshr_b32 s{sSET}, s{sW}, 2
    s_and_b32 s{sTILE}, s{sW}, 3
    s_mov_b32 s83, 0x20000
    s_mov_b32 s87, 0x20000
    s_bitcmp1_b32 s2, 3
    s_cbranch_scc1 K_np
    s_mul_i32 s88, s62, {CH*4}
    s_add_u32 s89, s88, 8192
    s_add_u32 s82, s88, {CH*4}
    s_min_u32 s82, s82, {E*4}
    s_mov_b32 s86, s82
    s_waitcnt lgkmcnt(0)
    s_mov_b32 s80, s58
    s_mov_b32 s81, s59
    s_mov_b32 s84, s56
    s_mov_b32 s85, s57
    buffer_load_dwordx4 v[8:11], v1, s[80:83], s88 offen
    buffer_load_dwordx4 v[12:15], v1, s[80:83], s89 offen
    buffer_load_dwordx4 v[16:19], v1, s[84:87], s88 offen
    buffer_load_dwordx4 v[20:23], v1, s[84:87], s89 offen
    s_branch K_prod
    K_np:
    """)
    def xdma(base, delta):
        o = []
        for i, so in enumerate(("s51", "s91")):
            o.append(f"s_add_u32 m0, s90, {base + 8192*i}")
            o.append(f"s_sub_u32 s50, {so}, {delta}")
            o.append("buffer_load_dwordx4 v3, s[20:23], s50 offen lds")
        return o
    def wdma():
        o = []
        for q in range(8):
            o += [f"s_add_u32 m0, s{sRING}, {1024*q}", f"s_add_u32 s89, s63, {4096*q}",
                  f"buffer_load_dwordx4 v{VW}, s[24:27], s89 offen lds"]
        return o
    wcdma = [f"s_lshl_b32 s89, s{sTILE}, 10", f"s_add_u32 m0, s89, {WCL}", "s_nop 0",
             f"buffer_load_dwordx4 v{VW}, s[32:35], s63 offen lds"]
    def common(first):
        a(f"""
        s_lshl_b32 s{sRING}, s{sW}, 13
        s_add_u32 s{sRING}, s{sRING}, {RING}
        s_lshl_b32 s63, s{sTILE}, 6
        s_cmp_eq_u32 s{sSET}, 0
        s_cselect_b32 s64, s64, s70
        s_cselect_b32 s65, s65, s71
        s_cselect_b32 s66, s66, s72
        s_cselect_b32 s67, s67, s73
        s_mov_b32 s24, s{first}
        s_mov_b32 s25, s{first+1}
        s_mov_b32 s26, 32768
        s_mov_b32 s27, 0x20000
        """)
    def common2(x):
        x(f"""
        s_mov_b32 s32, s68
        s_mov_b32 s33, s69
        s_mov_b32 s34, 4096
        s_mov_b32 s35, 0x20000
        s_mov_b32 s14, {WS_END}
        s_mov_b32 s15, 0x20000
        s_movk_i32 s30, 256
        s_mov_b32 s31, 0x20000
        s_mov_b32 s4, s78
        s_mov_b32 s5, s79
        s_mov_b32 s12, s78
        s_mov_b32 s13, s79
        s_mov_b32 s10, s74
        s_mov_b32 s11, s75
        s_mov_b32 s28, s76
        s_mov_b32 s29, s77
        v_lshrrev_b32 v88, 5, v2
        v_and_b32 v89, 31, v2
        v_lshrrev_b32 v90, 2, v85
        v_lshl_add_u32 v90, v88, 3, v90
        v_and_b32 v91, 1, v84
        v_lshlrev_b32 v91, 5, v91
        v_lshl_add_u32 v91, v87, 3, v91
        v_lshl_add_u32 v90, v90, 6, v91
        v_add_u32 v{FW}, s{sRING}, v90
        s_lshl_b32 s50, s{sTILE}, 10
        s_add_u32 s50, s50, {WCL}
        v_add_u32 v{WCR}, s50, v90
        v_xor_b32 v90, v88, v85
        v_lshlrev_b32 v90, 4, v90
        v_lshl_add_u32 v{FX}, v89, 8, v90
        v_lshlrev_b32 v93, 3, v88
        v_lshrrev_b32 v94, 4, v0
        v_xor_b32 v90, v94, v0
        v_and_b32 v90, 15, v90
        v_lshlrev_b32 v90, 4, v90
        v_lshl_add_u32 v{FU}, v94, 8, v90
        s_mov_b32 s94, {hex(f32(-LOG2E))}
        s_mov_b32 s95, {hex(f32(-LOG2E))}
        s_lshr_b32 s50, s62, 2
        s_lshl_b32 s50, s50, 7
        s_and_b32 s97, s2, 3
        s_lshl_b32 s97, s97, 2
        s_add_u32 s97, s97, s50
        s_cmp_eq_u32 s{sW}, 0
        s_cselect_b32 s97, s97, {OOB}
        s_cselect_b32 s{sPROD}, 0, {OOB}
        """)
    def wfrag(q):
        return [f"ds_read_b64_tr_b16 {ar(WA+4*q+2*z,2)}, v{FW} offset:{1024*q+256*z}" for z in range(2)]
    def xfrag(q, off=0):
        return [f"v_xor_b32 v3, {32*q}, v{FX}", f"ds_read_b128 {vr(XF+8*q,4)}, v3 offset:{off}",
                f"ds_read_b128 {vr(XF+8*q+4,4)}, v3 offset:{off+8192}"]
    misc = [f"v_add_u32 v3, {ERING}, v{FU}", f"ds_read_b128 {vr(XR,4)}, v3", f"ds_read_b128 {vr(XR+4,4)}, v3 offset:8192",
            f"ds_read_b64_tr_b16 {vr(WCR+2,2)}, v{WCR} offset:256", f"ds_read_b64_tr_b16 {vr(WCR,2)}, v{WCR}"]
    def gm(q, rt, base=DA):
        d = vr(base + 16*rt, 16)
        return f"{MF} {d}, {ar(WA+4*q,4)}, {vr(XF+8*q+4*rt,4)}, {'0' if q == 0 else d}"
    RDY = 99
    ready_load = f"buffer_load_dword v{RDY}, off, s[28:31], s{sPROD} sc1"
    def ready_check(tag):
        a(f"""
        s_cmp_lg_u32 s{sW}, 0
        s_cbranch_scc1 K_{tag}
        s_mov_b32 s50, 0
        K_{tag}_spin:
        v_cmp_eq_u32 vcc, 0, v{RDY}
        s_cbranch_vccz K_{tag}
        {ready_load}
        s_add_u32 s50, s50, 1
        s_cmp_lt_u32 s50, 0x40000
        s_waitcnt vmcnt(0)
        s_cbranch_scc1 K_{tag}_spin
        K_{tag}:
        """)
    D1 = 4
    def conv(rt, addrs, base=DA, mul=None, off=lambda j: 0):
        o = []
        for j in range(4):
            b_ = base + 16*rt + 4*j
            if mul:
                o += [f"v_mul_f32 v{b_+i}, {mul}, v{b_+i}" for i in range(4)]
            o += [f"v_cvt_pk_bf16_f32 v{b_}, v{b_}, v{b_+1}", f"v_cvt_pk_bf16_f32 v{b_+1}, v{b_+2}, v{b_+3}",
                  f"ds_write_b64 v{addrs[j]}, {vr(b_,2)} offset:{off(j)}"]
        return o

    def lds_reset(prefill):
        a(f"""
        v_lshlrev_b32 v76, 2, v0
        v_mov_b32 v77, 0
        ds_write_b32 v76, v77
        """)
        if prefill:
            a(f"""
            v_mov_b32 v76, {hex(DUMMY | (SB*AST) << 16)}
            v_mov_b32 v77, {OOB}
            v_mov_b32 v78, v76
            v_mov_b32 v79, v77
            v_lshlrev_b32 v80, 4, v0
            """)
            for i in range(5):
                a(f"ds_write_b128 v80, v[76:79] offset:{LIST + 8192*i}")

    a(f"""
    s_or_b32 s50, s90, s2
    s_cmp_eq_u32 s50, {7*1024 + 8}
    s_cbranch_scc1 K_clr
    s_waitcnt lgkmcnt(0)
    s_mov_b32 s20, s52
    s_mov_b32 s21, s53
    """)
    emit(xdma(XP, SB*256) + xdma(ERING, 0))
    a("K_np1:")
    common(66)
    w1 = wdma()
    b = Asm()
    common2(b)
    b(f"""
    s_add_u32 s97, s97, {WS_FLG}
    """)
    FG1 = 174
    cf = opt.get('cf', 1)
    b(f"""
    s_lshl_b32 s50, s{sTILE}, 3
    s_lshl_b32 s51, s{sSET}, 2
    s_add_u32 s50, s50, s51
    v_and_b32 v90, 7, v2
    v_xor_b32 v90, s50, v90
    v_lshl_add_u32 v90, v90, 4, v93
    v_lshl_add_u32 v90, v89, 9, v90
    v_and_b32 v98, {8 if cf else 0}, v2
    v_xor_b32 v90, v90, v98
    v_add_u32 v{FS}, {XP}, v90
    v_bfe_u32 v90, v0, 5, 3
    v_lshlrev_b32 v90, 4, v90
    v_xor_b32 v90, v90, v1
    v_add_u32 v{FR}, {XP}, v90
    s_lshl_b32 s50, s{sSET}, 3
    v_xor_b32 v175, s50, v{FR}
    v_xor_b32 v204, 8, v175
    v_xor_b32 v95, 16, v{FS}
    v_xor_b32 v96, 32, v{FS}
    v_xor_b32 v97, 48, v{FS}
    s_mul_i32 s50, s{sBIN}, {SB}
    v_lshrrev_b32 v90, 5, v0
    v_add_u32 v90, s50, v90
    v_and_b32 v98, 7, v90
    v_lshrrev_b32 v{FG1}, 3, v90
    v_lshl_or_b32 v{FG1}, v98, 11, v{FG1}
    v_lshl_add_u32 v{FG1}, v{FG1}, 5, v89
    v_lshlrev_b32 v{FG1}, 4, v{FG1}
    v_add_u32 v90, {-SB & 0xffffffff}, v90
    v_and_b32 v98, 7, v90
    v_lshrrev_b32 v{FG}, 3, v90
    v_lshl_or_b32 v{FG}, v98, 11, v{FG}
    v_lshl_add_u32 v{FG}, v{FG}, 5, v89
    v_lshlrev_b32 v{FG}, 4, v{FG}
    v_cmp_gt_u32 s[56:57], {SB - 32}, v89
    s_cmp_eq_u32 s{sSET}, 0
    s_cselect_b32 s96, s94, 1.0
    """)
    nw = opt.get("wearly", 3)
    a("s_barrier")
    emit(w1[:3*nw])
    lds_reset(True)
    cut = [i for i, l in enumerate(b.l) if f"v{FX}," in l][0] + 1
    a.l += b.l[:cut]
    later = [x.strip() for x in b.l[cut:]]
    a(f"""
    s_or_b32 s50, s90, s2
    s_cmp_eq_u32 s50, {7*1024 + 8}
    s_cbranch_scc1 K_pub
    s_waitcnt vmcnt({nw})
    K_np2:
    s_barrier
    """)
    st(1)
    emit(xfrag(0, XP) + xfrag(1, XP) + xfrag(2, XP) + xfrag(3, XP))
    w2 = wdma()
    ahead = opt.get("ahead", 5)
    seq = [w1[3*q:3*q+3] for q in range(8)] + [wcdma + ["s_mov_b32 s24, s64", "s_mov_b32 s25, s65"]] + \
          [w2[3*q:3*q+3] for q in range(8)]
    sent = [nw]
    def send(n):
        o = []
        while sent[0] < min(n, len(seq)):
            o += seq[sent[0]]
            sent[0] += 1
        return o
    landed = lambda i: f"s_waitcnt vmcnt({sent[0] - 1 - i})"
    SA = [FS, 95, 96, 97]
    emit(send(ahead))
    emit([landed(0)] + wfrag(0) + [landed(1)] + wfrag(1))
    for q in range(8):
        a(f"s_waitcnt lgkmcnt({[2, 4, 4, 4, 4, 4, 4, 2][q]})")
        a(gm(q, 0, D1))
        emit(send(ahead + q + 1))
        if q == 4:
            a(f"v_add_u32 v{FX}, {ERING}, v{FX}")
        emit(xfrag(q + 4, XP) if q < 4 else xfrag(q - 4))
        if q < 6:
            emit([landed(q + 2)] + wfrag(q + 2))
        a(gm(q, 1, D1))
        n_ = -(-len(later) // (8 - q))
        while n_ < len(later) and ("cselect" in later[n_] or "addc" in later[n_]):
            n_ += 1
        emit(later[:n_])
        later = later[n_:]
    st(2)
    a(landed(8))
    B2, SO2 = SB * 512, 176
    def stores(fg, so):
        o = []
        for i in range(3):
            o += [f"s_waitcnt lgkmcnt({(3-i)*(1+cf)})", f"buffer_store_dwordx4 {vr(so+4*i,4)}, v{fg}, s[12:15], 0 offen offset:{1024*i} {tst}"]
        return o + ["s_mov_b32 exec_hi, 0", "s_waitcnt lgkmcnt(0)",
                    f"buffer_store_dwordx4 {vr(so+12,4)}, v{fg}, s[12:15], s{sPROD} offen offset:3072 {tst}", "s_mov_b32 exec_hi, -1"]
    back = lambda o, so: [f"ds_read_b128 {vr(so+4*i,4)}, v{FR} offset:{o + 8192*i}" for i in range(4)] if not cf else \
        [f"ds_read_b64 {vr(so+4*i+2*z,2)}, v{(175, 204)[z]} offset:{o + 8192*i}" for i in range(4) for z in range(2)]
    slots = [[] for _ in range(16)]
    slots[0] = xfrag(4) + xfrag(5)
    slots[1] = xfrag(6) + xfrag(7)
    slots[2] = misc[:3]
    c1 = conv(0, SA, D1, "s96") + conv(1, SA, D1, "s96", lambda j: 16384)
    for i in range(8):
        slots[3 + i] = c1[7*i:7*i+7]
    for q in range(8):
        slots[q] += send(sent[0] + 1)
    assert sent[0] == len(seq)
    slots[8] += [ready_load]
    bp = opt.get("backpos", 15)
    slots[bp] += ["s_waitcnt lgkmcnt(0)", "s_barrier"] + back(0, SO)
    emit(misc[3:])
    a("s_waitcnt lgkmcnt(0)\ns_barrier")
    def p2(lo_, hi_, mul=True):
        for i in range(lo_, hi_):
            if i == 8:
                a("s_waitcnt lgkmcnt(5)")
            a(gm(i // 2, i % 2))
            emit([x for x in slots[i] if mul or not x.startswith("v_mul")])
    if opt.get("nomul", 0):
        p2(0, 3)
        a(f"s_cmp_lg_u32 s{sSET}, 0\ns_cbranch_scc1 K_p2b")
        p2(3, 11)
        a("s_branch K_p2c\nK_p2b:")
        p2(3, 11, False)
        a("K_p2c:")
        p2(11, 16)
    else:
        p2(0, 16)
    emit(stores(FG, SO))
    st(3)
    a(f"s_cmp_lg_u32 s{sSET}, 0\ns_cbranch_scc1 K_ns1")
    for i in range(16):
        a(f"v_pk_mul_f32 {vr(DA+2*i,2)}, {vr(DA+2*i,2)}, s[94:95]")
    a("K_ns1:")
    emit(conv(0, SA, DA, None, lambda j: B2) + ["s_mov_b64 exec, s[56:57]"] + conv(1, SA, DA, None, lambda j: B2 + 16384))
    a("s_mov_b64 exec, -1\ns_waitcnt lgkmcnt(0)\ns_barrier")
    emit(back(B2, SO2) + stores(FG1, SO2))
    a("s_waitcnt vmcnt(8)")
    for q in range(8):
        emit(wfrag(q))
    for q in range(8):
        a(f"s_waitcnt lgkmcnt({14 - 2*q})")
        emit([gm(q, 0, D1), gm(q, 1, D1)])
    ready_check("rn")
    a("K_join:")
    st(4)
    def poll_check(tag, base, lanes, wave=0):
        a(f"""
        s_cmp_lg_u32 s{sW}, {wave}
        s_cbranch_scc1 K_{tag}_done
        s_mov_b32 s50, 0
        s_mov_b32 s51, {base}
        K_{tag}_spin:
        s_waitcnt vmcnt(0)
        v_and_b32 v{PL}, v{PL}, v{PL+1}
        v_and_b32 v{PL+2}, v{PL+2}, v{PL+3}
        v_and_b32 v{PL}, v{PL}, v{PL+2}
        v_cmp_ne_u32 vcc, 1, v{PL}
        s_cbranch_vccz K_{tag}_done
        s_add_u32 s50, s50, 1
        s_cmp_lt_u32 s50, 0x40000
        buffer_load_dwordx4 {vr(PL,4)}, v{lanes}, s[12:15], s51 offen sc1
        s_cbranch_scc1 K_{tag}_spin
        K_{tag}_done:
        """)
    def list_ptrs():
        a(f"""
        s_mul_i32 s50, s{sSET}, {LSET}
        s_add_u32 s50, s50, {LIST}
        v_and_b32 v98, 32, v2
        v_bfe_u32 v97, v2, 4, 1
        v_bfe_u32 v96, v2, 3, 1
        v_lshl_add_u32 v96, v96, 2, v97
        v_add_u32 v96, v96, v98
        v_lshl_add_u32 v{LI}, v96, 3, s50
        v_and_b32 v96, 0x2c, v2
        v_lshl_add_u32 v{LP}, v96, 3, s50
        v_and_b32 v96, 2, v2
        v_bfe_u32 v99, v2, 2, 1
        v_lshl_add_u32 v96, v96, 1, v99
        v_and_or_b32 v96, v2, 8, v96
        s_lshr_b32 s51, s{sTILE}, 1
        s_lshl_b32 s51, s51, 7
        s_add_u32 s50, s50, s51
        s_and_b32 s51, s{sTILE}, 1
        s_lshl_b32 s51, s51, 8
        s_add_u32 s50, s50, s51
        v_lshl_add_u32 v{LE}, v96, 3, s50
        """)
    PL = 68
    def rec_loads(n=2):
        a(f"buffer_load_dwordx4 {vr(REC,4)}, v{SEG}, s[12:15], s{sSTART} offen sc1")
        if n == 2:
            a(f"buffer_load_dwordx4 {vr(REC+4,4)}, v{SEG}, s[12:15], s{sSTART} offen offset:64 sc1")
    a(f"""
    v_lshlrev_b32 v{FS}, 7, v89
    s_cmp_lg_u32 s{sW}, 0
    s_cbranch_scc1 K_nopoll
    s_mov_b32 s50, {WS_FLG + 4096}
    buffer_load_dwordx4 {vr(PL,4)}, v{FS}, s[12:15], s50 offen sc1
    K_nopoll:
    v_lshrrev_b32 v95, 2, v0
    v_lshlrev_b32 v{SIDX}, 4, v87
    v_lshl_add_u32 v{SEG}, v95, 7, v{SIDX}
    v_mul_u32_u24 v92, {AST}, v89
    v_mul_u32_u24 v{PB}, {CH}, v95
    s_lshl_b32 s{sSTART}, s{sBIN}, 14
    s_add_u32 s{sSTART}, s{sSTART}, {WS_SLOT}
    s_mov_b32 s16, s54
    s_mov_b32 s17, s55
    s_mov_b32 s18, {opt.get('erows', E) * 32}
    s_mov_b32 s19, 0x20000
    s_mov_b32 s{sMODE}, 0
    s_bitcmp1_b32 s2, 3
    s_cselect_b32 s60, {4*opt.get('ewarm', 2)}, {4*opt.get('ewarmp', opt.get('ewarm', 2))}
    """)
    a(f"""
    s_cmp_lg_u32 s{sSET}, 0
    s_cbranch_scc1 K_uaddr
    v_cmp_gt_u32 s[90:91], {SB - 31}, v89
    s_lshl_b32 s51, s{sTILE}, 7
    s_add_u32 s51, s51, {ATAB}
    v_add3_u32 v81, v92, v93, s51
    """)
    for i in range(16):
        a(f"v_pk_mul_f32 {vr(D1+2*i,2)}, {vr(D1+2*i,2)}, s[94:95]")
    ca = conv(0, [81]*4, D1, None, lambda j: 16*j) + conv(1, [81]*4, D1, None, lambda j: 16*j + 32*AST)
    emit([x for x in ca if x.startswith("v_")])
    a(f"""
    s_branch K_conv
    K_uaddr:
    v_bfe_u32 v52, v2, 1, 2
    v_lshl_add_u32 v52, v52, 4, v93
    v_lshl_add_u32 v52, v89, 6, v52
    v_add_u32 v52, s{sRING}, v52
    """)
    for j in range(1, 4):
        a(f"v_xor_b32 v{52+j}, {16*j}, v52")
    emit(conv(0, [52, 53, 54, 55], D1) + conv(1, [52, 53, 54, 55], D1, None, lambda j: 2048))
    a(f"""
    v_and_b32 v45, 63, v95
    v_and_b32 v46, 31, v95
    v_lshlrev_b32 v47, 3, v87
    v_sub_u32 v46, v46, v47
    v_cmp_eq_u32 s[90:91], {SB}, v45
    v_mov_b32 v47, 64
    v_cmp_ge_u32 s[92:93], {SB}, v45
    v_cndmask_b32 v46, v46, v47, s[90:91]
    v_and_b32 v47, 1, v46
    v_lshlrev_b32 v47, 4, v47
    v_mov_b32 v48, 0x3f80
    v_lshlrev_b32 v47, v47, v48
    v_ashrrev_i32 v46, 1, v46
    v_cmp_eq_u32 s[64:65], 0, v46
    v_cmp_eq_u32 s[66:67], 1, v46
    v_cmp_eq_u32 s[68:69], 2, v46
    v_cmp_eq_u32 s[70:71], 3, v46
    v_cndmask_b32 v48, 0, v47, s[64:65]
    v_cndmask_b32 v49, 0, v47, s[66:67]
    v_cndmask_b32 v50, 0, v47, s[68:69]
    v_cndmask_b32 v51, 0, v47, s[70:71]
    v_mul_u32_u24 v46, {AST}, v45
    v_add_u32 v46, v46, v{SIDX}
    K_conv:
    """)
    st(5)
    poll_check("s", WS_FLG + 4096, FS)
    a("s_waitcnt vmcnt(0) lgkmcnt(0)\ns_barrier")
    rec_loads()
    a(f"""
    s_mov_b64 exec, 1
    buffer_store_dword v{ONE}, off, s[12:15], s97 sc1
    s_mov_b64 exec, -1
    """)
    st(6)
    PL = 156
    wa = [x for x in ca if x.startswith("ds_")]
    a(f"s_cmp_eq_u32 s{sSET}, 0\ns_cbranch_scc1 K_tab\ns_mov_b64 exec, s[92:93]")
    for t in range(4):
        a(f"ds_write_b128 v46, v[48:51] offset:{ATAB+128*t+64}")
    a("K_tab:\ns_mov_b64 exec, -1")
    a(f"""
    s_lshl_b32 s50, s{sTILE}, 7
    s_add_u32 s51, s50, {ATAB}
    v_add_u32 v{TC}, s51, v91
    v_and_b32 v90, 7, v2
    v_xor_b32 v90, v90, v84
    v_lshl_add_u32 v{OF0}, v90, 4, s50
    v_xor_b32 v{OF1}, 64, v{OF0}
    v_bfe_u32 v90, v0, 2, 2
    v_lshlrev_b32 v90, 13, v90
    v_lshl_add_u32 v90, v94, 6, v90
    v_bfe_u32 v96, v0, 5, 2
    v_xor_b32 v96, v96, v87
    v_lshl_add_u32 v90, v96, 4, v90
    v_add_u32 v3, {RING + 32768}, v90
    ds_read_b128 {ar(AU,4)}, v3
    ds_read_b128 {ar(AU+4,4)}, v3 offset:2048
    s_lshr_b32 s51, s{sTILE}, 1
    v_xor_b32 v84, s51, v2
    v_and_b32 v84, 1, v84
    v_lshlrev_b32 v{EP+1}, 4, v84
    s_mov_b32 s{s512}, 512
    s_lshl_b32 s50, s{sSET}, 12
    s_add_u32 s93, s50, {ERING}
    s_lshl_b32 s51, s{sTILE}, 8
    s_add_u32 s{sEM0}, s93, s51
    """)
    list_ptrs()
    def consts2():
        a(f"""
        v_lshl_add_u32 v3, v88, 4, v92
        ds_read_b128 {vr(SEL0,4)}, v3 offset:{ATAB + 64}
        ds_read_b128 {vr(SEL1,4)}, v3 offset:{ATAB + 96}
        v_lshrrev_b32 v90, 3, v89
        v_and_b32 v96, 1, v89
        v_lshl_add_u32 v90, v90, 1, v96
        v_and_b32 v96, 4, v89
        v_lshl_add_u32 v90, v96, 1, v90
        v_mul_u32_u24 v90, {AST}, v90
        v_lshl_add_u32 v3, v88, 4, v90
        ds_read_b128 {vr(PIND,4)}, v3 offset:{ATAB + 64}
        """)
    def consts3():
        a("s_mov_b32 s51, 0xffff0000")
        for j in range(4):
            a(f"""
            v_lshlrev_b32 v76, 16, v{WCR+j}
            v_and_b32 v77, s51, v{WCR+j}
            v_pk_mul_f32 v[76:77], v[76:77], s[94:95]
            v_cvt_pk_bf16_f32 v{WC+j}, v76, v77
            """)
        a(f"""
        v_bfe_u32 v90, v89, 1, 3
        v_xor_b32 v90, v90, v88
        v_lshlrev_b32 v90, 4, v90
        v_lshl_add_u32 v90, v89, 7, v90
        v_add_u32 v{RA[0]}, s{sRING}, v90
        v_xor_b32 v{RA[1]}, 32, v{RA[0]}
        v_lshlrev_b32 v90, 1, v89
        v_and_b32 v91, 32, v2
        v_xor_b32 v90, v90, v91
        v_lshl_add_u32 v90, v88, 9, v90
        v_add3_u32 v182, v90, s{sRING}, 64
        v_xor_b32 v84, v97, v88
        v_lshlrev_b32 v84, 4, v84
        v_and_b32 v90, 0x13, v2
        v_lshl_add_u32 v84, v90, 5, v84
        v_and_b32 v90, 4, v2
        v_lshl_add_u32 v84, v90, 6, v84
        v_and_b32 v90, 8, v2
        v_lshl_add_u32 v84, v90, 4, v84
        v_add_u32 v{EA}, s93, v84
        """)

    def classes(ks, with_masks):
        a(f"s_movk_i32 s51, {63*32}\ns_movk_i32 s50, {cmask}")
        for k in ks:
            a(f"v_lshrrev_b32 v{CA+k}, 9, v{REC+k}")
            a(f"v_and_b32 v{CA+k}, s50, v{CA+k}")
            if with_masks:
                a(f"v_cmp_gt_u32 {sr(sM+2*k,2)}, s51, v{CA+k}")

    PW, SW = 7, 4
    def sort(first):
        tg = "a" if first else "b"
        a(f"""
        v_mov_b32 v{T+1}, 8
        v_lshlrev_b32 v{T}, 5, v2
        """)
        if first:
            a("s_waitcnt vmcnt(1)")
            st(7)
        else:
            a(f"""
            v_mov_b32 v{T+2}, 0
            s_waitcnt vmcnt(0) lgkmcnt(0)
            s_barrier
            s_mov_b64 exec, s[56:57]
            ds_write_b32 v{T+2}, v{T+1} offset:{62*32}
            s_mov_b64 exec, -1
            """)
        classes(range(8), first)
        for k in range(8):
            a(f"s_mov_b64 exec, {sr(sM+2*k,2)}")
            a(f"ds_add_rtn_u32 v{RK+k}, v{CA+k}, v{T+1}")
        a(f"s_mov_b64 exec, -1\ns_movk_i32 s50, {AST*4}")
        hi, lo, ew = [], [], []
        for k in range(8):
            e = EN + 2*k
            hi += [f"v_lshrrev_b32 v{e+1}, 20, v{REC+k}", f"v_add_lshl_u32 v{e+1}, v{e+1}, v{PB}, 5"]
            lo += [f"v_and_b32 v{e}, 0x3fff, v{REC+k}", f"v_and_b32 v3, 0xfc000, v{REC+k}", f"v_mad_u32_u24 v{e}, v3, s50, v{e}"]
            ew += [f"v_and_b32 v3, 28, v{CA+k}", f"v_cmp_gt_u32 vcc, s60, v3",
                   f"s_and_b64 exec, vcc, {sr(sM+2*k,2)}", f"buffer_load_dword v{SLEN}, v{e+1}, s[16:19], 0 offen",
                   "s_mov_b64 exec, -1"]
        if not (first and opt.get("ewarm", 2)):
            ew = []
        c, W1, U, n, I, X, L, Z = 116, 124, 132, 136, 140, 144, 148, 152
        Tt = lambda i: W1 + 2*i
        Dd = lambda i: W1 + 2*i + 1
        t0, t1, run = T+2, T+3, T+4
        emit(hi + ew[:20])
        a(f"""
        s_cmp_eq_u32 s{sW}, {SW}
        s_waitcnt lgkmcnt(0)
        s_barrier
        s_cbranch_scc1 K_scan{tg}
        """)
        emit(ew[20:])
        if first:
            a(f"s_cmp_lg_u32 s{sSET}, 0\ns_cbranch_scc1 K_noa")
            emit(wa[:4] + ["s_mov_b64 exec, s[90:91]"] + wa[4:])
            a("s_mov_b64 exec, -1\nK_noa:")
            consts2()
        emit(lo)
        if first and not opt.get("ppos", 0):
            a(f"""
            s_cmp_lg_u32 s{sW}, {PW}
            s_cbranch_scc1 K_scanned{tg}
            s_mov_b32 s50, {WS_FLG}
            buffer_load_dwordx4 {vr(PL,4)}, v{FS}, s[12:15], s50 offen sc1
            """)
        a(f"""
        s_branch K_scanned{tg}
        K_scan{tg}:
        ds_read_b128 {vr(c,4)}, v{T}
        ds_read_b128 {vr(c+4,4)}, v{T} offset:16
        s_setprio 1
        """)
        emit(lo)
        a(f"""
        s_mov_b32 s51, 0xffe0ffe0
        s_waitcnt lgkmcnt(0)
        v_readlane_b32 s{sMORE}, v{c}, 62
        v_writelane_b32 v{c}, 0, 62
        """)
        for r in range(1, 8):
            a(f"v_add_u32 v{c+r}, v{c+r-1}, v{c+r}")
        steps = [("row_shr:1", "0xf"), ("row_shr:2", "0xf"), ("row_shr:4", "0xf"), ("row_shr:8", "0xf"),
                 ("row_bcast:15", "0xa"), ("row_bcast:31", "0xc")]
        Q, CN, SF, U0, H0 = 60, 61, 62, 63, 64
        a(f"""
        v_add_u32 v{Q}, 15, v{c+7}
        v_and_b32 v{Q}, 0xffe0, v{Q}
        v_mov_b32 v{t0}, v{Q}
        v_cmp_lt_u32 s[88:89], v{Q}, v{c+7}
        """)
        pk_ = [f"v_lshl_or_b32 v{Dd(i)}, v{c+2*i+1}, 16, v{c+2*i}" for i in range(4)] + \
              [f"v_mbcnt_lo_u32_b32 v{CN}, s88, 0", f"v_mbcnt_hi_u32_b32 v{CN}, s89, v{CN}",
               f"v_sub_u32 v{H0}, v{c+7}, v{Q}", f"v_mov_b32 v{L}, {hex((LIST + 512) * 0x10001)}",
               f"v_mov_b32 v{L+1}, {hex((LIST + LSET + 512) * 0x10001)}"]
        if first:
            a(pk_.pop(0))
            for ctl, m_ in steps:
                a(f"v_add_u32_dpp v{t0}, v{t0}, v{t0} {ctl} row_mask:{m_} bank_mask:0xf")
                if pk_:
                    emit([pk_.pop(0), pk_.pop(0)])
                else:
                    a("s_nop 1")
            a(f"""
            v_readlane_b32 s50, v{t0}, 63
            v_sub_u32 v{t0}, v{t0}, v{Q}
            v_lshlrev_b32 v{t1}, 1, v{t0}
            v_cmp_gt_u32 vcc, s50, v{t1}
            v_sub_u32 v{t1}, s50, v{t0}
            v_add_u32 v{t0}, 0xff, v{t0}
            v_add_u32 v{t1}, 0xff, v{t1}
            s_bcnt1_i32_b64 s50, vcc
            v_lshrrev_b32 v{t0}, 8, v{t0}
            s_max_u32 s50, s50, 18
            v_lshrrev_b32 v{t1}, 8, v{t1}
            s_min_u32 s50, s50, 32
            v_lshl_add_u32 v{t0}, v{t0}, 1, -1
            v_lshlrev_b32 v{t1}, 1, v{t1}
            v_max_i32 v{t0}, v{t0}, v{t1}
            s_sub_u32 s58, s50, 1
            v_readlane_b32 s56, v{t0}, s50
            v_readlane_b32 s57, v{t0}, s58
            s_cmp_le_i32 s56, s57
            s_cselect_b32 s{sVS}, s50, s58
            """)
        else:
            emit(pk_)
        a(f"""
        v_readlane_b32 s56, v{CN}, s{sVS}
        v_cmp_le_u32 vcc, s{sVS}, v2
        s_nop 0
        v_subrev_u32 v{t0}, s56, v{CN}
        v_cndmask_b32 v{run}, v{L}, v{L+1}, vcc
        v_cndmask_b32 v{CN}, v{CN}, v{t0}, vcc
        v_cmp_gt_u32 s[56:57], {16 if opt.get("head", 1) else 0}, v{CN}
        s_and_b64 s[88:89], s[88:89], s[56:57]
        v_lshl_add_u32 v{CN}, v{CN}, 5, v{run}
        v_cndmask_b32 v{U0}, 0, 32, s[88:89]
        v_cndmask_b32 v{H0}, 0, v{H0}, s[88:89]
        v_sub_u32 v{SF}, v{U0}, v{H0}
        v_lshl_or_b32 v{SF}, v{SF}, 16, v{SF}
        """)
        for i in range(4):
            a(f"v_add_u32 v{Dd(i)}, v{SF}, v{Dd(i)}")
        for i in range(4):
            a(f"v_add_u32 v{U+i}, 0x001f001f, v{Dd(i)}")
        for i in range(4):
            a(f"v_and_b32 v{U+i}, s51, v{U+i}")
        for i in range(4):
            a(f"v_lshl_or_b32 v{n}, v{U}, 16, v{U0}" if i == 0 else f"v_alignbit_b32 v{n+i}, v{U+i}, v{U+i-1}, 16")
        for i in range(4):
            a(f"v_sub_u32 v{I+i}, v{U+i}, v{n+i}")
        for ctl, m_ in steps:
            for i in range(4):
                a(f"v_add_u32_dpp v{I+i}, v{I+i}, v{I+i} {ctl} row_mask:{m_} bank_mask:0xf")
        emit([f"v_sub_u32 v{n+i}, v{U+i}, v{n+i}" for i in range(4)] + [f"v_sub_u32 v{X+i}, v{I+i}, v{n+i}" for i in range(4)])
        for i in range(4):
            a(f"v_readlane_b32 s{84+i}, v{I+i}, 63")
        for i in range(4):
            a(f"v_readlane_b32 s{80+i}, v{X+i}, s{sVS}")
        for i in range(4):
            a(f"v_sub_u32 v{Dd(i)}, v{U+i}, v{Dd(i)}")
        for i in range(4):
            a(f"v_mov_b32 v{L+i}, s{80+i}")
        for i in range(4):
            a(f"v_sub_u32 v{Z+i}, s{84+i}, v{L+i}")
            a(f"v_cndmask_b32 v{U+i}, 0, v{L+i}, vcc")
        for i in range(4):
            a(f"v_cndmask_b32 v{L+i}, v{L+i}, v{Z+i}, vcc")
        a(f"v_add_u32 v{CN}, {-480 & 0xffffffff}, v{CN}\ns_mov_b32 s51, 0x03020302")
        for i in range(4):
            a(f"v_lshl_or_b32 v{Tt(0)}, v{Dd(0)}, 16, v{H0}" if i == 0 else f"v_alignbit_b32 v{Tt(i)}, v{Dd(i)}, v{Dd(i-1)}, 16")
            a(f"v_sub_u32 v{X+i}, v{X+i}, v{U+i}")
        a(f"ds_write_b128 v{T}, {vr(W1,4)} offset:{TW1}\nds_write_b128 v{T}, {vr(W1+4,4)} offset:{TW1+16}")
        for i in range(4):
            a(f"v_lshl_add_u32 v{t0}, v{L+i}, 16, v{run}")
            a(f"v_pk_min_u16 v{Z+i}, v{n+i}, 1 op_sel_hi:[1,0]")
            a(f"v_add_u32 v{t1}, v{t0}, v{L+i}")
            a(f"v_add_u32 v{X+i}, v{X+i}, v{t0}")
            a(f"v_perm_b32 v{run}, v{t1}, v{t1}, s51")
        for i in range(4):
            a(f"v_add_u32 v{I+i}, v{X+i}, v{n+i}")
            a(f"v_sub_u32 v{c+2*i}, v{X+i}, v{Tt(i)}")
        a(f"v_readlane_b32 s56, v{run}, 0\nv_readlane_b32 s57, v{run}, 63")
        for i in range(4):
            a(f"v_pk_mul_lo_u16 v{Z+i}, v{Z+i}, v{I+i}")
            a(f"v_lshrrev_b32 v{c+2*i+1}, 16, v{c+2*i}")
        a(f"v_and_b32 v{t0}, 0xffff, v{CN}\nv_cndmask_b32 v{t0}, 0, v{t0}, s[88:89]\ns_movk_i32 s51, {TRASH}")
        for r in range(8):
            a(f"v_sub_u16_sdwa v{c+r}, v{t0}, v{W1+r} dst_sel:WORD_1 dst_unused:UNUSED_PRESERVE src0_sel:WORD_0 src1_sel:WORD_0")
            if r < 7:
                a(f"v_max_u32_sdwa v{t0}, v{t0}, v{Z+r//2} {SDW} src0_sel:DWORD src1_sel:WORD_{r % 2}")
        a(f"""
        v_writelane_b32 v{c}, s51, 62
        ds_write_b128 v{T}, {vr(c,4)} offset:{TW0}
        ds_write_b128 v{T}, {vr(c+4,4)} offset:{TW0+16}
        """)
        a(f"""
        s_pack_hh_b32_b16 s50, s56, s57
        s_sub_u32 s50, s50, {hex((LIST - 255) + ((LIST + LSET - 255) << 16))}
        v_mov_b32 v{Z}, s50
        v_mov_b32 v{Z+1}, s{sVS}
        v_mov_b32 v{Z+2}, s{sMORE}
        ds_write_b96 v{T+1}, {vr(Z,3)} offset:{63*32 - 8}
        s_setprio 0
        s_waitcnt lgkmcnt(0)
        K_scanned{tg}:
        s_cmp_lg_u32 s{sW}, {SW}
        s_barrier
        ds_read_b96 {vr(Z,3)}, v{T+1} offset:{63*32 - 8}
        """)
        if first:
            st(8)
        for k in range(8):
            a(f"ds_read2st64_b32 {vr(BB+2*k,2)}, v{CA+k} offset0:{TW0//256} offset1:{TW1//256}")
        a(f"s_cbranch_scc1 K_rest{tg}")
        emit(ew[20:])
        a(f"""
        K_rest{tg}:
        """)
        if first and opt.get("ppos", 0):
            a(f"""
            s_cmp_lg_u32 s{sW}, {PW}
            s_cbranch_scc1 K_nop2
            s_mov_b32 s50, {WS_FLG}
            buffer_load_dwordx4 {vr(PL,4)}, v{FS}, s[12:15], s50 offen sc1
            K_nop2:
            """)
        a(f"""
        s_waitcnt lgkmcnt(8)
        v_readfirstlane_b32 s50, v{Z}
        v_readfirstlane_b32 s{sVS}, v{Z+1}
        v_readfirstlane_b32 s{sMORE}, v{Z+2}
        s_bfe_u32 s56, s50, {hex(8 | 8 << 16)}
        s_lshr_b32 s57, s50, 24
        s_max_u32 s57, s57, 1
        s_max_u32 s58, s56, s57
        s_cmp_le_u32 s58, {LIMIT // 256}
        s_cbranch_scc0 K_over
        s_sub_u32 s59, s58, 1
        s_max_u32 s59, s59, s57
        s_add_u32 s56, s58, 1
        s_and_b32 s56, s56, -2
        s_cmp_lt_u32 s58, 9
        s_cselect_b32 s58, s56, s58
        s_cselect_b32 s59, s56, s59
        s_sub_u32 s{sXB}, s58, s59
        s_cmp_eq_u32 s{sSET}, 0
        s_cselect_b32 s{sS}, s58, s59
        """)
        for k0 in (0, 4):
            a(f"s_waitcnt lgkmcnt({4 - k0})")
            for k in range(k0, k0 + 4):
                a(f"v_cmp_lt_u32_sdwa {sr(80+2*(k % 4),2)}, v{RK+k}, v{BB+2*k+1} src0_sel:DWORD src1_sel:WORD_0")
                a(f"v_lshrrev_b32 v{BB+2*k+1}, 16, v{BB+2*k}")
            for k in range(k0, k0 + 4):
                a(f"v_cndmask_b32 v{BB+2*k}, v{BB+2*k}, v{BB+2*k+1}, {sr(80+2*(k % 4),2)}")
                a(f"v_add_u32_sdwa v{RK+k}, v{RK+k}, v{BB+2*k} {SDW} src0_sel:DWORD src1_sel:WORD_0")
        for k in range(8):
            a(f"s_mov_b64 exec, {sr(sM+2*k,2)}")
            a(f"ds_write_b64 v{RK+k}, {vr(EN+2*k,2)}")
        a("s_mov_b64 exec, -1")

    def idx_reads(blk, sub):
        o = 128*blk + 4*sub
        return [f"ds_read2_b32 {vr(RW,2)}, v{LI} offset0:{o} offset1:{o+16}",
                f"ds_read2_b32 {vr(RW+2,2)}, v{LI} offset0:{o+32} offset1:{o+48}"]
    mads = [f"v_mad_u32_u16 v{IX+t}, v{RW+t}, s{s512}, v{OF1 if t % 2 else OF0}" for t in range(4)]
    def dma(slot, mid):
        o = []
        for t in range(4):
            o += [f"s_add_u32 m0, s{sRING}, {4096*slot + 1024*t}"] + mid[t] + \
                 [f"buffer_load_dwordx4 v{IX+t}, s[24:27], 0 offen {tfl} lds"]
        return o
    def edma(step, src=EP):
        return [f"s_add_u32 m0, s{sEM0}, {1024*(step % 4)}", "s_mov_b64 exec, 0xffff", f"v_or_b32 v{src}, v{src}, v{EP+1}",
                f"buffer_load_dwordx4 v{src}, s[16:19], 0 offen {opt.get('eflag','')} lds", "s_mov_b64 exec, -1"]
    def eid_read(step, dst=None):
        return [f"ds_read_b32 v{dst or EP}, v{LE} offset:{512*(step // 2) + 16*(step % 2) + 4}"]
    def pn_read(blk):
        return [f"ds_read2_b32 {vr(TA0,2)}, v{LP} offset0:{128*blk} offset1:{128*blk+32}"]
    ta = [f"v_add_u32_sdwa v{x}, v{x}, v{TC} {SDW} src0_sel:WORD_1 src1_sel:DWORD" for x in (TA0, TA1)]
    def reads(step):
        s = step % 2
        o = [f"ds_read_b128 {vr(OE,4)}, v{EA} offset:{1024*(step % 4)}"]
        o += [f"ds_read_b128 {vr(r,4)}, v{RA[i]} offset:{4096*s}" for i, r in enumerate((OB0, OB1))]
        o += [f"ds_read_u16_d16_hi v{H[s]+r}, v{HA[2*((r//4) % 2) + (r % 4)//2]} offset:{4096*s + 128*(8*(r//4) + r % 4)}"
              for r in range(16)]
        return o
    def tr_reads(blk):
        i = IND[blk % 2]
        return [f"ds_read_b64_tr_b16 {vr(OA,2)}, v{TA0}", f"ds_read_b64_tr_b16 {vr(OA+2,2)}, v{TA1}",
                f"ds_read_b64_tr_b16 {vr(i,2)}, v{TA0} offset:64", f"ds_read_b64_tr_b16 {vr(i+2,2)}, v{TA1} offset:64"]
    mct = f"{MF} {vr(CT,16)}, {vr(PIND,4)}, {vr(OA,4)}, 0"
    def mf_g(g):
        d = vr(g, 16)
        return [f"{MF} {d}, {vr(OE,4)}, {vr(WC,4)}, {vr(CT,16)}",
                f"{MF} {d}, {vr(OB0,4)}, {vr(SEL0,4)}, {d}",
                f"{MF} {d}, {vr(OB1,4)}, {vr(SEL1,4)}, {d}"]
    def mf_red(i):
        return [f"{MF} {ar(ACD,16)}, {vr(IND[i],4)}, {vr(BD,4)}, {ar(ACD,16)}",
                f"{MF} {ar(ACN,16)}, {vr(IND[i],4)}, {vr(BN,4)}, {ar(ACN,16)}"]
    cvts = [f"v_cvt_pk_bf16_f32 v{BD+j}, v{AS+2*j}, v{AS+2*j+1}" for j in range(4)] + \
           [f"v_cvt_pk_bf16_f32 v{BN+j}, v{AM+2*j}, v{AM+2*j+1}" for j in range(4)]
    def pk(op, d, *s):
        return f"v_pk_{op}_f32 {vr(d,2)}, " + ", ".join(x if isinstance(x, str) else vr(x, 2) for x in s)
    def pk2(k):
        o = []
        for dst, src in ((AS, SS), (AM, MM)):
            for j in range(4):
                if k % 2 == 0:
                    o.append(pk("mul", dst+2*j, src+2*j, RR+2*j))
                else:
                    o.append(pk("fma", dst+2*j, src+2*j, RR+2*j, dst+2*j))
        return o
    RE = 183
    cut = opt.get("cut", 1)
    def load_seg(u):
        side = eid_read(u + 5, RE) + idx_reads(*[(1, 1), (0, 0), (0, 1), (1, 0)][u])
        side += pn_read(u // 2) if u % 2 == 0 else tr_reads((u + 1) // 2)
        rd = reads(u + 1)
        va = mads + [f"v_or_b32 v{EP}, v{RE}, v{EP+1}"] + (ta if u % 2 == 0 else [])
        adv = {0: LI, 2: LP, 3: LE}.get(u)
        if adv:
            va = va + [f"v_add_u32 v{adv}, 0x400, v{adv}"]
        ed = [x for x in edma(u) if not x.startswith("v_or")]
        n_ = -(-len(side) // 4)
        dd = dma(u % 2, [side[n_*t:n_*t+n_] for t in range(4)])
        mode = opt.get("lmode", 0)
        if mode == 0:
            o = dd + ed + [f"s_waitcnt vmcnt({opt.get('vmtest', 6)})"]
        else:
            o = ed + dd + ["s_waitcnt vmcnt(5)"]
        o += rd + ["s_waitcnt lgkmcnt(15)"] + va
        if cut:
            o += [f"s_cmp_lt_i32 s{sK}, s{sLUT}", "s_cselect_b32 s26, s14, 0"]
        o += [f"s_add_u32 s{sK}, s{sK}, 1", f"s_cmp_ge_u32 s{sK}, s{sS}"]
        return o + ["s_setprio 0", "s_waitcnt lgkmcnt(0)", "s_barrier"]
    def comp_seg(u, first=False):
        g, gn, h = G[u % 2], G[(u + 1) % 2], H[u % 2]
        ex = [f"v_exp_f32 v{g+r}, v{g+r}" for r in range(16)]
        mg = mf_g(gn)
        if u % 2 == 0:
            mr = mf_red((u // 2 - 1) % 2)
            o = pk2(u - 1) + [mg[0]] + cvts[:6] + [mg[1]] + cvts[6:] + ex[:2] + [mg[2]] + ex[2:5] + \
                [mr[0]] + ex[5:8] + [mr[1]] + ex[8:]
        else:
            o = ([] if first else pk2(u - 1)) + [mct] + ex[:3] + [mg[0]] + ex[3:6] + [mg[1]] + ex[6:9] + [mg[2]] + ex[9:]
        for j in range(4):
            b_ = g + 4*j
            o += [pk("fma", x, x, sr(sCC, 2), sr(sCC, 2)) + " clamp" for x in (b_, b_+2)]
        for j in range(4):
            b_, hh = g + 4*j, h + 4*j
            o += [pk("mul", RR+2*j, b_, b_+2), pk("mul", MM+2*j, hh, b_+2), f"v_rcp_f32 v{RR+2*j}, v{RR+2*j}",
                  pk("add", SS+2*j, b_, b_+2), f"v_rcp_f32 v{RR+2*j+1}, v{RR+2*j+1}", pk("fma", MM+2*j, hh+2, b_, MM+2*j)]
        return o + ["s_setprio 1", "s_barrier"]

    peel = opt.get("peel", 0)
    one = lambda l: [[x] for x in l]
    def fill_a():
        a(f"s_mov_b32 s24, s4\ns_mov_b32 s25, s5\ns_mov_b32 s26, s14\ns_sub_u32 s{sLUT}, s{sS}, 3")
        emit(eid_read(1) + eid_read(2, 1) + idx_reads(0, 1) + [f"ds_read2_b32 {vr(TA0,2)}, v{LP} offset0:6 offset1:38"])
        a("s_waitcnt lgkmcnt(0)")
        emit(edma(1) + edma(2, 1) + dma(1, one(mads)))
        emit(eid_read(3) + idx_reads(1, 0) + ta)
    def fill_b():
        a("s_waitcnt lgkmcnt(0)")
        emit(edma(3) + dma(0, one(mads)) + eid_read(4) + idx_reads(1, 1) + pn_read(1))
        a(f"v_add_u32 v{LP}, 0x200, v{LP}\nv_add_u32 v{LI}, 0x400, v{LI}\ns_mov_b32 s{sK}, 1")
    sort(True)
    a(f"K_sorted:\ns_cmp_lg_u32 s{sW}, {SW}\ns_cbranch_scc1 K_c2")
    consts2()
    a("K_c2:")
    if opt.get("c3", 0) == 2:
        consts3()
    poll_check("t", WS_FLG, FS, PW)
    a("s_waitcnt lgkmcnt(0)\ns_barrier")
    st(9)
    if opt.get("c3", 0) == 2:
        fill_a()
    elif opt.get("c3", 0):
        a(f"s_cmp_eq_u32 s{sSET}, 0\ns_cbranch_scc1 K_f0")
        consts3()
        a("K_f0:")
        fill_a()
        a(f"s_cmp_lg_u32 s{sSET}, 0\ns_cbranch_scc1 K_f1")
        consts3()
        a("K_f1:")
    else:
        fill_a()
        consts3()
    st(13)
    for i in range(4):
        a(f"v_mov_b32 v{108+i}, 0")
    a(f"""
    s_sub_u32 s51, {N*256}, s{sXO}
    s_min_u32 s34, s51, {SB*256}
    s_add_u32 s32, s10, s{sXO}
    s_addc_u32 s33, s11, 0
    {MF} {ar(ACD,16)}, v[108:111], v[108:111], 0
    s_mov_b32 s{sCC}, {hex(f32(2.0**-SHIFT))}
    s_mov_b32 s{sCC+1}, {hex(f32(2.0**-SHIFT))}
    {MF} {ar(ACN,16)}, v[108:111], v[108:111], 0
    K_fillb:
    v_mov_b32 v{HA[0]}, v182
    v_xor_b32 v{HA[1]}, 16, v182
    v_xor_b32 v{HA[2]}, 64, v182
    v_xor_b32 v{HA[3]}, 0x50, v182
    """)
    a(f"""
    s_and_b32 s50, s{sS}, 1
    s_cmp_gt_u32 s50, s{sTILE}
    s_cbranch_scc0 K_nospread
    s_mul_i32 s50, s{sSET}, {LSET}
    s_lshl_b32 s51, s{sS}, 8
    s_add_u32 s50, s50, s51
    v_lshrrev_b32 v108, 1, v2
    v_bfi_b32 v108, 1, v2, v108
    v_lshl_add_u32 v108, v108, 3, s50
    v_and_b32 v109, 2, v2
    v_lshl_add_u32 v108, v109, 7, v108
    ds_read_b64 v[110:111], v108 offset:{LIST - 256}
    v_lshl_add_u32 v108, v2, 3, s50
    s_waitcnt lgkmcnt(0)
    ds_write_b64 v108, v[110:111] offset:{LIST - 256}
    K_nospread:
    """)
    emit(tr_reads(0))
    fill_b()
    a(f"{mct}\ns_waitcnt lgkmcnt(0)")
    emit(mads + ta + [f"v_mov_b32 v{x}, 0" for x in (list(range(AS, AS+16)) if peel else list(range(SS, SS+16)) + list(range(RR, RR+8)))])
    st(14)
    stag = opt.get("stag", 1)
    if stag:
        a(f"s_cmp_eq_u32 s{sSET}, 0\ns_cbranch_scc1 K_lead\ns_barrier\nK_lead:")
    a("s_waitcnt vmcnt(5)\ns_barrier")
    r0 = reads(1)
    emit(r0[:11] + edma(4) + r0[11:18])
    a("s_waitcnt lgkmcnt(15)")
    emit(mf_g(G[1]) + r0[18:] + eid_read(5))
    a(f"s_waitcnt lgkmcnt(0)\nv_or_b32 v{EP}, v{EP}, v{EP+1}")
    st(10)
    if stag:
        a("s_setprio 1\ns_barrier")
    else:
        a(f"""
        s_cmp_eq_u32 s{sSET}, 0
        s_barrier
        s_cbranch_scc1 K_lead
        s_barrier
        s_setprio 1
        K_lead:
        """)
    if peel:
        emit(load_seg(1) + comp_seg(1, first=True))
        a("s_cbranch_scc1 K_drain0\ns_branch K_loop1")
        a.l.append(".p2align 6")
        a("K_loop:")
        for u in range(4):
            if u == 2:
                a("K_loop1:")
            emit(load_seg(u) + comp_seg(u))
            a(f"s_cbranch_scc1 K_drain{0 if u < 2 else ''}" if u < 3 else "s_cbranch_scc0 K_loop")
        a("s_branch K_drain\nK_drain0:")
    else:
        a.l.append(f".p2align {opt.get('al', 6)}")
        a("K_loop:")
        for u in (1, 2, 3, 0):
            emit(load_seg(u) + comp_seg(u))
            a(f"s_cbranch_scc1 K_drain{0 if u < 2 else ''}" if u else "s_cbranch_scc0 K_loop")
        a("K_drain0:")
    emit([f"v_mov_b32 v{IND[1]+j}, v{IND[0]+j}" for j in range(4)])
    a(f"""
    K_drain:
    s_setprio 0
    s_cmp_lg_u32 s{sSET}, s{sXB}
    s_cbranch_scc1 K_done
    s_barrier
    K_done:
    s_bitcmp1_b32 s{sS}, 0
    s_cbranch_scc1 K_half
    """)
    emit(pk2(1))
    a("K_last:")
    emit(cvts + ["s_nop 1"] + mf_red(1))
    st(11)
    a(f"""
    s_cmp_lg_u32 s{sMORE}, 0
    s_cbranch_scc1 K_again
    v_and_b32 v41, 31, v2
    s_and_b32 s50, s{sW}, 1
    s_lshl_b32 s50, s50, 7
    s_add_u32 s50, s50, s{sRING}
    v_lshl_add_u32 v42, v41, 2, s50
    v_and_b32 v40, 32, v2
    v_lshl_add_u32 v42, v40, 5, v42
    s_mov_b32 s50, {hex(f32(1e-6 * 2.0**SHIFT))}
    s_mov_b32 s51, s50
    s_mov_b32 s56, 0xffff0000
    """)
    Dn, Nn, Uu = NV + ACD, NV + ACN, NV + AU
    un = []
    for k in range(8):
        un += [f"v_lshlrev_b32 v{64+2*k}, 16, v{XR+k}", f"v_and_b32 v{65+2*k}, s56, v{XR+k}",
               f"v_lshlrev_b32 v{96+2*k}, 16, v{Uu+k}", f"v_and_b32 v{97+2*k}, s56, v{Uu+k}"]
    emit(un[:8])
    for r in range(0, 16, 2):
        a(pk("add", Dn+r, Dn+r, "s[50:51]"))
    for r in range(16):
        a(f"v_rcp_f32 v{Dn+r}, v{Dn+r}")
    a("s_waitcnt vmcnt(0)")
    for r in range(0, 16, 2):
        a(pk("mul", Dn+r, Dn+r, Nn+r))
        row = 8*(r//4) + r % 4
        a(f"ds_write2st64_b32 v42, v{Dn+r}, v{Dn+r+1} offset0:{row} offset1:{row+1}")
    emit(un[8:])
    a(f"""
    v_lshrrev_b32 v44, 4, v0
    v_bfe_u32 v45, v0, 2, 2
    v_lshlrev_b32 v45, 13, v45
    v_lshl_add_u32 v45, v44, 8, v45
    v_and_b32 v46, 7, v0
    v_lshl_add_u32 v45, v46, 5, v45
    v_add_u32 v45, {RING}, v45
    v_add_u32 v46, 0x8000, v45
    v_cmp_gt_u32 vcc, s{sVS}, v44
    v_lshlrev_b32 v43, 4, v0
    s_movk_i32 s51, 8192
    v_cndmask_b32 v45, v46, v45, vcc
    s_waitcnt lgkmcnt(0)
    s_barrier
    ds_read_b128 v[48:51], v45
    ds_read_b128 v[52:55], v45 offset:16
    ds_read_b128 v[56:59], v46
    ds_read_b128 v[60:63], v46 offset:16
    """)
    for k in range(8):
        a(pk("add", 96+2*k, 96+2*k, 64+2*k))
    for i in range(2):
        a(f"s_waitcnt lgkmcnt({2-2*i})")
        for j in range(0, 8, 2):
            a(pk("add", 48+8*i+j, 48+8*i+j, 96+8*i+j))
        for j in range(8):
            a(f"v_max_f32 v{48+8*i+j}, v{64+8*i+j}, v{48+8*i+j}")
        for j in range(4):
            a(f"v_cvt_pk_bf16_f32 v{80+4*i+j}, v{48+8*i+2*j}, v{48+8*i+2*j+1}")
        a(f"buffer_store_dwordx4 {vr(80+4*i,4)}, v43, s[32:35], {'s51' if i else '0'} offen {opt.get('ost','sc1')}")
    if st.on:
        a("s_waitcnt vmcnt(0)")
        a(f"v_writelane_b32 v205, s{sS}, 15")
    st(12)
    st.flush()
    a("K_end:\ns_endpgm\nK_half:")
    emit(pk2(0))
    a("s_branch K_last")
    a(f"""
    K_clr:
    s_waitcnt lgkmcnt(0)
    s_mov_b32 s20, s52
    s_mov_b32 s21, s53
    s_mov_b32 s12, s78
    s_mov_b32 s13, s79
    s_mov_b32 s14, {WS_END}
    s_mov_b32 s15, 0x20000
    s_mov_b32 s28, s76
    s_mov_b32 s29, s77
    s_movk_i32 s30, 256
    s_mov_b32 s31, 0x20000
    v_mov_b32 v8, 0
    v_mov_b32 v9, 0
    v_mov_b32 v10, 0
    v_mov_b32 v11, 0
    v_lshlrev_b32 v4, 7, v2
    s_mov_b32 s50, {WS_FLG}
    buffer_store_dwordx4 v[8:11], v4, s[12:15], s50 offen sc1
    """)
    emit(xdma(XP, SB*256) + xdma(ERING, 0))
    a(f"""
    v_and_b32 v12, 4, v2
    v_cmp_eq_u32 vcc, 0, v12
    v_mov_b32 v13, 0x71807180
    v_and_b32 v5, 0x1f0, v1
    v_cndmask_b32 v12, 0, v13, vcc
    v_mov_b32 v13, v12
    v_mov_b32 v14, v12
    v_mov_b32 v15, v12
    s_mov_b32 s50, {DUMMY*512}
    buffer_store_dwordx4 v[12:15], v5, s[12:15], s50 offen sc1
    s_branch K_np1
    K_pub:
    s_mov_b64 exec, 1
    s_waitcnt vmcnt({5 + nw})
    buffer_store_dword v{ONE}, off, s[28:31], 0 sc1
    s_mov_b64 exec, -1
    s_waitcnt vmcnt({nw + 1})
    s_branch K_np2
    """)
    koff = sum(o << (8*i) for i, o in enumerate((40, 64, 32, 56, 48, 88, 8, 72)))
    a(f"""
    K_prod:
    s_lshl_b32 s50, s{sW}, 3
    s_mov_b32 s92, {hex(koff & 0xffffffff)}
    s_mov_b32 s93, {hex(koff >> 32)}
    s_lshr_b64 s[92:93], s[92:93], s50
    s_and_b32 s92, s92, 0xff
    s_load_dwordx2 s[96:97], s[0:1], s92
    s_mov_b32 s20, s52
    s_mov_b32 s21, s53
    v_lshlrev_b32 v4, 2, v0
    v_mov_b32 v62, 0
    ds_write_b32 v4, v62
    v_mov_b32 v40, -1
    v_mov_b32 v41, -1
    v_mov_b32 v42, -1
    v_mov_b32 v43, -1
    """)
    for i in range(4):
        a(f"ds_write_b128 v1, v[40:43] offset:{IMG + 8192*i}")
    a(f"""
    v_mov_b32 v5, 128
    v_writelane_b32 v5, 16, 4
    s_mov_b32 s50, {WS_END // 256}
    v_writelane_b32 v5, s50, 5
    s_mov_b32 s50, {E*32 // 256}
    v_writelane_b32 v5, s50, 6
    s_mov_b32 s50, {N}
    v_writelane_b32 v5, s50, 7
    s_and_b32 s93, s2, 0xf0
    v_readlane_b32 s50, v5, s{sW}
    v_add_u32 v4, s93, v85
    s_waitcnt lgkmcnt(0)
    v_mul_u32_u24 v4, s50, v4
    s_barrier
    """)
    wm = 0
    emit(xdma(ERING, 0))
    a(f"""
    s_mov_b64 exec, 0xffff
    global_load_dword v60, v4, s[96:97] sc1
    s_mov_b64 exec, -1
    s_sub_u32 s90, s82, s88
    v_add_u32 v4, 8192, v1
    v_cmp_gt_u32 s[92:93], s90, v4
    s_mov_b32 s91, {-SB & 0xffffffff}
    v_mov_b32 v6, 4
    v_lshlrev_b32 v7, 22, v0
    v_mov_b32 v36, 0
    v_mov_b32 v37, 0
    v_mov_b32 v38, 0
    v_mov_b32 v39, 0
    """)
    for k in range(8):
        a(f"v_add_u32 v{68+k}, {hex(((2048*(k//4) + k % 4) << 20) & 0xffffffff)}, v7")
    for g in range(2):
        a(f"s_waitcnt vmcnt({6 - g + wm})")
        if g == 0:
            st(1)
        for j in range(4):
            d, t = 8 + 4*g + j, 24 + 4*g + j
            a(f"v_mul_u32_u24 v{44+4*g+j}, 21400, v{d}")
            a(f"v_lshrrev_b32 v{44+4*g+j}, 20, v{44+4*g+j}")
            a(f"v_lshlrev_b32 v{t}, 2, v{44+4*g+j}")
        if g:
            a("s_mov_b64 exec, s[92:93]")
        for j in range(4):
            a(f"ds_add_rtn_u32 v{32+4*g+j}, v{24+4*g+j}, v6")
    a(f"""
    s_mov_b64 exec, -1
    s_lshl_b32 s56, s62, 7
    s_add_u32 s56, s56, {WS_SLOT}
    s_add_u32 s57, s56, {1 << 20}
    s_add_u32 s58, s56, {2 << 20}
    s_add_u32 s59, s56, {3 << 20}
    v_lshrrev_b32 v5, 3, v0
    v_and_b32 v61, 0x70, v1
    v_lshl_add_u32 v61, v5, 14, v61
    s_mov_b32 s4, s78
    s_mov_b32 s5, s79
    s_mov_b32 s12, s78
    s_mov_b32 s13, s79
    s_mov_b32 s14, {WS_END}
    s_mov_b32 s15, 0x20000
    s_waitcnt vmcnt(3)
    """)
    wp = wdma()
    for k in range(8):
        s_, d = 16 + k, 8 + k
        a(f"v_mad_i32_i24 v{d}, v{44+k}, s91, v{d}")
        a(f"v_and_b32 v4, 7, v{s_}")
        a(f"v_lshl_or_b32 v{d}, v{d}, 3, v4")
        a(f"v_lshrrev_b32 v{s_}, 3, v{s_}")
        a(f"v_lshl_or_b32 v{d}, v{d}, 11, v{68+k}")
        a(f"v_or_b32 v{s_}, v{d}, v{s_}")
    a("s_waitcnt lgkmcnt(0)")
    for k in range(8):
        if k == 4:
            a("s_mov_b64 exec, s[92:93]")
        a(f"v_add_u32 v4, v{32+k}, v{24+k}")
        a(f"v_and_b32 v4, 0x7f, v4")
        a(f"v_lshl_add_u32 v{44+k}, v{24+k}, 5, v4")
        a(f"ds_write_b32 v{44+k}, v{16+k} offset:{IMG}")
    a(f"""
    s_mov_b64 exec, -1
    v_or3_b32 v4, v32, v33, v34
    v_or3_b32 v5, v35, v36, v37
    v_or3_b32 v4, v4, v38, v39
    v_or_b32 v4, v4, v5
    v_cmp_lt_u32 vcc, 0x7f, v4
    s_mov_b64 exec, vcc
    ds_write_b32 v62, v6 offset:1024
    s_mov_b64 exec, -1
    s_waitcnt vmcnt(1) lgkmcnt(0)
    s_barrier
    ds_read_b32 v4, v62 offset:1024
    """)
    OUTR = [8, 12, 68, 72]
    def img_reads():
        for i in range(4):
            a(f"ds_read_b128 {vr(OUTR[i],4)}, v1 offset:{IMG + 8192*i}")
    img_reads()
    a(f"""
    s_waitcnt lgkmcnt(4)
    v_readfirstlane_b32 s50, v4
    s_cmp_lg_u32 s50, 0
    s_cbranch_scc1 K_slow
    K_out:
    """)
    for i in range(4):
        a(f"s_waitcnt lgkmcnt({3-i})")
        a(f"buffer_store_dwordx4 {vr(OUTR[i],4)}, v61, s[12:15], s{56+i} offen sc1")
    st(2)
    common(64)
    common2(a)
    wb = opt.get("wbefore", 2)
    emit([ready_load] + wcdma + wp[:3*wb])
    a(f"v_add_u32 v{FX}, {ERING}, v{FX}")
    for q in range(8):
        emit(xfrag(q))
    emit(misc[:3])
    a(f"s_add_u32 s96, s97, {WS_FLG + 4096}\ns_mov_b32 s97, {OOB}\ns_waitcnt vmcnt({wb + 1})")
    ready_check("rp")
    a(f"""
    s_mov_b64 exec, 1
    s_barrier
    buffer_store_dword v{ONE}, off, s[12:15], s96 sc1
    s_mov_b64 exec, -1
    """)
    st(3)
    emit(wp[3*wb:])
    lds_reset(True)
    left = lambda q: 7 - q + (1 if q < wb else 0)
    emit([f"s_waitcnt vmcnt({left(0)})"] + misc[3:] + wfrag(0))
    for q in range(8):
        if q < 7:
            emit([f"s_waitcnt vmcnt({left(q + 1)})"] + wfrag(q + 1))
        a(f"s_waitcnt lgkmcnt({2 if q < 7 else 0})")
        emit([gm(q, 0, D1), gm(q, 1, D1)])
    a("s_branch K_join")


    a("""
    K_slow:
    v_lshlrev_b32 v5, 4, v2
    s_waitcnt lgkmcnt(0)
    ds_read_b128 v[8:11], v5
    s_waitcnt lgkmcnt(0)
    v_add_u32 v13, v8, v9
    v_add_u32 v14, v13, v10
    v_add_u32 v15, v14, v11
    v_mov_b32 v4, v15
    """)
    scan64(a, [4])
    a("""
    v_sub_u32 v40, v4, v15
    v_add_u32 v41, v40, v8
    v_add_u32 v42, v40, v13
    v_add_u32 v43, v40, v14
    ds_write_b128 v5, v[40:43] offset:2048
    """)
    for k in range(8):
        a(f"ds_read_b32 v{24+k}, v{24+k} offset:2048")
    a("s_waitcnt lgkmcnt(0)")
    for k in range(8):
        a(f"s_mov_b64 exec, {'s[92:93]' if k >= 4 else '-1'}")
        a(f"v_add_u32 v{24+k}, v{24+k}, v{32+k}")
        a(f"ds_write_b32 v{24+k}, v{16+k} offset:{STG}")
        a(f"v_cmp_gt_u32 vcc, 0x80, v{32+k}")
        a("s_mov_b64 exec, vcc")
        a(f"ds_write_b32 v{44+k}, v{16+k} offset:{IMG}")
    a(f"""
    s_mov_b64 exec, -1
    s_waitcnt lgkmcnt(0)
    s_barrier
    v_mov_b32 v16, {62 << 14}
    """)
    for j in range(4):
        a(f"""
        v_add_u32 v12, {4*j}, v5
        v_add_u32 v13, 124, v12
        v_and_b32 v13, 0x7f, v13
        v_lshl_add_u32 v13, v12, 5, v13
        v_add_u32 v14, 120, v{40+j}
        v_lshl_or_b32 v14, v14, 18, v16
        v_add_u32 v15, -124, v{8+j}
        v_cmp_lt_u32 vcc, 0x80, v{8+j}
        s_mov_b64 exec, vcc
        ds_write_b32 v13, v14 offset:{IMG}
        ds_write_b32 v{40+j}, v15 offset:{STG + 120}
        s_mov_b64 exec, -1
        """)
    a(f"""
    ds_read_b128 v[16:19], v1 offset:{STG}
    ds_read_b128 v[20:23], v1 offset:{STG + 8192}
    s_add_u32 s50, s88, {WS_REC}
    s_add_u32 s80, s4, s50
    s_addc_u32 s81, s5, 0
    s_mov_b32 s82, s90
    s_movk_i32 s50, 8192
    s_waitcnt lgkmcnt(0)
    buffer_store_dwordx4 v[16:19], v1, s[80:83], 0 offen sc1
    buffer_store_dwordx4 v[20:23], v1, s[80:83], s50 offen sc1
    """)
    img_reads()
    a("s_branch K_out")

    zero_masks = lambda ks: [f"s_mov_b64 {sr(sM+2*k,2)}, 0" for k in ks]
    a("""
    K_again:
    s_waitcnt vmcnt(0) lgkmcnt(0)
    s_barrier
    """)
    lds_reset(True)
    a(f"""
    s_cmp_eq_u32 s{sMODE}, 3
    s_cbranch_scc1 K_next
    """)
    rec_loads()
    a(f"""
    s_waitcnt vmcnt(0)
    s_cmp_eq_u32 s{sMODE}, 1
    s_cbranch_scc0 K_marks
    s_mov_b32 s{sMODE}, 2
    s_mov_b64 s[56:57], 0
    """)
    classes(range(4, 8), True)
    emit(zero_masks(range(4)))
    a(f"""
    s_branch K_resort
    K_marks:
    s_mov_b32 s{sMODE}, 3
    v_mov_b32 v84, 0
    """)
    for k in range(8):
        a(f"""
        v_bfe_u32 v85, v{REC+k}, 14, 6
        v_cmp_eq_u32 vcc, 62, v85
        s_nop 1
        v_cndmask_b32 v84, v84, v{REC+k}, vcc
        """)
    a(f"""
    s_nop 1
    v_or_b32_dpp v84, v84, v84 quad_perm:[1,0,3,2] row_mask:0xf bank_mask:0xf
    s_nop 1
    v_or_b32_dpp v84, v84, v84 quad_perm:[2,3,0,1] row_mask:0xf bank_mask:0xf
    v_cmp_ne_u32 vcc, 0, v84
    v_lshrrev_b32 v84, 20, v84
    v_add_lshl_u32 v84, v84, v{PB}, 2
    s_mov_b32 s{sSTART}, {WS_REC}
    buffer_load_dword v{SLEN}, v84, s[12:15], s{sSTART} offen sc1
    v_add_u32 v{SEG}, v84, v{SIDX}
    s_mov_b32 s{sSTART}, {WS_REC + 4 - 64}
    s_waitcnt vmcnt(0)
    v_cndmask_b32 v{SLEN}, 0, v{SLEN}, vcc
    v_min_u32 v{SLEN}, {CH*4}, v{SLEN}
    v_add_u32 v{SLEN}, 64, v{SLEN}
    K_next:
    s_add_u32 s{sSTART}, s{sSTART}, 64
    v_add_u32 v{SLEN}, -64, v{SLEN}
    """)
    rec_loads(1)
    a(f"""
    v_cmp_lt_i32 s[56:57], 64, v{SLEN}
    v_sub_u32 v84, v{SLEN}, v{SIDX}
    """)
    for k in range(4):
        a(f"v_cmp_lt_i32 {sr(sM+2*k,2)}, {4*k}, v84")
    emit(zero_masks(range(4, 8)))
    a("K_resort:")
    list_ptrs()
    sort(False)
    a(f"""
    s_cmp_eq_u32 s{sMODE}, 2
    s_cselect_b32 s{sMORE}, s{sMARK}, s{sMORE}
    s_cmp_eq_u32 s{sMODE}, 1
    s_cselect_b32 s{sMORE}, 1, s{sMORE}
    s_cbranch_scc1 K_sorted
    s_waitcnt lgkmcnt(0)
    s_barrier
    """)
    fill_a()
    a(f"""
    s_branch K_fillb
    K_over:
    s_cmp_lg_u32 s{sMODE}, 0
    s_cbranch_scc1 K_end
    s_mov_b32 s{sMODE}, 1
    s_mov_b32 s{sMARK}, s{sMORE}
    s_mov_b64 s[56:57], 0
    s_waitcnt lgkmcnt(0)
    s_barrier
    """)
    lds_reset(False)
    emit(zero_masks(range(4, 8)))
    a("s_branch K_resort\nK_codeend:")
    d = desc(name, 256, 100, 256)
    ln = f"; @launch grid=(256,1,1) block=(512,1,1) lds={LDS}\n"
    if opt.get("probe"):
        import gen
        ln = f"; @launch kernel={name} grid=(256,1,1) block=(512,1,1) lds={LDS}\n; @launch kernel=probe_kernel grid=(1,1,1) block=(64,1,1) lds=0\n"
        d += gen.gen_probe(a, opt)
    hdr = """; GatedGCN layer in one launch: each workgroup builds the table rows of its 49 nodes, half of them also
; partition a chunk of edges by destination bin; after two counted hand-offs every workgroup sorts its bin
; and runs the gate / aggregation loop.
""" + ln + '.amdgcn_target "amdgcn-amd-amdhsa--gfx950"\n.text\n'
    return hdr + a.text() + d

if __name__ == "__main__":
    opt = {}
    out = f"cdna_kernels/{NAME}.s"
    for x in sys.argv[1:]:
        k, v = x.split("=", 1)
        if k == "out":
            out = v
        else:
            opt[k] = int(v) if v.lstrip("-").isdigit() else v
    open(out, "w").write(generate(opt))
    print("wrote", out)
```

```python
import sys
from gen import (NAME, N, E, SB, CH, P, RG, DUMMY, WS_REC, WS_SLOT, WS_END, SHIFT, LOG2E, WS_STAMP, MF,
                 f32, Asm, vr, ar, sr, scan64, desc, head, Stamps)

TW0, TW1, TRASH = 2048, 4096, 6144
LIST = 7168
CAPS = 2560
LSET = CAPS * 8
ATAB = LIST + 2 * LSET
AST = 576
WCL = 77824
WS_FLG = 0xA00000
XP = ATAB
ERING = 81920
RING = 98304
LDS = RING + 65536
LIMIT = 2304 * 8
IMG, STG = 4096, 36864
SDW = "dst_sel:DWORD dst_unused:UNUSED_PAD"
OOB = 0x7000000

def generate(opt=None):
    opt = opt or {}
    a = Asm()
    name = NAME + "_kernel"
    cmask = {8: 0x7FC, 4: 0x7F8, 2: 0x7F0}[opt.get("R", 8)]
    tfl = opt.get("tfl", "sc1").replace("+", " ")
    tst = opt.get("tst", "sc1").replace("+", " ")
    head(a, name)
    st = Stamps(a, opt.get("stamp"), 205, WS_STAMP)
    SEL0, SIX, PIND, WC, CT, RR = 4, 8, 12, 16, 84, 248
    G = [52, 68]; H = [20, 36]
    OE, RW, OB, OA = 100, 104, 108, 120
    IND = [124, 128]
    SS, MM, AS, AM, BD, BN = 132, 140, 148, 156, 164, 168
    IX, OF0, OF1, EP = 172, 176, 177, 178
    RA = [180, 181]
    EA, LI, LE, LP, TA0, TA1, TC = 184, 185, 186, 187, 188, 189, 190
    XR = 192
    SEG, SLEN, SIDX, PB = 200, 201, 202, 203
    NV = 208
    ACD, ACN, AU = 0, 16, 32
    sW, sSET, sTILE, sBIN = 3, 36, 37, 38
    sRING, sEM0, sS, sK, sVS, sSTART, sLUT, sMORE, s512 = 39, 40, 41, 42, 43, 44, 45, 46, 47
    sCC, sM, sMODE, sMARK, sXO, sPROD, sXB = 48, 64, 7, 9, 8, 6, 61
    REC, CA, RK, BB, EN, T = 36, 44, 52, 60, 100, 76
    XF, WA, DA, SO, WCR = 100, 0, 36, 68, 164
    VW, FW, FX, FS, FR, FG, FA, FB, FU = 168, 169, 170, 171, 172, 173, 207, 204, 191
    ONE, PL = 206, 164

    def emit(lst):
        for x in lst:
            a(x)
    ar = lambda b_, n_=1: vr(NV + b_, n_)

    cw = opt.get("cw", 8)
    a("s_cmp_ge_u32 s2, 256\ns_cbranch_scc1 K_end")
    if opt.get("perm"):
        a(f"s_mul_i32 s2, s2, {opt['perm']}\ns_lshr_b32 s3, s2, 3\ns_and_b32 s3, s3, 7\ns_xor_b32 s2, s2, s3\ns_and_b32 s2, s2, 255")
    st(0)
    a(f"""
    s_load_dwordx8 s[52:59], s[0:1], 0
    s_load_dwordx16 s[64:79], s[0:1], 32
    s_getpc_b64 s[92:93]
    K_pc:
    s_and_b32 s50, s2, {0xf8 if cw == 8 else 0x78}
    s_lshl_b32 s50, s50, {0 if cw == 8 else 1}
    v_add_u32 v4, s50, v0
    v_mul_u32_u24 v4, (K_codeend-K_pc)/1024*4, v4
    v_cmp_gt_u32 vcc, {cw}, v0
    s_and_saveexec_b64 s[90:91], vcc
    s_cbranch_execz K_nocw
    global_load_dword v63, v4, s[92:93]
    K_nocw:
    s_mov_b64 exec, -1
    v_lshrrev_b32 v1, 6, v0
    v_and_b32 v2, 63, v0
    v_readfirstlane_b32 s{sW}, v1
    s_and_b32 s60, s2, 7
    s_lshr_b32 s61, s2, 3
    s_lshl_b32 s50, s60, 5
    s_add_u32 s{sBIN}, s50, s61
    v_lshrrev_b32 v84, 4, v2
    v_and_b32 v85, 15, v2
    v_bfe_u32 v3, v0, 4, 4
    v_xor_b32 v3, v3, v85
    v_lshlrev_b32 v3, 4, v3
    v_lshl_add_u32 v3, v84, 8, v3
    v_lshlrev_b32 v1, 4, v0
    s_mul_i32 s{sXO}, s{sBIN}, {SB*256}
    s_lshl_b32 s90, s{sW}, 10
    s_add_u32 s51, s{sXO}, s90
    s_add_u32 s91, s51, 8192
    s_cmp_lt_u32 s{sW}, 5
    s_cselect_b32 s91, s91, {OOB}
    s_mov_b32 s22, {N*256}
    s_mov_b32 s23, 0x20000
    v_lshrrev_b32 v86, 2, v2
    v_and_b32 v87, 3, v2
    v_lshlrev_b32 v{VW}, 4, v87
    v_lshl_add_u32 v{VW}, v86, 8, v{VW}
    v_mov_b32 v{ONE}, 1
    s_lshr_b32 s50, s2, 4
    s_lshl_b32 s50, s50, 3
    s_add_u32 s62, s50, s60
    s_lshr_b32 s{sSET}, s{sW}, 2
    s_and_b32 s{sTILE}, s{sW}, 3
    s_mov_b32 s83, 0x20000
    s_mov_b32 s87, 0x20000
    s_bitcmp1_b32 s2, 3
    s_cbranch_scc1 K_np
    s_mul_i32 s88, s62, {CH*4}
    s_add_u32 s89, s88, 8192
    s_add_u32 s82, s88, {CH*4}
    s_min_u32 s82, s82, {E*4}
    s_mov_b32 s86, s82
    s_waitcnt lgkmcnt(0)
    s_mov_b32 s80, s58
    s_mov_b32 s81, s59
    s_mov_b32 s84, s56
    s_mov_b32 s85, s57
    buffer_load_dwordx4 v[8:11], v1, s[80:83], s88 offen
    buffer_load_dwordx4 v[12:15], v1, s[80:83], s89 offen
    buffer_load_dwordx4 v[16:19], v1, s[84:87], s88 offen
    buffer_load_dwordx4 v[20:23], v1, s[84:87], s89 offen
    s_branch K_prod
    K_np:
    """)
    def xdma(base, delta):
        o = []
        for i, so in enumerate(("s51", "s91")):
            o.append(f"s_add_u32 m0, s90, {base + 8192*i}")
            o.append(f"s_sub_u32 s50, {so}, {delta}")
            o.append("buffer_load_dwordx4 v3, s[20:23], s50 offen lds")
        return o
    def wdma():
        o = []
        for q in range(8):
            o += [f"s_add_u32 m0, s{sRING}, {1024*q}", f"s_add_u32 s89, s63, {4096*q}",
                  f"buffer_load_dwordx4 v{VW}, s[24:27], s89 offen lds"]
        return o
    wcdma = [f"s_lshl_b32 s89, s{sTILE}, 10", f"s_add_u32 m0, s89, {WCL}", "s_nop 0",
             f"buffer_load_dwordx4 v{VW}, s[32:35], s63 offen lds"]
    def common(first):
        a(f"""
        s_lshl_b32 s{sRING}, s{sW}, 13
        s_add_u32 s{sRING}, s{sRING}, {RING}
        s_lshl_b32 s63, s{sTILE}, 6
        s_cmp_eq_u32 s{sSET}, 0
        s_cselect_b32 s64, s64, s70
        s_cselect_b32 s65, s65, s71
        s_cselect_b32 s66, s66, s72
        s_cselect_b32 s67, s67, s73
        s_mov_b32 s24, s{first}
        s_mov_b32 s25, s{first+1}
        s_mov_b32 s26, 32768
        s_mov_b32 s27, 0x20000
        """)
    def common2(x):
        x(f"""
        s_mov_b32 s32, s68
        s_mov_b32 s33, s69
        s_mov_b32 s34, 4096
        s_mov_b32 s35, 0x20000
        s_mov_b32 s14, {WS_END}
        s_mov_b32 s15, 0x20000
        s_movk_i32 s30, 256
        s_mov_b32 s31, 0x20000
        s_mov_b32 s4, s78
        s_mov_b32 s5, s79
        s_mov_b32 s12, s78
        s_mov_b32 s13, s79
        s_mov_b32 s10, s74
        s_mov_b32 s11, s75
        s_mov_b32 s28, s76
        s_mov_b32 s29, s77
        v_lshrrev_b32 v88, 5, v2
        v_and_b32 v89, 31, v2
        v_lshrrev_b32 v90, 2, v85
        v_lshl_add_u32 v90, v88, 3, v90
        v_and_b32 v91, 1, v84
        v_lshlrev_b32 v91, 5, v91
        v_lshl_add_u32 v91, v87, 3, v91
        v_lshl_add_u32 v90, v90, 6, v91
        v_add_u32 v{FW}, s{sRING}, v90
        s_lshl_b32 s50, s{sTILE}, 10
        s_add_u32 s50, s50, {WCL}
        v_add_u32 v{WCR}, s50, v90
        v_xor_b32 v90, v88, v85
        v_lshlrev_b32 v90, 4, v90
        v_lshl_add_u32 v{FX}, v89, 8, v90
        v_lshlrev_b32 v93, 3, v88
        v_lshrrev_b32 v94, 4, v0
        v_xor_b32 v90, v94, v0
        v_and_b32 v90, 15, v90
        v_lshlrev_b32 v90, 4, v90
        v_lshl_add_u32 v{FU}, v94, 8, v90
        s_mov_b32 s94, {hex(f32(-LOG2E))}
        s_mov_b32 s95, {hex(f32(-LOG2E))}
        s_lshr_b32 s50, s62, 2
        s_lshl_b32 s50, s50, 7
        s_and_b32 s97, s2, 3
        s_lshl_b32 s97, s97, 2
        s_add_u32 s97, s97, s50
        s_cmp_eq_u32 s{sW}, 0
        s_cselect_b32 s97, s97, {OOB}
        s_cselect_b32 s{sPROD}, 0, {OOB}
        """)
    def wfrag(q):
        return [f"ds_read_b64_tr_b16 {ar(WA+4*q+2*z,2)}, v{FW} offset:{1024*q+256*z}" for z in range(2)]
    def xfrag(q, off=0):
        return [f"v_xor_b32 v3, {32*q}, v{FX}", f"ds_read_b128 {vr(XF+8*q,4)}, v3 offset:{off}",
                f"ds_read_b128 {vr(XF+8*q+4,4)}, v3 offset:{off+8192}"]
    misc = [f"v_add_u32 v3, {ERING}, v{FU}", f"ds_read_b128 {vr(XR,4)}, v3", f"ds_read_b128 {vr(XR+4,4)}, v3 offset:8192",
            f"ds_read_b64_tr_b16 {vr(WCR+2,2)}, v{WCR} offset:256", f"ds_read_b64_tr_b16 {vr(WCR,2)}, v{WCR}"]
    def gm(q, rt, base=DA):
        d = vr(base + 16*rt, 16)
        return f"{MF} {d}, {ar(WA+4*q,4)}, {vr(XF+8*q+4*rt,4)}, {'0' if q == 0 else d}"
    RDY = 99
    ready_load = f"buffer_load_dword v{RDY}, off, s[28:31], s{sPROD} sc1"
    def ready_check(tag):
        a(f"""
        s_cmp_lg_u32 s{sW}, 0
        s_cbranch_scc1 K_{tag}
        s_mov_b32 s50, 0
        K_{tag}_spin:
        v_cmp_eq_u32 vcc, 0, v{RDY}
        s_cbranch_vccz K_{tag}
        {ready_load}
        s_add_u32 s50, s50, 1
        s_cmp_lt_u32 s50, 0x40000
        s_waitcnt vmcnt(0)
        s_cbranch_scc1 K_{tag}_spin
        K_{tag}:
        """)
    D1 = 4
    def conv(rt, addrs, base=DA, mul=None, off=lambda j: 0):
        o = []
        for j in range(4):
            b_ = base + 16*rt + 4*j
            if mul:
                o += [f"v_mul_f32 v{b_+i}, {mul}, v{b_+i}" for i in range(4)]
            o += [f"v_cvt_pk_bf16_f32 v{b_}, v{b_}, v{b_+1}", f"v_cvt_pk_bf16_f32 v{b_+1}, v{b_+2}, v{b_+3}",
                  f"ds_write_b64 v{addrs[j]}, {vr(b_,2)} offset:{off(j)}"]
        return o

    def lds_reset(prefill):
        a(f"""
        v_lshlrev_b32 v76, 2, v0
        v_mov_b32 v77, 0
        ds_write_b32 v76, v77
        """)
        if prefill:
            a(f"""
            v_mov_b32 v76, {hex(DUMMY | (SB*AST) << 16)}
            v_mov_b32 v77, {OOB}
            v_mov_b32 v78, v76
            v_mov_b32 v79, v77
            v_lshlrev_b32 v80, 4, v0
            """)
            for i in range(5):
                a(f"ds_write_b128 v80, v[76:79] offset:{LIST + 8192*i}")

    a(f"""
    s_or_b32 s50, s90, s2
    s_cmp_eq_u32 s50, {7*1024 + 8}
    s_cbranch_scc1 K_clr
    s_waitcnt lgkmcnt(0)
    s_mov_b32 s20, s52
    s_mov_b32 s21, s53
    """)
    emit(xdma(XP, SB*256) + xdma(ERING, 0))
    a("K_np1:")
    common(66)
    w1 = wdma()
    b = Asm()
    common2(b)
    b(f"""
    s_add_u32 s97, s97, {WS_FLG}
    """)
    FG1 = 174
    cf = opt.get('cf', 1)
    b(f"""
    s_lshl_b32 s50, s{sTILE}, 3
    s_lshl_b32 s51, s{sSET}, 2
    s_add_u32 s50, s50, s51
    v_and_b32 v90, 7, v2
    v_xor_b32 v90, s50, v90
    v_lshl_add_u32 v90, v90, 4, v93
    v_lshl_add_u32 v90, v89, 9, v90
    v_and_b32 v98, {8 if cf else 0}, v2
    v_xor_b32 v90, v90, v98
    v_add_u32 v{FS}, {XP}, v90
    v_bfe_u32 v90, v0, 5, 3
    v_lshlrev_b32 v90, 4, v90
    v_xor_b32 v90, v90, v1
    v_add_u32 v{FR}, {XP}, v90
    s_lshl_b32 s50, s{sSET}, 3
    v_xor_b32 v175, s50, v{FR}
    v_xor_b32 v204, 8, v175
    v_xor_b32 v95, 16, v{FS}
    v_xor_b32 v96, 32, v{FS}
    v_xor_b32 v97, 48, v{FS}
    s_mul_i32 s50, s{sBIN}, {SB}
    v_lshrrev_b32 v90, 5, v0
    v_add_u32 v90, s50, v90
    v_and_b32 v98, 7, v90
    v_lshrrev_b32 v{FG1}, 3, v90
    v_lshl_or_b32 v{FG1}, v98, 11, v{FG1}
    v_lshl_add_u32 v{FG1}, v{FG1}, 5, v89
    v_lshlrev_b32 v{FG1}, 4, v{FG1}
    v_add_u32 v90, {-SB & 0xffffffff}, v90
    v_and_b32 v98, 7, v90
    v_lshrrev_b32 v{FG}, 3, v90
    v_lshl_or_b32 v{FG}, v98, 11, v{FG}
    v_lshl_add_u32 v{FG}, v{FG}, 5, v89
    v_lshlrev_b32 v{FG}, 4, v{FG}
    v_cmp_gt_u32 s[56:57], {SB - 32}, v89
    s_cmp_eq_u32 s{sSET}, 0
    s_cselect_b32 s96, s94, 1.0
    """)
    nw = opt.get("wearly", 3)
    a("s_barrier")
    emit(w1[:3*nw])
    lds_reset(True)
    cut = [i for i, l in enumerate(b.l) if f"v{FX}," in l][0] + 1
    a.l += b.l[:cut]
    later = [x.strip() for x in b.l[cut:]]
    a(f"""
    s_or_b32 s50, s90, s2
    s_cmp_eq_u32 s50, {7*1024 + 8}
    s_cbranch_scc1 K_pub
    s_waitcnt vmcnt({nw})
    K_np2:
    s_barrier
    """)
    st(1)
    emit(xfrag(0, XP) + xfrag(1, XP) + xfrag(2, XP) + xfrag(3, XP))
    w2 = wdma()
    ahead = opt.get("ahead", 5)
    seq = [w1[3*q:3*q+3] for q in range(8)] + [wcdma + ["s_mov_b32 s24, s64", "s_mov_b32 s25, s65"]] + \
          [w2[3*q:3*q+3] for q in range(8)]
    sent = [nw]
    def send(n):
        o = []
        while sent[0] < min(n, len(seq)):
            o += seq[sent[0]]
            sent[0] += 1
        return o
    landed = lambda i: f"s_waitcnt vmcnt({sent[0] - 1 - i})"
    SA = [FS, 95, 96, 97]
    emit(send(ahead))
    emit([landed(0)] + wfrag(0) + [landed(1)] + wfrag(1))
    for q in range(8):
        a(f"s_waitcnt lgkmcnt({[2, 4, 4, 4, 4, 4, 4, 2][q]})")
        a(gm(q, 0, D1))
        emit(send(ahead + q + 1))
        if q == 4:
            a(f"v_add_u32 v{FX}, {ERING}, v{FX}")
        emit(xfrag(q + 4, XP) if q < 4 else xfrag(q - 4))
        if q < 6:
            emit([landed(q + 2)] + wfrag(q + 2))
        a(gm(q, 1, D1))
        n_ = -(-len(later) // (8 - q))
        while n_ < len(later) and ("cselect" in later[n_] or "addc" in later[n_]):
            n_ += 1
        emit(later[:n_])
        later = later[n_:]
    st(2)
    a(landed(8))
    B2, SO2 = SB * 512, 176
    def stores(fg, so):
        o = []
        for i in range(3):
            o += [f"s_waitcnt lgkmcnt({(3-i)*(1+cf)})", f"buffer_store_dwordx4 {vr(so+4*i,4)}, v{fg}, s[12:15], 0 offen offset:{1024*i} {tst}"]
        return o + ["s_mov_b32 exec_hi, 0", "s_waitcnt lgkmcnt(0)",
                    f"buffer_store_dwordx4 {vr(so+12,4)}, v{fg}, s[12:15], s{sPROD} offen offset:3072 {tst}", "s_mov_b32 exec_hi, -1"]
    back = lambda o, so: [f"ds_read_b128 {vr(so+4*i,4)}, v{FR} offset:{o + 8192*i}" for i in range(4)] if not cf else \
        [f"ds_read_b64 {vr(so+4*i+2*z,2)}, v{(175, 204)[z]} offset:{o + 8192*i}" for i in range(4) for z in range(2)]
    slots = [[] for _ in range(16)]
    slots[0] = xfrag(4) + xfrag(5)
    slots[1] = xfrag(6) + xfrag(7)
    slots[2] = misc[:3]
    c1 = conv(0, SA, D1, "s96") + conv(1, SA, D1, "s96", lambda j: 16384)
    for i in range(8):
        slots[3 + i] = c1[7*i:7*i+7]
    for q in range(8):
        slots[q] += send(sent[0] + 1)
    assert sent[0] == len(seq)
    slots[8] += [ready_load]
    bp = opt.get("backpos", 15)
    slots[bp] += ["s_waitcnt lgkmcnt(0)", "s_barrier"] + back(0, SO)
    emit(misc[3:])
    a("s_waitcnt lgkmcnt(0)\ns_barrier")
    def p2(lo_, hi_, mul=True):
        for i in range(lo_, hi_):
            if i == 8:
                a("s_waitcnt lgkmcnt(5)")
            a(gm(i // 2, i % 2))
            emit([x for x in slots[i] if mul or not x.startswith("v_mul")])
    if opt.get("nomul", 0):
        p2(0, 3)
        a(f"s_cmp_lg_u32 s{sSET}, 0\ns_cbranch_scc1 K_p2b")
        p2(3, 11)
        a("s_branch K_p2c\nK_p2b:")
        p2(3, 11, False)
        a("K_p2c:")
        p2(11, 16)
    else:
        p2(0, 16)
    emit(stores(FG, SO))
    st(3)
    a(f"s_cmp_lg_u32 s{sSET}, 0\ns_cbranch_scc1 K_ns1")
    for i in range(16):
        a(f"v_pk_mul_f32 {vr(DA+2*i,2)}, {vr(DA+2*i,2)}, s[94:95]")
    a("K_ns1:")
    emit(conv(0, SA, DA, None, lambda j: B2) + ["s_mov_b64 exec, s[56:57]"] + conv(1, SA, DA, None, lambda j: B2 + 16384))
    a("s_mov_b64 exec, -1\ns_waitcnt lgkmcnt(0)\ns_barrier")
    emit(back(B2, SO2) + stores(FG1, SO2))
    a("s_waitcnt vmcnt(8)")
    for q in range(8):
        emit(wfrag(q))
    for q in range(8):
        a(f"s_waitcnt lgkmcnt({14 - 2*q})")
        emit([gm(q, 0, D1), gm(q, 1, D1)])
    ready_check("rn")
    a("K_join:")
    st(4)
    def poll_check(tag, base, lanes, wave=0):
        a(f"""
        s_cmp_lg_u32 s{sW}, {wave}
        s_cbranch_scc1 K_{tag}_done
        s_mov_b32 s50, 0
        s_mov_b32 s51, {base}
        K_{tag}_spin:
        s_waitcnt vmcnt(0)
        v_and_b32 v{PL}, v{PL}, v{PL+1}
        v_and_b32 v{PL+2}, v{PL+2}, v{PL+3}
        v_and_b32 v{PL}, v{PL}, v{PL+2}
        v_cmp_ne_u32 vcc, 1, v{PL}
        s_cbranch_vccz K_{tag}_done
        s_add_u32 s50, s50, 1
        s_cmp_lt_u32 s50, 0x40000
        buffer_load_dwordx4 {vr(PL,4)}, v{lanes}, s[12:15], s51 offen sc1
        s_cbranch_scc1 K_{tag}_spin
        K_{tag}_done:
        """)
    def list_ptrs():
        a(f"""
        s_mul_i32 s50, s{sSET}, {LSET}
        s_add_u32 s50, s50, {LIST}
        v_and_b32 v98, 32, v2
        v_bfe_u32 v97, v2, 4, 1
        v_bfe_u32 v96, v2, 3, 1
        v_lshl_add_u32 v96, v96, 2, v97
        v_add_u32 v96, v96, v98
        v_lshl_add_u32 v{LI}, v96, 3, s50
        v_and_b32 v96, 0x2c, v2
        v_lshl_add_u32 v{LP}, v96, 3, s50
        v_and_b32 v96, 2, v2
        v_bfe_u32 v99, v2, 2, 1
        v_lshl_add_u32 v96, v96, 1, v99
        v_and_or_b32 v96, v2, 8, v96
        s_lshr_b32 s51, s{sTILE}, 1
        s_lshl_b32 s51, s51, 7
        s_add_u32 s50, s50, s51
        s_and_b32 s51, s{sTILE}, 1
        s_lshl_b32 s51, s51, 8
        s_add_u32 s50, s50, s51
        v_lshl_add_u32 v{LE}, v96, 3, s50
        """)
    PL = 68
    def rec_loads(n=2):
        a(f"buffer_load_dwordx4 {vr(REC,4)}, v{SEG}, s[12:15], s{sSTART} offen sc1")
        if n == 2:
            a(f"buffer_load_dwordx4 {vr(REC+4,4)}, v{SEG}, s[12:15], s{sSTART} offen offset:64 sc1")
    a(f"""
    v_lshlrev_b32 v{FS}, 7, v89
    s_cmp_lg_u32 s{sW}, 0
    s_cbranch_scc1 K_nopoll
    s_mov_b32 s50, {WS_FLG + 4096}
    buffer_load_dwordx4 {vr(PL,4)}, v{FS}, s[12:15], s50 offen sc1
    K_nopoll:
    v_lshrrev_b32 v95, 2, v0
    v_lshlrev_b32 v{SIDX}, 4, v87
    v_lshl_add_u32 v{SEG}, v95, 7, v{SIDX}
    v_mul_u32_u24 v92, {AST}, v89
    v_mul_u32_u24 v{PB}, {CH}, v95
    s_lshl_b32 s{sSTART}, s{sBIN}, 14
    s_add_u32 s{sSTART}, s{sSTART}, {WS_SLOT}
    s_mov_b32 s16, s54
    s_mov_b32 s17, s55
    s_mov_b32 s18, {opt.get('erows', E) * 32}
    s_mov_b32 s19, 0x20000
    s_mov_b32 s{sMODE}, 0
    s_bitcmp1_b32 s2, 3
    s_cselect_b32 s60, {4*opt.get('ewarm', 2)}, {4*opt.get('ewarmp', opt.get('ewarm', 2))}
    """)
    a(f"""
    s_cmp_lg_u32 s{sSET}, 0
    s_cbranch_scc1 K_uaddr
    v_cmp_gt_u32 s[90:91], {SB - 31}, v89
    s_lshl_b32 s51, s{sTILE}, 7
    s_add_u32 s51, s51, {ATAB}
    v_add3_u32 v81, v92, v93, s51
    """)
    for i in range(16):
        a(f"v_pk_mul_f32 {vr(D1+2*i,2)}, {vr(D1+2*i,2)}, s[94:95]")
    ca = conv(0, [81]*4, D1, None, lambda j: 16*j) + conv(1, [81]*4, D1, None, lambda j: 16*j + 32*AST)
    emit([x for x in ca if x.startswith("v_")])
    a(f"""
    s_branch K_conv
    K_uaddr:
    v_bfe_u32 v52, v2, 1, 2
    v_lshl_add_u32 v52, v52, 4, v93
    v_lshl_add_u32 v52, v89, 6, v52
    v_add_u32 v52, s{sRING}, v52
    """)
    for j in range(1, 4):
        a(f"v_xor_b32 v{52+j}, {16*j}, v52")
    emit(conv(0, [52, 53, 54, 55], D1) + conv(1, [52, 53, 54, 55], D1, None, lambda j: 2048))
    a(f"""
    v_and_b32 v45, 63, v95
    v_and_b32 v46, 31, v95
    v_lshlrev_b32 v47, 3, v87
    v_sub_u32 v46, v46, v47
    v_cmp_eq_u32 s[90:91], {SB}, v45
    v_mov_b32 v47, 64
    v_cmp_ge_u32 s[92:93], {SB}, v45
    v_cndmask_b32 v46, v46, v47, s[90:91]
    v_and_b32 v47, 1, v46
    v_lshlrev_b32 v47, 4, v47
    v_mov_b32 v48, 0x3f80
    v_lshlrev_b32 v47, v47, v48
    v_ashrrev_i32 v46, 1, v46
    v_cmp_eq_u32 s[64:65], 0, v46
    v_cmp_eq_u32 s[66:67], 1, v46
    v_cmp_eq_u32 s[68:69], 2, v46
    v_cmp_eq_u32 s[70:71], 3, v46
    v_cndmask_b32 v48, 0, v47, s[64:65]
    v_cndmask_b32 v49, 0, v47, s[66:67]
    v_cndmask_b32 v50, 0, v47, s[68:69]
    v_cndmask_b32 v51, 0, v47, s[70:71]
    v_mul_u32_u24 v46, {AST}, v45
    v_add_u32 v46, v46, v{SIDX}
    K_conv:
    """)
    st(5)
    poll_check("s", WS_FLG + 4096, FS)
    a("s_waitcnt vmcnt(0) lgkmcnt(0)\ns_barrier")
    rec_loads()
    a(f"""
    s_mov_b64 exec, 1
    buffer_store_dword v{ONE}, off, s[12:15], s97 sc1
    s_mov_b64 exec, -1
    """)
    st(6)
    PL = 156
    wa = [x for x in ca if x.startswith("ds_")]
    a(f"s_cmp_eq_u32 s{sSET}, 0\ns_cbranch_scc1 K_tab\ns_mov_b64 exec, s[92:93]")
    for t in range(4):
        a(f"ds_write_b128 v46, v[48:51] offset:{ATAB+128*t+64}")
    a("K_tab:\ns_mov_b64 exec, -1")
    a(f"""
    s_lshl_b32 s50, s{sTILE}, 7
    s_add_u32 s51, s50, {ATAB}
    v_add_u32 v{TC}, s51, v91
    v_lshlrev_b32 v90, 2, v84
    v_xor_b32 v90, v90, v2
    v_and_b32 v90, 7, v90
    v_lshl_add_u32 v{OF0}, v90, 4, s50
    v_add_u32 v{OF1}, 0x400, v{OF0}
    v_add_u32 v182, 0x800, v{OF0}
    v_add_u32 v207, 0xc00, v{OF0}
    v_bfe_u32 v90, v0, 2, 2
    v_lshlrev_b32 v90, 13, v90
    v_lshl_add_u32 v90, v94, 6, v90
    v_bfe_u32 v96, v0, 5, 2
    v_xor_b32 v96, v96, v87
    v_lshl_add_u32 v90, v96, 4, v90
    v_add_u32 v3, {RING + 32768}, v90
    ds_read_b128 {ar(AU,4)}, v3
    ds_read_b128 {ar(AU+4,4)}, v3 offset:2048
    s_lshr_b32 s51, s{sTILE}, 1
    v_xor_b32 v84, s51, v2
    v_and_b32 v84, 1, v84
    v_lshlrev_b32 v{EP+1}, 4, v84
    s_mov_b32 s{s512}, 512
    s_lshl_b32 s50, s{sSET}, 12
    s_add_u32 s93, s50, {ERING}
    s_lshl_b32 s51, s{sTILE}, 8
    s_add_u32 s{sEM0}, s93, s51
    """)
    list_ptrs()
    def consts2():
        a(f"""
        v_and_b32 v90, 5, v89
        v_bfe_u32 v96, v89, 3, 1
        v_lshl_add_u32 v90, v96, 1, v90
        v_lshrrev_b32 v96, 4, v89
        v_lshl_add_u32 v90, v96, 3, v90
        v_mul_u32_u24 v90, {AST}, v90
        v_lshl_add_u32 v3, v88, 4, v90
        ds_read_b128 {vr(SEL0,4)}, v3 offset:{ATAB + 64}
        v_lshrrev_b32 v90, 3, v89
        v_and_b32 v96, 1, v89
        v_lshl_add_u32 v90, v90, 1, v96
        v_and_b32 v96, 4, v89
        v_lshl_add_u32 v90, v96, 1, v90
        v_mul_u32_u24 v90, {AST}, v90
        v_lshl_add_u32 v3, v88, 4, v90
        ds_read_b128 {vr(PIND,4)}, v3 offset:{ATAB + 64}
        """)
    def consts3():
        a("s_mov_b32 s51, 0xffff0000")
        for j in range(4):
            a(f"""
            v_lshlrev_b32 v76, 16, v{WCR+j}
            v_and_b32 v77, s51, v{WCR+j}
            v_pk_mul_f32 v[76:77], v[76:77], s[94:95]
            v_cvt_pk_bf16_f32 v{WC+j}, v76, v77
            """)
        a(f"""
        v_lshl_add_u32 v90, v88, 9, s{sRING}
        v_lshl_add_u32 v{RA[1]}, v89, 1, v90
        v_add_u32 v90, v90, v91
        v_and_b32 v91, 12, v2
        v_lshl_add_u32 v90, v91, 5, v90
        v_and_b32 v91, 8, v2
        v_lshl_add_u32 v{RA[0]}, v91, 3, v90
        v_and_b32 v90, 2, v2
        v_mul_u32_u24 v90, 0x5555, v90
        v_add_u32 v{SIX}, 0x4444, v90
        v_xor_b32 v84, v97, v88
        v_lshlrev_b32 v84, 4, v84
        v_and_b32 v90, 0x13, v2
        v_lshl_add_u32 v84, v90, 5, v84
        v_and_b32 v90, 4, v2
        v_lshl_add_u32 v84, v90, 6, v84
        v_and_b32 v90, 8, v2
        v_lshl_add_u32 v84, v90, 4, v84
        v_add_u32 v{EA}, s93, v84
        """)

    def classes(ks, with_masks):
        a(f"s_movk_i32 s51, {63*32}\ns_movk_i32 s50, {cmask}")
        for k in ks:
            a(f"v_lshrrev_b32 v{CA+k}, 9, v{REC+k}")
            a(f"v_and_b32 v{CA+k}, s50, v{CA+k}")
            if with_masks:
                a(f"v_cmp_gt_u32 {sr(sM+2*k,2)}, s51, v{CA+k}")

    PW, SW = 7, 4
    def sort(first):
        tg = "a" if first else "b"
        a(f"""
        v_mov_b32 v{T+1}, 8
        v_lshlrev_b32 v{T}, 5, v2
        """)
        if first:
            a("s_waitcnt vmcnt(1)")
            st(7)
        else:
            a(f"""
            v_mov_b32 v{T+2}, 0
            s_waitcnt vmcnt(0) lgkmcnt(0)
            s_barrier
            s_mov_b64 exec, s[56:57]
            ds_write_b32 v{T+2}, v{T+1} offset:{62*32}
            s_mov_b64 exec, -1
            """)
        classes(range(8), first)
        for k in range(8):
            a(f"s_mov_b64 exec, {sr(sM+2*k,2)}")
            a(f"ds_add_rtn_u32 v{RK+k}, v{CA+k}, v{T+1}")
        a(f"s_mov_b64 exec, -1\ns_movk_i32 s50, {AST*4}")
        hi, lo, ew = [], [], []
        for k in range(8):
            e = EN + 2*k
            hi += [f"v_lshrrev_b32 v{e+1}, 20, v{REC+k}", f"v_add_lshl_u32 v{e+1}, v{e+1}, v{PB}, 5"]
            lo += [f"v_and_b32 v{e}, 0x3fff, v{REC+k}", f"v_and_b32 v3, 0xfc000, v{REC+k}", f"v_mad_u32_u24 v{e}, v3, s50, v{e}"]
            ew += [f"v_and_b32 v3, 28, v{CA+k}", f"v_cmp_gt_u32 vcc, s60, v3",
                   f"s_and_b64 exec, vcc, {sr(sM+2*k,2)}", f"buffer_load_dword v{SLEN}, v{e+1}, s[16:19], 0 offen",
                   "s_mov_b64 exec, -1"]
        if not (first and opt.get("ewarm", 2)):
            ew = []
        c, W1, U, n, I, X, L, Z = 116, 124, 132, 136, 140, 144, 148, 152
        Tt = lambda i: W1 + 2*i
        Dd = lambda i: W1 + 2*i + 1
        t0, t1, run = T+2, T+3, T+4
        emit(hi + ew[:20])
        a(f"""
        s_cmp_eq_u32 s{sW}, {SW}
        s_waitcnt lgkmcnt(0)
        s_barrier
        s_cbranch_scc1 K_scan{tg}
        """)
        emit(ew[20:])
        if first:
            a(f"s_cmp_lg_u32 s{sSET}, 0\ns_cbranch_scc1 K_noa")
            emit(wa[:4] + ["s_mov_b64 exec, s[90:91]"] + wa[4:])
            a("s_mov_b64 exec, -1\nK_noa:")
            consts2()
        emit(lo)
        if first and not opt.get("ppos", 0):
            a(f"""
            s_cmp_lg_u32 s{sW}, {PW}
            s_cbranch_scc1 K_scanned{tg}
            s_mov_b32 s50, {WS_FLG}
            buffer_load_dwordx4 {vr(PL,4)}, v{FS}, s[12:15], s50 offen sc1
            """)
        a(f"""
        s_branch K_scanned{tg}
        K_scan{tg}:
        ds_read_b128 {vr(c,4)}, v{T}
        ds_read_b128 {vr(c+4,4)}, v{T} offset:16
        s_setprio 1
        """)
        emit(lo)
        a(f"""
        s_mov_b32 s51, 0xffe0ffe0
        s_waitcnt lgkmcnt(0)
        v_readlane_b32 s{sMORE}, v{c}, 62
        v_writelane_b32 v{c}, 0, 62
        """)
        for r in range(1, 8):
            a(f"v_add_u32 v{c+r}, v{c+r-1}, v{c+r}")
        steps = [("row_shr:1", "0xf"), ("row_shr:2", "0xf"), ("row_shr:4", "0xf"), ("row_shr:8", "0xf"),
                 ("row_bcast:15", "0xa"), ("row_bcast:31", "0xc")]
        Q, CN, SF, U0, H0 = 60, 61, 62, 63, 64
        a(f"""
        v_add_u32 v{Q}, 15, v{c+7}
        v_and_b32 v{Q}, 0xffe0, v{Q}
        v_mov_b32 v{t0}, v{Q}
        v_cmp_lt_u32 s[88:89], v{Q}, v{c+7}
        """)
        pk_ = [f"v_lshl_or_b32 v{Dd(i)}, v{c+2*i+1}, 16, v{c+2*i}" for i in range(4)] + \
              [f"v_mbcnt_lo_u32_b32 v{CN}, s88, 0", f"v_mbcnt_hi_u32_b32 v{CN}, s89, v{CN}",
               f"v_sub_u32 v{H0}, v{c+7}, v{Q}", f"v_mov_b32 v{L}, {hex((LIST + 512) * 0x10001)}",
               f"v_mov_b32 v{L+1}, {hex((LIST + LSET + 512) * 0x10001)}"]
        if first:
            a(pk_.pop(0))
            for ctl, m_ in steps:
                a(f"v_add_u32_dpp v{t0}, v{t0}, v{t0} {ctl} row_mask:{m_} bank_mask:0xf")
                if pk_:
                    emit([pk_.pop(0), pk_.pop(0)])
                else:
                    a("s_nop 1")
            a(f"""
            v_readlane_b32 s50, v{t0}, 63
            v_sub_u32 v{t0}, v{t0}, v{Q}
            v_lshlrev_b32 v{t1}, 1, v{t0}
            v_cmp_gt_u32 vcc, s50, v{t1}
            v_sub_u32 v{t1}, s50, v{t0}
            v_add_u32 v{t0}, 0xff, v{t0}
            v_add_u32 v{t1}, 0xff, v{t1}
            s_bcnt1_i32_b64 s50, vcc
            v_lshrrev_b32 v{t0}, 8, v{t0}
            s_max_u32 s50, s50, 18
            v_lshrrev_b32 v{t1}, 8, v{t1}
            s_min_u32 s50, s50, 32
            v_lshl_add_u32 v{t0}, v{t0}, 1, -1
            v_lshlrev_b32 v{t1}, 1, v{t1}
            v_max_i32 v{t0}, v{t0}, v{t1}
            s_sub_u32 s58, s50, 1
            v_readlane_b32 s56, v{t0}, s50
            v_readlane_b32 s57, v{t0}, s58
            s_cmp_le_i32 s56, s57
            s_cselect_b32 s{sVS}, s50, s58
            """)
        else:
            emit(pk_)
        a(f"""
        v_readlane_b32 s56, v{CN}, s{sVS}
        v_cmp_le_u32 vcc, s{sVS}, v2
        s_nop 0
        v_subrev_u32 v{t0}, s56, v{CN}
        v_cndmask_b32 v{run}, v{L}, v{L+1}, vcc
        v_cndmask_b32 v{CN}, v{CN}, v{t0}, vcc
        v_cmp_gt_u32 s[56:57], {16 if opt.get("head", 1) else 0}, v{CN}
        s_and_b64 s[88:89], s[88:89], s[56:57]
        v_lshl_add_u32 v{CN}, v{CN}, 5, v{run}
        v_cndmask_b32 v{U0}, 0, 32, s[88:89]
        v_cndmask_b32 v{H0}, 0, v{H0}, s[88:89]
        v_sub_u32 v{SF}, v{U0}, v{H0}
        v_lshl_or_b32 v{SF}, v{SF}, 16, v{SF}
        """)
        for i in range(4):
            a(f"v_add_u32 v{Dd(i)}, v{SF}, v{Dd(i)}")
        for i in range(4):
            a(f"v_add_u32 v{U+i}, 0x001f001f, v{Dd(i)}")
        for i in range(4):
            a(f"v_and_b32 v{U+i}, s51, v{U+i}")
        for i in range(4):
            a(f"v_lshl_or_b32 v{n}, v{U}, 16, v{U0}" if i == 0 else f"v_alignbit_b32 v{n+i}, v{U+i}, v{U+i-1}, 16")
        for i in range(4):
            a(f"v_sub_u32 v{I+i}, v{U+i}, v{n+i}")
        for ctl, m_ in steps:
            for i in range(4):
                a(f"v_add_u32_dpp v{I+i}, v{I+i}, v{I+i} {ctl} row_mask:{m_} bank_mask:0xf")
        emit([f"v_sub_u32 v{n+i}, v{U+i}, v{n+i}" for i in range(4)] + [f"v_sub_u32 v{X+i}, v{I+i}, v{n+i}" for i in range(4)])
        for i in range(4):
            a(f"v_readlane_b32 s{84+i}, v{I+i}, 63")
        for i in range(4):
            a(f"v_readlane_b32 s{80+i}, v{X+i}, s{sVS}")
        for i in range(4):
            a(f"v_sub_u32 v{Dd(i)}, v{U+i}, v{Dd(i)}")
        for i in range(4):
            a(f"v_mov_b32 v{L+i}, s{80+i}")
        for i in range(4):
            a(f"v_sub_u32 v{Z+i}, s{84+i}, v{L+i}")
            a(f"v_cndmask_b32 v{U+i}, 0, v{L+i}, vcc")
        for i in range(4):
            a(f"v_cndmask_b32 v{L+i}, v{L+i}, v{Z+i}, vcc")
        a(f"v_add_u32 v{CN}, {-480 & 0xffffffff}, v{CN}\ns_mov_b32 s51, 0x03020302")
        for i in range(4):
            a(f"v_lshl_or_b32 v{Tt(0)}, v{Dd(0)}, 16, v{H0}" if i == 0 else f"v_alignbit_b32 v{Tt(i)}, v{Dd(i)}, v{Dd(i-1)}, 16")
            a(f"v_sub_u32 v{X+i}, v{X+i}, v{U+i}")
        a(f"ds_write_b128 v{T}, {vr(W1,4)} offset:{TW1}\nds_write_b128 v{T}, {vr(W1+4,4)} offset:{TW1+16}")
        for i in range(4):
            a(f"v_lshl_add_u32 v{t0}, v{L+i}, 16, v{run}")
            a(f"v_pk_min_u16 v{Z+i}, v{n+i}, 1 op_sel_hi:[1,0]")
            a(f"v_add_u32 v{t1}, v{t0}, v{L+i}")
            a(f"v_add_u32 v{X+i}, v{X+i}, v{t0}")
            a(f"v_perm_b32 v{run}, v{t1}, v{t1}, s51")
        for i in range(4):
            a(f"v_add_u32 v{I+i}, v{X+i}, v{n+i}")
            a(f"v_sub_u32 v{c+2*i}, v{X+i}, v{Tt(i)}")
        a(f"v_readlane_b32 s56, v{run}, 0\nv_readlane_b32 s57, v{run}, 63")
        for i in range(4):
            a(f"v_pk_mul_lo_u16 v{Z+i}, v{Z+i}, v{I+i}")
            a(f"v_lshrrev_b32 v{c+2*i+1}, 16, v{c+2*i}")
        a(f"v_and_b32 v{t0}, 0xffff, v{CN}\nv_cndmask_b32 v{t0}, 0, v{t0}, s[88:89]\ns_movk_i32 s51, {TRASH}")
        for r in range(8):
            a(f"v_sub_u16_sdwa v{c+r}, v{t0}, v{W1+r} dst_sel:WORD_1 dst_unused:UNUSED_PRESERVE src0_sel:WORD_0 src1_sel:WORD_0")
            if r < 7:
                a(f"v_max_u32_sdwa v{t0}, v{t0}, v{Z+r//2} {SDW} src0_sel:DWORD src1_sel:WORD_{r % 2}")
        a(f"""
        v_writelane_b32 v{c}, s51, 62
        ds_write_b128 v{T}, {vr(c,4)} offset:{TW0}
        ds_write_b128 v{T}, {vr(c+4,4)} offset:{TW0+16}
        """)
        a(f"""
        s_pack_hh_b32_b16 s50, s56, s57
        s_sub_u32 s50, s50, {hex((LIST - 255) + ((LIST + LSET - 255) << 16))}
        v_mov_b32 v{Z}, s50
        v_mov_b32 v{Z+1}, s{sVS}
        v_mov_b32 v{Z+2}, s{sMORE}
        ds_write_b96 v{T+1}, {vr(Z,3)} offset:{63*32 - 8}
        s_setprio 0
        s_waitcnt lgkmcnt(0)
        K_scanned{tg}:
        s_cmp_lg_u32 s{sW}, {SW}
        s_barrier
        ds_read_b96 {vr(Z,3)}, v{T+1} offset:{63*32 - 8}
        """)
        if first:
            st(8)
        for k in range(8):
            a(f"ds_read2st64_b32 {vr(BB+2*k,2)}, v{CA+k} offset0:{TW0//256} offset1:{TW1//256}")
        a(f"s_cbranch_scc1 K_rest{tg}")
        emit(ew[20:])
        a(f"""
        K_rest{tg}:
        """)
        if first and opt.get("ppos", 0):
            a(f"""
            s_cmp_lg_u32 s{sW}, {PW}
            s_cbranch_scc1 K_nop2
            s_mov_b32 s50, {WS_FLG}
            buffer_load_dwordx4 {vr(PL,4)}, v{FS}, s[12:15], s50 offen sc1
            K_nop2:
            """)
        a(f"""
        s_waitcnt lgkmcnt(8)
        v_readfirstlane_b32 s50, v{Z}
        v_readfirstlane_b32 s{sVS}, v{Z+1}
        v_readfirstlane_b32 s{sMORE}, v{Z+2}
        s_bfe_u32 s56, s50, {hex(8 | 8 << 16)}
        s_lshr_b32 s57, s50, 24
        s_max_u32 s57, s57, 1
        s_max_u32 s58, s56, s57
        s_cmp_le_u32 s58, {LIMIT // 256}
        s_cbranch_scc0 K_over
        s_sub_u32 s59, s58, 1
        s_max_u32 s59, s59, s57
        s_add_u32 s56, s58, 1
        s_and_b32 s56, s56, -2
        s_cmp_lt_u32 s58, 9
        s_cselect_b32 s58, s56, s58
        s_cselect_b32 s59, s56, s59
        s_sub_u32 s{sXB}, s58, s59
        s_cmp_eq_u32 s{sSET}, 0
        s_cselect_b32 s{sS}, s58, s59
        """)
        for k0 in (0, 4):
            a(f"s_waitcnt lgkmcnt({4 - k0})")
            for k in range(k0, k0 + 4):
                a(f"v_cmp_lt_u32_sdwa {sr(80+2*(k % 4),2)}, v{RK+k}, v{BB+2*k+1} src0_sel:DWORD src1_sel:WORD_0")
                a(f"v_lshrrev_b32 v{BB+2*k+1}, 16, v{BB+2*k}")
            for k in range(k0, k0 + 4):
                a(f"v_cndmask_b32 v{BB+2*k}, v{BB+2*k}, v{BB+2*k+1}, {sr(80+2*(k % 4),2)}")
                a(f"v_add_u32_sdwa v{RK+k}, v{RK+k}, v{BB+2*k} {SDW} src0_sel:DWORD src1_sel:WORD_0")
        for k in range(8):
            a(f"s_mov_b64 exec, {sr(sM+2*k,2)}")
            a(f"ds_write_b64 v{RK+k}, {vr(EN+2*k,2)}")
        a("s_mov_b64 exec, -1")

    def idx_reads(blk, sub):
        o = 128*blk + 4*sub
        return [f"ds_read2_b32 {vr(RW,2)}, v{LI} offset0:{o} offset1:{o+16}",
                f"ds_read2_b32 {vr(RW+2,2)}, v{LI} offset0:{o+32} offset1:{o+48}"]
    mads = [f"v_mad_u32_u16 v{IX+t}, v{RW+t}, s{s512}, v{(207, 182, OF1, OF0)[t]}" for t in range(4)]
    def dma(slot, mid):
        o = [f"s_add_u32 m0, s{sRING}, {4096*slot}"]
        for t in range(4):
            o += mid[t] + [f"buffer_load_dwordx4 v{IX+t}, s[24:27], 0 offen offset:{1024*t} {tfl} lds"]
        return o
    def edma(step, src=EP):
        return [f"s_add_u32 m0, s{sEM0}, {1024*(step % 4)}", "s_mov_b64 exec, 0xffff", f"v_or_b32 v{src}, v{src}, v{EP+1}",
                f"buffer_load_dwordx4 v{src}, s[16:19], 0 offen {opt.get('eflag','')} lds", "s_mov_b64 exec, -1"]
    def eid_read(step, dst=None):
        return [f"ds_read_b32 v{dst or EP}, v{LE} offset:{512*(step // 2) + 16*(step % 2) + 4}"]
    def pn_read(blk):
        return [f"ds_read2_b32 {vr(TA0,2)}, v{LP} offset0:{128*blk} offset1:{128*blk+32}"]
    ta = [f"v_add_u32_sdwa v{x}, v{x}, v{TC} {SDW} src0_sel:WORD_1 src1_sel:DWORD" for x in (TA0, TA1)]
    def reads(step):
        s = step % 2
        o = [f"ds_read_b128 {vr(OE,4)}, v{EA} offset:{1024*(step % 4)}"]
        o += [f"ds_read_b64_tr_b16 {vr(OB+2*z,2)}, v{RA[0]} offset:{4096*s + 1024*z}" for z in range(4)]
        o += [f"ds_read_u16_d16_hi v{H[s]+r}, v{RA[1]} offset:{4096*s + 128*(8*(r//4) + r % 4) + (0 if r & 2 else 64)}"
              for r in range(16)]
        return o
    def tr_reads(blk):
        i = IND[blk % 2]
        return [f"ds_read_b64_tr_b16 {vr(OA,2)}, v{TA0}", f"ds_read_b64_tr_b16 {vr(OA+2,2)}, v{TA1}",
                f"ds_read_b64_tr_b16 {vr(i,2)}, v{TA0} offset:64", f"ds_read_b64_tr_b16 {vr(i+2,2)}, v{TA1} offset:64"]
    mct = f"{MF} {vr(CT,16)}, {vr(PIND,4)}, {vr(OA,4)}, 0"
    def mf_g(g):
        d = vr(g, 16)
        return [f"{MF} {d}, {vr(OE,4)}, {vr(WC,4)}, {vr(CT,16)}",
                f"v_smfmac_f32_32x32x32_bf16 {d}, {vr(SEL0,4)}, {vr(OB,8)}, v{SIX}"]
    def mf_red(i):
        return [f"{MF} {ar(ACD,16)}, {vr(IND[i],4)}, {vr(BD,4)}, {ar(ACD,16)}",
                f"{MF} {ar(ACN,16)}, {vr(IND[i],4)}, {vr(BN,4)}, {ar(ACN,16)}"]
    cvts = [f"v_cvt_pk_bf16_f32 v{BD+j}, v{AS+2*j}, v{AS+2*j+1}" for j in range(4)] + \
           [f"v_cvt_pk_bf16_f32 v{BN+j}, v{AM+2*j}, v{AM+2*j+1}" for j in range(4)]
    def pk(op, d, *s):
        return f"v_pk_{op}_f32 {vr(d,2)}, " + ", ".join(x if isinstance(x, str) else vr(x, 2) for x in s)
    def pk2(k):
        o = []
        for dst, src in ((AS, SS), (AM, MM)):
            for j in range(4):
                if k % 2 == 0:
                    o.append(pk("mul", dst+2*j, src+2*j, RR+2*j))
                else:
                    o.append(pk("fma", dst+2*j, src+2*j, RR+2*j, dst+2*j))
        return o
    RE = 183
    cut = opt.get("cut", 1)
    def load_seg(u):
        side = eid_read(u + 5, RE) + idx_reads(*[(1, 1), (0, 0), (0, 1), (1, 0)][u])
        if opt.get("bal", 0):
            side += tr_reads(u // 2)[2:] + pn_read(u // 2) if u % 2 == 0 else tr_reads(0)[:2]
        else:
            side += pn_read(u // 2) if u % 2 == 0 else tr_reads((u + 1) // 2)
        rd = reads(u + 1)
        va = mads + [f"v_or_b32 v{EP}, v{RE}, v{EP+1}"] + (ta if u % 2 == 0 else [])
        adv = {0: LI, 2: LP, 3: LE}.get(u)
        if adv:
            va = va + [f"v_add_u32 v{adv}, 0x400, v{adv}"]
        ed = [x for x in edma(u) if not x.startswith("v_or")]
        dd = dma(u % 2, [side[len(side)*t//4:len(side)*(t+1)//4] for t in range(4)])
        nf = opt.get("nf", 4)
        if nf == 4:
            o = dd + ed + ["s_waitcnt vmcnt(6)"] + rd
        else:
            n_ = -(-len(side) // nf)
            g_ = opt.get("gap", 4)
            mid = [side[n_*t:n_*t+n_] for t in range(nf)] + [rd[g_*t:g_*t+g_] for t in range(4 - nf)]
            mid[nf] = [f"s_waitcnt vmcnt({nf + 1})"] + mid[nf]
            o = dma(u % 2, mid) + ed + rd[g_*(4 - nf):]
        vp = opt.get("vpos", 0)
        if vp:
            o = o[:len(o)-vp] + [f"s_waitcnt lgkmcnt({min(15, 21 - vp)})"] + va + o[len(o)-vp:] + [f"s_sub_u32 s{sK}, s{sK}, 1"]
        else:
            o += ["s_waitcnt lgkmcnt(15)"] + va + [f"s_sub_u32 s{sK}, s{sK}, 1"]
        return o + ["s_setprio 0", "s_waitcnt lgkmcnt(0)", "s_barrier"]
    def comp_seg(u, first=False):
        g, gn, h = G[u % 2], G[(u + 1) % 2], H[u % 2]
        ex = [f"v_exp_f32 v{g+r}, v{g+r}" for r in range(16)]
        mg = mf_g(gn)
        if u % 2 == 0:
            mr = mf_red((u // 2 - 1) % 2)
            o = pk2(u - 1) + [mg[0]] + cvts[:6] + [mg[1]] + cvts[6:] + ex[:2] + [mr[0]] + ex[2:5] + [mr[1]] + ex[5:]
        else:
            o = ([] if first else pk2(u - 1)) + [mct] + ex[:3] + [mg[0]] + ex[3:6] + [mg[1]] + ex[6:]
        for j in range(4):
            b_ = g + 4*j
            o += [pk("fma", x, x, sr(sCC, 2), sr(sCC, 2)) + " clamp" for x in (b_, b_+2)]
        for j in range(4):
            b_, hh = g + 4*j, h + 4*j
            o += [pk("mul", RR+2*j, b_, b_+2), pk("mul", MM+2*j, hh, b_+2), f"v_rcp_f32 v{RR+2*j}, v{RR+2*j}",
                  pk("add", SS+2*j, b_, b_+2), f"v_rcp_f32 v{RR+2*j+1}, v{RR+2*j+1}", pk("fma", MM+2*j, hh+2, b_, MM+2*j)]
        if opt.get("rcend"):
            o = [x for x in o if "rcp" not in x] + [x for x in o if "rcp" in x]
        return o + ["s_setprio 1", "s_barrier"]

    peel = opt.get("peel", 0)
    one = lambda l: [[x] for x in l]
    def fill_a():
        a(f"s_sub_u32 s24, s4, 3072\ns_subb_u32 s25, s5, 0\ns_mov_b32 s26, s14")
        emit(eid_read(1) + eid_read(2, 1) + idx_reads(0, 1) + [f"ds_read2_b32 {vr(TA0,2)}, v{LP} offset0:6 offset1:38"])
        a("s_waitcnt lgkmcnt(0)")
        emit(edma(1) + edma(2, 1) + dma(1, one(mads)))
        emit(eid_read(3) + idx_reads(1, 0) + ta)
    def fill_b():
        a("s_waitcnt lgkmcnt(0)")
        emit(edma(3) + dma(0, one(mads)) + eid_read(4) + idx_reads(1, 1) + pn_read(1))
        a(f"v_add_u32 v{LP}, 0x200, v{LP}\nv_add_u32 v{LI}, 0x400, v{LI}\ns_sub_u32 s{sK}, s{sS}, 2")
    sort(True)
    a(f"K_sorted:\ns_cmp_lg_u32 s{sW}, {SW}\ns_cbranch_scc1 K_c2")
    consts2()
    a("K_c2:")
    if opt.get("c3", 0) == 2:
        consts3()
    poll_check("t", WS_FLG, FS, PW)
    a("s_waitcnt lgkmcnt(0)\ns_barrier")
    st(9)
    if opt.get("c3", 0) == 2:
        fill_a()
    elif opt.get("c3", 0):
        a(f"s_cmp_eq_u32 s{sSET}, 0\ns_cbranch_scc1 K_f0")
        consts3()
        a("K_f0:")
        fill_a()
        a(f"s_cmp_lg_u32 s{sSET}, 0\ns_cbranch_scc1 K_f1")
        consts3()
        a("K_f1:")
    else:
        fill_a()
        consts3()
    st(13)
    for i in range(4):
        a(f"v_mov_b32 v{108+i}, 0")
    a(f"""
    s_sub_u32 s51, {N*256}, s{sXO}
    s_min_u32 s34, s51, {SB*256}
    s_add_u32 s32, s10, s{sXO}
    s_addc_u32 s33, s11, 0
    {MF} {ar(ACD,16)}, v[108:111], v[108:111], 0
    s_mov_b32 s{sCC}, {hex(f32(2.0**-SHIFT))}
    s_mov_b32 s{sCC+1}, {hex(f32(2.0**-SHIFT))}
    {MF} {ar(ACN,16)}, v[108:111], v[108:111], 0
    K_fillb:
    """)
    a(f"""
    s_and_b32 s50, s{sS}, 1
    s_cmp_gt_u32 s50, s{sTILE}
    s_cbranch_scc0 K_nospread
    s_mul_i32 s50, s{sSET}, {LSET}
    s_lshl_b32 s51, s{sS}, 8
    s_add_u32 s50, s50, s51
    v_lshrrev_b32 v108, 1, v2
    v_bfi_b32 v108, 1, v2, v108
    v_lshl_add_u32 v108, v108, 3, s50
    v_and_b32 v109, 2, v2
    v_lshl_add_u32 v108, v109, 7, v108
    ds_read_b64 v[110:111], v108 offset:{LIST - 256}
    v_lshl_add_u32 v108, v2, 3, s50
    s_waitcnt lgkmcnt(0)
    ds_write_b64 v108, v[110:111] offset:{LIST - 256}
    K_nospread:
    """)
    emit(tr_reads(0))
    fill_b()
    a(f"{mct}\ns_waitcnt lgkmcnt(0)")
    emit(mads + ta + [f"v_mov_b32 v{x}, 0" for x in (list(range(AS, AS+16)) if peel else list(range(SS, SS+16)) + list(range(RR, RR+8)))])
    st(14)
    stag = opt.get("stag", 1)
    if stag:
        a(f"s_cmp_eq_u32 s{sSET}, 0\ns_cbranch_scc1 K_lead\ns_barrier\nK_lead:")
    a("s_waitcnt vmcnt(5)\ns_barrier")
    r0 = reads(1)
    emit(r0[:11] + edma(4) + r0[11:20])
    a("s_waitcnt lgkmcnt(15)")
    emit(mf_g(G[1]) + r0[20:] + eid_read(5))
    a(f"s_waitcnt lgkmcnt(0)\nv_or_b32 v{EP}, v{EP}, v{EP+1}")
    st(10)
    if stag:
        a("s_setprio 1\ns_barrier")
    else:
        a(f"""
        s_cmp_eq_u32 s{sSET}, 0
        s_barrier
        s_cbranch_scc1 K_lead
        s_barrier
        s_setprio 1
        K_lead:
        """)
    if peel:
        emit(load_seg(1) + comp_seg(1, first=True))
        a("s_cbranch_scc1 K_drain0\ns_branch K_loop1")
        a.l.append(".p2align 6")
        a("K_loop:")
        for u in range(4):
            if u == 2:
                a("K_loop1:")
            emit(load_seg(u) + comp_seg(u))
            a(f"s_cbranch_scc1 K_drain{0 if u < 2 else ''}" if u < 3 else "s_cbranch_scc0 K_loop")
        a("s_branch K_drain\nK_drain0:")
    else:
        a.l.append(f".p2align {opt.get('al', 6)}")
        a("K_loop:")
        for u in (1, 2, 3, 0):
            emit(load_seg(u) + comp_seg(u))
            a(f"s_cbranch_scc1 K_drain{0 if u < 2 else ''}" if u else "s_cbranch_scc0 K_loop")
        a("K_drain0:")
    emit([f"v_mov_b32 v{IND[1]+j}, v{IND[0]+j}" for j in range(4)])
    a(f"""
    K_drain:
    s_setprio 0
    s_cmp_lg_u32 s{sSET}, s{sXB}
    s_cbranch_scc1 K_done
    s_barrier
    K_done:
    s_bitcmp1_b32 s{sS}, 0
    s_cbranch_scc1 K_half
    """)
    emit(pk2(1))
    a("K_last:")
    emit(cvts + ["s_nop 1"] + mf_red(1))
    st(11)
    a(f"""
    s_cmp_lg_u32 s{sMORE}, 0
    s_cbranch_scc1 K_again
    v_and_b32 v41, 31, v2
    s_and_b32 s50, s{sW}, 1
    s_lshl_b32 s50, s50, 7
    s_add_u32 s50, s50, s{sRING}
    v_lshl_add_u32 v42, v41, 2, s50
    v_and_b32 v40, 32, v2
    v_lshl_add_u32 v42, v40, 5, v42
    s_mov_b32 s50, {hex(f32(1e-6 * 2.0**SHIFT))}
    s_mov_b32 s51, s50
    s_mov_b32 s56, 0xffff0000
    """)
    Dn, Nn, Uu = NV + ACD, NV + ACN, NV + AU
    un = []
    for k in range(8):
        un += [f"v_lshlrev_b32 v{64+2*k}, 16, v{XR+k}", f"v_and_b32 v{65+2*k}, s56, v{XR+k}",
               f"v_lshlrev_b32 v{96+2*k}, 16, v{Uu+k}", f"v_and_b32 v{97+2*k}, s56, v{Uu+k}"]
    emit(un[:8])
    for r in range(0, 16, 2):
        a(pk("add", Dn+r, Dn+r, "s[50:51]"))
    for r in range(16):
        a(f"v_rcp_f32 v{Dn+r}, v{Dn+r}")
    a("s_waitcnt vmcnt(0)")
    for r in range(0, 16, 2):
        a(pk("mul", Dn+r, Dn+r, Nn+r))
        row = 8*(r//4) + r % 4
        a(f"ds_write2st64_b32 v42, v{Dn+r}, v{Dn+r+1} offset0:{row} offset1:{row+1}")
    emit(un[8:])
    a(f"""
    v_lshrrev_b32 v44, 4, v0
    v_bfe_u32 v45, v0, 2, 2
    v_lshlrev_b32 v45, 13, v45
    v_lshl_add_u32 v45, v44, 8, v45
    v_and_b32 v46, 7, v0
    v_lshl_add_u32 v45, v46, 5, v45
    v_add_u32 v45, {RING}, v45
    v_add_u32 v46, 0x8000, v45
    v_cmp_gt_u32 vcc, s{sVS}, v44
    v_lshlrev_b32 v43, 4, v0
    s_movk_i32 s51, 8192
    v_cndmask_b32 v45, v46, v45, vcc
    s_waitcnt lgkmcnt(0)
    s_barrier
    ds_read_b128 v[48:51], v45
    ds_read_b128 v[52:55], v45 offset:16
    ds_read_b128 v[56:59], v46
    ds_read_b128 v[60:63], v46 offset:16
    """)
    for k in range(8):
        a(pk("add", 96+2*k, 96+2*k, 64+2*k))
    for i in range(2):
        a(f"s_waitcnt lgkmcnt({2-2*i})")
        for j in range(0, 8, 2):
            a(pk("add", 48+8*i+j, 48+8*i+j, 96+8*i+j))
        for j in range(8):
            a(f"v_max_f32 v{48+8*i+j}, v{64+8*i+j}, v{48+8*i+j}")
        for j in range(4):
            a(f"v_cvt_pk_bf16_f32 v{80+4*i+j}, v{48+8*i+2*j}, v{48+8*i+2*j+1}")
        a(f"buffer_store_dwordx4 {vr(80+4*i,4)}, v43, s[32:35], {'s51' if i else '0'} offen {opt.get('ost','sc1')}")
    if st.on:
        a("s_waitcnt vmcnt(0)")
        a(f"v_writelane_b32 v205, s{sS}, 15")
    st(12)
    st.flush()
    a("K_end:\ns_endpgm\nK_half:")
    emit(pk2(0))
    a("s_branch K_last")
    a(f"""
    K_clr:
    s_waitcnt lgkmcnt(0)
    s_mov_b32 s20, s52
    s_mov_b32 s21, s53
    s_mov_b32 s12, s78
    s_mov_b32 s13, s79
    s_mov_b32 s14, {WS_END}
    s_mov_b32 s15, 0x20000
    s_mov_b32 s28, s76
    s_mov_b32 s29, s77
    s_movk_i32 s30, 256
    s_mov_b32 s31, 0x20000
    v_mov_b32 v8, 0
    v_mov_b32 v9, 0
    v_mov_b32 v10, 0
    v_mov_b32 v11, 0
    v_lshlrev_b32 v4, 7, v2
    s_mov_b32 s50, {WS_FLG}
    buffer_store_dwordx4 v[8:11], v4, s[12:15], s50 offen sc1
    """)
    emit(xdma(XP, SB*256) + xdma(ERING, 0))
    a(f"""
    v_and_b32 v12, 4, v2
    v_cmp_eq_u32 vcc, 0, v12
    v_mov_b32 v13, 0x71807180
    v_and_b32 v5, 0x1f0, v1
    v_cndmask_b32 v12, 0, v13, vcc
    v_mov_b32 v13, v12
    v_mov_b32 v14, v12
    v_mov_b32 v15, v12
    s_mov_b32 s50, {DUMMY*512}
    buffer_store_dwordx4 v[12:15], v5, s[12:15], s50 offen sc1
    s_branch K_np1
    K_pub:
    s_mov_b64 exec, 1
    s_waitcnt vmcnt({5 + nw})
    buffer_store_dword v{ONE}, off, s[28:31], 0 sc1
    s_mov_b64 exec, -1
    s_waitcnt vmcnt({nw + 1})
    s_branch K_np2
    """)
    koff = sum(o << (8*i) for i, o in enumerate((40, 64, 32, 56, 48, 88, 8, 72)))
    a(f"""
    K_prod:
    s_lshl_b32 s50, s{sW}, 3
    s_mov_b32 s92, {hex(koff & 0xffffffff)}
    s_mov_b32 s93, {hex(koff >> 32)}
    s_lshr_b64 s[92:93], s[92:93], s50
    s_and_b32 s92, s92, 0xff
    s_load_dwordx2 s[96:97], s[0:1], s92
    s_mov_b32 s20, s52
    s_mov_b32 s21, s53
    v_lshlrev_b32 v4, 2, v0
    v_mov_b32 v62, 0
    ds_write_b32 v4, v62
    v_mov_b32 v40, -1
    v_mov_b32 v41, -1
    v_mov_b32 v42, -1
    v_mov_b32 v43, -1
    """)
    for i in range(4):
        a(f"ds_write_b128 v1, v[40:43] offset:{IMG + 8192*i}")
    a(f"""
    v_mov_b32 v5, 128
    v_writelane_b32 v5, 16, 4
    s_mov_b32 s50, {WS_END // 256}
    v_writelane_b32 v5, s50, 5
    s_mov_b32 s50, {E*32 // 256}
    v_writelane_b32 v5, s50, 6
    s_mov_b32 s50, {N}
    v_writelane_b32 v5, s50, 7
    s_and_b32 s93, s2, 0xf0
    v_readlane_b32 s50, v5, s{sW}
    v_add_u32 v4, s93, v85
    s_waitcnt lgkmcnt(0)
    v_mul_u32_u24 v4, s50, v4
    s_barrier
    """)
    wm = 0
    emit(xdma(ERING, 0))
    a(f"""
    s_mov_b64 exec, 0xffff
    global_load_dword v60, v4, s[96:97] sc1
    s_mov_b64 exec, -1
    s_sub_u32 s90, s82, s88
    v_add_u32 v4, 8192, v1
    v_cmp_gt_u32 s[92:93], s90, v4
    s_mov_b32 s91, {-SB & 0xffffffff}
    v_mov_b32 v6, 4
    v_lshlrev_b32 v7, 22, v0
    v_mov_b32 v36, 0
    v_mov_b32 v37, 0
    v_mov_b32 v38, 0
    v_mov_b32 v39, 0
    """)
    for k in range(8):
        a(f"v_add_u32 v{68+k}, {hex(((2048*(k//4) + k % 4) << 20) & 0xffffffff)}, v7")
    for g in range(2):
        a(f"s_waitcnt vmcnt({6 - g + wm})")
        if g == 0:
            st(1)
        for j in range(4):
            d, t = 8 + 4*g + j, 24 + 4*g + j
            a(f"v_mul_u32_u24 v{44+4*g+j}, 21400, v{d}")
            a(f"v_lshrrev_b32 v{44+4*g+j}, 20, v{44+4*g+j}")
            a(f"v_lshlrev_b32 v{t}, 2, v{44+4*g+j}")
        if g:
            a("s_mov_b64 exec, s[92:93]")
        for j in range(4):
            a(f"ds_add_rtn_u32 v{32+4*g+j}, v{24+4*g+j}, v6")
    a(f"""
    s_mov_b64 exec, -1
    s_lshl_b32 s56, s62, 7
    s_add_u32 s56, s56, {WS_SLOT}
    s_add_u32 s57, s56, {1 << 20}
    s_add_u32 s58, s56, {2 << 20}
    s_add_u32 s59, s56, {3 << 20}
    v_lshrrev_b32 v5, 3, v0
    v_and_b32 v61, 0x70, v1
    v_lshl_add_u32 v61, v5, 14, v61
    s_mov_b32 s4, s78
    s_mov_b32 s5, s79
    s_mov_b32 s12, s78
    s_mov_b32 s13, s79
    s_mov_b32 s14, {WS_END}
    s_mov_b32 s15, 0x20000
    s_waitcnt vmcnt(3)
    """)
    wp = wdma()
    for k in range(8):
        s_, d = 16 + k, 8 + k
        a(f"v_mad_i32_i24 v{d}, v{44+k}, s91, v{d}")
        a(f"v_and_b32 v4, 7, v{s_}")
        a(f"v_lshl_or_b32 v{d}, v{d}, 3, v4")
        a(f"v_lshrrev_b32 v{s_}, 3, v{s_}")
        a(f"v_lshl_or_b32 v{d}, v{d}, 11, v{68+k}")
        a(f"v_or_b32 v{s_}, v{d}, v{s_}")
    a("s_waitcnt lgkmcnt(0)")
    for k in range(8):
        if k == 4:
            a("s_mov_b64 exec, s[92:93]")
        a(f"v_add_u32 v4, v{32+k}, v{24+k}")
        a(f"v_and_b32 v4, 0x7f, v4")
        a(f"v_lshl_add_u32 v{44+k}, v{24+k}, 5, v4")
        a(f"ds_write_b32 v{44+k}, v{16+k} offset:{IMG}")
    a(f"""
    s_mov_b64 exec, -1
    v_or3_b32 v4, v32, v33, v34
    v_or3_b32 v5, v35, v36, v37
    v_or3_b32 v4, v4, v38, v39
    v_or_b32 v4, v4, v5
    v_cmp_lt_u32 vcc, 0x7f, v4
    s_mov_b64 exec, vcc
    ds_write_b32 v62, v6 offset:1024
    s_mov_b64 exec, -1
    s_waitcnt vmcnt(1) lgkmcnt(0)
    s_barrier
    ds_read_b32 v4, v62 offset:1024
    """)
    OUTR = [8, 12, 68, 72]
    def img_reads():
        for i in range(4):
            a(f"ds_read_b128 {vr(OUTR[i],4)}, v1 offset:{IMG + 8192*i}")
    img_reads()
    a(f"""
    s_waitcnt lgkmcnt(4)
    v_readfirstlane_b32 s50, v4
    s_cmp_lg_u32 s50, 0
    s_cbranch_scc1 K_slow
    K_out:
    """)
    for i in range(4):
        a(f"s_waitcnt lgkmcnt({3-i})")
        a(f"buffer_store_dwordx4 {vr(OUTR[i],4)}, v61, s[12:15], s{56+i} offen sc1")
    st(2)
    common(64)
    common2(a)
    wb = opt.get("wbefore", 2)
    emit([ready_load] + wcdma + wp[:3*wb])
    a(f"v_add_u32 v{FX}, {ERING}, v{FX}")
    for q in range(8):
        emit(xfrag(q))
    emit(misc[:3])
    a(f"s_add_u32 s96, s97, {WS_FLG + 4096}\ns_mov_b32 s97, {OOB}\ns_waitcnt vmcnt({wb + 1})")
    ready_check("rp")
    a(f"""
    s_mov_b64 exec, 1
    s_barrier
    buffer_store_dword v{ONE}, off, s[12:15], s96 sc1
    s_mov_b64 exec, -1
    """)
    st(3)
    emit(wp[3*wb:])
    lds_reset(True)
    left = lambda q: 7 - q + (1 if q < wb else 0)
    emit([f"s_waitcnt vmcnt({left(0)})"] + misc[3:] + wfrag(0))
    for q in range(8):
        if q < 7:
            emit([f"s_waitcnt vmcnt({left(q + 1)})"] + wfrag(q + 1))
        a(f"s_waitcnt lgkmcnt({2 if q < 7 else 0})")
        emit([gm(q, 0, D1), gm(q, 1, D1)])
    a("s_branch K_join")


    a("""
    K_slow:
    v_lshlrev_b32 v5, 4, v2
    s_waitcnt lgkmcnt(0)
    ds_read_b128 v[8:11], v5
    s_waitcnt lgkmcnt(0)
    v_add_u32 v13, v8, v9
    v_add_u32 v14, v13, v10
    v_add_u32 v15, v14, v11
    v_mov_b32 v4, v15
    """)
    scan64(a, [4])
    a("""
    v_sub_u32 v40, v4, v15
    v_add_u32 v41, v40, v8
    v_add_u32 v42, v40, v13
    v_add_u32 v43, v40, v14
    ds_write_b128 v5, v[40:43] offset:2048
    """)
    for k in range(8):
        a(f"ds_read_b32 v{24+k}, v{24+k} offset:2048")
    a("s_waitcnt lgkmcnt(0)")
    for k in range(8):
        a(f"s_mov_b64 exec, {'s[92:93]' if k >= 4 else '-1'}")
        a(f"v_add_u32 v{24+k}, v{24+k}, v{32+k}")
        a(f"ds_write_b32 v{24+k}, v{16+k} offset:{STG}")
        a(f"v_cmp_gt_u32 vcc, 0x80, v{32+k}")
        a("s_mov_b64 exec, vcc")
        a(f"ds_write_b32 v{44+k}, v{16+k} offset:{IMG}")
    a(f"""
    s_mov_b64 exec, -1
    s_waitcnt lgkmcnt(0)
    s_barrier
    v_mov_b32 v16, {62 << 14}
    """)
    for j in range(4):
        a(f"""
        v_add_u32 v12, {4*j}, v5
        v_add_u32 v13, 124, v12
        v_and_b32 v13, 0x7f, v13
        v_lshl_add_u32 v13, v12, 5, v13
        v_add_u32 v14, 120, v{40+j}
        v_lshl_or_b32 v14, v14, 18, v16
        v_add_u32 v15, -124, v{8+j}
        v_cmp_lt_u32 vcc, 0x80, v{8+j}
        s_mov_b64 exec, vcc
        ds_write_b32 v13, v14 offset:{IMG}
        ds_write_b32 v{40+j}, v15 offset:{STG + 120}
        s_mov_b64 exec, -1
        """)
    a(f"""
    ds_read_b128 v[16:19], v1 offset:{STG}
    ds_read_b128 v[20:23], v1 offset:{STG + 8192}
    s_add_u32 s50, s88, {WS_REC}
    s_add_u32 s80, s4, s50
    s_addc_u32 s81, s5, 0
    s_mov_b32 s82, s90
    s_movk_i32 s50, 8192
    s_waitcnt lgkmcnt(0)
    buffer_store_dwordx4 v[16:19], v1, s[80:83], 0 offen sc1
    buffer_store_dwordx4 v[20:23], v1, s[80:83], s50 offen sc1
    """)
    img_reads()
    a("s_branch K_out")

    zero_masks = lambda ks: [f"s_mov_b64 {sr(sM+2*k,2)}, 0" for k in ks]
    a("""
    K_again:
    s_waitcnt vmcnt(0) lgkmcnt(0)
    s_barrier
    """)
    lds_reset(True)
    a(f"""
    s_cmp_eq_u32 s{sMODE}, 3
    s_cbranch_scc1 K_next
    """)
    rec_loads()
    a(f"""
    s_waitcnt vmcnt(0)
    s_cmp_eq_u32 s{sMODE}, 1
    s_cbranch_scc0 K_marks
    s_mov_b32 s{sMODE}, 2
    s_mov_b64 s[56:57], 0
    """)
    classes(range(4, 8), True)
    emit(zero_masks(range(4)))
    a(f"""
    s_branch K_resort
    K_marks:
    s_mov_b32 s{sMODE}, 3
    v_mov_b32 v84, 0
    """)
    for k in range(8):
        a(f"""
        v_bfe_u32 v85, v{REC+k}, 14, 6
        v_cmp_eq_u32 vcc, 62, v85
        s_nop 1
        v_cndmask_b32 v84, v84, v{REC+k}, vcc
        """)
    a(f"""
    s_nop 1
    v_or_b32_dpp v84, v84, v84 quad_perm:[1,0,3,2] row_mask:0xf bank_mask:0xf
    s_nop 1
    v_or_b32_dpp v84, v84, v84 quad_perm:[2,3,0,1] row_mask:0xf bank_mask:0xf
    v_cmp_ne_u32 vcc, 0, v84
    v_lshrrev_b32 v84, 20, v84
    v_add_lshl_u32 v84, v84, v{PB}, 2
    s_mov_b32 s{sSTART}, {WS_REC}
    buffer_load_dword v{SLEN}, v84, s[12:15], s{sSTART} offen sc1
    v_add_u32 v{SEG}, v84, v{SIDX}
    s_mov_b32 s{sSTART}, {WS_REC + 4 - 64}
    s_waitcnt vmcnt(0)
    v_cndmask_b32 v{SLEN}, 0, v{SLEN}, vcc
    v_min_u32 v{SLEN}, {CH*4}, v{SLEN}
    v_add_u32 v{SLEN}, 64, v{SLEN}
    K_next:
    s_add_u32 s{sSTART}, s{sSTART}, 64
    v_add_u32 v{SLEN}, -64, v{SLEN}
    """)
    rec_loads(1)
    a(f"""
    v_cmp_lt_i32 s[56:57], 64, v{SLEN}
    v_sub_u32 v84, v{SLEN}, v{SIDX}
    """)
    for k in range(4):
        a(f"v_cmp_lt_i32 {sr(sM+2*k,2)}, {4*k}, v84")
    emit(zero_masks(range(4, 8)))
    a("K_resort:")
    list_ptrs()
    sort(False)
    a(f"""
    s_cmp_eq_u32 s{sMODE}, 2
    s_cselect_b32 s{sMORE}, s{sMARK}, s{sMORE}
    s_cmp_eq_u32 s{sMODE}, 1
    s_cselect_b32 s{sMORE}, 1, s{sMORE}
    s_cbranch_scc1 K_sorted
    s_waitcnt lgkmcnt(0)
    s_barrier
    """)
    fill_a()
    a(f"""
    s_branch K_fillb
    K_over:
    s_cmp_lg_u32 s{sMODE}, 0
    s_cbranch_scc1 K_end
    s_mov_b32 s{sMODE}, 1
    s_mov_b32 s{sMARK}, s{sMORE}
    s_mov_b64 s[56:57], 0
    s_waitcnt lgkmcnt(0)
    s_barrier
    """)
    lds_reset(False)
    emit(zero_masks(range(4, 8)))
    a("s_branch K_resort\nK_codeend:")
    d = desc(name, 256, 100, 256)
    ln = f"; @launch grid=(256,1,1) block=(512,1,1) lds={LDS}\n"
    if opt.get("probe"):
        import gen
        ln = f"; @launch kernel={name} grid=(256,1,1) block=(512,1,1) lds={LDS}\n; @launch kernel=probe_kernel grid=(1,1,1) block=(64,1,1) lds=0\n"
        d += gen.gen_probe(a, opt)
    hdr = """; GatedGCN layer in one launch: each workgroup builds the table rows of its 49 nodes, half of them also
; partition a chunk of edges by destination bin; after two counted hand-offs every workgroup sorts its bin
; and runs the gate / aggregation loop.
""" + ln + '.amdgcn_target "amdgcn-amd-amdhsa--gfx950"\n.text\n'
    return hdr + a.text() + d

if __name__ == "__main__":
    opt = {}
    out = f"cdna_kernels/{NAME}.s"
    for x in sys.argv[1:]:
        k, v = x.split("=", 1)
        if k == "out":
            out = v
        else:
            opt[k] = int(v) if v.lstrip("-").isdigit() else v
    open(out, "w").write(generate(opt))
    print("wrote", out)
```

```python
import sys
from gen import (NAME, N, E, SB, CH, P, RG, DUMMY, WS_REC, WS_SLOT, WS_END, SHIFT, LOG2E, WS_STAMP, MF,
                 f32, Asm, vr, ar, sr, scan64, desc, head, Stamps)

TW0, TW1, TRASH = 2048, 4096, 6144
LIST = 7168
CAPS = 2560
LSET = CAPS * 8
ATAB = LIST + 2 * LSET
AST = 576
WCL = 77824
WS_FLG = 0xA00000
XP = ATAB
ERING = 81920
RING = 98304
LDS = RING + 65536
LIMIT = 2304 * 8
IMG, STG = 4096, 36864
SDW = "dst_sel:DWORD dst_unused:UNUSED_PAD"
OOB = 0x7000000

def generate(opt=None):
    opt = opt or {}
    a = Asm()
    name = NAME + "_kernel"
    cmask = {8: 0x7FC, 4: 0x7F8, 2: 0x7F0}[opt.get("R", 8)]
    tfl = opt.get("tfl", "sc1").replace("+", " ")
    tst = opt.get("tst", "sc1").replace("+", " ")
    head(a, name)
    st = Stamps(a, opt.get("stamp"), 205, WS_STAMP)
    if opt.get("hold"):
        hi_, ht_ = [int(x) for x in opt["hold"].split(":")]
        class Hold:
            on = 0
            def __call__(self, i):
                if i == 0:
                    a("s_memrealtime s[100:101]\ns_waitcnt lgkmcnt(0)")
                if i == hi_:
                    lab = f"K_hold{len(a.l)}"
                    a(f"s_cselect_b32 s101, 1, 0\n{lab}:\ns_memrealtime s[98:99]\ns_waitcnt lgkmcnt(0)\ns_sub_u32 s98, s98, s100\ns_cmp_lt_u32 s98, {ht_}\ns_cbranch_scc1 {lab}\ns_cmp_eq_u32 s101, 1")
            def flush(self):
                pass
        st = Hold()
    SEL0, SIX, PIND, WC, CT, RR = 4, 8, 12, 16, 84, 248
    G = [52, 68]; H = [20, 36]
    OE, RW, OB, OA = 100, 104, 108, 120
    IND = [124, 128]
    SS, MM, AS, AM, BD, BN = 132, 140, 148, 156, 164, 168
    IX, OF0, OF1, EP = 172, 176, 177, 178
    RA = [180, 181]
    EA, LI, LE, LP, TA0, TA1, TC = 184, 185, 186, 187, 188, 189, 190
    XR = 192
    SEG, SLEN, SIDX, PB = 200, 201, 202, 203
    NV = 208
    ACD, ACN, AU = 0, 16, 32
    sW, sSET, sTILE, sBIN = 3, 36, 37, 38
    sRING, sEM0, sS, sK, sVS, sSTART, sLUT, sMORE, s512 = 39, 40, 41, 42, 43, 44, 45, 46, 47
    sCC, sM, sMODE, sMARK, sXO, sPROD, sXB = 48, 64, 7, 9, 8, 6, 61
    REC, CA, RK, BB, EN, T = 36, 44, 52, 60, 100, 76
    XF, WA, DA, SO, WCR = 100, 0, 36, 68, 164
    VW, FW, FX, FS, FR, FG, FA, FB, FU = 168, 169, 170, 171, 172, 173, 207, 204, 191
    ONE, PL = 206, 164

    def emit(lst):
        for x in lst:
            a(x)
    ar = lambda b_, n_=1: vr(NV + b_, n_)

    cw = opt.get("cw", 8)
    a("s_cmp_ge_u32 s2, 256\ns_cbranch_scc1 K_end")
    if opt.get("perm"):
        a(f"s_mul_i32 s2, s2, {opt['perm']}\ns_lshr_b32 s3, s2, 3\ns_and_b32 s3, s3, 7\ns_xor_b32 s2, s2, s3\ns_and_b32 s2, s2, 255")
    st(0)
    a(f"""
    s_load_dwordx8 s[52:59], s[0:1], 0
    s_load_dwordx16 s[64:79], s[0:1], 32
    s_getpc_b64 s[92:93]
    K_pc:
    s_and_b32 s50, s2, {0xf8 if cw == 8 else 0x78}
    s_lshl_b32 s50, s50, {0 if cw == 8 else 1}
    v_add_u32 v4, s50, v0
    v_mul_u32_u24 v4, (K_codeend-K_pc)/1024*4, v4
    v_cmp_gt_u32 vcc, {cw}, v0
    s_and_saveexec_b64 s[90:91], vcc
    s_cbranch_execz K_nocw
    global_load_dword v63, v4, s[92:93]
    K_nocw:
    s_mov_b64 exec, -1
    v_lshrrev_b32 v1, 6, v0
    v_and_b32 v2, 63, v0
    v_readfirstlane_b32 s{sW}, v1
    s_and_b32 s60, s2, 7
    s_lshr_b32 s61, s2, 3
    s_lshl_b32 s50, s60, 5
    s_add_u32 s{sBIN}, s50, s61
    v_lshrrev_b32 v84, 4, v2
    v_and_b32 v85, 15, v2
    v_bfe_u32 v3, v0, 4, 4
    v_xor_b32 v3, v3, v85
    v_lshlrev_b32 v3, 4, v3
    v_lshl_add_u32 v3, v84, 8, v3
    v_lshlrev_b32 v1, 4, v0
    s_mul_i32 s{sXO}, s{sBIN}, {SB*256}
    s_lshl_b32 s90, s{sW}, 10
    s_add_u32 s51, s{sXO}, s90
    s_add_u32 s91, s51, 8192
    s_cmp_lt_u32 s{sW}, 5
    s_cselect_b32 s91, s91, {OOB}
    s_mov_b32 s22, {N*256}
    s_mov_b32 s23, 0x20000
    v_lshrrev_b32 v86, 2, v2
    v_and_b32 v87, 3, v2
    v_lshlrev_b32 v{VW}, 4, v87
    v_lshl_add_u32 v{VW}, v86, 8, v{VW}
    v_mov_b32 v{ONE}, 1
    s_lshr_b32 s50, s2, 4
    s_lshl_b32 s50, s50, 3
    s_add_u32 s62, s50, s60
    s_lshr_b32 s{sSET}, s{sW}, 2
    s_and_b32 s{sTILE}, s{sW}, 3
    s_mov_b32 s83, 0x20000
    s_mov_b32 s87, 0x20000
    s_bitcmp1_b32 s2, 3
    s_cbranch_scc1 K_np
    s_mul_i32 s88, s62, {CH*4}
    s_add_u32 s89, s88, 8192
    s_add_u32 s82, s88, {CH*4}
    s_min_u32 s82, s82, {E*4}
    s_mov_b32 s86, s82
    s_waitcnt lgkmcnt(0)
    s_mov_b32 s80, s58
    s_mov_b32 s81, s59
    s_mov_b32 s84, s56
    s_mov_b32 s85, s57
    buffer_load_dwordx4 v[8:11], v1, s[80:83], s88 offen
    buffer_load_dwordx4 v[12:15], v1, s[80:83], s89 offen
    buffer_load_dwordx4 v[16:19], v1, s[84:87], s88 offen
    buffer_load_dwordx4 v[20:23], v1, s[84:87], s89 offen
    s_branch K_prod
    K_np:
    """)
    def xdma(base, delta):
        o = []
        for i, so in enumerate(("s51", "s91")):
            o.append(f"s_add_u32 m0, s90, {base + 8192*i}")
            o.append(f"s_sub_u32 s50, {so}, {delta}")
            o.append("buffer_load_dwordx4 v3, s[20:23], s50 offen lds")
        return o
    def wdma():
        o = []
        for q in range(8):
            o += [f"s_add_u32 m0, s{sRING}, {1024*q}", f"s_add_u32 s89, s63, {4096*q}",
                  f"buffer_load_dwordx4 v{VW}, s[24:27], s89 offen lds"]
        return o
    wcdma = [f"s_lshl_b32 s89, s{sTILE}, 10", f"s_add_u32 m0, s89, {WCL}", "s_nop 0",
             f"buffer_load_dwordx4 v{VW}, s[32:35], s63 offen lds"]
    def common(first):
        a(f"""
        s_lshl_b32 s{sRING}, s{sW}, 13
        s_add_u32 s{sRING}, s{sRING}, {RING}
        s_lshl_b32 s63, s{sTILE}, 6
        s_cmp_eq_u32 s{sSET}, 0
        s_cselect_b32 s64, s64, s70
        s_cselect_b32 s65, s65, s71
        s_cselect_b32 s66, s66, s72
        s_cselect_b32 s67, s67, s73
        s_mov_b32 s24, s{first}
        s_mov_b32 s25, s{first+1}
        s_mov_b32 s26, 32768
        s_mov_b32 s27, 0x20000
        """)
    def common2(x):
        x(f"""
        s_mov_b32 s32, s68
        s_mov_b32 s33, s69
        s_mov_b32 s34, 4096
        s_mov_b32 s35, 0x20000
        s_mov_b32 s14, {WS_END}
        s_mov_b32 s15, 0x20000
        s_movk_i32 s30, 256
        s_mov_b32 s31, 0x20000
        s_mov_b32 s4, s78
        s_mov_b32 s5, s79
        s_mov_b32 s12, s78
        s_mov_b32 s13, s79
        s_mov_b32 s10, s74
        s_mov_b32 s11, s75
        s_mov_b32 s28, s76
        s_mov_b32 s29, s77
        v_lshrrev_b32 v88, 5, v2
        v_and_b32 v89, 31, v2
        v_lshrrev_b32 v90, 2, v85
        v_lshl_add_u32 v90, v88, 3, v90
        v_and_b32 v91, 1, v84
        v_lshlrev_b32 v91, 5, v91
        v_lshl_add_u32 v91, v87, 3, v91
        v_lshl_add_u32 v90, v90, 6, v91
        v_add_u32 v{FW}, s{sRING}, v90
        s_lshl_b32 s50, s{sTILE}, 10
        s_add_u32 s50, s50, {WCL}
        v_add_u32 v{WCR}, s50, v90
        v_xor_b32 v90, v88, v85
        v_lshlrev_b32 v90, 4, v90
        v_lshl_add_u32 v{FX}, v89, 8, v90
        v_lshlrev_b32 v93, 3, v88
        v_lshrrev_b32 v94, 4, v0
        v_xor_b32 v90, v94, v0
        v_and_b32 v90, 15, v90
        v_lshlrev_b32 v90, 4, v90
        v_lshl_add_u32 v{FU}, v94, 8, v90
        s_mov_b32 s94, {hex(f32(-LOG2E))}
        s_mov_b32 s95, {hex(f32(-LOG2E))}
        s_lshr_b32 s50, s62, 2
        s_lshl_b32 s50, s50, 7
        s_and_b32 s97, s2, 3
        s_lshl_b32 s97, s97, 2
        s_add_u32 s97, s97, s50
        s_cmp_eq_u32 s{sW}, 0
        s_cselect_b32 s97, s97, {OOB}
        s_cselect_b32 s{sPROD}, 0, {OOB}
        """)
    def wfrag(q):
        return [f"ds_read_b64_tr_b16 {ar(WA+4*q+2*z,2)}, v{FW} offset:{1024*q+256*z}" for z in range(2)]
    def xfrag(q, off=0):
        return [f"v_xor_b32 v3, {32*q}, v{FX}", f"ds_read_b128 {vr(XF+8*q,4)}, v3 offset:{off}",
                f"ds_read_b128 {vr(XF+8*q+4,4)}, v3 offset:{off+8192}"]
    misc = [f"v_add_u32 v3, {ERING}, v{FU}", f"ds_read_b128 {vr(XR,4)}, v3", f"ds_read_b128 {vr(XR+4,4)}, v3 offset:8192",
            f"ds_read_b64_tr_b16 {vr(WCR+2,2)}, v{WCR} offset:256", f"ds_read_b64_tr_b16 {vr(WCR,2)}, v{WCR}"]
    def gm(q, rt, base=DA):
        d = vr(base + 16*rt, 16)
        return f"{MF} {d}, {ar(WA+4*q,4)}, {vr(XF+8*q+4*rt,4)}, {'0' if q == 0 else d}"
    RDY = 99
    ready_load = f"buffer_load_dword v{RDY}, off, s[28:31], s{sPROD} sc1"
    def ready_check(tag):
        a(f"""
        s_cmp_lg_u32 s{sW}, 0
        s_cbranch_scc1 K_{tag}
        s_mov_b32 s50, 0
        K_{tag}_spin:
        v_cmp_eq_u32 vcc, 0, v{RDY}
        s_cbranch_vccz K_{tag}
        {ready_load}
        s_add_u32 s50, s50, 1
        s_cmp_lt_u32 s50, 0x40000
        s_waitcnt vmcnt(0)
        s_cbranch_scc1 K_{tag}_spin
        K_{tag}:
        """)
    D1 = 4
    def conv(rt, addrs, base=DA, mul=None, off=lambda j: 0):
        o = []
        for j in range(4):
            b_ = base + 16*rt + 4*j
            if mul:
                o += [f"v_mul_f32 v{b_+i}, {mul}, v{b_+i}" for i in range(4)]
            o += [f"v_cvt_pk_bf16_f32 v{b_}, v{b_}, v{b_+1}", f"v_cvt_pk_bf16_f32 v{b_+1}, v{b_+2}, v{b_+3}",
                  f"ds_write_b64 v{addrs[j]}, {vr(b_,2)} offset:{off(j)}"]
        return o

    def lds_reset(prefill):
        a(f"""
        v_lshlrev_b32 v76, 2, v0
        v_mov_b32 v77, 0
        ds_write_b32 v76, v77
        """)
        if prefill:
            a(f"""
            v_mov_b32 v76, {hex(DUMMY | (SB*AST) << 16)}
            v_mov_b32 v77, {OOB}
            v_mov_b32 v78, v76
            v_mov_b32 v79, v77
            v_lshlrev_b32 v80, 4, v0
            """)
            for i in range(5):
                a(f"ds_write_b128 v80, v[76:79] offset:{LIST + 8192*i}")

    a(f"""
    s_or_b32 s50, s90, s2
    s_cmp_eq_u32 s50, {7*1024 + 8}
    s_cbranch_scc1 K_clr
    s_waitcnt lgkmcnt(0)
    s_mov_b32 s20, s52
    s_mov_b32 s21, s53
    """)
    emit(xdma(XP, SB*256) + xdma(ERING, 0))
    a("K_np1:")
    common(66)
    w1 = wdma()
    b = Asm()
    common2(b)
    b(f"""
    s_add_u32 s97, s97, {WS_FLG}
    """)
    FG1 = 174
    cf = opt.get('cf', 1)
    b(f"""
    s_lshl_b32 s50, s{sTILE}, 3
    s_lshl_b32 s51, s{sSET}, 2
    s_add_u32 s50, s50, s51
    v_and_b32 v90, 7, v2
    v_xor_b32 v90, s50, v90
    v_lshl_add_u32 v90, v90, 4, v93
    v_lshl_add_u32 v90, v89, 9, v90
    v_and_b32 v98, {8 if cf else 0}, v2
    v_xor_b32 v90, v90, v98
    v_add_u32 v{FS}, {XP}, v90
    v_bfe_u32 v90, v0, 5, 3
    v_lshlrev_b32 v90, 4, v90
    v_xor_b32 v90, v90, v1
    v_add_u32 v{FR}, {XP}, v90
    s_lshl_b32 s50, s{sSET}, 3
    v_xor_b32 v175, s50, v{FR}
    v_xor_b32 v204, 8, v175
    v_xor_b32 v95, 16, v{FS}
    v_xor_b32 v96, 32, v{FS}
    v_xor_b32 v97, 48, v{FS}
    s_mul_i32 s50, s{sBIN}, {SB}
    v_lshrrev_b32 v90, 5, v0
    v_add_u32 v90, s50, v90
    v_and_b32 v98, 7, v90
    v_lshrrev_b32 v{FG1}, 3, v90
    v_lshl_or_b32 v{FG1}, v98, 11, v{FG1}
    v_lshl_add_u32 v{FG1}, v{FG1}, 5, v89
    v_lshlrev_b32 v{FG1}, 4, v{FG1}
    v_add_u32 v90, {-SB & 0xffffffff}, v90
    v_and_b32 v98, 7, v90
    v_lshrrev_b32 v{FG}, 3, v90
    v_lshl_or_b32 v{FG}, v98, 11, v{FG}
    v_lshl_add_u32 v{FG}, v{FG}, 5, v89
    v_lshlrev_b32 v{FG}, 4, v{FG}
    v_cmp_gt_u32 s[56:57], {SB - 32}, v89
    s_cmp_eq_u32 s{sSET}, 0
    s_cselect_b32 s96, s94, 1.0
    """)
    nw = opt.get("wearly", 3)
    a("s_barrier")
    emit(w1[:3*nw])
    lds_reset(True)
    cut = [i for i, l in enumerate(b.l) if f"v{FX}," in l][0] + 1
    a.l += b.l[:cut]
    later = [x.strip() for x in b.l[cut:]]
    a(f"""
    s_or_b32 s50, s90, s2
    s_cmp_eq_u32 s50, {7*1024 + 8}
    s_cbranch_scc1 K_pub
    s_waitcnt vmcnt({nw})
    K_np2:
    s_barrier
    """)
    st(1)
    emit(xfrag(0, XP) + xfrag(1, XP) + xfrag(2, XP) + xfrag(3, XP))
    w2 = wdma()
    ahead = opt.get("ahead", 5)
    seq = [w1[3*q:3*q+3] for q in range(8)] + [wcdma + ["s_mov_b32 s24, s64", "s_mov_b32 s25, s65"]] + \
          [w2[3*q:3*q+3] for q in range(8)]
    sent = [nw]
    def send(n):
        o = []
        while sent[0] < min(n, len(seq)):
            o += seq[sent[0]]
            sent[0] += 1
        return o
    landed = lambda i: f"s_waitcnt vmcnt({sent[0] - 1 - i})"
    SA = [FS, 95, 96, 97]
    emit(send(ahead))
    emit([landed(0)] + wfrag(0) + [landed(1)] + wfrag(1))
    for q in range(8):
        a(f"s_waitcnt lgkmcnt({[2, 4, 4, 4, 4, 4, 4, 2][q]})")
        a(gm(q, 0, D1))
        emit(send(ahead + q + 1))
        if q == 4:
            a(f"v_add_u32 v{FX}, {ERING}, v{FX}")
        emit(xfrag(q + 4, XP) if q < 4 else xfrag(q - 4))
        if q < 6:
            emit([landed(q + 2)] + wfrag(q + 2))
        a(gm(q, 1, D1))
        n_ = -(-len(later) // (8 - q))
        while n_ < len(later) and ("cselect" in later[n_] or "addc" in later[n_]):
            n_ += 1
        emit(later[:n_])
        later = later[n_:]
    st(2)
    a(landed(8))
    B2, SO2 = SB * 512, 176
    def stores(fg, so):
        o = []
        for i in range(3):
            o += [f"s_waitcnt lgkmcnt({(3-i)*(1+cf)})", f"buffer_store_dwordx4 {vr(so+4*i,4)}, v{fg}, s[12:15], 0 offen offset:{1024*i} {tst}"]
        return o + ["s_mov_b32 exec_hi, 0", "s_waitcnt lgkmcnt(0)",
                    f"buffer_store_dwordx4 {vr(so+12,4)}, v{fg}, s[12:15], s{sPROD} offen offset:3072 {tst}", "s_mov_b32 exec_hi, -1"]
    back = lambda o, so: [f"ds_read_b128 {vr(so+4*i,4)}, v{FR} offset:{o + 8192*i}" for i in range(4)] if not cf else \
        [f"ds_read_b64 {vr(so+4*i+2*z,2)}, v{(175, 204)[z]} offset:{o + 8192*i}" for i in range(4) for z in range(2)]
    slots = [[] for _ in range(16)]
    slots[0] = xfrag(4) + xfrag(5)
    slots[1] = xfrag(6) + xfrag(7)
    slots[2] = misc[:3]
    c1 = conv(0, SA, D1, "s96") + conv(1, SA, D1, "s96", lambda j: 16384)
    for i in range(8):
        slots[3 + i] = c1[7*i:7*i+7]
    for q in range(8):
        slots[q] += send(sent[0] + 1)
    assert sent[0] == len(seq)
    slots[8] += [ready_load]
    bp = opt.get("backpos", 15)
    slots[bp] += ["s_waitcnt lgkmcnt(0)", "s_barrier"] + back(0, SO)
    emit(misc[3:])
    a("s_waitcnt lgkmcnt(0)\ns_barrier")
    def p2(lo_, hi_, mul=True):
        for i in range(lo_, hi_):
            if i == 8:
                a("s_waitcnt lgkmcnt(5)")
            a(gm(i // 2, i % 2))
            emit([x for x in slots[i] if mul or not x.startswith("v_mul")])
    if opt.get("nomul", 0):
        p2(0, 3)
        a(f"s_cmp_lg_u32 s{sSET}, 0\ns_cbranch_scc1 K_p2b")
        p2(3, 11)
        a("s_branch K_p2c\nK_p2b:")
        p2(3, 11, False)
        a("K_p2c:")
        p2(11, 16)
    else:
        p2(0, 16)
    emit(stores(FG, SO))
    st(3)
    a(f"s_cmp_lg_u32 s{sSET}, 0\ns_cbranch_scc1 K_ns1")
    for i in range(16):
        a(f"v_pk_mul_f32 {vr(DA+2*i,2)}, {vr(DA+2*i,2)}, s[94:95]")
    a("K_ns1:")
    emit(conv(0, SA, DA, None, lambda j: B2) + ["s_mov_b64 exec, s[56:57]"] + conv(1, SA, DA, None, lambda j: B2 + 16384))
    a("s_mov_b64 exec, -1\ns_waitcnt lgkmcnt(0)\ns_barrier")
    emit(back(B2, SO2) + stores(FG1, SO2))
    a("s_waitcnt vmcnt(8)")
    for q in range(8):
        emit(wfrag(q))
    for q in range(8):
        a(f"s_waitcnt lgkmcnt({14 - 2*q})")
        emit([gm(q, 0, D1), gm(q, 1, D1)])
    ready_check("rn")
    a("K_join:")
    st(4)
    def poll_check(tag, base, lanes, wave=0):
        a(f"""
        s_cmp_lg_u32 s{sW}, {wave}
        s_cbranch_scc1 K_{tag}_done
        s_mov_b32 s50, 0
        s_mov_b32 s51, {base}
        K_{tag}_spin:
        s_waitcnt vmcnt(0)
        v_and_b32 v{PL}, v{PL}, v{PL+1}
        v_and_b32 v{PL+2}, v{PL+2}, v{PL+3}
        v_and_b32 v{PL}, v{PL}, v{PL+2}
        v_cmp_ne_u32 vcc, 1, v{PL}
        s_cbranch_vccz K_{tag}_done
        s_add_u32 s50, s50, 1
        s_cmp_lt_u32 s50, 0x40000
        buffer_load_dwordx4 {vr(PL,4)}, v{lanes}, s[12:15], s51 offen sc1
        s_cbranch_scc1 K_{tag}_spin
        K_{tag}_done:
        """)
    def list_ptrs():
        a(f"""
        s_mul_i32 s50, s{sSET}, {LSET}
        s_add_u32 s50, s50, {LIST}
        v_and_b32 v98, 32, v2
        v_bfe_u32 v97, v2, 4, 1
        v_bfe_u32 v96, v2, 3, 1
        v_lshl_add_u32 v96, v96, 2, v97
        v_add_u32 v96, v96, v98
        v_lshl_add_u32 v{LI}, v96, 3, s50
        v_and_b32 v96, 0x2c, v2
        v_lshl_add_u32 v{LP}, v96, 3, s50
        v_and_b32 v96, 2, v2
        v_bfe_u32 v99, v2, 2, 1
        v_lshl_add_u32 v96, v96, 1, v99
        v_and_or_b32 v96, v2, 8, v96
        s_lshr_b32 s51, s{sTILE}, 1
        s_lshl_b32 s51, s51, 7
        s_add_u32 s50, s50, s51
        s_and_b32 s51, s{sTILE}, 1
        s_lshl_b32 s51, s51, 8
        s_add_u32 s50, s50, s51
        v_lshl_add_u32 v{LE}, v96, 3, s50
        """)
    PL = 68
    def rec_loads(n=2):
        a(f"buffer_load_dwordx4 {vr(REC,4)}, v{SEG}, s[12:15], s{sSTART} offen sc1")
        if n == 2:
            a(f"buffer_load_dwordx4 {vr(REC+4,4)}, v{SEG}, s[12:15], s{sSTART} offen offset:64 sc1")
    a(f"""
    v_lshlrev_b32 v{FS}, 7, v89
    s_cmp_lg_u32 s{sW}, 0
    s_cbranch_scc1 K_nopoll
    s_mov_b32 s50, {WS_FLG + 4096}
    buffer_load_dwordx4 {vr(PL,4)}, v{FS}, s[12:15], s50 offen sc1
    K_nopoll:
    v_lshrrev_b32 v95, 2, v0
    v_lshlrev_b32 v{SIDX}, 4, v87
    v_lshl_add_u32 v{SEG}, v95, 7, v{SIDX}
    v_mul_u32_u24 v92, {AST}, v89
    v_mul_u32_u24 v{PB}, {CH}, v95
    s_lshl_b32 s{sSTART}, s{sBIN}, 14
    s_add_u32 s{sSTART}, s{sSTART}, {WS_SLOT}
    s_mov_b32 s16, s54
    s_mov_b32 s17, s55
    s_mov_b32 s18, {opt.get('erows', E) * 32}
    s_mov_b32 s19, 0x20000
    s_mov_b32 s{sMODE}, 0
    s_bitcmp1_b32 s2, 3
    s_cselect_b32 s60, {4*opt.get('ewarm', 2)}, {4*opt.get('ewarmp', opt.get('ewarm', 2))}
    """)
    a(f"""
    s_cmp_lg_u32 s{sSET}, 0
    s_cbranch_scc1 K_uaddr
    v_cmp_gt_u32 s[90:91], {SB - 31}, v89
    s_lshl_b32 s51, s{sTILE}, 7
    s_add_u32 s51, s51, {ATAB}
    v_add3_u32 v81, v92, v93, s51
    """)
    for i in range(16):
        a(f"v_pk_mul_f32 {vr(D1+2*i,2)}, {vr(D1+2*i,2)}, s[94:95]")
    ca = conv(0, [81]*4, D1, None, lambda j: 16*j) + conv(1, [81]*4, D1, None, lambda j: 16*j + 32*AST)
    emit([x for x in ca if x.startswith("v_")])
    a(f"""
    s_branch K_conv
    K_uaddr:
    v_bfe_u32 v52, v2, 1, 2
    v_lshl_add_u32 v52, v52, 4, v93
    v_lshl_add_u32 v52, v89, 6, v52
    v_add_u32 v52, s{sRING}, v52
    """)
    for j in range(1, 4):
        a(f"v_xor_b32 v{52+j}, {16*j}, v52")
    emit(conv(0, [52, 53, 54, 55], D1) + conv(1, [52, 53, 54, 55], D1, None, lambda j: 2048))
    a(f"""
    v_and_b32 v45, 63, v95
    v_and_b32 v46, 31, v95
    v_lshlrev_b32 v47, 3, v87
    v_sub_u32 v46, v46, v47
    v_cmp_eq_u32 s[90:91], {SB}, v45
    v_mov_b32 v47, 64
    v_cmp_ge_u32 s[92:93], {SB}, v45
    v_cndmask_b32 v46, v46, v47, s[90:91]
    v_and_b32 v47, 1, v46
    v_lshlrev_b32 v47, 4, v47
    v_mov_b32 v48, 0x3f80
    v_lshlrev_b32 v47, v47, v48
    v_ashrrev_i32 v46, 1, v46
    v_cmp_eq_u32 s[64:65], 0, v46
    v_cmp_eq_u32 s[66:67], 1, v46
    v_cmp_eq_u32 s[68:69], 2, v46
    v_cmp_eq_u32 s[70:71], 3, v46
    v_cndmask_b32 v48, 0, v47, s[64:65]
    v_cndmask_b32 v49, 0, v47, s[66:67]
    v_cndmask_b32 v50, 0, v47, s[68:69]
    v_cndmask_b32 v51, 0, v47, s[70:71]
    v_mul_u32_u24 v46, {AST}, v45
    v_add_u32 v46, v46, v{SIDX}
    K_conv:
    """)
    st(5)
    poll_check("s", WS_FLG + 4096, FS)
    a("s_waitcnt vmcnt(0) lgkmcnt(0)\ns_barrier")
    rec_loads()
    a(f"""
    s_mov_b64 exec, 1
    buffer_store_dword v{ONE}, off, s[12:15], s97 sc1
    s_mov_b64 exec, -1
    """)
    st(6)
    PL = 156
    wa = [x for x in ca if x.startswith("ds_")]
    a(f"s_cmp_eq_u32 s{sSET}, 0\ns_cbranch_scc1 K_tab\ns_mov_b64 exec, s[92:93]")
    for t in range(4):
        a(f"ds_write_b128 v46, v[48:51] offset:{ATAB+128*t+64}")
    a("K_tab:\ns_mov_b64 exec, -1")
    a(f"""
    s_lshl_b32 s50, s{sTILE}, 7
    s_add_u32 s51, s50, {ATAB}
    v_add_u32 v{TC}, s51, v91
    v_lshlrev_b32 v90, 2, v84
    v_xor_b32 v90, v90, v2
    v_and_b32 v90, 7, v90
    v_lshl_add_u32 v{OF0}, v90, 4, s50
    v_add_u32 v{OF1}, 0x400, v{OF0}
    v_add_u32 v182, 0x800, v{OF0}
    v_add_u32 v207, 0xc00, v{OF0}
    v_bfe_u32 v90, v0, 2, 2
    v_lshlrev_b32 v90, 13, v90
    v_lshl_add_u32 v90, v94, 6, v90
    v_bfe_u32 v96, v0, 5, 2
    v_xor_b32 v96, v96, v87
    v_lshl_add_u32 v90, v96, 4, v90
    v_add_u32 v3, {RING + 32768}, v90
    ds_read_b128 {ar(AU,4)}, v3
    ds_read_b128 {ar(AU+4,4)}, v3 offset:2048
    s_lshr_b32 s51, s{sTILE}, 1
    v_xor_b32 v84, s51, v2
    v_and_b32 v84, 1, v84
    v_lshlrev_b32 v{EP+1}, 4, v84
    s_mov_b32 s{s512}, 512
    s_lshl_b32 s50, s{sSET}, 12
    s_add_u32 s93, s50, {ERING}
    s_lshl_b32 s51, s{sTILE}, 8
    s_add_u32 s{sEM0}, s93, s51
    """)
    list_ptrs()
    def consts2():
        a(f"""
        v_and_b32 v90, 5, v89
        v_bfe_u32 v96, v89, 3, 1
        v_lshl_add_u32 v90, v96, 1, v90
        v_lshrrev_b32 v96, 4, v89
        v_lshl_add_u32 v90, v96, 3, v90
        v_mul_u32_u24 v90, {AST}, v90
        v_lshl_add_u32 v3, v88, 4, v90
        ds_read_b128 {vr(SEL0,4)}, v3 offset:{ATAB + 64}
        v_lshrrev_b32 v90, 3, v89
        v_and_b32 v96, 1, v89
        v_lshl_add_u32 v90, v90, 1, v96
        v_and_b32 v96, 4, v89
        v_lshl_add_u32 v90, v96, 1, v90
        v_mul_u32_u24 v90, {AST}, v90
        v_lshl_add_u32 v3, v88, 4, v90
        ds_read_b128 {vr(PIND,4)}, v3 offset:{ATAB + 64}
        """)
    def consts3():
        a("s_mov_b32 s51, 0xffff0000")
        for j in range(4):
            a(f"""
            v_lshlrev_b32 v76, 16, v{WCR+j}
            v_and_b32 v77, s51, v{WCR+j}
            v_pk_mul_f32 v[76:77], v[76:77], s[94:95]
            v_cvt_pk_bf16_f32 v{WC+j}, v76, v77
            """)
        a(f"""
        v_lshl_add_u32 v90, v88, 9, s{sRING}
        v_lshl_add_u32 v{RA[1]}, v89, 1, v90
        v_add_u32 v90, v90, v91
        v_and_b32 v91, 12, v2
        v_lshl_add_u32 v90, v91, 5, v90
        v_and_b32 v91, 8, v2
        v_lshl_add_u32 v{RA[0]}, v91, 3, v90
        v_and_b32 v90, 2, v2
        v_mul_u32_u24 v90, 0x5555, v90
        v_add_u32 v{SIX}, 0x4444, v90
        v_xor_b32 v84, v97, v88
        v_lshlrev_b32 v84, 4, v84
        v_and_b32 v90, 0x13, v2
        v_lshl_add_u32 v84, v90, 5, v84
        v_and_b32 v90, 4, v2
        v_lshl_add_u32 v84, v90, 6, v84
        v_and_b32 v90, 8, v2
        v_lshl_add_u32 v84, v90, 4, v84
        v_add_u32 v{EA}, s93, v84
        """)

    def classes(ks, with_masks):
        a(f"s_movk_i32 s51, {63*32}\ns_movk_i32 s50, {cmask}")
        for k in ks:
            a(f"v_lshrrev_b32 v{CA+k}, 9, v{REC+k}")
            a(f"v_and_b32 v{CA+k}, s50, v{CA+k}")
            if with_masks:
                a(f"v_cmp_gt_u32 {sr(sM+2*k,2)}, s51, v{CA+k}")

    PW, SW = 7, 4
    def sort(first):
        tg = "a" if first else "b"
        a(f"""
        v_mov_b32 v{T+1}, 8
        v_lshlrev_b32 v{T}, 5, v2
        """)
        if first:
            a("s_waitcnt vmcnt(1)")
            st(7)
        else:
            a(f"""
            v_mov_b32 v{T+2}, 0
            s_waitcnt vmcnt(0) lgkmcnt(0)
            s_barrier
            s_mov_b64 exec, s[56:57]
            ds_write_b32 v{T+2}, v{T+1} offset:{62*32}
            s_mov_b64 exec, -1
            """)
        classes(range(8), first)
        for k in range(8):
            a(f"s_mov_b64 exec, {sr(sM+2*k,2)}")
            a(f"ds_add_rtn_u32 v{RK+k}, v{CA+k}, v{T+1}")
        a(f"s_mov_b64 exec, -1\ns_movk_i32 s50, {AST*4}")
        hi, lo, ew = [], [], []
        for k in range(8):
            e = EN + 2*k
            hi += [f"v_lshrrev_b32 v{e+1}, 20, v{REC+k}", f"v_add_lshl_u32 v{e+1}, v{e+1}, v{PB}, 5"]
            lo += [f"v_and_b32 v{e}, 0x3fff, v{REC+k}", f"v_and_b32 v3, 0xfc000, v{REC+k}", f"v_mad_u32_u24 v{e}, v3, s50, v{e}"]
            ew += [f"v_and_b32 v3, 28, v{CA+k}", f"v_cmp_gt_u32 vcc, s60, v3",
                   f"s_and_b64 exec, vcc, {sr(sM+2*k,2)}", f"buffer_load_dword v{SLEN}, v{e+1}, s[16:19], 0 offen",
                   "s_mov_b64 exec, -1"]
        if not (first and opt.get("ewarm", 2)):
            ew = []
        c, W1, U, n, I, X, L, Z = 116, 124, 132, 136, 140, 144, 148, 152
        Tt = lambda i: W1 + 2*i
        Dd = lambda i: W1 + 2*i + 1
        t0, t1, run = T+2, T+3, T+4
        emit(hi + ew[:20])
        a(f"""
        s_cmp_eq_u32 s{sW}, {SW}
        s_waitcnt lgkmcnt(0)
        s_barrier
        s_cbranch_scc1 K_scan{tg}
        """)
        emit(ew[20:])
        if first:
            a(f"s_cmp_lg_u32 s{sSET}, 0\ns_cbranch_scc1 K_noa")
            emit(wa[:4] + ["s_mov_b64 exec, s[90:91]"] + wa[4:])
            a("s_mov_b64 exec, -1\nK_noa:")
            consts2()
        emit(lo)
        if first and not opt.get("ppos", 0):
            a(f"""
            s_cmp_lg_u32 s{sW}, {PW}
            s_cbranch_scc1 K_scanned{tg}
            s_mov_b32 s50, {WS_FLG}
            buffer_load_dwordx4 {vr(PL,4)}, v{FS}, s[12:15], s50 offen sc1
            """)
        a(f"""
        s_branch K_scanned{tg}
        K_scan{tg}:
        ds_read_b128 {vr(c,4)}, v{T}
        ds_read_b128 {vr(c+4,4)}, v{T} offset:16
        s_setprio 1
        """)
        emit(lo)
        a(f"""
        s_mov_b32 s51, 0xffe0ffe0
        s_waitcnt lgkmcnt(0)
        v_readlane_b32 s{sMORE}, v{c}, 62
        v_writelane_b32 v{c}, 0, 62
        """)
        for r in range(1, 8):
            a(f"v_add_u32 v{c+r}, v{c+r-1}, v{c+r}")
        steps = [("row_shr:1", "0xf"), ("row_shr:2", "0xf"), ("row_shr:4", "0xf"), ("row_shr:8", "0xf"),
                 ("row_bcast:15", "0xa"), ("row_bcast:31", "0xc")]
        Q, CN, SF, U0, H0 = 60, 61, 62, 63, 64
        a(f"""
        v_add_u32 v{Q}, 15, v{c+7}
        v_and_b32 v{Q}, 0xffe0, v{Q}
        v_mov_b32 v{t0}, v{Q}
        v_cmp_lt_u32 s[88:89], v{Q}, v{c+7}
        """)
        pk_ = [f"v_lshl_or_b32 v{Dd(i)}, v{c+2*i+1}, 16, v{c+2*i}" for i in range(4)] + \
              [f"v_mbcnt_lo_u32_b32 v{CN}, s88, 0", f"v_mbcnt_hi_u32_b32 v{CN}, s89, v{CN}",
               f"v_sub_u32 v{H0}, v{c+7}, v{Q}", f"v_mov_b32 v{L}, {hex((LIST + 512) * 0x10001)}",
               f"v_mov_b32 v{L+1}, {hex((LIST + LSET + 512) * 0x10001)}"]
        if first:
            a(pk_.pop(0))
            for ctl, m_ in steps:
                a(f"v_add_u32_dpp v{t0}, v{t0}, v{t0} {ctl} row_mask:{m_} bank_mask:0xf")
                if pk_:
                    emit([pk_.pop(0), pk_.pop(0)])
                else:
                    a("s_nop 1")
            a(f"""
            v_readlane_b32 s50, v{t0}, 63
            v_sub_u32 v{t0}, v{t0}, v{Q}
            v_lshlrev_b32 v{t1}, 1, v{t0}
            v_cmp_gt_u32 vcc, s50, v{t1}
            v_sub_u32 v{t1}, s50, v{t0}
            v_add_u32 v{t0}, 0xff, v{t0}
            v_add_u32 v{t1}, 0xff, v{t1}
            s_bcnt1_i32_b64 s50, vcc
            v_lshrrev_b32 v{t0}, 8, v{t0}
            s_max_u32 s50, s50, 18
            v_lshrrev_b32 v{t1}, 8, v{t1}
            s_min_u32 s50, s50, 32
            v_lshl_add_u32 v{t0}, v{t0}, 1, -1
            v_lshlrev_b32 v{t1}, 1, v{t1}
            v_max_i32 v{t0}, v{t0}, v{t1}
            s_sub_u32 s58, s50, 1
            v_readlane_b32 s56, v{t0}, s50
            v_readlane_b32 s57, v{t0}, s58
            s_cmp_le_i32 s56, s57
            s_cselect_b32 s{sVS}, s50, s58
            """)
        else:
            emit(pk_)
        a(f"""
        v_readlane_b32 s56, v{CN}, s{sVS}
        v_cmp_le_u32 vcc, s{sVS}, v2
        s_nop 0
        v_subrev_u32 v{t0}, s56, v{CN}
        v_cndmask_b32 v{run}, v{L}, v{L+1}, vcc
        v_cndmask_b32 v{CN}, v{CN}, v{t0}, vcc
        v_cmp_gt_u32 s[56:57], {16 if opt.get("head", 1) else 0}, v{CN}
        s_and_b64 s[88:89], s[88:89], s[56:57]
        v_lshl_add_u32 v{CN}, v{CN}, 5, v{run}
        v_cndmask_b32 v{U0}, 0, 32, s[88:89]
        v_cndmask_b32 v{H0}, 0, v{H0}, s[88:89]
        v_sub_u32 v{SF}, v{U0}, v{H0}
        v_lshl_or_b32 v{SF}, v{SF}, 16, v{SF}
        """)
        for i in range(4):
            a(f"v_add_u32 v{Dd(i)}, v{SF}, v{Dd(i)}")
        for i in range(4):
            a(f"v_add_u32 v{U+i}, 0x001f001f, v{Dd(i)}")
        for i in range(4):
            a(f"v_and_b32 v{U+i}, s51, v{U+i}")
        for i in range(4):
            a(f"v_lshl_or_b32 v{n}, v{U}, 16, v{U0}" if i == 0 else f"v_alignbit_b32 v{n+i}, v{U+i}, v{U+i-1}, 16")
        for i in range(4):
            a(f"v_sub_u32 v{I+i}, v{U+i}, v{n+i}")
        for ctl, m_ in steps:
            for i in range(4):
                a(f"v_add_u32_dpp v{I+i}, v{I+i}, v{I+i} {ctl} row_mask:{m_} bank_mask:0xf")
        emit([f"v_sub_u32 v{n+i}, v{U+i}, v{n+i}" for i in range(4)] + [f"v_sub_u32 v{X+i}, v{I+i}, v{n+i}" for i in range(4)])
        for i in range(4):
            a(f"v_readlane_b32 s{84+i}, v{I+i}, 63")
        for i in range(4):
            a(f"v_readlane_b32 s{80+i}, v{X+i}, s{sVS}")
        for i in range(4):
            a(f"v_sub_u32 v{Dd(i)}, v{U+i}, v{Dd(i)}")
        for i in range(4):
            a(f"v_mov_b32 v{L+i}, s{80+i}")
        for i in range(4):
            a(f"v_sub_u32 v{Z+i}, s{84+i}, v{L+i}")
            a(f"v_cndmask_b32 v{U+i}, 0, v{L+i}, vcc")
        for i in range(4):
            a(f"v_cndmask_b32 v{L+i}, v{L+i}, v{Z+i}, vcc")
        a(f"v_add_u32 v{CN}, {-480 & 0xffffffff}, v{CN}\ns_mov_b32 s51, 0x03020302")
        for i in range(4):
            a(f"v_lshl_or_b32 v{Tt(0)}, v{Dd(0)}, 16, v{H0}" if i == 0 else f"v_alignbit_b32 v{Tt(i)}, v{Dd(i)}, v{Dd(i-1)}, 16")
            a(f"v_sub_u32 v{X+i}, v{X+i}, v{U+i}")
        a(f"ds_write_b128 v{T}, {vr(W1,4)} offset:{TW1}\nds_write_b128 v{T}, {vr(W1+4,4)} offset:{TW1+16}")
        for i in range(4):
            a(f"v_lshl_add_u32 v{t0}, v{L+i}, 16, v{run}")
            a(f"v_pk_min_u16 v{Z+i}, v{n+i}, 1 op_sel_hi:[1,0]")
            a(f"v_add_u32 v{t1}, v{t0}, v{L+i}")
            a(f"v_add_u32 v{X+i}, v{X+i}, v{t0}")
            a(f"v_perm_b32 v{run}, v{t1}, v{t1}, s51")
        for i in range(4):
            a(f"v_add_u32 v{I+i}, v{X+i}, v{n+i}")
            a(f"v_sub_u32 v{c+2*i}, v{X+i}, v{Tt(i)}")
        a(f"v_readlane_b32 s56, v{run}, 0\nv_readlane_b32 s57, v{run}, 63")
        for i in range(4):
            a(f"v_pk_mul_lo_u16 v{Z+i}, v{Z+i}, v{I+i}")
            a(f"v_lshrrev_b32 v{c+2*i+1}, 16, v{c+2*i}")
        a(f"v_and_b32 v{t0}, 0xffff, v{CN}\nv_cndmask_b32 v{t0}, 0, v{t0}, s[88:89]\ns_movk_i32 s51, {TRASH}")
        for r in range(8):
            a(f"v_sub_u16_sdwa v{c+r}, v{t0}, v{W1+r} dst_sel:WORD_1 dst_unused:UNUSED_PRESERVE src0_sel:WORD_0 src1_sel:WORD_0")
            if r < 7:
                a(f"v_max_u32_sdwa v{t0}, v{t0}, v{Z+r//2} {SDW} src0_sel:DWORD src1_sel:WORD_{r % 2}")
        a(f"""
        v_writelane_b32 v{c}, s51, 62
        ds_write_b128 v{T}, {vr(c,4)} offset:{TW0}
        ds_write_b128 v{T}, {vr(c+4,4)} offset:{TW0+16}
        """)
        a(f"""
        s_pack_hh_b32_b16 s50, s56, s57
        s_sub_u32 s50, s50, {hex((LIST - 255) + ((LIST + LSET - 255) << 16))}
        v_mov_b32 v{Z}, s50
        v_mov_b32 v{Z+1}, s{sVS}
        v_mov_b32 v{Z+2}, s{sMORE}
        ds_write_b96 v{T+1}, {vr(Z,3)} offset:{63*32 - 8}
        s_setprio 0
        s_waitcnt lgkmcnt(0)
        K_scanned{tg}:
        s_cmp_lg_u32 s{sW}, {SW}
        s_barrier
        ds_read_b96 {vr(Z,3)}, v{T+1} offset:{63*32 - 8}
        """)
        if first:
            st(8)
        for k in range(8):
            a(f"ds_read2st64_b32 {vr(BB+2*k,2)}, v{CA+k} offset0:{TW0//256} offset1:{TW1//256}")
        a(f"s_cbranch_scc1 K_rest{tg}")
        emit(ew[20:])
        a(f"""
        K_rest{tg}:
        """)
        if first and opt.get("ppos", 0):
            a(f"""
            s_cmp_lg_u32 s{sW}, {PW}
            s_cbranch_scc1 K_nop2
            s_mov_b32 s50, {WS_FLG}
            buffer_load_dwordx4 {vr(PL,4)}, v{FS}, s[12:15], s50 offen sc1
            K_nop2:
            """)
        a(f"""
        s_waitcnt lgkmcnt(8)
        v_readfirstlane_b32 s50, v{Z}
        v_readfirstlane_b32 s{sVS}, v{Z+1}
        v_readfirstlane_b32 s{sMORE}, v{Z+2}
        s_bfe_u32 s56, s50, {hex(8 | 8 << 16)}
        s_lshr_b32 s57, s50, 24
        s_max_u32 s57, s57, 1
        s_max_u32 s58, s56, s57
        s_cmp_le_u32 s58, {LIMIT // 256}
        s_cbranch_scc0 K_over
        s_sub_u32 s59, s58, 1
        s_max_u32 s59, s59, s57
        s_add_u32 s56, s58, 1
        s_and_b32 s56, s56, -2
        s_cmp_lt_u32 s58, 9
        s_cselect_b32 s58, s56, s58
        s_cselect_b32 s59, s56, s59
        s_sub_u32 s{sXB}, s58, s59
        s_cmp_eq_u32 s{sSET}, 0
        s_cselect_b32 s{sS}, s58, s59
        """)
        for k0 in (0, 4):
            a(f"s_waitcnt lgkmcnt({4 - k0})")
            for k in range(k0, k0 + 4):
                a(f"v_cmp_lt_u32_sdwa {sr(80+2*(k % 4),2)}, v{RK+k}, v{BB+2*k+1} src0_sel:DWORD src1_sel:WORD_0")
                a(f"v_lshrrev_b32 v{BB+2*k+1}, 16, v{BB+2*k}")
            for k in range(k0, k0 + 4):
                a(f"v_cndmask_b32 v{BB+2*k}, v{BB+2*k}, v{BB+2*k+1}, {sr(80+2*(k % 4),2)}")
                a(f"v_add_u32_sdwa v{RK+k}, v{RK+k}, v{BB+2*k} {SDW} src0_sel:DWORD src1_sel:WORD_0")
        for k in range(8):
            a(f"s_mov_b64 exec, {sr(sM+2*k,2)}")
            a(f"ds_write_b64 v{RK+k}, {vr(EN+2*k,2)}")
        a("s_mov_b64 exec, -1")

    def idx_reads(blk, sub):
        o = 128*blk + 4*sub
        return [f"ds_read2_b32 {vr(RW,2)}, v{LI} offset0:{o} offset1:{o+16}",
                f"ds_read2_b32 {vr(RW+2,2)}, v{LI} offset0:{o+32} offset1:{o+48}"]
    mads = [f"v_mad_u32_u16 v{IX+t}, v{RW+t}, s{s512}, v{(207, 182, OF1, OF0)[t]}" for t in range(4)]
    def dma(slot, mid):
        o = [f"s_add_u32 m0, s{sRING}, {4096*slot}"]
        for t in range(4):
            o += mid[t] + [f"buffer_load_dwordx4 v{IX+t}, s[24:27], 0 offen offset:{1024*t} {tfl} lds"]
        return o
    def edma(step, src=EP):
        return [f"s_add_u32 m0, s{sEM0}, {1024*(step % 4)}", "s_mov_b64 exec, 0xffff", f"v_or_b32 v{src}, v{src}, v{EP+1}",
                f"buffer_load_dwordx4 v{src}, s[16:19], 0 offen {opt.get('eflag','')} lds", "s_mov_b64 exec, -1"]
    def eid_read(step, dst=None):
        return [f"ds_read_b32 v{dst or EP}, v{LE} offset:{512*(step // 2) + 16*(step % 2) + 4}"]
    def pn_read(blk):
        return [f"ds_read2_b32 {vr(TA0,2)}, v{LP} offset0:{128*blk} offset1:{128*blk+32}"]
    ta = [f"v_add_u32_sdwa v{x}, v{x}, v{TC} {SDW} src0_sel:WORD_1 src1_sel:DWORD" for x in (TA0, TA1)]
    def reads(step):
        s = step % 2
        o = [f"ds_read_b128 {vr(OE,4)}, v{EA} offset:{1024*(step % 4)}"]
        o += [f"ds_read_b64_tr_b16 {vr(OB+2*z,2)}, v{RA[0]} offset:{4096*s + 1024*z}" for z in range(4)]
        o += [f"ds_read_u16_d16_hi v{H[s]+r}, v{RA[1]} offset:{4096*s + 128*(8*(r//4) + r % 4) + (0 if r & 2 else 64)}"
              for r in range(16)]
        return o
    def tr_reads(blk):
        i = IND[blk % 2]
        return [f"ds_read_b64_tr_b16 {vr(OA,2)}, v{TA0}", f"ds_read_b64_tr_b16 {vr(OA+2,2)}, v{TA1}",
                f"ds_read_b64_tr_b16 {vr(i,2)}, v{TA0} offset:64", f"ds_read_b64_tr_b16 {vr(i+2,2)}, v{TA1} offset:64"]
    mct = f"{MF} {vr(CT,16)}, {vr(PIND,4)}, {vr(OA,4)}, 0"
    def mf_g(g):
        d = vr(g, 16)
        return [f"{MF} {d}, {vr(OE,4)}, {vr(WC,4)}, {vr(CT,16)}",
                f"v_smfmac_f32_32x32x32_bf16 {d}, {vr(SEL0,4)}, {vr(OB,8)}, v{SIX}"]
    def mf_red(i):
        return [f"{MF} {ar(ACD,16)}, {vr(IND[i],4)}, {vr(BD,4)}, {ar(ACD,16)}",
                f"{MF} {ar(ACN,16)}, {vr(IND[i],4)}, {vr(BN,4)}, {ar(ACN,16)}"]
    cvts = [f"v_cvt_pk_bf16_f32 v{BD+j}, v{AS+2*j}, v{AS+2*j+1}" for j in range(4)] + \
           [f"v_cvt_pk_bf16_f32 v{BN+j}, v{AM+2*j}, v{AM+2*j+1}" for j in range(4)]
    def pk(op, d, *s):
        return f"v_pk_{op}_f32 {vr(d,2)}, " + ", ".join(x if isinstance(x, str) else vr(x, 2) for x in s)
    def pk2(k):
        o = []
        for dst, src in ((AS, SS), (AM, MM)):
            for j in range(4):
                if k % 2 == 0:
                    o.append(pk("mul", dst+2*j, src+2*j, RR+2*j))
                else:
                    o.append(pk("fma", dst+2*j, src+2*j, RR+2*j, dst+2*j))
        return o
    RE = 183
    cut = opt.get("cut", 1)
    def load_seg(u):
        side = eid_read(u + 5, RE) + idx_reads(*[(1, 1), (0, 0), (0, 1), (1, 0)][u])
        if opt.get("bal", 0):
            side += tr_reads(u // 2)[2:] + pn_read(u // 2) if u % 2 == 0 else tr_reads(0)[:2]
        else:
            side += pn_read(u // 2) if u % 2 == 0 else tr_reads((u + 1) // 2)
        rd = reads(u + 1)
        va = mads + [f"v_or_b32 v{EP}, v{RE}, v{EP+1}"] + (ta if u % 2 == 0 else [])
        adv = {0: LI, 2: LP, 3: LE}.get(u)
        if adv:
            va = va + [f"v_add_u32 v{adv}, 0x400, v{adv}"]
        ed = [x for x in edma(u) if not x.startswith("v_or")]
        dd = dma(u % 2, [side[len(side)*t//4:len(side)*(t+1)//4] for t in range(4)])
        nf = opt.get("nf", 4)
        if nf == 4:
            o = dd + ed + ["s_waitcnt vmcnt(6)"] + rd
        else:
            n_ = -(-len(side) // nf)
            g_ = opt.get("gap", 4)
            mid = [side[n_*t:n_*t+n_] for t in range(nf)] + [rd[g_*t:g_*t+g_] for t in range(4 - nf)]
            mid[nf] = [f"s_waitcnt vmcnt({nf + 1})"] + mid[nf]
            o = dma(u % 2, mid) + ed + rd[g_*(4 - nf):]
        vp = opt.get("vpos", 0)
        if vp:
            o = o[:len(o)-vp] + [f"s_waitcnt lgkmcnt({min(15, 21 - vp)})"] + va + o[len(o)-vp:] + [f"s_sub_u32 s{sK}, s{sK}, 1"]
        else:
            o += ["s_waitcnt lgkmcnt(15)"] + va + [f"s_sub_u32 s{sK}, s{sK}, 1"]
        return o + ["s_setprio 0", "s_waitcnt lgkmcnt(0)", "s_barrier"]
    def comp_seg(u, first=False):
        g, gn, h = G[u % 2], G[(u + 1) % 2], H[u % 2]
        ex = [f"v_exp_f32 v{g+r}, v{g+r}" for r in range(16)]
        mg = mf_g(gn)
        if u % 2 == 0:
            mr = mf_red((u // 2 - 1) % 2)
            o = pk2(u - 1) + [mg[0]] + cvts[:6] + [mg[1]] + cvts[6:] + ex[:2] + [mr[0]] + ex[2:5] + [mr[1]] + ex[5:]
        else:
            o = ([] if first else pk2(u - 1)) + [mct] + ex[:3] + [mg[0]] + ex[3:6] + [mg[1]] + ex[6:]
        for j in range(4):
            b_ = g + 4*j
            o += [pk("fma", x, x, sr(sCC, 2), sr(sCC, 2)) + " clamp" for x in (b_, b_+2)]
        for j in range(4):
            b_, hh = g + 4*j, h + 4*j
            o += [pk("mul", RR+2*j, b_, b_+2), pk("mul", MM+2*j, hh, b_+2), f"v_rcp_f32 v{RR+2*j}, v{RR+2*j}",
                  pk("add", SS+2*j, b_, b_+2), f"v_rcp_f32 v{RR+2*j+1}, v{RR+2*j+1}", pk("fma", MM+2*j, hh+2, b_, MM+2*j)]
        if opt.get("rcend"):
            o = [x for x in o if "rcp" not in x] + [x for x in o if "rcp" in x]
        return o + ["s_setprio 1", "s_barrier"]

    peel = opt.get("peel", 0)
    one = lambda l: [[x] for x in l]
    def fill_a():
        a(f"s_sub_u32 s24, s4, 3072\ns_subb_u32 s25, s5, 0\ns_mov_b32 s26, s14")
        emit(eid_read(1) + eid_read(2, 1) + idx_reads(0, 1) + [f"ds_read2_b32 {vr(TA0,2)}, v{LP} offset0:6 offset1:38"])
        a("s_waitcnt lgkmcnt(0)")
        emit(edma(1) + edma(2, 1) + dma(1, one(mads)))
        emit(eid_read(3) + idx_reads(1, 0) + ta)
    def fill_b():
        a("s_waitcnt lgkmcnt(0)")
        emit(edma(3) + dma(0, one(mads)) + eid_read(4) + idx_reads(1, 1) + pn_read(1))
        a(f"v_add_u32 v{LP}, 0x200, v{LP}\nv_add_u32 v{LI}, 0x400, v{LI}\ns_sub_u32 s{sK}, s{sS}, 2")
    sort(True)
    a(f"K_sorted:\ns_cmp_lg_u32 s{sW}, {SW}\ns_cbranch_scc1 K_c2")
    consts2()
    a("K_c2:")
    if opt.get("c3", 0) == 2:
        consts3()
    poll_check("t", WS_FLG, FS, PW)
    a("s_waitcnt lgkmcnt(0)\ns_barrier")
    st(9)
    if opt.get("c3", 0) == 2:
        fill_a()
    elif opt.get("c3", 0):
        a(f"s_cmp_eq_u32 s{sSET}, 0\ns_cbranch_scc1 K_f0")
        consts3()
        a("K_f0:")
        fill_a()
        a(f"s_cmp_lg_u32 s{sSET}, 0\ns_cbranch_scc1 K_f1")
        consts3()
        a("K_f1:")
    else:
        fill_a()
        consts3()
    st(13)
    for i in range(4):
        a(f"v_mov_b32 v{108+i}, 0")
    a(f"""
    s_sub_u32 s51, {N*256}, s{sXO}
    s_min_u32 s34, s51, {SB*256}
    s_add_u32 s32, s10, s{sXO}
    s_addc_u32 s33, s11, 0
    {MF} {ar(ACD,16)}, v[108:111], v[108:111], 0
    s_mov_b32 s{sCC}, {hex(f32(2.0**-SHIFT))}
    s_mov_b32 s{sCC+1}, {hex(f32(2.0**-SHIFT))}
    {MF} {ar(ACN,16)}, v[108:111], v[108:111], 0
    K_fillb:
    """)
    a(f"""
    s_and_b32 s50, s{sS}, 1
    s_cmp_gt_u32 s50, s{sTILE}
    s_cbranch_scc0 K_nospread
    s_mul_i32 s50, s{sSET}, {LSET}
    s_lshl_b32 s51, s{sS}, 8
    s_add_u32 s50, s50, s51
    v_lshrrev_b32 v108, 1, v2
    v_bfi_b32 v108, 1, v2, v108
    v_lshl_add_u32 v108, v108, 3, s50
    v_and_b32 v109, 2, v2
    v_lshl_add_u32 v108, v109, 7, v108
    ds_read_b64 v[110:111], v108 offset:{LIST - 256}
    v_lshl_add_u32 v108, v2, 3, s50
    s_waitcnt lgkmcnt(0)
    ds_write_b64 v108, v[110:111] offset:{LIST - 256}
    K_nospread:
    """)
    emit(tr_reads(0))
    fill_b()
    a(f"{mct}\ns_waitcnt lgkmcnt(0)")
    emit(mads + ta + [f"v_mov_b32 v{x}, 0" for x in (list(range(AS, AS+16)) if peel else list(range(SS, SS+16)) + list(range(RR, RR+8)))])
    st(14)
    stag = opt.get("stag", 1)
    if stag:
        a(f"s_cmp_eq_u32 s{sSET}, 0\ns_cbranch_scc1 K_lead\ns_barrier\nK_lead:")
    a("s_waitcnt vmcnt(5)\ns_barrier")
    r0 = reads(1)
    emit(r0[:11] + edma(4) + r0[11:20])
    a("s_waitcnt lgkmcnt(15)")
    emit(mf_g(G[1]) + r0[20:] + eid_read(5))
    a(f"s_waitcnt lgkmcnt(0)\nv_or_b32 v{EP}, v{EP}, v{EP+1}")
    st(10)
    if stag:
        a("s_setprio 1\ns_barrier")
    else:
        a(f"""
        s_cmp_eq_u32 s{sSET}, 0
        s_barrier
        s_cbranch_scc1 K_lead
        s_barrier
        s_setprio 1
        K_lead:
        """)
    if peel:
        emit(load_seg(1) + comp_seg(1, first=True))
        a("s_cbranch_scc1 K_drain0\ns_branch K_loop1")
        a.l.append(".p2align 6")
        a("K_loop:")
        for u in range(4):
            if u == 2:
                a("K_loop1:")
            emit(load_seg(u) + comp_seg(u))
            a(f"s_cbranch_scc1 K_drain{0 if u < 2 else ''}" if u < 3 else "s_cbranch_scc0 K_loop")
        a("s_branch K_drain\nK_drain0:")
    else:
        a.l.append(f".p2align {opt.get('al', 6)}")
        a("K_loop:")
        for u in (1, 2, 3, 0):
            emit(load_seg(u) + comp_seg(u))
            a(f"s_cbranch_scc1 K_drain{0 if u < 2 else ''}" if u else "s_cbranch_scc0 K_loop")
        a("K_drain0:")
    emit([f"v_mov_b32 v{IND[1]+j}, v{IND[0]+j}" for j in range(4)])
    a(f"""
    K_drain:
    s_setprio 0
    s_cmp_lg_u32 s{sSET}, s{sXB}
    s_cbranch_scc1 K_done
    s_barrier
    K_done:
    s_bitcmp1_b32 s{sS}, 0
    s_cbranch_scc1 K_half
    """)
    emit(pk2(1))
    a("K_last:")
    emit(cvts + ["s_nop 1"] + mf_red(1))
    st(11)
    a(f"""
    s_cmp_lg_u32 s{sMORE}, 0
    s_cbranch_scc1 K_again
    v_and_b32 v41, 31, v2
    s_and_b32 s50, s{sW}, 1
    s_lshl_b32 s50, s50, 7
    s_add_u32 s50, s50, s{sRING}
    v_lshl_add_u32 v42, v41, 2, s50
    v_and_b32 v40, 32, v2
    v_lshl_add_u32 v42, v40, 5, v42
    s_mov_b32 s50, {hex(f32(1e-6 * 2.0**SHIFT))}
    s_mov_b32 s51, s50
    s_mov_b32 s56, 0xffff0000
    """)
    Dn, Nn, Uu = NV + ACD, NV + ACN, NV + AU
    un = []
    for k in range(8):
        un += [f"v_lshlrev_b32 v{64+2*k}, 16, v{XR+k}", f"v_and_b32 v{65+2*k}, s56, v{XR+k}",
               f"v_lshlrev_b32 v{96+2*k}, 16, v{Uu+k}", f"v_and_b32 v{97+2*k}, s56, v{Uu+k}"]
    emit(un[:8])
    for r in range(0, 16, 2):
        a(pk("add", Dn+r, Dn+r, "s[50:51]"))
    for r in range(16):
        a(f"v_rcp_f32 v{Dn+r}, v{Dn+r}")
    a("s_waitcnt vmcnt(0)")
    for r in range(0, 16, 2):
        a(pk("mul", Dn+r, Dn+r, Nn+r))
        row = 8*(r//4) + r % 4
        a(f"ds_write2st64_b32 v42, v{Dn+r}, v{Dn+r+1} offset0:{row} offset1:{row+1}")
    emit(un[8:])
    a(f"""
    v_lshrrev_b32 v44, 4, v0
    v_bfe_u32 v45, v0, 2, 2
    v_lshlrev_b32 v45, 13, v45
    v_lshl_add_u32 v45, v44, 8, v45
    v_and_b32 v46, 7, v0
    v_lshl_add_u32 v45, v46, 5, v45
    v_add_u32 v45, {RING}, v45
    v_add_u32 v46, 0x8000, v45
    v_cmp_gt_u32 vcc, s{sVS}, v44
    v_lshlrev_b32 v43, 4, v0
    s_movk_i32 s51, 8192
    v_cndmask_b32 v45, v46, v45, vcc
    s_waitcnt lgkmcnt(0)
    s_barrier
    ds_read_b128 v[48:51], v45
    ds_read_b128 v[52:55], v45 offset:16
    ds_read_b128 v[56:59], v46
    ds_read_b128 v[60:63], v46 offset:16
    """)
    for k in range(8):
        a(pk("add", 96+2*k, 96+2*k, 64+2*k))
    for i in range(2):
        a(f"s_waitcnt lgkmcnt({2-2*i})")
        for j in range(0, 8, 2):
            a(pk("add", 48+8*i+j, 48+8*i+j, 96+8*i+j))
        for j in range(8):
            a(f"v_max_f32 v{48+8*i+j}, v{64+8*i+j}, v{48+8*i+j}")
        for j in range(4):
            a(f"v_cvt_pk_bf16_f32 v{80+4*i+j}, v{48+8*i+2*j}, v{48+8*i+2*j+1}")
        a(f"buffer_store_dwordx4 {vr(80+4*i,4)}, v43, s[32:35], {'s51' if i else '0'} offen {opt.get('ost','sc1')}")
    if st.on:
        a("s_waitcnt vmcnt(0)")
        a(f"v_writelane_b32 v205, s{sS}, 15")
    st(12)
    st.flush()
    a("K_end:\ns_endpgm\nK_half:")
    emit(pk2(0))
    a("s_branch K_last")
    a(f"""
    K_clr:
    s_waitcnt lgkmcnt(0)
    s_mov_b32 s20, s52
    s_mov_b32 s21, s53
    s_mov_b32 s12, s78
    s_mov_b32 s13, s79
    s_mov_b32 s14, {WS_END}
    s_mov_b32 s15, 0x20000
    s_mov_b32 s28, s76
    s_mov_b32 s29, s77
    s_movk_i32 s30, 256
    s_mov_b32 s31, 0x20000
    v_mov_b32 v8, 0
    v_mov_b32 v9, 0
    v_mov_b32 v10, 0
    v_mov_b32 v11, 0
    v_lshlrev_b32 v4, 7, v2
    s_mov_b32 s50, {WS_FLG}
    buffer_store_dwordx4 v[8:11], v4, s[12:15], s50 offen sc1
    """)
    emit(xdma(XP, SB*256) + xdma(ERING, 0))
    a(f"""
    v_and_b32 v12, 4, v2
    v_cmp_eq_u32 vcc, 0, v12
    v_mov_b32 v13, 0x71807180
    v_and_b32 v5, 0x1f0, v1
    v_cndmask_b32 v12, 0, v13, vcc
    v_mov_b32 v13, v12
    v_mov_b32 v14, v12
    v_mov_b32 v15, v12
    s_mov_b32 s50, {DUMMY*512}
    buffer_store_dwordx4 v[12:15], v5, s[12:15], s50 offen sc1
    s_branch K_np1
    K_pub:
    s_mov_b64 exec, 1
    s_waitcnt vmcnt({5 + nw})
    buffer_store_dword v{ONE}, off, s[28:31], 0 sc1
    s_mov_b64 exec, -1
    s_waitcnt vmcnt({nw + 1})
    s_branch K_np2
    """)
    koff = sum(o << (8*i) for i, o in enumerate((40, 64, 32, 56, 48, 88, 8, 72)))
    a(f"""
    K_prod:
    s_lshl_b32 s50, s{sW}, 3
    s_mov_b32 s92, {hex(koff & 0xffffffff)}
    s_mov_b32 s93, {hex(koff >> 32)}
    s_lshr_b64 s[92:93], s[92:93], s50
    s_and_b32 s92, s92, 0xff
    s_load_dwordx2 s[96:97], s[0:1], s92
    s_mov_b32 s20, s52
    s_mov_b32 s21, s53
    v_lshlrev_b32 v4, 2, v0
    v_mov_b32 v62, 0
    ds_write_b32 v4, v62
    v_mov_b32 v40, -1
    v_mov_b32 v41, -1
    v_mov_b32 v42, -1
    v_mov_b32 v43, -1
    """)
    for i in range(4):
        a(f"ds_write_b128 v1, v[40:43] offset:{IMG + 8192*i}")
    a(f"""
    v_mov_b32 v5, 128
    v_writelane_b32 v5, 16, 4
    s_mov_b32 s50, {WS_END // 256}
    v_writelane_b32 v5, s50, 5
    s_mov_b32 s50, {E*32 // 256}
    v_writelane_b32 v5, s50, 6
    s_mov_b32 s50, {N}
    v_writelane_b32 v5, s50, 7
    s_and_b32 s93, s2, 0xf0
    v_readlane_b32 s50, v5, s{sW}
    v_add_u32 v4, s93, v85
    s_waitcnt lgkmcnt(0)
    v_mul_u32_u24 v4, s50, v4
    s_barrier
    """)
    wm = 0
    emit(xdma(ERING, 0))
    a(f"""
    s_mov_b64 exec, 0xffff
    global_load_dword v60, v4, s[96:97] sc1
    s_mov_b64 exec, -1
    s_sub_u32 s90, s82, s88
    v_add_u32 v4, 8192, v1
    v_cmp_gt_u32 s[92:93], s90, v4
    s_mov_b32 s91, {-SB & 0xffffffff}
    v_mov_b32 v6, 4
    v_lshlrev_b32 v7, 22, v0
    v_mov_b32 v36, 0
    v_mov_b32 v37, 0
    v_mov_b32 v38, 0
    v_mov_b32 v39, 0
    """)
    for k in range(8):
        a(f"v_add_u32 v{68+k}, {hex(((2048*(k//4) + k % 4) << 20) & 0xffffffff)}, v7")
    for g in range(2):
        a(f"s_waitcnt vmcnt({6 - g + wm})")
        if g == 0:
            st(1)
        for j in range(4):
            d, t = 8 + 4*g + j, 24 + 4*g + j
            a(f"v_mul_u32_u24 v{44+4*g+j}, 21400, v{d}")
            a(f"v_lshrrev_b32 v{44+4*g+j}, 20, v{44+4*g+j}")
            a(f"v_lshlrev_b32 v{t}, 2, v{44+4*g+j}")
        if g:
            a("s_mov_b64 exec, s[92:93]")
        for j in range(4):
            a(f"ds_add_rtn_u32 v{32+4*g+j}, v{24+4*g+j}, v6")
    a(f"""
    s_mov_b64 exec, -1
    s_lshl_b32 s56, s62, 7
    s_add_u32 s56, s56, {WS_SLOT}
    s_add_u32 s57, s56, {1 << 20}
    s_add_u32 s58, s56, {2 << 20}
    s_add_u32 s59, s56, {3 << 20}
    v_lshrrev_b32 v5, 3, v0
    v_and_b32 v61, 0x70, v1
    v_lshl_add_u32 v61, v5, 14, v61
    s_mov_b32 s4, s78
    s_mov_b32 s5, s79
    s_mov_b32 s12, s78
    s_mov_b32 s13, s79
    s_mov_b32 s14, {WS_END}
    s_mov_b32 s15, 0x20000
    s_waitcnt vmcnt(3)
    """)
    wp = wdma()
    for k in range(8):
        s_, d = 16 + k, 8 + k
        a(f"v_mad_i32_i24 v{d}, v{44+k}, s91, v{d}")
        a(f"v_and_b32 v4, 7, v{s_}")
        a(f"v_lshl_or_b32 v{d}, v{d}, 3, v4")
        a(f"v_lshrrev_b32 v{s_}, 3, v{s_}")
        a(f"v_lshl_or_b32 v{d}, v{d}, 11, v{68+k}")
        a(f"v_or_b32 v{s_}, v{d}, v{s_}")
    a("s_waitcnt lgkmcnt(0)")
    for k in range(8):
        if k == 4:
            a("s_mov_b64 exec, s[92:93]")
        a(f"v_add_u32 v4, v{32+k}, v{24+k}")
        a(f"v_and_b32 v4, 0x7f, v4")
        a(f"v_lshl_add_u32 v{44+k}, v{24+k}, 5, v4")
        a(f"ds_write_b32 v{44+k}, v{16+k} offset:{IMG}")
    a(f"""
    s_mov_b64 exec, -1
    v_or3_b32 v4, v32, v33, v34
    v_or3_b32 v5, v35, v36, v37
    v_or3_b32 v4, v4, v38, v39
    v_or_b32 v4, v4, v5
    v_cmp_lt_u32 vcc, 0x7f, v4
    s_mov_b64 exec, vcc
    ds_write_b32 v62, v6 offset:1024
    s_mov_b64 exec, -1
    s_waitcnt vmcnt(1) lgkmcnt(0)
    s_barrier
    ds_read_b32 v4, v62 offset:1024
    """)
    OUTR = [8, 12, 68, 72]
    def img_reads():
        for i in range(4):
            a(f"ds_read_b128 {vr(OUTR[i],4)}, v1 offset:{IMG + 8192*i}")
    img_reads()
    a(f"""
    s_waitcnt lgkmcnt(4)
    v_readfirstlane_b32 s50, v4
    s_cmp_lg_u32 s50, 0
    s_cbranch_scc1 K_slow
    K_out:
    """)
    for i in range(4):
        a(f"s_waitcnt lgkmcnt({3-i})")
        a(f"buffer_store_dwordx4 {vr(OUTR[i],4)}, v61, s[12:15], s{56+i} offen sc1")
    st(2)
    common(64)
    common2(a)
    wb = opt.get("wbefore", 2)
    emit([ready_load] + wcdma + wp[:3*wb])
    a(f"v_add_u32 v{FX}, {ERING}, v{FX}")
    for q in range(8):
        emit(xfrag(q))
    emit(misc[:3])
    a(f"s_add_u32 s96, s97, {WS_FLG + 4096}\ns_mov_b32 s97, {OOB}\ns_waitcnt vmcnt({wb + 1})")
    ready_check("rp")
    a(f"""
    s_mov_b64 exec, 1
    s_barrier
    buffer_store_dword v{ONE}, off, s[12:15], s96 sc1
    s_mov_b64 exec, -1
    """)
    st(3)
    emit(wp[3*wb:])
    lds_reset(True)
    left = lambda q: 7 - q + (1 if q < wb else 0)
    emit([f"s_waitcnt vmcnt({left(0)})"] + misc[3:] + wfrag(0))
    for q in range(8):
        if q < 7:
            emit([f"s_waitcnt vmcnt({left(q + 1)})"] + wfrag(q + 1))
        a(f"s_waitcnt lgkmcnt({2 if q < 7 else 0})")
        emit([gm(q, 0, D1), gm(q, 1, D1)])
    a("s_branch K_join")


    a("""
    K_slow:
    v_lshlrev_b32 v5, 4, v2
    s_waitcnt lgkmcnt(0)
    ds_read_b128 v[8:11], v5
    s_waitcnt lgkmcnt(0)
    v_add_u32 v13, v8, v9
    v_add_u32 v14, v13, v10
    v_add_u32 v15, v14, v11
    v_mov_b32 v4, v15
    """)
    scan64(a, [4])
    a("""
    v_sub_u32 v40, v4, v15
    v_add_u32 v41, v40, v8
    v_add_u32 v42, v40, v13
    v_add_u32 v43, v40, v14
    ds_write_b128 v5, v[40:43] offset:2048
    """)
    for k in range(8):
        a(f"ds_read_b32 v{24+k}, v{24+k} offset:2048")
    a("s_waitcnt lgkmcnt(0)")
    for k in range(8):
        a(f"s_mov_b64 exec, {'s[92:93]' if k >= 4 else '-1'}")
        a(f"v_add_u32 v{24+k}, v{24+k}, v{32+k}")
        a(f"ds_write_b32 v{24+k}, v{16+k} offset:{STG}")
        a(f"v_cmp_gt_u32 vcc, 0x80, v{32+k}")
        a("s_mov_b64 exec, vcc")
        a(f"ds_write_b32 v{44+k}, v{16+k} offset:{IMG}")
    a(f"""
    s_mov_b64 exec, -1
    s_waitcnt lgkmcnt(0)
    s_barrier
    v_mov_b32 v16, {62 << 14}
    """)
    for j in range(4):
        a(f"""
        v_add_u32 v12, {4*j}, v5
        v_add_u32 v13, 124, v12
        v_and_b32 v13, 0x7f, v13
        v_lshl_add_u32 v13, v12, 5, v13
        v_add_u32 v14, 120, v{40+j}
        v_lshl_or_b32 v14, v14, 18, v16
        v_add_u32 v15, -124, v{8+j}
        v_cmp_lt_u32 vcc, 0x80, v{8+j}
        s_mov_b64 exec, vcc
        ds_write_b32 v13, v14 offset:{IMG}
        ds_write_b32 v{40+j}, v15 offset:{STG + 120}
        s_mov_b64 exec, -1
        """)
    a(f"""
    ds_read_b128 v[16:19], v1 offset:{STG}
    ds_read_b128 v[20:23], v1 offset:{STG + 8192}
    s_add_u32 s50, s88, {WS_REC}
    s_add_u32 s80, s4, s50
    s_addc_u32 s81, s5, 0
    s_mov_b32 s82, s90
    s_movk_i32 s50, 8192
    s_waitcnt lgkmcnt(0)
    buffer_store_dwordx4 v[16:19], v1, s[80:83], 0 offen sc1
    buffer_store_dwordx4 v[20:23], v1, s[80:83], s50 offen sc1
    """)
    img_reads()
    a("s_branch K_out")

    zero_masks = lambda ks: [f"s_mov_b64 {sr(sM+2*k,2)}, 0" for k in ks]
    a("""
    K_again:
    s_waitcnt vmcnt(0) lgkmcnt(0)
    s_barrier
    """)
    lds_reset(True)
    a(f"""
    s_cmp_eq_u32 s{sMODE}, 3
    s_cbranch_scc1 K_next
    """)
    rec_loads()
    a(f"""
    s_waitcnt vmcnt(0)
    s_cmp_eq_u32 s{sMODE}, 1
    s_cbranch_scc0 K_marks
    s_mov_b32 s{sMODE}, 2
    s_mov_b64 s[56:57], 0
    """)
    classes(range(4, 8), True)
    emit(zero_masks(range(4)))
    a(f"""
    s_branch K_resort
    K_marks:
    s_mov_b32 s{sMODE}, 3
    v_mov_b32 v84, 0
    """)
    for k in range(8):
        a(f"""
        v_bfe_u32 v85, v{REC+k}, 14, 6
        v_cmp_eq_u32 vcc, 62, v85
        s_nop 1
        v_cndmask_b32 v84, v84, v{REC+k}, vcc
        """)
    a(f"""
    s_nop 1
    v_or_b32_dpp v84, v84, v84 quad_perm:[1,0,3,2] row_mask:0xf bank_mask:0xf
    s_nop 1
    v_or_b32_dpp v84, v84, v84 quad_perm:[2,3,0,1] row_mask:0xf bank_mask:0xf
    v_cmp_ne_u32 vcc, 0, v84
    v_lshrrev_b32 v84, 20, v84
    v_add_lshl_u32 v84, v84, v{PB}, 2
    s_mov_b32 s{sSTART}, {WS_REC}
    buffer_load_dword v{SLEN}, v84, s[12:15], s{sSTART} offen sc1
    v_add_u32 v{SEG}, v84, v{SIDX}
    s_mov_b32 s{sSTART}, {WS_REC + 4 - 64}
    s_waitcnt vmcnt(0)
    v_cndmask_b32 v{SLEN}, 0, v{SLEN}, vcc
    v_min_u32 v{SLEN}, {CH*4}, v{SLEN}
    v_add_u32 v{SLEN}, 64, v{SLEN}
    K_next:
    s_add_u32 s{sSTART}, s{sSTART}, 64
    v_add_u32 v{SLEN}, -64, v{SLEN}
    """)
    rec_loads(1)
    a(f"""
    v_cmp_lt_i32 s[56:57], 64, v{SLEN}
    v_sub_u32 v84, v{SLEN}, v{SIDX}
    """)
    for k in range(4):
        a(f"v_cmp_lt_i32 {sr(sM+2*k,2)}, {4*k}, v84")
    emit(zero_masks(range(4, 8)))
    a("K_resort:")
    list_ptrs()
    sort(False)
    a(f"""
    s_cmp_eq_u32 s{sMODE}, 2
    s_cselect_b32 s{sMORE}, s{sMARK}, s{sMORE}
    s_cmp_eq_u32 s{sMODE}, 1
    s_cselect_b32 s{sMORE}, 1, s{sMORE}
    s_cbranch_scc1 K_sorted
    s_waitcnt lgkmcnt(0)
    s_barrier
    """)
    fill_a()
    a(f"""
    s_branch K_fillb
    K_over:
    s_cmp_lg_u32 s{sMODE}, 0
    s_cbranch_scc1 K_end
    s_mov_b32 s{sMODE}, 1
    s_mov_b32 s{sMARK}, s{sMORE}
    s_mov_b64 s[56:57], 0
    s_waitcnt lgkmcnt(0)
    s_barrier
    """)
    lds_reset(False)
    emit(zero_masks(range(4, 8)))
    a("s_branch K_resort\nK_codeend:")
    d = desc(name, 256, 102, 256)
    ln = f"; @launch grid=(256,1,1) block=(512,1,1) lds={LDS}\n"
    if opt.get("probe"):
        import gen
        ln = f"; @launch kernel={name} grid=(256,1,1) block=(512,1,1) lds={LDS}\n; @launch kernel=probe_kernel grid=(1,1,1) block=(64,1,1) lds=0\n"
        d += gen.gen_probe(a, opt)
    hdr = """; GatedGCN layer in one launch: each workgroup builds the table rows of its 49 nodes, half of them also
; partition a chunk of edges by destination bin; after two counted hand-offs every workgroup sorts its bin
; and runs the gate / aggregation loop.
""" + ln + '.amdgcn_target "amdgcn-amd-amdhsa--gfx950"\n.text\n'
    return hdr + a.text() + d

if __name__ == "__main__":
    opt = {}
    out = f"cdna_kernels/{NAME}.s"
    for x in sys.argv[1:]:
        k, v = x.split("=", 1)
        if k == "out":
            out = v
        else:
            opt[k] = int(v) if v.lstrip("-").isdigit() else v
    open(out, "w").write(generate(opt))
    print("wrote", out)
```

```python
import sys
from gen import (NAME, N, E, SB, CH, P, RG, DUMMY, WS_REC, WS_SLOT, WS_END, SHIFT, LOG2E, WS_STAMP, MF,
                 f32, Asm, vr, ar, sr, scan64, desc, head, Stamps)

TW0, TW1, TRASH = 2048, 4096, 6144
LIST = 7168
CAPS = 2560
LSET = CAPS * 8
ATAB = LIST + 2 * LSET
AST = 576
WCL = 77824
WS_FLG = 0xA00000
XP = ATAB
ERING = 81920
RING = 98304
LDS = RING + 65536
LIMIT = 2304 * 8
IMG, STG = 4096, 36864
SDW = "dst_sel:DWORD dst_unused:UNUSED_PAD"
OOB = 0x7000000

def generate(opt=None):
    opt = opt or {}
    a = Asm()
    name = NAME + "_kernel"
    cmask = {8: 0x7FC, 4: 0x7F8, 2: 0x7F0}[opt.get("R", 8)]
    tfl = opt.get("tfl", "sc1").replace("+", " ")
    tst = opt.get("tst", "sc1").replace("+", " ")
    head(a, name)
    st = Stamps(a, opt.get("stamp"), 205, WS_STAMP)
    SEL0, SIX, PIND, WC, CT, RR = 4, 8, 12, 16, 84, 248
    G = [52, 68]; H = [20, 36]
    OE, RW, OB, OA = 100, 104, 108, 120
    IND = [124, 128]
    SS, MM, AS, AM, BD, BN = 132, 140, 148, 156, 164, 168
    IX, OF0, OF1, EP = 172, 176, 177, 178
    RA = [180, 181]
    EA, LI, LE, LP, TA0, TA1, TC = 184, 185, 186, 187, 188, 189, 190
    XR = 192
    SEG, SLEN, SIDX, PB = 200, 201, 202, 203
    NV = 208
    ACD, ACN, AU = 0, 16, 32
    sW, sSET, sTILE, sBIN = 3, 36, 37, 38
    sRING, sEM0, sS, sK, sVS, sSTART, sLUT, sMORE, s512 = 39, 40, 41, 42, 43, 44, 45, 46, 47
    sCC, sM, sMODE, sMARK, sXO, sPROD, sXB = 48, 64, 7, 9, 8, 6, 61
    REC, CA, RK, BB, EN, T = 36, 44, 52, 60, 100, 76
    XF, WA, DA, SO, WCR = 100, 0, 36, 68, 164
    VW, FW, FX, FS, FR, FG, FA, FB, FU = 168, 169, 170, 171, 172, 173, 207, 204, 191
    ONE, PL = 206, 164

    def emit(lst):
        for x in lst:
            a(x)
    ar = lambda b_, n_=1: vr(NV + b_, n_)

    cw = opt.get("cw", 8)
    a("s_cmp_ge_u32 s2, 256\ns_cbranch_scc1 K_end")
    if opt.get("perm"):
        a(f"s_mul_i32 s2, s2, {opt['perm']}\ns_lshr_b32 s3, s2, 3\ns_and_b32 s3, s3, 7\ns_xor_b32 s2, s2, s3\ns_and_b32 s2, s2, 255")
    st(0)
    a(f"""
    s_load_dwordx8 s[52:59], s[0:1], 0
    s_load_dwordx16 s[64:79], s[0:1], 32
    s_getpc_b64 s[92:93]
    K_pc:
    s_and_b32 s50, s2, {0xf8 if cw == 8 else 0x78}
    s_lshl_b32 s50, s50, {0 if cw == 8 else 1}
    v_add_u32 v4, s50, v0
    v_mul_u32_u24 v4, (K_codeend-K_pc)/1024*4, v4
    v_cmp_gt_u32 vcc, {cw}, v0
    s_and_saveexec_b64 s[90:91], vcc
    s_cbranch_execz K_nocw
    global_load_dword v63, v4, s[92:93]
    K_nocw:
    s_mov_b64 exec, -1
    v_lshrrev_b32 v1, 6, v0
    v_and_b32 v2, 63, v0
    v_readfirstlane_b32 s{sW}, v1
    s_and_b32 s60, s2, 7
    s_lshr_b32 s61, s2, 3
    s_lshl_b32 s50, s60, 5
    s_add_u32 s{sBIN}, s50, s61
    v_lshrrev_b32 v84, 4, v2
    v_and_b32 v85, 15, v2
    v_bfe_u32 v3, v0, 4, 4
    v_xor_b32 v3, v3, v85
    v_lshlrev_b32 v3, 4, v3
    v_lshl_add_u32 v3, v84, 8, v3
    v_lshlrev_b32 v1, 4, v0
    s_mul_i32 s{sXO}, s{sBIN}, {SB*256}
    s_lshl_b32 s90, s{sW}, 10
    s_add_u32 s51, s{sXO}, s90
    s_add_u32 s91, s51, 8192
    s_cmp_lt_u32 s{sW}, 5
    s_cselect_b32 s91, s91, {OOB}
    s_mov_b32 s22, {N*256}
    s_mov_b32 s23, 0x20000
    v_lshrrev_b32 v86, 2, v2
    v_and_b32 v87, 3, v2
    v_lshlrev_b32 v{VW}, 4, v87
    v_lshl_add_u32 v{VW}, v86, 8, v{VW}
    v_mov_b32 v{ONE}, 1
    s_lshr_b32 s50, s2, 4
    s_lshl_b32 s50, s50, 3
    s_add_u32 s62, s50, s60
    s_lshr_b32 s{sSET}, s{sW}, 2
    s_and_b32 s{sTILE}, s{sW}, 3
    s_mov_b32 s83, 0x20000
    s_mov_b32 s87, 0x20000
    s_bitcmp1_b32 s2, 3
    s_cbranch_scc1 K_np
    s_mul_i32 s88, s62, {CH*4}
    s_add_u32 s89, s88, 8192
    s_add_u32 s82, s88, {CH*4}
    s_min_u32 s82, s82, {E*4}
    s_mov_b32 s86, s82
    s_waitcnt lgkmcnt(0)
    s_mov_b32 s80, s58
    s_mov_b32 s81, s59
    s_mov_b32 s84, s56
    s_mov_b32 s85, s57
    buffer_load_dwordx4 v[8:11], v1, s[80:83], s88 offen
    buffer_load_dwordx4 v[12:15], v1, s[80:83], s89 offen
    buffer_load_dwordx4 v[16:19], v1, s[84:87], s88 offen
    buffer_load_dwordx4 v[20:23], v1, s[84:87], s89 offen
    s_branch K_prod
    K_np:
    """)
    def xdma(base, delta):
        o = []
        for i, so in enumerate(("s51", "s91")):
            o.append(f"s_add_u32 m0, s90, {base + 8192*i}")
            o.append(f"s_sub_u32 s50, {so}, {delta}")
            o.append("buffer_load_dwordx4 v3, s[20:23], s50 offen lds")
        return o
    def wdma():
        o = []
        for q in range(8):
            o += [f"s_add_u32 m0, s{sRING}, {1024*q}", f"s_add_u32 s89, s63, {4096*q}",
                  f"buffer_load_dwordx4 v{VW}, s[24:27], s89 offen lds"]
        return o
    wcdma = [f"s_lshl_b32 s89, s{sTILE}, 10", f"s_add_u32 m0, s89, {WCL}", "s_nop 0",
             f"buffer_load_dwordx4 v{VW}, s[32:35], s63 offen lds"]
    def common(first):
        a(f"""
        s_lshl_b32 s{sRING}, s{sW}, 13
        s_add_u32 s{sRING}, s{sRING}, {RING}
        s_lshl_b32 s63, s{sTILE}, 6
        s_cmp_eq_u32 s{sSET}, 0
        s_cselect_b32 s64, s64, s70
        s_cselect_b32 s65, s65, s71
        s_cselect_b32 s66, s66, s72
        s_cselect_b32 s67, s67, s73
        s_mov_b32 s24, s{first}
        s_mov_b32 s25, s{first+1}
        s_mov_b32 s26, 32768
        s_mov_b32 s27, 0x20000
        """)
    def common2(x):
        x(f"""
        s_mov_b32 s32, s68
        s_mov_b32 s33, s69
        s_mov_b32 s34, 4096
        s_mov_b32 s35, 0x20000
        s_mov_b32 s14, {WS_END}
        s_mov_b32 s15, 0x20000
        s_movk_i32 s30, 256
        s_mov_b32 s31, 0x20000
        s_mov_b32 s4, s78
        s_mov_b32 s5, s79
        s_mov_b32 s12, s78
        s_mov_b32 s13, s79
        s_mov_b32 s10, s74
        s_mov_b32 s11, s75
        s_mov_b32 s28, s76
        s_mov_b32 s29, s77
        v_lshrrev_b32 v88, 5, v2
        v_and_b32 v89, 31, v2
        v_lshrrev_b32 v90, 2, v85
        v_lshl_add_u32 v90, v88, 3, v90
        v_and_b32 v91, 1, v84
        v_lshlrev_b32 v91, 5, v91
        v_lshl_add_u32 v91, v87, 3, v91
        v_lshl_add_u32 v90, v90, 6, v91
        v_add_u32 v{FW}, s{sRING}, v90
        s_lshl_b32 s50, s{sTILE}, 10
        s_add_u32 s50, s50, {WCL}
        v_add_u32 v{WCR}, s50, v90
        v_xor_b32 v90, v88, v85
        v_lshlrev_b32 v90, 4, v90
        v_lshl_add_u32 v{FX}, v89, 8, v90
        v_lshlrev_b32 v93, 3, v88
        v_lshrrev_b32 v94, 4, v0
        v_xor_b32 v90, v94, v0
        v_and_b32 v90, 15, v90
        v_lshlrev_b32 v90, 4, v90
        v_lshl_add_u32 v{FU}, v94, 8, v90
        s_mov_b32 s94, {hex(f32(-LOG2E))}
        s_mov_b32 s95, {hex(f32(-LOG2E))}
        s_lshr_b32 s50, s62, 2
        s_lshl_b32 s50, s50, 7
        s_and_b32 s97, s2, 3
        s_lshl_b32 s97, s97, 2
        s_add_u32 s97, s97, s50
        s_cmp_eq_u32 s{sW}, 0
        s_cselect_b32 s97, s97, {OOB}
        s_cselect_b32 s{sPROD}, 0, {OOB}
        """)
    em2, em3, es = opt.get("em2", 0), opt.get("em3", 0), opt.get("es", 0)
    def emw(n, first):
        return ["s_mov_b32 s16, s54", "s_mov_b32 s17, s55", f"s_mov_b32 s18, {E*32}", "s_mov_b32 s19, 0x20000",
                f"s_mul_i32 s50, s{sW}, {n*128}", f"s_mul_i32 s51, s62, {CH*32}", "s_add_u32 s50, s50, s51",
                f"s_add_u32 s50, s50, {first*128}", "v_lshlrev_b32 v98, 7, v2", f"s_bfm_b64 exec, {n}, 0" if n < 64 else "s_nop 0",
                f"buffer_load_dword v{SLEN}, v98, s[16:19], s50 offen", "s_mov_b64 exec, -1"]
    def esw(first):
        o = [f"s_mul_i32 s50, s{sW}, {es*128}", f"s_mul_i32 s51, s62, {CH*32}", "s_add_u32 s50, s50, s51",
             f"s_add_u32 s50, s50, {first*128}", f"s_min_u32 s50, s50, {E*32 - es*128}", "s_add_u32 s56, s54, s50", "s_addc_u32 s57, s55, 0"]
        return o, [f"s_load_dword s58, s[56:57], {128*i}" for i in range(es)]
    def g2(first):
        pre, ld = esw(first) if es else ([], [])
        emit(pre)
        for q in range(8):
            if q < 3:
                a(f"s_waitcnt lgkmcnt({[14, 12, 0][q]})")
            a(gm(q, 0, D1))
            if q >= 2:
                emit(ld[3*(q-2):3*(q-2)+3])
            a(gm(q, 1, D1))
    def wfrag(q):
        return [f"ds_read_b64_tr_b16 {ar(WA+4*q+2*z,2)}, v{FW} offset:{1024*q+256*z}" for z in range(2)]
    def xfrag(q, off=0):
        return [f"v_xor_b32 v3, {32*q}, v{FX}", f"ds_read_b128 {vr(XF+8*q,4)}, v3 offset:{off}",
                f"ds_read_b128 {vr(XF+8*q+4,4)}, v3 offset:{off+8192}"]
    misc = [f"v_add_u32 v3, {ERING}, v{FU}", f"ds_read_b128 {vr(XR,4)}, v3", f"ds_read_b128 {vr(XR+4,4)}, v3 offset:8192",
            f"ds_read_b64_tr_b16 {vr(WCR+2,2)}, v{WCR} offset:256", f"ds_read_b64_tr_b16 {vr(WCR,2)}, v{WCR}"]
    def gm(q, rt, base=DA):
        d = vr(base + 16*rt, 16)
        return f"{MF} {d}, {ar(WA+4*q,4)}, {vr(XF+8*q+4*rt,4)}, {'0' if q == 0 else d}"
    RDY = 99
    ready_load = f"buffer_load_dword v{RDY}, off, s[28:31], s{sPROD} sc1"
    def ready_check(tag):
        a(f"""
        s_cmp_lg_u32 s{sW}, 0
        s_cbranch_scc1 K_{tag}
        s_mov_b32 s50, 0
        K_{tag}_spin:
        v_cmp_eq_u32 vcc, 0, v{RDY}
        s_cbranch_vccz K_{tag}
        {ready_load}
        s_add_u32 s50, s50, 1
        s_cmp_lt_u32 s50, 0x40000
        s_waitcnt vmcnt(0)
        s_cbranch_scc1 K_{tag}_spin
        K_{tag}:
        """)
    D1 = 4
    def conv(rt, addrs, base=DA, mul=None, off=lambda j: 0):
        o = []
        for j in range(4):
            b_ = base + 16*rt + 4*j
            if mul:
                o += [f"v_mul_f32 v{b_+i}, {mul}, v{b_+i}" for i in range(4)]
            o += [f"v_cvt_pk_bf16_f32 v{b_}, v{b_}, v{b_+1}", f"v_cvt_pk_bf16_f32 v{b_+1}, v{b_+2}, v{b_+3}",
                  f"ds_write_b64 v{addrs[j]}, {vr(b_,2)} offset:{off(j)}"]
        return o

    def lds_reset(prefill):
        a(f"""
        v_lshlrev_b32 v76, 2, v0
        v_mov_b32 v77, 0
        ds_write_b32 v76, v77
        """)
        if prefill:
            a(f"""
            v_mov_b32 v76, {hex(DUMMY | (SB*AST) << 16)}
            v_mov_b32 v77, {OOB}
            v_mov_b32 v78, v76
            v_mov_b32 v79, v77
            v_lshlrev_b32 v80, 4, v0
            """)
            for i in range(5):
                a(f"ds_write_b128 v80, v[76:79] offset:{LIST + 8192*i}")

    a(f"""
    s_or_b32 s50, s90, s2
    s_cmp_eq_u32 s50, {7*1024 + 8}
    s_cbranch_scc1 K_clr
    s_waitcnt lgkmcnt(0)
    s_mov_b32 s20, s52
    s_mov_b32 s21, s53
    """)
    emit(xdma(XP, SB*256) + xdma(ERING, 0))
    a("K_np1:")
    common(66)
    w1 = wdma()
    b = Asm()
    common2(b)
    b(f"""
    s_add_u32 s97, s97, {WS_FLG}
    """)
    FG1 = 174
    cf = opt.get('cf', 1)
    b(f"""
    s_lshl_b32 s50, s{sTILE}, 3
    s_lshl_b32 s51, s{sSET}, 2
    s_add_u32 s50, s50, s51
    v_and_b32 v90, 7, v2
    v_xor_b32 v90, s50, v90
    v_lshl_add_u32 v90, v90, 4, v93
    v_lshl_add_u32 v90, v89, 9, v90
    v_and_b32 v98, {8 if cf else 0}, v2
    v_xor_b32 v90, v90, v98
    v_add_u32 v{FS}, {XP}, v90
    v_bfe_u32 v90, v0, 5, 3
    v_lshlrev_b32 v90, 4, v90
    v_xor_b32 v90, v90, v1
    v_add_u32 v{FR}, {XP}, v90
    s_lshl_b32 s50, s{sSET}, 3
    v_xor_b32 v175, s50, v{FR}
    v_xor_b32 v204, 8, v175
    v_xor_b32 v95, 16, v{FS}
    v_xor_b32 v96, 32, v{FS}
    v_xor_b32 v97, 48, v{FS}
    s_mul_i32 s50, s{sBIN}, {SB}
    v_lshrrev_b32 v90, 5, v0
    v_add_u32 v90, s50, v90
    v_and_b32 v98, 7, v90
    v_lshrrev_b32 v{FG1}, 3, v90
    v_lshl_or_b32 v{FG1}, v98, 11, v{FG1}
    v_lshl_add_u32 v{FG1}, v{FG1}, 5, v89
    v_lshlrev_b32 v{FG1}, 4, v{FG1}
    v_add_u32 v90, {-SB & 0xffffffff}, v90
    v_and_b32 v98, 7, v90
    v_lshrrev_b32 v{FG}, 3, v90
    v_lshl_or_b32 v{FG}, v98, 11, v{FG}
    v_lshl_add_u32 v{FG}, v{FG}, 5, v89
    v_lshlrev_b32 v{FG}, 4, v{FG}
    v_cmp_gt_u32 s[56:57], {SB - 32}, v89
    s_cmp_eq_u32 s{sSET}, 0
    s_cselect_b32 s96, s94, 1.0
    """)
    nw = opt.get("wearly", 3)
    a("s_barrier")
    emit(w1[:3*nw])
    lds_reset(True)
    cut = [i for i, l in enumerate(b.l) if f"v{FX}," in l][0] + 1
    a.l += b.l[:cut]
    later = [x.strip() for x in b.l[cut:]]
    a(f"""
    s_or_b32 s50, s90, s2
    s_cmp_eq_u32 s50, {7*1024 + 8}
    s_cbranch_scc1 K_pub
    s_waitcnt vmcnt({nw})
    K_np2:
    s_barrier
    """)
    st(1)
    emit(xfrag(0, XP) + xfrag(1, XP) + xfrag(2, XP) + xfrag(3, XP))
    w2 = wdma()
    ahead = opt.get("ahead", 5)
    seq = [w1[3*q:3*q+3] for q in range(8)] + [wcdma + ["s_mov_b32 s24, s64", "s_mov_b32 s25, s65"]] + \
          [w2[3*q:3*q+3] for q in range(8)]
    sent = [nw]
    def send(n):
        o = []
        while sent[0] < min(n, len(seq)):
            o += seq[sent[0]]
            sent[0] += 1
        return o
    landed = lambda i: f"s_waitcnt vmcnt({sent[0] - 1 - i})"
    SA = [FS, 95, 96, 97]
    emit(send(ahead))
    emit([landed(0)] + wfrag(0) + [landed(1)] + wfrag(1))
    for q in range(8):
        a(f"s_waitcnt lgkmcnt({[2, 4, 4, 4, 4, 4, 4, 2][q]})")
        a(gm(q, 0, D1))
        emit(send(ahead + q + 1))
        if q == 4:
            a(f"v_add_u32 v{FX}, {ERING}, v{FX}")
        emit(xfrag(q + 4, XP) if q < 4 else xfrag(q - 4))
        if q < 6:
            emit([landed(q + 2)] + wfrag(q + 2))
        a(gm(q, 1, D1))
        n_ = -(-len(later) // (8 - q))
        while n_ < len(later) and ("cselect" in later[n_] or "addc" in later[n_]):
            n_ += 1
        emit(later[:n_])
        later = later[n_:]
    st(2)
    a(landed(8))
    B2, SO2 = SB * 512, 176
    def stores(fg, so):
        o = []
        for i in range(3):
            o += [f"s_waitcnt lgkmcnt({(3-i)*(1+cf)})", f"buffer_store_dwordx4 {vr(so+4*i,4)}, v{fg}, s[12:15], 0 offen offset:{1024*i} {tst}"]
        return o + ["s_mov_b32 exec_hi, 0", "s_waitcnt lgkmcnt(0)",
                    f"buffer_store_dwordx4 {vr(so+12,4)}, v{fg}, s[12:15], s{sPROD} offen offset:3072 {tst}", "s_mov_b32 exec_hi, -1"]
    back = lambda o, so: [f"ds_read_b128 {vr(so+4*i,4)}, v{FR} offset:{o + 8192*i}" for i in range(4)] if not cf else \
        [f"ds_read_b64 {vr(so+4*i+2*z,2)}, v{(175, 204)[z]} offset:{o + 8192*i}" for i in range(4) for z in range(2)]
    slots = [[] for _ in range(16)]
    slots[0] = xfrag(4) + xfrag(5)
    slots[1] = xfrag(6) + xfrag(7)
    slots[2] = misc[:3]
    c1 = conv(0, SA, D1, "s96") + conv(1, SA, D1, "s96", lambda j: 16384)
    for i in range(8):
        slots[3 + i] = c1[7*i:7*i+7]
    for q in range(8):
        slots[q] += send(sent[0] + 1)
    assert sent[0] == len(seq)
    slots[8] += [ready_load]
    bp = opt.get("backpos", 15)
    slots[bp] += ["s_waitcnt lgkmcnt(0)", "s_barrier"] + back(0, SO)
    emit(misc[3:])
    a("s_waitcnt lgkmcnt(0)\ns_barrier")
    def p2(lo_, hi_, mul=True):
        for i in range(lo_, hi_):
            if i == 8:
                a("s_waitcnt lgkmcnt(5)")
            a(gm(i // 2, i % 2))
            emit([x for x in slots[i] if mul or not x.startswith("v_mul")])
    if opt.get("nomul", 0):
        p2(0, 3)
        a(f"s_cmp_lg_u32 s{sSET}, 0\ns_cbranch_scc1 K_p2b")
        p2(3, 11)
        a("s_branch K_p2c\nK_p2b:")
        p2(3, 11, False)
        a("K_p2c:")
        p2(11, 16)
    else:
        p2(0, 16)
    emit(stores(FG, SO))
    st(3)
    a(f"s_cmp_lg_u32 s{sSET}, 0\ns_cbranch_scc1 K_ns1")
    for i in range(16):
        a(f"v_pk_mul_f32 {vr(DA+2*i,2)}, {vr(DA+2*i,2)}, s[94:95]")
    a("K_ns1:")
    emit(conv(0, SA, DA, None, lambda j: B2) + ["s_mov_b64 exec, s[56:57]"] + conv(1, SA, DA, None, lambda j: B2 + 16384))
    a("s_mov_b64 exec, -1\ns_waitcnt lgkmcnt(0)\ns_barrier")
    emit(back(B2, SO2) + stores(FG1, SO2))
    a("s_waitcnt vmcnt(8)")
    for q in range(8):
        emit(wfrag(q))
    if em3:
        emit(emw(em3, 8*em2))
    g2(8*(em2 + em3 + es))
    ready_check("rn")
    a("K_join:")
    st(4)
    def poll_check(tag, base, lanes, wave=0):
        a(f"""
        s_cmp_lg_u32 s{sW}, {wave}
        s_cbranch_scc1 K_{tag}_done
        s_mov_b32 s50, 0
        s_mov_b32 s51, {base}
        K_{tag}_spin:
        s_waitcnt vmcnt(0)
        v_and_b32 v{PL}, v{PL}, v{PL+1}
        v_and_b32 v{PL+2}, v{PL+2}, v{PL+3}
        v_and_b32 v{PL}, v{PL}, v{PL+2}
        v_cmp_ne_u32 vcc, 1, v{PL}
        s_cbranch_vccz K_{tag}_done
        s_add_u32 s50, s50, 1
        s_cmp_lt_u32 s50, 0x40000
        buffer_load_dwordx4 {vr(PL,4)}, v{lanes}, s[12:15], s51 offen sc1
        s_cbranch_scc1 K_{tag}_spin
        K_{tag}_done:
        """)
    def list_ptrs():
        a(f"""
        s_mul_i32 s50, s{sSET}, {LSET}
        s_add_u32 s50, s50, {LIST}
        v_and_b32 v98, 32, v2
        v_bfe_u32 v97, v2, 4, 1
        v_bfe_u32 v96, v2, 3, 1
        v_lshl_add_u32 v96, v96, 2, v97
        v_add_u32 v96, v96, v98
        v_lshl_add_u32 v{LI}, v96, 3, s50
        v_and_b32 v96, 0x2c, v2
        v_lshl_add_u32 v{LP}, v96, 3, s50
        v_and_b32 v96, 2, v2
        v_bfe_u32 v99, v2, 2, 1
        v_lshl_add_u32 v96, v96, 1, v99
        v_and_or_b32 v96, v2, 8, v96
        s_lshr_b32 s51, s{sTILE}, 1
        s_lshl_b32 s51, s51, 7
        s_add_u32 s50, s50, s51
        s_and_b32 s51, s{sTILE}, 1
        s_lshl_b32 s51, s51, 8
        s_add_u32 s50, s50, s51
        v_lshl_add_u32 v{LE}, v96, 3, s50
        """)
    PL = 68
    def rec_loads(n=2):
        a(f"buffer_load_dwordx4 {vr(REC,4)}, v{SEG}, s[12:15], s{sSTART} offen sc1")
        if n == 2:
            a(f"buffer_load_dwordx4 {vr(REC+4,4)}, v{SEG}, s[12:15], s{sSTART} offen offset:64 sc1")
    a(f"""
    v_lshlrev_b32 v{FS}, 7, v89
    s_cmp_lg_u32 s{sW}, 0
    s_cbranch_scc1 K_nopoll
    s_mov_b32 s50, {WS_FLG + 4096}
    buffer_load_dwordx4 {vr(PL,4)}, v{FS}, s[12:15], s50 offen sc1
    K_nopoll:
    v_lshrrev_b32 v95, 2, v0
    v_lshlrev_b32 v{SIDX}, 4, v87
    v_lshl_add_u32 v{SEG}, v95, 7, v{SIDX}
    v_mul_u32_u24 v92, {AST}, v89
    v_mul_u32_u24 v{PB}, {CH}, v95
    s_lshl_b32 s{sSTART}, s{sBIN}, 14
    s_add_u32 s{sSTART}, s{sSTART}, {WS_SLOT}
    s_mov_b32 s16, s54
    s_mov_b32 s17, s55
    s_mov_b32 s18, {opt.get('erows', E) * 32}
    s_mov_b32 s19, 0x20000
    s_mov_b32 s{sMODE}, 0
    s_bitcmp1_b32 s2, 3
    s_cselect_b32 s60, {4*opt.get('ewarm', 2)}, {4*opt.get('ewarmp', opt.get('ewarm', 2))}
    """)
    a(f"""
    s_cmp_lg_u32 s{sSET}, 0
    s_cbranch_scc1 K_uaddr
    v_cmp_gt_u32 s[90:91], {SB - 31}, v89
    s_lshl_b32 s51, s{sTILE}, 7
    s_add_u32 s51, s51, {ATAB}
    v_add3_u32 v81, v92, v93, s51
    """)
    for i in range(16):
        a(f"v_pk_mul_f32 {vr(D1+2*i,2)}, {vr(D1+2*i,2)}, s[94:95]")
    ca = conv(0, [81]*4, D1, None, lambda j: 16*j) + conv(1, [81]*4, D1, None, lambda j: 16*j + 32*AST)
    emit([x for x in ca if x.startswith("v_")])
    a(f"""
    s_branch K_conv
    K_uaddr:
    v_bfe_u32 v52, v2, 1, 2
    v_lshl_add_u32 v52, v52, 4, v93
    v_lshl_add_u32 v52, v89, 6, v52
    v_add_u32 v52, s{sRING}, v52
    """)
    for j in range(1, 4):
        a(f"v_xor_b32 v{52+j}, {16*j}, v52")
    emit(conv(0, [52, 53, 54, 55], D1) + conv(1, [52, 53, 54, 55], D1, None, lambda j: 2048))
    a(f"""
    v_and_b32 v45, 63, v95
    v_and_b32 v46, 31, v95
    v_lshlrev_b32 v47, 3, v87
    v_sub_u32 v46, v46, v47
    v_cmp_eq_u32 s[90:91], {SB}, v45
    v_mov_b32 v47, 64
    v_cmp_ge_u32 s[92:93], {SB}, v45
    v_cndmask_b32 v46, v46, v47, s[90:91]
    v_and_b32 v47, 1, v46
    v_lshlrev_b32 v47, 4, v47
    v_mov_b32 v48, 0x3f80
    v_lshlrev_b32 v47, v47, v48
    v_ashrrev_i32 v46, 1, v46
    v_cmp_eq_u32 s[64:65], 0, v46
    v_cmp_eq_u32 s[66:67], 1, v46
    v_cmp_eq_u32 s[68:69], 2, v46
    v_cmp_eq_u32 s[70:71], 3, v46
    v_cndmask_b32 v48, 0, v47, s[64:65]
    v_cndmask_b32 v49, 0, v47, s[66:67]
    v_cndmask_b32 v50, 0, v47, s[68:69]
    v_cndmask_b32 v51, 0, v47, s[70:71]
    v_mul_u32_u24 v46, {AST}, v45
    v_add_u32 v46, v46, v{SIDX}
    K_conv:
    """)
    st(5)
    poll_check("s", WS_FLG + 4096, FS)
    a("s_waitcnt vmcnt(0) lgkmcnt(0)\ns_barrier")
    rec_loads()
    a(f"""
    s_mov_b64 exec, 1
    buffer_store_dword v{ONE}, off, s[12:15], s97 sc1
    s_mov_b64 exec, -1
    """)
    st(6)
    PL = 156
    wa = [x for x in ca if x.startswith("ds_")]
    a(f"s_cmp_eq_u32 s{sSET}, 0\ns_cbranch_scc1 K_tab\ns_mov_b64 exec, s[92:93]")
    for t in range(4):
        a(f"ds_write_b128 v46, v[48:51] offset:{ATAB+128*t+64}")
    a("K_tab:\ns_mov_b64 exec, -1")
    a(f"""
    s_lshl_b32 s50, s{sTILE}, 7
    s_add_u32 s51, s50, {ATAB}
    v_add_u32 v{TC}, s51, v91
    v_lshlrev_b32 v90, 2, v84
    v_xor_b32 v90, v90, v2
    v_and_b32 v90, 7, v90
    v_lshl_add_u32 v{OF0}, v90, 4, s50
    v_add_u32 v{OF1}, 0x400, v{OF0}
    v_add_u32 v182, 0x800, v{OF0}
    v_add_u32 v207, 0xc00, v{OF0}
    v_bfe_u32 v90, v0, 2, 2
    v_lshlrev_b32 v90, 13, v90
    v_lshl_add_u32 v90, v94, 6, v90
    v_bfe_u32 v96, v0, 5, 2
    v_xor_b32 v96, v96, v87
    v_lshl_add_u32 v90, v96, 4, v90
    v_add_u32 v3, {RING + 32768}, v90
    ds_read_b128 {ar(AU,4)}, v3
    ds_read_b128 {ar(AU+4,4)}, v3 offset:2048
    s_lshr_b32 s51, s{sTILE}, 1
    v_xor_b32 v84, s51, v2
    v_and_b32 v84, 1, v84
    v_lshlrev_b32 v{EP+1}, 4, v84
    s_mov_b32 s{s512}, 512
    s_lshl_b32 s50, s{sSET}, 12
    s_add_u32 s93, s50, {ERING}
    s_lshl_b32 s51, s{sTILE}, 8
    s_add_u32 s{sEM0}, s93, s51
    """)
    list_ptrs()
    def consts2():
        a(f"""
        v_and_b32 v90, 5, v89
        v_bfe_u32 v96, v89, 3, 1
        v_lshl_add_u32 v90, v96, 1, v90
        v_lshrrev_b32 v96, 4, v89
        v_lshl_add_u32 v90, v96, 3, v90
        v_mul_u32_u24 v90, {AST}, v90
        v_lshl_add_u32 v3, v88, 4, v90
        ds_read_b128 {vr(SEL0,4)}, v3 offset:{ATAB + 64}
        v_lshrrev_b32 v90, 3, v89
        v_and_b32 v96, 1, v89
        v_lshl_add_u32 v90, v90, 1, v96
        v_and_b32 v96, 4, v89
        v_lshl_add_u32 v90, v96, 1, v90
        v_mul_u32_u24 v90, {AST}, v90
        v_lshl_add_u32 v3, v88, 4, v90
        ds_read_b128 {vr(PIND,4)}, v3 offset:{ATAB + 64}
        """)
    def consts3():
        a("s_mov_b32 s51, 0xffff0000")
        for j in range(4):
            a(f"""
            v_lshlrev_b32 v76, 16, v{WCR+j}
            v_and_b32 v77, s51, v{WCR+j}
            v_pk_mul_f32 v[76:77], v[76:77], s[94:95]
            v_cvt_pk_bf16_f32 v{WC+j}, v76, v77
            """)
        a(f"""
        v_lshl_add_u32 v90, v88, 9, s{sRING}
        v_lshl_add_u32 v{RA[1]}, v89, 1, v90
        v_add_u32 v90, v90, v91
        v_and_b32 v91, 12, v2
        v_lshl_add_u32 v90, v91, 5, v90
        v_and_b32 v91, 8, v2
        v_lshl_add_u32 v{RA[0]}, v91, 3, v90
        v_and_b32 v90, 2, v2
        v_mul_u32_u24 v90, 0x5555, v90
        v_add_u32 v{SIX}, 0x4444, v90
        v_xor_b32 v84, v97, v88
        v_lshlrev_b32 v84, 4, v84
        v_and_b32 v90, 0x13, v2
        v_lshl_add_u32 v84, v90, 5, v84
        v_and_b32 v90, 4, v2
        v_lshl_add_u32 v84, v90, 6, v84
        v_and_b32 v90, 8, v2
        v_lshl_add_u32 v84, v90, 4, v84
        v_add_u32 v{EA}, s93, v84
        """)

    def classes(ks, with_masks):
        a(f"s_movk_i32 s51, {63*32}\ns_movk_i32 s50, {cmask}")
        for k in ks:
            a(f"v_lshrrev_b32 v{CA+k}, 9, v{REC+k}")
            a(f"v_and_b32 v{CA+k}, s50, v{CA+k}")
            if with_masks:
                a(f"v_cmp_gt_u32 {sr(sM+2*k,2)}, s51, v{CA+k}")

    PW, SW = 7, 4
    def sort(first):
        tg = "a" if first else "b"
        a(f"""
        v_mov_b32 v{T+1}, 8
        v_lshlrev_b32 v{T}, 5, v2
        """)
        if first:
            a("s_waitcnt vmcnt(1)")
            st(7)
        else:
            a(f"""
            v_mov_b32 v{T+2}, 0
            s_waitcnt vmcnt(0) lgkmcnt(0)
            s_barrier
            s_mov_b64 exec, s[56:57]
            ds_write_b32 v{T+2}, v{T+1} offset:{62*32}
            s_mov_b64 exec, -1
            """)
        classes(range(8), first)
        for k in range(8):
            a(f"s_mov_b64 exec, {sr(sM+2*k,2)}")
            a(f"ds_add_rtn_u32 v{RK+k}, v{CA+k}, v{T+1}")
        a(f"s_mov_b64 exec, -1\ns_movk_i32 s50, {AST*4}")
        hi, lo, ew = [], [], []
        for k in range(8):
            e = EN + 2*k
            hi += [f"v_lshrrev_b32 v{e+1}, 20, v{REC+k}", f"v_add_lshl_u32 v{e+1}, v{e+1}, v{PB}, 5"]
            lo += [f"v_and_b32 v{e}, 0x3fff, v{REC+k}", f"v_and_b32 v3, 0xfc000, v{REC+k}", f"v_mad_u32_u24 v{e}, v3, s50, v{e}"]
            ew += [f"v_and_b32 v3, 28, v{CA+k}", f"v_cmp_gt_u32 vcc, s60, v3",
                   f"s_and_b64 exec, vcc, {sr(sM+2*k,2)}", f"buffer_load_dword v{SLEN}, v{e+1}, s[16:19], 0 offen",
                   "s_mov_b64 exec, -1"]
        if not (first and opt.get("ewarm", 2)):
            ew = []
        c, W1, U, n, I, X, L, Z = 116, 124, 132, 136, 140, 144, 148, 152
        Tt = lambda i: W1 + 2*i
        Dd = lambda i: W1 + 2*i + 1
        t0, t1, run = T+2, T+3, T+4
        emit(hi + ew[:20])
        a(f"""
        s_cmp_eq_u32 s{sW}, {SW}
        s_waitcnt lgkmcnt(0)
        s_barrier
        s_cbranch_scc1 K_scan{tg}
        """)
        emit(ew[20:])
        if first:
            a(f"s_cmp_lg_u32 s{sSET}, 0\ns_cbranch_scc1 K_noa")
            emit(wa[:4] + ["s_mov_b64 exec, s[90:91]"] + wa[4:])
            a("s_mov_b64 exec, -1\nK_noa:")
            consts2()
        emit(lo)
        if first and not opt.get("ppos", 0):
            a(f"""
            s_cmp_lg_u32 s{sW}, {PW}
            s_cbranch_scc1 K_scanned{tg}
            s_mov_b32 s50, {WS_FLG}
            buffer_load_dwordx4 {vr(PL,4)}, v{FS}, s[12:15], s50 offen sc1
            """)
        a(f"""
        s_branch K_scanned{tg}
        K_scan{tg}:
        ds_read_b128 {vr(c,4)}, v{T}
        ds_read_b128 {vr(c+4,4)}, v{T} offset:16
        s_setprio 1
        """)
        emit(lo)
        a(f"""
        s_mov_b32 s51, 0xffe0ffe0
        s_waitcnt lgkmcnt(0)
        v_readlane_b32 s{sMORE}, v{c}, 62
        v_writelane_b32 v{c}, 0, 62
        """)
        for r in range(1, 8):
            a(f"v_add_u32 v{c+r}, v{c+r-1}, v{c+r}")
        steps = [("row_shr:1", "0xf"), ("row_shr:2", "0xf"), ("row_shr:4", "0xf"), ("row_shr:8", "0xf"),
                 ("row_bcast:15", "0xa"), ("row_bcast:31", "0xc")]
        Q, CN, SF, U0, H0 = 60, 61, 62, 63, 64
        a(f"""
        v_add_u32 v{Q}, 15, v{c+7}
        v_and_b32 v{Q}, 0xffe0, v{Q}
        v_mov_b32 v{t0}, v{Q}
        v_cmp_lt_u32 s[88:89], v{Q}, v{c+7}
        """)
        pk_ = [f"v_lshl_or_b32 v{Dd(i)}, v{c+2*i+1}, 16, v{c+2*i}" for i in range(4)] + \
              [f"v_mbcnt_lo_u32_b32 v{CN}, s88, 0", f"v_mbcnt_hi_u32_b32 v{CN}, s89, v{CN}",
               f"v_sub_u32 v{H0}, v{c+7}, v{Q}", f"v_mov_b32 v{L}, {hex((LIST + 512) * 0x10001)}",
               f"v_mov_b32 v{L+1}, {hex((LIST + LSET + 512) * 0x10001)}"]
        if first:
            a(pk_.pop(0))
            for ctl, m_ in steps:
                a(f"v_add_u32_dpp v{t0}, v{t0}, v{t0} {ctl} row_mask:{m_} bank_mask:0xf")
                if pk_:
                    emit([pk_.pop(0), pk_.pop(0)])
                else:
                    a("s_nop 1")
            a(f"""
            v_readlane_b32 s50, v{t0}, 63
            v_sub_u32 v{t0}, v{t0}, v{Q}
            v_lshlrev_b32 v{t1}, 1, v{t0}
            v_cmp_gt_u32 vcc, s50, v{t1}
            v_sub_u32 v{t1}, s50, v{t0}
            v_add_u32 v{t0}, 0xff, v{t0}
            v_add_u32 v{t1}, 0xff, v{t1}
            s_bcnt1_i32_b64 s50, vcc
            v_lshrrev_b32 v{t0}, 8, v{t0}
            s_max_u32 s50, s50, 18
            v_lshrrev_b32 v{t1}, 8, v{t1}
            s_min_u32 s50, s50, 32
            v_lshl_add_u32 v{t0}, v{t0}, 1, -1
            v_lshlrev_b32 v{t1}, 1, v{t1}
            v_max_i32 v{t0}, v{t0}, v{t1}
            s_sub_u32 s58, s50, 1
            v_readlane_b32 s56, v{t0}, s50
            v_readlane_b32 s57, v{t0}, s58
            s_cmp_le_i32 s56, s57
            s_cselect_b32 s{sVS}, s50, s58
            """)
        else:
            emit(pk_)
        a(f"""
        v_readlane_b32 s56, v{CN}, s{sVS}
        v_cmp_le_u32 vcc, s{sVS}, v2
        s_nop 0
        v_subrev_u32 v{t0}, s56, v{CN}
        v_cndmask_b32 v{run}, v{L}, v{L+1}, vcc
        v_cndmask_b32 v{CN}, v{CN}, v{t0}, vcc
        v_cmp_gt_u32 s[56:57], {16 if opt.get("head", 1) else 0}, v{CN}
        s_and_b64 s[88:89], s[88:89], s[56:57]
        v_lshl_add_u32 v{CN}, v{CN}, 5, v{run}
        v_cndmask_b32 v{U0}, 0, 32, s[88:89]
        v_cndmask_b32 v{H0}, 0, v{H0}, s[88:89]
        v_sub_u32 v{SF}, v{U0}, v{H0}
        v_lshl_or_b32 v{SF}, v{SF}, 16, v{SF}
        """)
        for i in range(4):
            a(f"v_add_u32 v{Dd(i)}, v{SF}, v{Dd(i)}")
        for i in range(4):
            a(f"v_add_u32 v{U+i}, 0x001f001f, v{Dd(i)}")
        for i in range(4):
            a(f"v_and_b32 v{U+i}, s51, v{U+i}")
        for i in range(4):
            a(f"v_lshl_or_b32 v{n}, v{U}, 16, v{U0}" if i == 0 else f"v_alignbit_b32 v{n+i}, v{U+i}, v{U+i-1}, 16")
        for i in range(4):
            a(f"v_sub_u32 v{I+i}, v{U+i}, v{n+i}")
        for ctl, m_ in steps:
            for i in range(4):
                a(f"v_add_u32_dpp v{I+i}, v{I+i}, v{I+i} {ctl} row_mask:{m_} bank_mask:0xf")
        emit([f"v_sub_u32 v{n+i}, v{U+i}, v{n+i}" for i in range(4)] + [f"v_sub_u32 v{X+i}, v{I+i}, v{n+i}" for i in range(4)])
        for i in range(4):
            a(f"v_readlane_b32 s{84+i}, v{I+i}, 63")
        for i in range(4):
            a(f"v_readlane_b32 s{80+i}, v{X+i}, s{sVS}")
        for i in range(4):
            a(f"v_sub_u32 v{Dd(i)}, v{U+i}, v{Dd(i)}")
        for i in range(4):
            a(f"v_mov_b32 v{L+i}, s{80+i}")
        for i in range(4):
            a(f"v_sub_u32 v{Z+i}, s{84+i}, v{L+i}")
            a(f"v_cndmask_b32 v{U+i}, 0, v{L+i}, vcc")
        for i in range(4):
            a(f"v_cndmask_b32 v{L+i}, v{L+i}, v{Z+i}, vcc")
        a(f"v_add_u32 v{CN}, {-480 & 0xffffffff}, v{CN}\ns_mov_b32 s51, 0x03020302")
        for i in range(4):
            a(f"v_lshl_or_b32 v{Tt(0)}, v{Dd(0)}, 16, v{H0}" if i == 0 else f"v_alignbit_b32 v{Tt(i)}, v{Dd(i)}, v{Dd(i-1)}, 16")
            a(f"v_sub_u32 v{X+i}, v{X+i}, v{U+i}")
        a(f"ds_write_b128 v{T}, {vr(W1,4)} offset:{TW1}\nds_write_b128 v{T}, {vr(W1+4,4)} offset:{TW1+16}")
        for i in range(4):
            a(f"v_lshl_add_u32 v{t0}, v{L+i}, 16, v{run}")
            a(f"v_pk_min_u16 v{Z+i}, v{n+i}, 1 op_sel_hi:[1,0]")
            a(f"v_add_u32 v{t1}, v{t0}, v{L+i}")
            a(f"v_add_u32 v{X+i}, v{X+i}, v{t0}")
            a(f"v_perm_b32 v{run}, v{t1}, v{t1}, s51")
        for i in range(4):
            a(f"v_add_u32 v{I+i}, v{X+i}, v{n+i}")
            a(f"v_sub_u32 v{c+2*i}, v{X+i}, v{Tt(i)}")
        a(f"v_readlane_b32 s56, v{run}, 0\nv_readlane_b32 s57, v{run}, 63")
        for i in range(4):
            a(f"v_pk_mul_lo_u16 v{Z+i}, v{Z+i}, v{I+i}")
            a(f"v_lshrrev_b32 v{c+2*i+1}, 16, v{c+2*i}")
        a(f"v_and_b32 v{t0}, 0xffff, v{CN}\nv_cndmask_b32 v{t0}, 0, v{t0}, s[88:89]\ns_movk_i32 s51, {TRASH}")
        for r in range(8):
            a(f"v_sub_u16_sdwa v{c+r}, v{t0}, v{W1+r} dst_sel:WORD_1 dst_unused:UNUSED_PRESERVE src0_sel:WORD_0 src1_sel:WORD_0")
            if r < 7:
                a(f"v_max_u32_sdwa v{t0}, v{t0}, v{Z+r//2} {SDW} src0_sel:DWORD src1_sel:WORD_{r % 2}")
        a(f"""
        v_writelane_b32 v{c}, s51, 62
        ds_write_b128 v{T}, {vr(c,4)} offset:{TW0}
        ds_write_b128 v{T}, {vr(c+4,4)} offset:{TW0+16}
        """)
        a(f"""
        s_pack_hh_b32_b16 s50, s56, s57
        s_sub_u32 s50, s50, {hex((LIST - 255) + ((LIST + LSET - 255) << 16))}
        v_mov_b32 v{Z}, s50
        v_mov_b32 v{Z+1}, s{sVS}
        v_mov_b32 v{Z+2}, s{sMORE}
        ds_write_b96 v{T+1}, {vr(Z,3)} offset:{63*32 - 8}
        s_setprio 0
        s_waitcnt lgkmcnt(0)
        K_scanned{tg}:
        s_cmp_lg_u32 s{sW}, {SW}
        s_barrier
        ds_read_b96 {vr(Z,3)}, v{T+1} offset:{63*32 - 8}
        """)
        if first:
            st(8)
        for k in range(8):
            a(f"ds_read2st64_b32 {vr(BB+2*k,2)}, v{CA+k} offset0:{TW0//256} offset1:{TW1//256}")
        a(f"s_cbranch_scc1 K_rest{tg}")
        emit(ew[20:])
        a(f"""
        K_rest{tg}:
        """)
        if first and opt.get("ppos", 0):
            a(f"""
            s_cmp_lg_u32 s{sW}, {PW}
            s_cbranch_scc1 K_nop2
            s_mov_b32 s50, {WS_FLG}
            buffer_load_dwordx4 {vr(PL,4)}, v{FS}, s[12:15], s50 offen sc1
            K_nop2:
            """)
        a(f"""
        s_waitcnt lgkmcnt(8)
        v_readfirstlane_b32 s50, v{Z}
        v_readfirstlane_b32 s{sVS}, v{Z+1}
        v_readfirstlane_b32 s{sMORE}, v{Z+2}
        s_bfe_u32 s56, s50, {hex(8 | 8 << 16)}
        s_lshr_b32 s57, s50, 24
        s_max_u32 s57, s57, 1
        s_max_u32 s58, s56, s57
        s_cmp_le_u32 s58, {LIMIT // 256}
        s_cbranch_scc0 K_over
        s_sub_u32 s59, s58, 1
        s_max_u32 s59, s59, s57
        s_add_u32 s56, s58, 1
        s_and_b32 s56, s56, -2
        s_cmp_lt_u32 s58, 9
        s_cselect_b32 s58, s56, s58
        s_cselect_b32 s59, s56, s59
        s_sub_u32 s{sXB}, s58, s59
        s_cmp_eq_u32 s{sSET}, 0
        s_cselect_b32 s{sS}, s58, s59
        """)
        for k0 in (0, 4):
            a(f"s_waitcnt lgkmcnt({4 - k0})")
            for k in range(k0, k0 + 4):
                a(f"v_cmp_lt_u32_sdwa {sr(80+2*(k % 4),2)}, v{RK+k}, v{BB+2*k+1} src0_sel:DWORD src1_sel:WORD_0")
                a(f"v_lshrrev_b32 v{BB+2*k+1}, 16, v{BB+2*k}")
            for k in range(k0, k0 + 4):
                a(f"v_cndmask_b32 v{BB+2*k}, v{BB+2*k}, v{BB+2*k+1}, {sr(80+2*(k % 4),2)}")
                a(f"v_add_u32_sdwa v{RK+k}, v{RK+k}, v{BB+2*k} {SDW} src0_sel:DWORD src1_sel:WORD_0")
        for k in range(8):
            a(f"s_mov_b64 exec, {sr(sM+2*k,2)}")
            a(f"ds_write_b64 v{RK+k}, {vr(EN+2*k,2)}")
        a("s_mov_b64 exec, -1")

    def idx_reads(blk, sub):
        o = 128*blk + 4*sub
        return [f"ds_read2_b32 {vr(RW,2)}, v{LI} offset0:{o} offset1:{o+16}",
                f"ds_read2_b32 {vr(RW+2,2)}, v{LI} offset0:{o+32} offset1:{o+48}"]
    mads = [f"v_mad_u32_u16 v{IX+t}, v{RW+t}, s{s512}, v{(207, 182, OF1, OF0)[t]}" for t in range(4)]
    def dma(slot, mid):
        o = [f"s_add_u32 m0, s{sRING}, {4096*slot}"]
        for t in range(4):
            o += mid[t] + [f"buffer_load_dwordx4 v{IX+t}, s[24:27], 0 offen offset:{1024*t} {tfl} lds"]
        return o
    def edma(step, src=EP):
        return [f"s_add_u32 m0, s{sEM0}, {1024*(step % 4)}", "s_mov_b64 exec, 0xffff", f"v_or_b32 v{src}, v{src}, v{EP+1}",
                f"buffer_load_dwordx4 v{src}, s[16:19], 0 offen {opt.get('eflag','')} lds", "s_mov_b64 exec, -1"]
    def eid_read(step, dst=None):
        return [f"ds_read_b32 v{dst or EP}, v{LE} offset:{512*(step // 2) + 16*(step % 2) + 4}"]
    def pn_read(blk):
        return [f"ds_read2_b32 {vr(TA0,2)}, v{LP} offset0:{128*blk} offset1:{128*blk+32}"]
    ta = [f"v_add_u32_sdwa v{x}, v{x}, v{TC} {SDW} src0_sel:WORD_1 src1_sel:DWORD" for x in (TA0, TA1)]
    def reads(step):
        s = step % 2
        o = [f"ds_read_b128 {vr(OE,4)}, v{EA} offset:{1024*(step % 4)}"]
        o += [f"ds_read_b64_tr_b16 {vr(OB+2*z,2)}, v{RA[0]} offset:{4096*s + 1024*z}" for z in range(4)]
        o += [f"ds_read_u16_d16_hi v{H[s]+r}, v{RA[1]} offset:{4096*s + 128*(8*(r//4) + r % 4) + (0 if r & 2 else 64)}"
              for r in range(16)]
        return o
    def tr_reads(blk):
        i = IND[blk % 2]
        return [f"ds_read_b64_tr_b16 {vr(OA,2)}, v{TA0}", f"ds_read_b64_tr_b16 {vr(OA+2,2)}, v{TA1}",
                f"ds_read_b64_tr_b16 {vr(i,2)}, v{TA0} offset:64", f"ds_read_b64_tr_b16 {vr(i+2,2)}, v{TA1} offset:64"]
    mct = f"{MF} {vr(CT,16)}, {vr(PIND,4)}, {vr(OA,4)}, 0"
    def mf_g(g):
        d = vr(g, 16)
        return [f"{MF} {d}, {vr(OE,4)}, {vr(WC,4)}, {vr(CT,16)}",
                f"v_smfmac_f32_32x32x32_bf16 {d}, {vr(SEL0,4)}, {vr(OB,8)}, v{SIX}"]
    def mf_red(i):
        return [f"{MF} {ar(ACD,16)}, {vr(IND[i],4)}, {vr(BD,4)}, {ar(ACD,16)}",
                f"{MF} {ar(ACN,16)}, {vr(IND[i],4)}, {vr(BN,4)}, {ar(ACN,16)}"]
    cvts = [f"v_cvt_pk_bf16_f32 v{BD+j}, v{AS+2*j}, v{AS+2*j+1}" for j in range(4)] + \
           [f"v_cvt_pk_bf16_f32 v{BN+j}, v{AM+2*j}, v{AM+2*j+1}" for j in range(4)]
    def pk(op, d, *s):
        return f"v_pk_{op}_f32 {vr(d,2)}, " + ", ".join(x if isinstance(x, str) else vr(x, 2) for x in s)
    def pk2(k):
        o = []
        for dst, src in ((AS, SS), (AM, MM)):
            for j in range(4):
                if k % 2 == 0:
                    o.append(pk("mul", dst+2*j, src+2*j, RR+2*j))
                else:
                    o.append(pk("fma", dst+2*j, src+2*j, RR+2*j, dst+2*j))
        return o
    RE = 183
    cut = opt.get("cut", 1)
    def load_seg(u):
        side = eid_read(u + 5, RE) + idx_reads(*[(1, 1), (0, 0), (0, 1), (1, 0)][u])
        if opt.get("bal", 0):
            side += tr_reads(u // 2)[2:] + pn_read(u // 2) if u % 2 == 0 else tr_reads(0)[:2]
        else:
            side += pn_read(u // 2) if u % 2 == 0 else tr_reads((u + 1) // 2)
        rd = reads(u + 1)
        va = mads + [f"v_or_b32 v{EP}, v{RE}, v{EP+1}"] + (ta if u % 2 == 0 else [])
        adv = {0: LI, 2: LP, 3: LE}.get(u)
        if adv:
            va = va + [f"v_add_u32 v{adv}, 0x400, v{adv}"]
        ed = [x for x in edma(u) if not x.startswith("v_or")]
        dd = dma(u % 2, [side[len(side)*t//4:len(side)*(t+1)//4] for t in range(4)])
        nf = opt.get("nf", 4)
        if nf == 4:
            o = dd + ed + ["s_waitcnt vmcnt(6)"] + rd
        else:
            n_ = -(-len(side) // nf)
            g_ = opt.get("gap", 4)
            mid = [side[n_*t:n_*t+n_] for t in range(nf)] + [rd[g_*t:g_*t+g_] for t in range(4 - nf)]
            mid[nf] = [f"s_waitcnt vmcnt({nf + 1})"] + mid[nf]
            o = dma(u % 2, mid) + ed + rd[g_*(4 - nf):]
        vp = opt.get("vpos", 0)
        if vp:
            o = o[:len(o)-vp] + [f"s_waitcnt lgkmcnt({min(15, 21 - vp)})"] + va + o[len(o)-vp:] + [f"s_sub_u32 s{sK}, s{sK}, 1"]
        else:
            o += ["s_waitcnt lgkmcnt(15)"] + va + [f"s_sub_u32 s{sK}, s{sK}, 1"]
        return o + ["s_setprio 0", "s_waitcnt lgkmcnt(0)", "s_barrier"]
    def comp_seg(u, first=False):
        g, gn, h = G[u % 2], G[(u + 1) % 2], H[u % 2]
        ex = [f"v_exp_f32 v{g+r}, v{g+r}" for r in range(16)]
        mg = mf_g(gn)
        if u % 2 == 0:
            mr = mf_red((u // 2 - 1) % 2)
            o = pk2(u - 1) + [mg[0]] + cvts[:6] + [mg[1]] + cvts[6:] + ex[:2] + [mr[0]] + ex[2:5] + [mr[1]] + ex[5:]
        else:
            o = ([] if first else pk2(u - 1)) + [mct] + ex[:3] + [mg[0]] + ex[3:6] + [mg[1]] + ex[6:]
        for j in range(4):
            b_ = g + 4*j
            o += [pk("fma", x, x, sr(sCC, 2), sr(sCC, 2)) + " clamp" for x in (b_, b_+2)]
        for j in range(4):
            b_, hh = g + 4*j, h + 4*j
            o += [pk("mul", RR+2*j, b_, b_+2), pk("mul", MM+2*j, hh, b_+2), f"v_rcp_f32 v{RR+2*j}, v{RR+2*j}",
                  pk("add", SS+2*j, b_, b_+2), f"v_rcp_f32 v{RR+2*j+1}, v{RR+2*j+1}", pk("fma", MM+2*j, hh+2, b_, MM+2*j)]
        if opt.get("rcend"):
            o = [x for x in o if "rcp" not in x] + [x for x in o if "rcp" in x]
        return o + ["s_setprio 1", "s_barrier"]

    peel = opt.get("peel", 0)
    one = lambda l: [[x] for x in l]
    def fill_a():
        a(f"s_sub_u32 s24, s4, 3072\ns_subb_u32 s25, s5, 0\ns_mov_b32 s26, s14")
        emit(eid_read(1) + eid_read(2, 1) + idx_reads(0, 1) + [f"ds_read2_b32 {vr(TA0,2)}, v{LP} offset0:6 offset1:38"])
        a("s_waitcnt lgkmcnt(0)")
        emit(edma(1) + edma(2, 1) + dma(1, one(mads)))
        emit(eid_read(3) + idx_reads(1, 0) + ta)
    def fill_b():
        a("s_waitcnt lgkmcnt(0)")
        emit(edma(3) + dma(0, one(mads)) + eid_read(4) + idx_reads(1, 1) + pn_read(1))
        a(f"v_add_u32 v{LP}, 0x200, v{LP}\nv_add_u32 v{LI}, 0x400, v{LI}\ns_sub_u32 s{sK}, s{sS}, 2")
    sort(True)
    a(f"K_sorted:\ns_cmp_lg_u32 s{sW}, {SW}\ns_cbranch_scc1 K_c2")
    consts2()
    a("K_c2:")
    if opt.get("c3", 0) == 2:
        consts3()
    poll_check("t", WS_FLG, FS, PW)
    a("s_waitcnt lgkmcnt(0)\ns_barrier")
    st(9)
    if opt.get("c3", 0) == 2:
        fill_a()
    elif opt.get("c3", 0):
        a(f"s_cmp_eq_u32 s{sSET}, 0\ns_cbranch_scc1 K_f0")
        consts3()
        a("K_f0:")
        fill_a()
        a(f"s_cmp_lg_u32 s{sSET}, 0\ns_cbranch_scc1 K_f1")
        consts3()
        a("K_f1:")
    else:
        fill_a()
        consts3()
    st(13)
    for i in range(4):
        a(f"v_mov_b32 v{108+i}, 0")
    a(f"""
    s_sub_u32 s51, {N*256}, s{sXO}
    s_min_u32 s34, s51, {SB*256}
    s_add_u32 s32, s10, s{sXO}
    s_addc_u32 s33, s11, 0
    {MF} {ar(ACD,16)}, v[108:111], v[108:111], 0
    s_mov_b32 s{sCC}, {hex(f32(2.0**-SHIFT))}
    s_mov_b32 s{sCC+1}, {hex(f32(2.0**-SHIFT))}
    {MF} {ar(ACN,16)}, v[108:111], v[108:111], 0
    K_fillb:
    """)
    a(f"""
    s_and_b32 s50, s{sS}, 1
    s_cmp_gt_u32 s50, s{sTILE}
    s_cbranch_scc0 K_nospread
    s_mul_i32 s50, s{sSET}, {LSET}
    s_lshl_b32 s51, s{sS}, 8
    s_add_u32 s50, s50, s51
    v_lshrrev_b32 v108, 1, v2
    v_bfi_b32 v108, 1, v2, v108
    v_lshl_add_u32 v108, v108, 3, s50
    v_and_b32 v109, 2, v2
    v_lshl_add_u32 v108, v109, 7, v108
    ds_read_b64 v[110:111], v108 offset:{LIST - 256}
    v_lshl_add_u32 v108, v2, 3, s50
    s_waitcnt lgkmcnt(0)
    ds_write_b64 v108, v[110:111] offset:{LIST - 256}
    K_nospread:
    """)
    emit(tr_reads(0))
    fill_b()
    a(f"{mct}\ns_waitcnt lgkmcnt(0)")
    emit(mads + ta + [f"v_mov_b32 v{x}, 0" for x in (list(range(AS, AS+16)) if peel else list(range(SS, SS+16)) + list(range(RR, RR+8)))])
    st(14)
    stag = opt.get("stag", 1)
    if stag:
        a(f"s_cmp_eq_u32 s{sSET}, 0\ns_cbranch_scc1 K_lead\ns_barrier\nK_lead:")
    a("s_waitcnt vmcnt(5)\ns_barrier")
    r0 = reads(1)
    emit(r0[:11] + edma(4) + r0[11:20])
    a("s_waitcnt lgkmcnt(15)")
    emit(mf_g(G[1]) + r0[20:] + eid_read(5))
    a(f"s_waitcnt lgkmcnt(0)\nv_or_b32 v{EP}, v{EP}, v{EP+1}")
    st(10)
    if stag:
        a("s_setprio 1\ns_barrier")
    else:
        a(f"""
        s_cmp_eq_u32 s{sSET}, 0
        s_barrier
        s_cbranch_scc1 K_lead
        s_barrier
        s_setprio 1
        K_lead:
        """)
    if peel:
        emit(load_seg(1) + comp_seg(1, first=True))
        a("s_cbranch_scc1 K_drain0\ns_branch K_loop1")
        a.l.append(".p2align 6")
        a("K_loop:")
        for u in range(4):
            if u == 2:
                a("K_loop1:")
            emit(load_seg(u) + comp_seg(u))
            a(f"s_cbranch_scc1 K_drain{0 if u < 2 else ''}" if u < 3 else "s_cbranch_scc0 K_loop")
        a("s_branch K_drain\nK_drain0:")
    else:
        a.l.append(f".p2align {opt.get('al', 6)}")
        a("K_loop:")
        for u in (1, 2, 3, 0):
            emit(load_seg(u) + comp_seg(u))
            a(f"s_cbranch_scc1 K_drain{0 if u < 2 else ''}" if u else "s_cbranch_scc0 K_loop")
        a("K_drain0:")
    emit([f"v_mov_b32 v{IND[1]+j}, v{IND[0]+j}" for j in range(4)])
    a(f"""
    K_drain:
    s_setprio 0
    s_cmp_lg_u32 s{sSET}, s{sXB}
    s_cbranch_scc1 K_done
    s_barrier
    K_done:
    s_bitcmp1_b32 s{sS}, 0
    s_cbranch_scc1 K_half
    """)
    emit(pk2(1))
    a("K_last:")
    emit(cvts + ["s_nop 1"] + mf_red(1))
    st(11)
    a(f"""
    s_cmp_lg_u32 s{sMORE}, 0
    s_cbranch_scc1 K_again
    v_and_b32 v41, 31, v2
    s_and_b32 s50, s{sW}, 1
    s_lshl_b32 s50, s50, 7
    s_add_u32 s50, s50, s{sRING}
    v_lshl_add_u32 v42, v41, 2, s50
    v_and_b32 v40, 32, v2
    v_lshl_add_u32 v42, v40, 5, v42
    s_mov_b32 s50, {hex(f32(1e-6 * 2.0**SHIFT))}
    s_mov_b32 s51, s50
    s_mov_b32 s56, 0xffff0000
    """)
    Dn, Nn, Uu = NV + ACD, NV + ACN, NV + AU
    un = []
    for k in range(8):
        un += [f"v_lshlrev_b32 v{64+2*k}, 16, v{XR+k}", f"v_and_b32 v{65+2*k}, s56, v{XR+k}",
               f"v_lshlrev_b32 v{96+2*k}, 16, v{Uu+k}", f"v_and_b32 v{97+2*k}, s56, v{Uu+k}"]
    emit(un[:8])
    for r in range(0, 16, 2):
        a(pk("add", Dn+r, Dn+r, "s[50:51]"))
    for r in range(16):
        a(f"v_rcp_f32 v{Dn+r}, v{Dn+r}")
    a("s_waitcnt vmcnt(0)")
    for r in range(0, 16, 2):
        a(pk("mul", Dn+r, Dn+r, Nn+r))
        row = 8*(r//4) + r % 4
        a(f"ds_write2st64_b32 v42, v{Dn+r}, v{Dn+r+1} offset0:{row} offset1:{row+1}")
    emit(un[8:])
    a(f"""
    v_lshrrev_b32 v44, 4, v0
    v_bfe_u32 v45, v0, 2, 2
    v_lshlrev_b32 v45, 13, v45
    v_lshl_add_u32 v45, v44, 8, v45
    v_and_b32 v46, 7, v0
    v_lshl_add_u32 v45, v46, 5, v45
    v_add_u32 v45, {RING}, v45
    v_add_u32 v46, 0x8000, v45
    v_cmp_gt_u32 vcc, s{sVS}, v44
    v_lshlrev_b32 v43, 4, v0
    s_movk_i32 s51, 8192
    v_cndmask_b32 v45, v46, v45, vcc
    s_waitcnt lgkmcnt(0)
    s_barrier
    ds_read_b128 v[48:51], v45
    ds_read_b128 v[52:55], v45 offset:16
    ds_read_b128 v[56:59], v46
    ds_read_b128 v[60:63], v46 offset:16
    """)
    for k in range(8):
        a(pk("add", 96+2*k, 96+2*k, 64+2*k))
    for i in range(2):
        a(f"s_waitcnt lgkmcnt({2-2*i})")
        for j in range(0, 8, 2):
            a(pk("add", 48+8*i+j, 48+8*i+j, 96+8*i+j))
        for j in range(8):
            a(f"v_max_f32 v{48+8*i+j}, v{64+8*i+j}, v{48+8*i+j}")
        for j in range(4):
            a(f"v_cvt_pk_bf16_f32 v{80+4*i+j}, v{48+8*i+2*j}, v{48+8*i+2*j+1}")
        a(f"buffer_store_dwordx4 {vr(80+4*i,4)}, v43, s[32:35], {'s51' if i else '0'} offen {opt.get('ost','sc1')}")
    if st.on:
        a("s_waitcnt vmcnt(0)")
        a(f"v_writelane_b32 v205, s{sS}, 15")
    st(12)
    st.flush()
    a("K_end:\ns_endpgm\nK_half:")
    emit(pk2(0))
    a("s_branch K_last")
    a(f"""
    K_clr:
    s_waitcnt lgkmcnt(0)
    s_mov_b32 s20, s52
    s_mov_b32 s21, s53
    s_mov_b32 s12, s78
    s_mov_b32 s13, s79
    s_mov_b32 s14, {WS_END}
    s_mov_b32 s15, 0x20000
    s_mov_b32 s28, s76
    s_mov_b32 s29, s77
    s_movk_i32 s30, 256
    s_mov_b32 s31, 0x20000
    v_mov_b32 v8, 0
    v_mov_b32 v9, 0
    v_mov_b32 v10, 0
    v_mov_b32 v11, 0
    v_lshlrev_b32 v4, 7, v2
    s_mov_b32 s50, {WS_FLG}
    buffer_store_dwordx4 v[8:11], v4, s[12:15], s50 offen sc1
    """)
    emit(xdma(XP, SB*256) + xdma(ERING, 0))
    a(f"""
    v_and_b32 v12, 4, v2
    v_cmp_eq_u32 vcc, 0, v12
    v_mov_b32 v13, 0x71807180
    v_and_b32 v5, 0x1f0, v1
    v_cndmask_b32 v12, 0, v13, vcc
    v_mov_b32 v13, v12
    v_mov_b32 v14, v12
    v_mov_b32 v15, v12
    s_mov_b32 s50, {DUMMY*512}
    buffer_store_dwordx4 v[12:15], v5, s[12:15], s50 offen sc1
    s_branch K_np1
    K_pub:
    s_mov_b64 exec, 1
    s_waitcnt vmcnt({5 + nw})
    buffer_store_dword v{ONE}, off, s[28:31], 0 sc1
    s_mov_b64 exec, -1
    s_waitcnt vmcnt({nw + 1})
    s_branch K_np2
    """)
    koff = sum(o << (8*i) for i, o in enumerate((40, 64, 32, 56, 48, 88, 8, 72)))
    a(f"""
    K_prod:
    s_lshl_b32 s50, s{sW}, 3
    s_mov_b32 s92, {hex(koff & 0xffffffff)}
    s_mov_b32 s93, {hex(koff >> 32)}
    s_lshr_b64 s[92:93], s[92:93], s50
    s_and_b32 s92, s92, 0xff
    s_load_dwordx2 s[96:97], s[0:1], s92
    s_mov_b32 s20, s52
    s_mov_b32 s21, s53
    v_lshlrev_b32 v4, 2, v0
    v_mov_b32 v62, 0
    ds_write_b32 v4, v62
    v_mov_b32 v40, -1
    v_mov_b32 v41, -1
    v_mov_b32 v42, -1
    v_mov_b32 v43, -1
    """)
    for i in range(4):
        a(f"ds_write_b128 v1, v[40:43] offset:{IMG + 8192*i}")
    a(f"""
    v_mov_b32 v5, 128
    v_writelane_b32 v5, 16, 4
    s_mov_b32 s50, {WS_END // 256}
    v_writelane_b32 v5, s50, 5
    s_mov_b32 s50, {E*32 // 256}
    v_writelane_b32 v5, s50, 6
    s_mov_b32 s50, {N}
    v_writelane_b32 v5, s50, 7
    s_and_b32 s93, s2, 0xf0
    v_readlane_b32 s50, v5, s{sW}
    v_add_u32 v4, s93, v85
    s_waitcnt lgkmcnt(0)
    v_mul_u32_u24 v4, s50, v4
    s_barrier
    """)
    wm = 0
    emit(xdma(ERING, 0))
    a(f"""
    s_mov_b64 exec, 0xffff
    global_load_dword v60, v4, s[96:97] sc1
    s_mov_b64 exec, -1
    s_sub_u32 s90, s82, s88
    v_add_u32 v4, 8192, v1
    v_cmp_gt_u32 s[92:93], s90, v4
    s_mov_b32 s91, {-SB & 0xffffffff}
    v_mov_b32 v6, 4
    v_lshlrev_b32 v7, 22, v0
    v_mov_b32 v36, 0
    v_mov_b32 v37, 0
    v_mov_b32 v38, 0
    v_mov_b32 v39, 0
    """)
    for k in range(8):
        a(f"v_add_u32 v{68+k}, {hex(((2048*(k//4) + k % 4) << 20) & 0xffffffff)}, v7")
    for g in range(2):
        a(f"s_waitcnt vmcnt({6 - g + wm})")
        if g == 0:
            st(1)
        for j in range(4):
            d, t = 8 + 4*g + j, 24 + 4*g + j
            a(f"v_mul_u32_u24 v{44+4*g+j}, 21400, v{d}")
            a(f"v_lshrrev_b32 v{44+4*g+j}, 20, v{44+4*g+j}")
            a(f"v_lshlrev_b32 v{t}, 2, v{44+4*g+j}")
        if g:
            a("s_mov_b64 exec, s[92:93]")
        for j in range(4):
            a(f"ds_add_rtn_u32 v{32+4*g+j}, v{24+4*g+j}, v6")
    a(f"""
    s_mov_b64 exec, -1
    s_lshl_b32 s56, s62, 7
    s_add_u32 s56, s56, {WS_SLOT}
    s_add_u32 s57, s56, {1 << 20}
    s_add_u32 s58, s56, {2 << 20}
    s_add_u32 s59, s56, {3 << 20}
    v_lshrrev_b32 v5, 3, v0
    v_and_b32 v61, 0x70, v1
    v_lshl_add_u32 v61, v5, 14, v61
    s_mov_b32 s4, s78
    s_mov_b32 s5, s79
    s_mov_b32 s12, s78
    s_mov_b32 s13, s79
    s_mov_b32 s14, {WS_END}
    s_mov_b32 s15, 0x20000
    s_waitcnt vmcnt(3)
    """)
    wp = wdma()
    for k in range(8):
        s_, d = 16 + k, 8 + k
        a(f"v_mad_i32_i24 v{d}, v{44+k}, s91, v{d}")
        a(f"v_and_b32 v4, 7, v{s_}")
        a(f"v_lshl_or_b32 v{d}, v{d}, 3, v4")
        a(f"v_lshrrev_b32 v{s_}, 3, v{s_}")
        a(f"v_lshl_or_b32 v{d}, v{d}, 11, v{68+k}")
        a(f"v_or_b32 v{s_}, v{d}, v{s_}")
    a("s_waitcnt lgkmcnt(0)")
    for k in range(8):
        if k == 4:
            a("s_mov_b64 exec, s[92:93]")
        a(f"v_add_u32 v4, v{32+k}, v{24+k}")
        a(f"v_and_b32 v4, 0x7f, v4")
        a(f"v_lshl_add_u32 v{44+k}, v{24+k}, 5, v4")
        a(f"ds_write_b32 v{44+k}, v{16+k} offset:{IMG}")
    a(f"""
    s_mov_b64 exec, -1
    v_or3_b32 v4, v32, v33, v34
    v_or3_b32 v5, v35, v36, v37
    v_or3_b32 v4, v4, v38, v39
    v_or_b32 v4, v4, v5
    v_cmp_lt_u32 vcc, 0x7f, v4
    s_mov_b64 exec, vcc
    ds_write_b32 v62, v6 offset:1024
    s_mov_b64 exec, -1
    s_waitcnt vmcnt(1) lgkmcnt(0)
    s_barrier
    ds_read_b32 v4, v62 offset:1024
    """)
    OUTR = [8, 12, 68, 72]
    def img_reads():
        for i in range(4):
            a(f"ds_read_b128 {vr(OUTR[i],4)}, v1 offset:{IMG + 8192*i}")
    img_reads()
    a(f"""
    s_waitcnt lgkmcnt(4)
    v_readfirstlane_b32 s50, v4
    s_cmp_lg_u32 s50, 0
    s_cbranch_scc1 K_slow
    K_out:
    """)
    for i in range(4):
        a(f"s_waitcnt lgkmcnt({3-i})")
        a(f"buffer_store_dwordx4 {vr(OUTR[i],4)}, v61, s[12:15], s{56+i} offen sc1")
    st(2)
    common(64)
    common2(a)
    wb = opt.get("wbefore", 2)
    emit([ready_load] + wcdma + wp[:3*wb])
    a(f"v_add_u32 v{FX}, {ERING}, v{FX}")
    for q in range(8):
        emit(xfrag(q))
    emit(misc[:3])
    a(f"s_add_u32 s96, s97, {WS_FLG + 4096}\ns_mov_b32 s97, {OOB}\ns_waitcnt vmcnt({wb + 1})")
    ready_check("rp")
    a(f"""
    s_mov_b64 exec, 1
    s_barrier
    buffer_store_dword v{ONE}, off, s[12:15], s96 sc1
    s_mov_b64 exec, -1
    """)
    st(3)
    emit(wp[3*wb:])
    if em2:
        emit(emw(em2, 0))
    lds_reset(True)
    if es:
        emit([f"s_waitcnt vmcnt({1 if em2 else 0})"] + misc[3:])
        for q in range(8):
            emit(wfrag(q))
        g2(8*(em2 + em3))
    else:
        left = lambda q: 7 - q + (1 if q < wb else 0) + (1 if em2 else 0)
        emit([f"s_waitcnt vmcnt({left(0)})"] + misc[3:] + wfrag(0))
        for q in range(8):
            if q < 7:
                emit([f"s_waitcnt vmcnt({left(q + 1)})"] + wfrag(q + 1))
            a(f"s_waitcnt lgkmcnt({2 if q < 7 else 0})")
            emit([gm(q, 0, D1), gm(q, 1, D1)])
    a("s_branch K_join")


    a("""
    K_slow:
    v_lshlrev_b32 v5, 4, v2
    s_waitcnt lgkmcnt(0)
    ds_read_b128 v[8:11], v5
    s_waitcnt lgkmcnt(0)
    v_add_u32 v13, v8, v9
    v_add_u32 v14, v13, v10
    v_add_u32 v15, v14, v11
    v_mov_b32 v4, v15
    """)
    scan64(a, [4])
    a("""
    v_sub_u32 v40, v4, v15
    v_add_u32 v41, v40, v8
    v_add_u32 v42, v40, v13
    v_add_u32 v43, v40, v14
    ds_write_b128 v5, v[40:43] offset:2048
    """)
    for k in range(8):
        a(f"ds_read_b32 v{24+k}, v{24+k} offset:2048")
    a("s_waitcnt lgkmcnt(0)")
    for k in range(8):
        a(f"s_mov_b64 exec, {'s[92:93]' if k >= 4 else '-1'}")
        a(f"v_add_u32 v{24+k}, v{24+k}, v{32+k}")
        a(f"ds_write_b32 v{24+k}, v{16+k} offset:{STG}")
        a(f"v_cmp_gt_u32 vcc, 0x80, v{32+k}")
        a("s_mov_b64 exec, vcc")
        a(f"ds_write_b32 v{44+k}, v{16+k} offset:{IMG}")
    a(f"""
    s_mov_b64 exec, -1
    s_waitcnt lgkmcnt(0)
    s_barrier
    v_mov_b32 v16, {62 << 14}
    """)
    for j in range(4):
        a(f"""
        v_add_u32 v12, {4*j}, v5
        v_add_u32 v13, 124, v12
        v_and_b32 v13, 0x7f, v13
        v_lshl_add_u32 v13, v12, 5, v13
        v_add_u32 v14, 120, v{40+j}
        v_lshl_or_b32 v14, v14, 18, v16
        v_add_u32 v15, -124, v{8+j}
        v_cmp_lt_u32 vcc, 0x80, v{8+j}
        s_mov_b64 exec, vcc
        ds_write_b32 v13, v14 offset:{IMG}
        ds_write_b32 v{40+j}, v15 offset:{STG + 120}
        s_mov_b64 exec, -1
        """)
    a(f"""
    ds_read_b128 v[16:19], v1 offset:{STG}
    ds_read_b128 v[20:23], v1 offset:{STG + 8192}
    s_add_u32 s50, s88, {WS_REC}
    s_add_u32 s80, s4, s50
    s_addc_u32 s81, s5, 0
    s_mov_b32 s82, s90
    s_movk_i32 s50, 8192
    s_waitcnt lgkmcnt(0)
    buffer_store_dwordx4 v[16:19], v1, s[80:83], 0 offen sc1
    buffer_store_dwordx4 v[20:23], v1, s[80:83], s50 offen sc1
    """)
    img_reads()
    a("s_branch K_out")

    zero_masks = lambda ks: [f"s_mov_b64 {sr(sM+2*k,2)}, 0" for k in ks]
    a("""
    K_again:
    s_waitcnt vmcnt(0) lgkmcnt(0)
    s_barrier
    """)
    lds_reset(True)
    a(f"""
    s_cmp_eq_u32 s{sMODE}, 3
    s_cbranch_scc1 K_next
    """)
    rec_loads()
    a(f"""
    s_waitcnt vmcnt(0)
    s_cmp_eq_u32 s{sMODE}, 1
    s_cbranch_scc0 K_marks
    s_mov_b32 s{sMODE}, 2
    s_mov_b64 s[56:57], 0
    """)
    classes(range(4, 8), True)
    emit(zero_masks(range(4)))
    a(f"""
    s_branch K_resort
    K_marks:
    s_mov_b32 s{sMODE}, 3
    v_mov_b32 v84, 0
    """)
    for k in range(8):
        a(f"""
        v_bfe_u32 v85, v{REC+k}, 14, 6
        v_cmp_eq_u32 vcc, 62, v85
        s_nop 1
        v_cndmask_b32 v84, v84, v{REC+k}, vcc
        """)
    a(f"""
    s_nop 1
    v_or_b32_dpp v84, v84, v84 quad_perm:[1,0,3,2] row_mask:0xf bank_mask:0xf
    s_nop 1
    v_or_b32_dpp v84, v84, v84 quad_perm:[2,3,0,1] row_mask:0xf bank_mask:0xf
    v_cmp_ne_u32 vcc, 0, v84
    v_lshrrev_b32 v84, 20, v84
    v_add_lshl_u32 v84, v84, v{PB}, 2
    s_mov_b32 s{sSTART}, {WS_REC}
    buffer_load_dword v{SLEN}, v84, s[12:15], s{sSTART} offen sc1
    v_add_u32 v{SEG}, v84, v{SIDX}
    s_mov_b32 s{sSTART}, {WS_REC + 4 - 64}
    s_waitcnt vmcnt(0)
    v_cndmask_b32 v{SLEN}, 0, v{SLEN}, vcc
    v_min_u32 v{SLEN}, {CH*4}, v{SLEN}
    v_add_u32 v{SLEN}, 64, v{SLEN}
    K_next:
    s_add_u32 s{sSTART}, s{sSTART}, 64
    v_add_u32 v{SLEN}, -64, v{SLEN}
    """)
    rec_loads(1)
    a(f"""
    v_cmp_lt_i32 s[56:57], 64, v{SLEN}
    v_sub_u32 v84, v{SLEN}, v{SIDX}
    """)
    for k in range(4):
        a(f"v_cmp_lt_i32 {sr(sM+2*k,2)}, {4*k}, v84")
    emit(zero_masks(range(4, 8)))
    a("K_resort:")
    list_ptrs()
    sort(False)
    a(f"""
    s_cmp_eq_u32 s{sMODE}, 2
    s_cselect_b32 s{sMORE}, s{sMARK}, s{sMORE}
    s_cmp_eq_u32 s{sMODE}, 1
    s_cselect_b32 s{sMORE}, 1, s{sMORE}
    s_cbranch_scc1 K_sorted
    s_waitcnt lgkmcnt(0)
    s_barrier
    """)
    fill_a()
    a(f"""
    s_branch K_fillb
    K_over:
    s_cmp_lg_u32 s{sMODE}, 0
    s_cbranch_scc1 K_end
    s_mov_b32 s{sMODE}, 1
    s_mov_b32 s{sMARK}, s{sMORE}
    s_mov_b64 s[56:57], 0
    s_waitcnt lgkmcnt(0)
    s_barrier
    """)
    lds_reset(False)
    emit(zero_masks(range(4, 8)))
    a("s_branch K_resort\nK_codeend:")
    d = desc(name, 256, 100, 256)
    ln = f"; @launch grid=(256,1,1) block=(512,1,1) lds={LDS}\n"
    if opt.get("probe"):
        import gen
        ln = f"; @launch kernel={name} grid=(256,1,1) block=(512,1,1) lds={LDS}\n; @launch kernel=probe_kernel grid=(1,1,1) block=(64,1,1) lds=0\n"
        d += gen.gen_probe(a, opt)
    hdr = """; GatedGCN layer in one launch: each workgroup builds the table rows of its 49 nodes, half of them also
; partition a chunk of edges by destination bin; after two counted hand-offs every workgroup sorts its bin
; and runs the gate / aggregation loop.
""" + ln + '.amdgcn_target "amdgcn-amd-amdhsa--gfx950"\n.text\n'
    return hdr + a.text() + d

if __name__ == "__main__":
    opt = {}
    out = f"cdna_kernels/{NAME}.s"
    for x in sys.argv[1:]:
        k, v = x.split("=", 1)
        if k == "out":
            out = v
        else:
            opt[k] = int(v) if v.lstrip("-").isdigit() else v
    open(out, "w").write(generate(opt))
    print("wrote", out)
```

```python
import sys
from gen import (NAME, N, E, SB, CH, P, RG, DUMMY, WS_REC, WS_SLOT, WS_END, SHIFT, LOG2E, WS_STAMP, MF,
                 f32, Asm, vr, ar, sr, scan64, desc, head, Stamps)

TW0, TW1, TRASH = 2048, 4096, 6144
LIST = 7168
CAPS = 2560
LSET = CAPS * 8
ATAB = LIST + 2 * LSET
AST = 576
WCL = 77824
WS_FLG = 0xA00000
XP = ATAB
ERING = 81920
RING = 98304
LDS = RING + 65536
LIMIT = 2304 * 8
IMG, STG = 4096, 36864
SDW = "dst_sel:DWORD dst_unused:UNUSED_PAD"
OOB = 0x7000000

def generate(opt=None):
    opt = opt or {}
    a = Asm()
    name = NAME + "_kernel"
    cmask = {8: 0x7FC, 4: 0x7F8, 2: 0x7F0}[opt.get("R", 8)]
    tfl = opt.get("tfl", "sc1").replace("+", " ")
    tst = opt.get("tst", "sc1").replace("+", " ")
    head(a, name)
    st = Stamps(a, opt.get("stamp"), 205, WS_STAMP)
    SEL0, SIX, PIND, WC, CT, RR = 4, 8, 12, 16, 84, 248
    G = [52, 68]; H = [20, 36]
    OE, RW, OB, OA = 100, 104, 108, 120
    IND = [124, 128]
    SS, MM, AS, AM, BD, BN = 132, 140, 148, 156, 164, 168
    IX, OF0, OF1, EP = 172, 176, 177, 178
    RA = [180, 181]
    EA, LI, LE, LP, TA0, TA1, TC = 184, 185, 186, 187, 188, 189, 190
    XR = 192
    SEG, SLEN, SIDX, PB = 200, 201, 202, 203
    NV = 208
    ACD, ACN, AU = 0, 16, 32
    sW, sSET, sTILE, sBIN = 3, 36, 37, 38
    sRING, sEM0, sS, sK, sVS, sSTART, sLUT, sMORE, s512 = 39, 40, 41, 42, 43, 44, 45, 46, 47
    sCC, sM, sMODE, sMARK, sXO, sPROD, sXB = 48, 64, 7, 9, 8, 6, 61
    REC, CA, RK, BB, EN, T = 36, 44, 52, 60, 100, 76
    XF, WA, DA, SO, WCR = 100, 0, 36, 68, 164
    VW, FW, FX, FS, FR, FG, FA, FB, FU = 168, 169, 170, 171, 172, 173, 207, 204, 191
    ONE, PL = 206, 164

    def emit(lst):
        for x in lst:
            a(x)
    ar = lambda b_, n_=1: vr(NV + b_, n_)

    cw = opt.get("cw", 8)
    a("s_cmp_ge_u32 s2, 256\ns_cbranch_scc1 K_end")
    if opt.get("perm"):
        a(f"s_mul_i32 s2, s2, {opt['perm']}\ns_lshr_b32 s3, s2, 3\ns_and_b32 s3, s3, 7\ns_xor_b32 s2, s2, s3\ns_and_b32 s2, s2, 255")
    st(0)
    a(f"""
    s_load_dwordx8 s[52:59], s[0:1], 0
    s_load_dwordx16 s[64:79], s[0:1], 32
    s_getpc_b64 s[92:93]
    K_pc:
    s_and_b32 s50, s2, {0xf8 if cw == 8 else 0x78}
    s_lshl_b32 s50, s50, {0 if cw == 8 else 1}
    v_add_u32 v4, s50, v0
    v_mul_u32_u24 v4, (K_codeend-K_pc)/1024*4, v4
    v_cmp_gt_u32 vcc, {cw}, v0
    s_and_saveexec_b64 s[90:91], vcc
    s_cbranch_execz K_nocw
    global_load_dword v63, v4, s[92:93]
    K_nocw:
    s_mov_b64 exec, -1
    v_lshrrev_b32 v1, 6, v0
    v_and_b32 v2, 63, v0
    v_readfirstlane_b32 s{sW}, v1
    s_and_b32 s60, s2, 7
    s_lshr_b32 s61, s2, 3
    s_lshl_b32 s50, s60, 5
    s_add_u32 s{sBIN}, s50, s61
    v_lshrrev_b32 v84, 4, v2
    v_and_b32 v85, 15, v2
    v_bfe_u32 v3, v0, 4, 4
    v_xor_b32 v3, v3, v85
    v_lshlrev_b32 v3, 4, v3
    v_lshl_add_u32 v3, v84, 8, v3
    v_lshlrev_b32 v1, 4, v0
    s_mul_i32 s{sXO}, s{sBIN}, {SB*256}
    s_lshl_b32 s90, s{sW}, 10
    s_add_u32 s51, s{sXO}, s90
    s_add_u32 s91, s51, 8192
    s_cmp_lt_u32 s{sW}, 5
    s_cselect_b32 s91, s91, {OOB}
    s_mov_b32 s22, {N*256}
    s_mov_b32 s23, 0x20000
    v_lshrrev_b32 v86, 2, v2
    v_and_b32 v87, 3, v2
    v_lshlrev_b32 v{VW}, 4, v87
    v_lshl_add_u32 v{VW}, v86, 8, v{VW}
    v_mov_b32 v{ONE}, 1
    s_lshr_b32 s50, s2, 4
    s_lshl_b32 s50, s50, 3
    s_add_u32 s62, s50, s60
    s_lshr_b32 s{sSET}, s{sW}, 2
    s_and_b32 s{sTILE}, s{sW}, 3
    s_mov_b32 s83, 0x20000
    s_mov_b32 s87, 0x20000
    s_bitcmp1_b32 s2, 3
    s_cbranch_scc1 K_np
    s_mul_i32 s88, s62, {CH*4}
    s_add_u32 s89, s88, 8192
    s_add_u32 s82, s88, {CH*4}
    s_min_u32 s82, s82, {E*4}
    s_mov_b32 s86, s82
    s_waitcnt lgkmcnt(0)
    s_mov_b32 s80, s58
    s_mov_b32 s81, s59
    s_mov_b32 s84, s56
    s_mov_b32 s85, s57
    buffer_load_dwordx4 v[8:11], v1, s[80:83], s88 offen
    buffer_load_dwordx4 v[12:15], v1, s[80:83], s89 offen
    buffer_load_dwordx4 v[16:19], v1, s[84:87], s88 offen
    buffer_load_dwordx4 v[20:23], v1, s[84:87], s89 offen
    s_branch K_prod
    K_np:
    """)
    def xdma(base, delta):
        o = []
        for i, so in enumerate(("s51", "s91")):
            o.append(f"s_add_u32 m0, s90, {base + 8192*i}")
            o.append(f"s_sub_u32 s50, {so}, {delta}")
            o.append("buffer_load_dwordx4 v3, s[20:23], s50 offen lds")
        return o
    def wdma():
        o = []
        for q in range(8):
            o += [f"s_add_u32 m0, s{sRING}, {1024*q}", f"s_add_u32 s89, s63, {4096*q}",
                  f"buffer_load_dwordx4 v{VW}, s[24:27], s89 offen lds"]
        return o
    wcdma = [f"s_lshl_b32 s89, s{sTILE}, 10", f"s_add_u32 m0, s89, {WCL}", "s_nop 0",
             f"buffer_load_dwordx4 v{VW}, s[32:35], s63 offen lds"]
    def common(first):
        a(f"""
        s_lshl_b32 s{sRING}, s{sW}, 13
        s_add_u32 s{sRING}, s{sRING}, {RING}
        s_lshl_b32 s63, s{sTILE}, 6
        s_cmp_eq_u32 s{sSET}, 0
        s_cselect_b32 s64, s64, s70
        s_cselect_b32 s65, s65, s71
        s_cselect_b32 s66, s66, s72
        s_cselect_b32 s67, s67, s73
        s_mov_b32 s24, s{first}
        s_mov_b32 s25, s{first+1}
        s_mov_b32 s26, 32768
        s_mov_b32 s27, 0x20000
        """)
    def common2(x):
        x(f"""
        s_mov_b32 s32, s68
        s_mov_b32 s33, s69
        s_mov_b32 s34, 4096
        s_mov_b32 s35, 0x20000
        s_mov_b32 s14, {WS_END}
        s_mov_b32 s15, 0x20000
        s_movk_i32 s30, 256
        s_mov_b32 s31, 0x20000
        s_mov_b32 s4, s78
        s_mov_b32 s5, s79
        s_mov_b32 s12, s78
        s_mov_b32 s13, s79
        s_mov_b32 s10, s74
        s_mov_b32 s11, s75
        s_mov_b32 s28, s76
        s_mov_b32 s29, s77
        v_lshrrev_b32 v88, 5, v2
        v_and_b32 v89, 31, v2
        v_lshrrev_b32 v90, 2, v85
        v_lshl_add_u32 v90, v88, 3, v90
        v_and_b32 v91, 1, v84
        v_lshlrev_b32 v91, 5, v91
        v_lshl_add_u32 v91, v87, 3, v91
        v_lshl_add_u32 v90, v90, 6, v91
        v_add_u32 v{FW}, s{sRING}, v90
        s_lshl_b32 s50, s{sTILE}, 10
        s_add_u32 s50, s50, {WCL}
        v_add_u32 v{WCR}, s50, v90
        v_xor_b32 v90, v88, v85
        v_lshlrev_b32 v90, 4, v90
        v_lshl_add_u32 v{FX}, v89, 8, v90
        v_lshlrev_b32 v93, 3, v88
        v_lshrrev_b32 v94, 4, v0
        v_xor_b32 v90, v94, v0
        v_and_b32 v90, 15, v90
        v_lshlrev_b32 v90, 4, v90
        v_lshl_add_u32 v{FU}, v94, 8, v90
        s_mov_b32 s94, {hex(f32(-LOG2E))}
        s_mov_b32 s95, {hex(f32(-LOG2E))}
        s_lshr_b32 s50, s62, 2
        s_lshl_b32 s50, s50, 7
        s_and_b32 s97, s2, 3
        s_lshl_b32 s97, s97, 2
        s_add_u32 s97, s97, s50
        s_cmp_eq_u32 s{sW}, 0
        s_cselect_b32 s97, s97, {OOB}
        s_cselect_b32 s{sPROD}, 0, {OOB}
        """)
    em2, em3, es = opt.get("em2", 40), opt.get("em3", 0), opt.get("es", 0)
    def emw(n, first):
        return ["s_mov_b32 s16, s54", "s_mov_b32 s17, s55", f"s_mov_b32 s18, {E*32}", "s_mov_b32 s19, 0x20000",
                f"s_mul_i32 s50, s{sW}, {n*128}", f"s_mul_i32 s51, s62, {CH*32}", "s_add_u32 s50, s50, s51",
                f"s_add_u32 s50, s50, {first*128}", "v_lshlrev_b32 v98, 7, v2", f"s_bfm_b64 exec, {n}, 0" if n < 64 else "s_nop 0",
                f"buffer_load_dword v{SLEN}, v98, s[16:19], s50 offen", "s_mov_b64 exec, -1"]
    def esw(first):
        o = [f"s_mul_i32 s50, s{sW}, {es*128}", f"s_mul_i32 s51, s62, {CH*32}", "s_add_u32 s50, s50, s51",
             f"s_add_u32 s50, s50, {first*128}", f"s_min_u32 s50, s50, {E*32 - es*128}", "s_add_u32 s56, s54, s50", "s_addc_u32 s57, s55, 0"]
        return o, [f"s_load_dword s58, s[56:57], {128*i}" for i in range(es)]
    def g2(first):
        pre, ld = esw(first) if es else ([], [])
        emit(pre)
        for q in range(8):
            if q < 3:
                a(f"s_waitcnt lgkmcnt({[14, 12, 0][q]})")
            a(gm(q, 0, D1))
            if q >= 2:
                emit(ld[3*(q-2):3*(q-2)+3])
            a(gm(q, 1, D1))
    def wfrag(q):
        return [f"ds_read_b64_tr_b16 {ar(WA+4*q+2*z,2)}, v{FW} offset:{1024*q+256*z}" for z in range(2)]
    def xfrag(q, off=0):
        return [f"v_xor_b32 v3, {32*q}, v{FX}", f"ds_read_b128 {vr(XF+8*q,4)}, v3 offset:{off}",
                f"ds_read_b128 {vr(XF+8*q+4,4)}, v3 offset:{off+8192}"]
    misc = [f"v_add_u32 v3, {ERING}, v{FU}", f"ds_read_b128 {vr(XR,4)}, v3", f"ds_read_b128 {vr(XR+4,4)}, v3 offset:8192",
            f"ds_read_b64_tr_b16 {vr(WCR+2,2)}, v{WCR} offset:256", f"ds_read_b64_tr_b16 {vr(WCR,2)}, v{WCR}"]
    def gm(q, rt, base=DA):
        d = vr(base + 16*rt, 16)
        return f"{MF} {d}, {ar(WA+4*q,4)}, {vr(XF+8*q+4*rt,4)}, {'0' if q == 0 else d}"
    RDY = 99
    ready_load = f"buffer_load_dword v{RDY}, off, s[28:31], s{sPROD} sc1"
    def ready_check(tag):
        a(f"""
        s_cmp_lg_u32 s{sW}, 0
        s_cbranch_scc1 K_{tag}
        s_mov_b32 s50, 0
        K_{tag}_spin:
        v_cmp_eq_u32 vcc, 0, v{RDY}
        s_cbranch_vccz K_{tag}
        {ready_load}
        s_add_u32 s50, s50, 1
        s_cmp_lt_u32 s50, 0x40000
        s_waitcnt vmcnt(0)
        s_cbranch_scc1 K_{tag}_spin
        K_{tag}:
        """)
    D1 = 4
    def conv(rt, addrs, base=DA, mul=None, off=lambda j: 0):
        o = []
        for j in range(4):
            b_ = base + 16*rt + 4*j
            if mul:
                o += [f"v_mul_f32 v{b_+i}, {mul}, v{b_+i}" for i in range(4)]
            o += [f"v_cvt_pk_bf16_f32 v{b_}, v{b_}, v{b_+1}", f"v_cvt_pk_bf16_f32 v{b_+1}, v{b_+2}, v{b_+3}",
                  f"ds_write_b64 v{addrs[j]}, {vr(b_,2)} offset:{off(j)}"]
        return o

    def lds_reset(prefill):
        a(f"""
        v_lshlrev_b32 v76, 2, v0
        v_mov_b32 v77, 0
        ds_write_b32 v76, v77
        """)
        if prefill:
            a(f"""
            v_mov_b32 v76, {hex(DUMMY | (SB*AST) << 16)}
            v_mov_b32 v77, {OOB}
            v_mov_b32 v78, v76
            v_mov_b32 v79, v77
            v_lshlrev_b32 v80, 4, v0
            """)
            for i in range(5):
                a(f"ds_write_b128 v80, v[76:79] offset:{LIST + 8192*i}")

    a(f"""
    s_or_b32 s50, s90, s2
    s_cmp_eq_u32 s50, {7*1024 + 8}
    s_cbranch_scc1 K_clr
    s_waitcnt lgkmcnt(0)
    s_mov_b32 s20, s52
    s_mov_b32 s21, s53
    """)
    emit(xdma(XP, SB*256) + xdma(ERING, 0))
    a("K_np1:")
    common(66)
    w1 = wdma()
    b = Asm()
    common2(b)
    b(f"""
    s_add_u32 s97, s97, {WS_FLG}
    """)
    FG1 = 174
    cf = opt.get('cf', 1)
    b(f"""
    s_lshl_b32 s50, s{sTILE}, 3
    s_lshl_b32 s51, s{sSET}, 2
    s_add_u32 s50, s50, s51
    v_and_b32 v90, 7, v2
    v_xor_b32 v90, s50, v90
    v_lshl_add_u32 v90, v90, 4, v93
    v_lshl_add_u32 v90, v89, 9, v90
    v_and_b32 v98, {8 if cf else 0}, v2
    v_xor_b32 v90, v90, v98
    v_add_u32 v{FS}, {XP}, v90
    v_bfe_u32 v90, v0, 5, 3
    v_lshlrev_b32 v90, 4, v90
    v_xor_b32 v90, v90, v1
    v_add_u32 v{FR}, {XP}, v90
    s_lshl_b32 s50, s{sSET}, 3
    v_xor_b32 v175, s50, v{FR}
    v_xor_b32 v204, 8, v175
    v_xor_b32 v95, 16, v{FS}
    v_xor_b32 v96, 32, v{FS}
    v_xor_b32 v97, 48, v{FS}
    s_mul_i32 s50, s{sBIN}, {SB}
    v_lshrrev_b32 v90, 5, v0
    v_add_u32 v90, s50, v90
    v_and_b32 v98, 7, v90
    v_lshrrev_b32 v{FG1}, 3, v90
    v_lshl_or_b32 v{FG1}, v98, 11, v{FG1}
    v_lshl_add_u32 v{FG1}, v{FG1}, 5, v89
    v_lshlrev_b32 v{FG1}, 4, v{FG1}
    v_add_u32 v90, {-SB & 0xffffffff}, v90
    v_and_b32 v98, 7, v90
    v_lshrrev_b32 v{FG}, 3, v90
    v_lshl_or_b32 v{FG}, v98, 11, v{FG}
    v_lshl_add_u32 v{FG}, v{FG}, 5, v89
    v_lshlrev_b32 v{FG}, 4, v{FG}
    v_cmp_gt_u32 s[56:57], {SB - 32}, v89
    s_cmp_eq_u32 s{sSET}, 0
    s_cselect_b32 s96, s94, 1.0
    """)
    nw = opt.get("wearly", 3)
    a("s_barrier")
    emit(w1[:3*nw])
    lds_reset(True)
    cut = [i for i, l in enumerate(b.l) if f"v{FX}," in l][0] + 1
    a.l += b.l[:cut]
    later = [x.strip() for x in b.l[cut:]]
    a(f"""
    s_or_b32 s50, s90, s2
    s_cmp_eq_u32 s50, {7*1024 + 8}
    s_cbranch_scc1 K_pub
    s_waitcnt vmcnt({nw})
    K_np2:
    s_barrier
    """)
    st(1)
    emit(xfrag(0, XP) + xfrag(1, XP) + xfrag(2, XP) + xfrag(3, XP))
    w2 = wdma()
    ahead = opt.get("ahead", 5)
    seq = [w1[3*q:3*q+3] for q in range(8)] + [wcdma + ["s_mov_b32 s24, s64", "s_mov_b32 s25, s65"]] + \
          [w2[3*q:3*q+3] for q in range(8)]
    sent = [nw]
    def send(n):
        o = []
        while sent[0] < min(n, len(seq)):
            o += seq[sent[0]]
            sent[0] += 1
        return o
    landed = lambda i: f"s_waitcnt vmcnt({sent[0] - 1 - i})"
    SA = [FS, 95, 96, 97]
    emit(send(ahead))
    emit([landed(0)] + wfrag(0) + [landed(1)] + wfrag(1))
    for q in range(8):
        a(f"s_waitcnt lgkmcnt({[2, 4, 4, 4, 4, 4, 4, 2][q]})")
        a(gm(q, 0, D1))
        emit(send(ahead + q + 1))
        if q == 4:
            a(f"v_add_u32 v{FX}, {ERING}, v{FX}")
        emit(xfrag(q + 4, XP) if q < 4 else xfrag(q - 4))
        if q < 6:
            emit([landed(q + 2)] + wfrag(q + 2))
        a(gm(q, 1, D1))
        n_ = -(-len(later) // (8 - q))
        while n_ < len(later) and ("cselect" in later[n_] or "addc" in later[n_]):
            n_ += 1
        emit(later[:n_])
        later = later[n_:]
    st(2)
    a(landed(8))
    B2, SO2 = SB * 512, 176
    def stores(fg, so):
        o = []
        for i in range(3):
            o += [f"s_waitcnt lgkmcnt({(3-i)*(1+cf)})", f"buffer_store_dwordx4 {vr(so+4*i,4)}, v{fg}, s[12:15], 0 offen offset:{1024*i} {tst}"]
        return o + ["s_mov_b32 exec_hi, 0", "s_waitcnt lgkmcnt(0)",
                    f"buffer_store_dwordx4 {vr(so+12,4)}, v{fg}, s[12:15], s{sPROD} offen offset:3072 {tst}", "s_mov_b32 exec_hi, -1"]
    back = lambda o, so: [f"ds_read_b128 {vr(so+4*i,4)}, v{FR} offset:{o + 8192*i}" for i in range(4)] if not cf else \
        [f"ds_read_b64 {vr(so+4*i+2*z,2)}, v{(175, 204)[z]} offset:{o + 8192*i}" for i in range(4) for z in range(2)]
    slots = [[] for _ in range(16)]
    slots[0] = xfrag(4) + xfrag(5)
    slots[1] = xfrag(6) + xfrag(7)
    slots[2] = misc[:3]
    c1 = conv(0, SA, D1, "s96") + conv(1, SA, D1, "s96", lambda j: 16384)
    for i in range(8):
        slots[3 + i] = c1[7*i:7*i+7]
    for q in range(8):
        slots[q] += send(sent[0] + 1)
    assert sent[0] == len(seq)
    slots[8] += [ready_load]
    bp = opt.get("backpos", 15)
    slots[bp] += ["s_waitcnt lgkmcnt(0)", "s_barrier"] + back(0, SO)
    emit(misc[3:])
    a("s_waitcnt lgkmcnt(0)\ns_barrier")
    def p2(lo_, hi_, mul=True):
        for i in range(lo_, hi_):
            if i == 8:
                a("s_waitcnt lgkmcnt(5)")
            a(gm(i // 2, i % 2))
            emit([x for x in slots[i] if mul or not x.startswith("v_mul")])
    if opt.get("nomul", 0):
        p2(0, 3)
        a(f"s_cmp_lg_u32 s{sSET}, 0\ns_cbranch_scc1 K_p2b")
        p2(3, 11)
        a("s_branch K_p2c\nK_p2b:")
        p2(3, 11, False)
        a("K_p2c:")
        p2(11, 16)
    else:
        p2(0, 16)
    emit(stores(FG, SO))
    st(3)
    a(f"s_cmp_lg_u32 s{sSET}, 0\ns_cbranch_scc1 K_ns1")
    for i in range(16):
        a(f"v_pk_mul_f32 {vr(DA+2*i,2)}, {vr(DA+2*i,2)}, s[94:95]")
    a("K_ns1:")
    emit(conv(0, SA, DA, None, lambda j: B2) + ["s_mov_b64 exec, s[56:57]"] + conv(1, SA, DA, None, lambda j: B2 + 16384))
    a("s_mov_b64 exec, -1\ns_waitcnt lgkmcnt(0)\ns_barrier")
    emit(back(B2, SO2) + stores(FG1, SO2))
    a("s_waitcnt vmcnt(8)")
    for q in range(8):
        emit(wfrag(q))
    if em3:
        emit(emw(em3, 8*em2))
    g2(8*(em2 + em3 + es))
    ready_check("rn")
    a("K_join:")
    st(4)
    def poll_check(tag, base, lanes, wave=0):
        a(f"""
        s_cmp_lg_u32 s{sW}, {wave}
        s_cbranch_scc1 K_{tag}_done
        s_mov_b32 s50, 0
        s_mov_b32 s51, {base}
        K_{tag}_spin:
        s_waitcnt vmcnt(0)
        v_and_b32 v{PL}, v{PL}, v{PL+1}
        v_and_b32 v{PL+2}, v{PL+2}, v{PL+3}
        v_and_b32 v{PL}, v{PL}, v{PL+2}
        v_cmp_ne_u32 vcc, 1, v{PL}
        s_cbranch_vccz K_{tag}_done
        s_add_u32 s50, s50, 1
        s_cmp_lt_u32 s50, 0x40000
        buffer_load_dwordx4 {vr(PL,4)}, v{lanes}, s[12:15], s51 offen sc1
        s_cbranch_scc1 K_{tag}_spin
        K_{tag}_done:
        """)
    def list_ptrs():
        a(f"""
        s_mul_i32 s50, s{sSET}, {LSET}
        s_add_u32 s50, s50, {LIST}
        v_and_b32 v98, 32, v2
        v_bfe_u32 v97, v2, 4, 1
        v_bfe_u32 v96, v2, 3, 1
        v_lshl_add_u32 v96, v96, 2, v97
        v_add_u32 v96, v96, v98
        v_lshl_add_u32 v{LI}, v96, 3, s50
        v_and_b32 v96, 0x2c, v2
        v_lshl_add_u32 v{LP}, v96, 3, s50
        v_and_b32 v96, 2, v2
        v_bfe_u32 v99, v2, 2, 1
        v_lshl_add_u32 v96, v96, 1, v99
        v_and_or_b32 v96, v2, 8, v96
        s_lshr_b32 s51, s{sTILE}, 1
        s_lshl_b32 s51, s51, 7
        s_add_u32 s50, s50, s51
        s_and_b32 s51, s{sTILE}, 1
        s_lshl_b32 s51, s51, 8
        s_add_u32 s50, s50, s51
        v_lshl_add_u32 v{LE}, v96, 3, s50
        """)
    PL = 68
    def rec_loads(n=2):
        a(f"buffer_load_dwordx4 {vr(REC,4)}, v{SEG}, s[12:15], s{sSTART} offen sc1")
        if n == 2:
            a(f"buffer_load_dwordx4 {vr(REC+4,4)}, v{SEG}, s[12:15], s{sSTART} offen offset:64 sc1")
    a(f"""
    v_lshlrev_b32 v{FS}, 7, v89
    s_cmp_lg_u32 s{sW}, 0
    s_cbranch_scc1 K_nopoll
    s_mov_b32 s50, {WS_FLG + 4096}
    buffer_load_dwordx4 {vr(PL,4)}, v{FS}, s[12:15], s50 offen sc1
    K_nopoll:
    v_lshrrev_b32 v95, 2, v0
    v_lshlrev_b32 v{SIDX}, 4, v87
    v_lshl_add_u32 v{SEG}, v95, 7, v{SIDX}
    v_mul_u32_u24 v92, {AST}, v89
    v_mul_u32_u24 v{PB}, {CH}, v95
    s_lshl_b32 s{sSTART}, s{sBIN}, 14
    s_add_u32 s{sSTART}, s{sSTART}, {WS_SLOT}
    s_mov_b32 s16, s54
    s_mov_b32 s17, s55
    s_mov_b32 s18, {opt.get('erows', E) * 32}
    s_mov_b32 s19, 0x20000
    s_mov_b32 s{sMODE}, 0
    s_bitcmp1_b32 s2, 3
    s_cselect_b32 s60, {4*opt.get('ewarm', 2)}, {4*opt.get('ewarmp', opt.get('ewarm', 2))}
    """)
    a(f"""
    s_cmp_lg_u32 s{sSET}, 0
    s_cbranch_scc1 K_uaddr
    v_cmp_gt_u32 s[90:91], {SB - 31}, v89
    s_lshl_b32 s51, s{sTILE}, 7
    s_add_u32 s51, s51, {ATAB}
    v_add3_u32 v81, v92, v93, s51
    """)
    for i in range(16):
        a(f"v_pk_mul_f32 {vr(D1+2*i,2)}, {vr(D1+2*i,2)}, s[94:95]")
    ca = conv(0, [81]*4, D1, None, lambda j: 16*j) + conv(1, [81]*4, D1, None, lambda j: 16*j + 32*AST)
    emit([x for x in ca if x.startswith("v_")])
    a(f"""
    s_branch K_conv
    K_uaddr:
    v_bfe_u32 v52, v2, 1, 2
    v_lshl_add_u32 v52, v52, 4, v93
    v_lshl_add_u32 v52, v89, 6, v52
    v_add_u32 v52, s{sRING}, v52
    """)
    for j in range(1, 4):
        a(f"v_xor_b32 v{52+j}, {16*j}, v52")
    emit(conv(0, [52, 53, 54, 55], D1) + conv(1, [52, 53, 54, 55], D1, None, lambda j: 2048))
    a(f"""
    v_and_b32 v45, 63, v95
    v_and_b32 v46, 31, v95
    v_lshlrev_b32 v47, 3, v87
    v_sub_u32 v46, v46, v47
    v_cmp_eq_u32 s[90:91], {SB}, v45
    v_mov_b32 v47, 64
    v_cmp_ge_u32 s[92:93], {SB}, v45
    v_cndmask_b32 v46, v46, v47, s[90:91]
    v_and_b32 v47, 1, v46
    v_lshlrev_b32 v47, 4, v47
    v_mov_b32 v48, 0x3f80
    v_lshlrev_b32 v47, v47, v48
    v_ashrrev_i32 v46, 1, v46
    v_cmp_eq_u32 s[64:65], 0, v46
    v_cmp_eq_u32 s[66:67], 1, v46
    v_cmp_eq_u32 s[68:69], 2, v46
    v_cmp_eq_u32 s[70:71], 3, v46
    v_cndmask_b32 v48, 0, v47, s[64:65]
    v_cndmask_b32 v49, 0, v47, s[66:67]
    v_cndmask_b32 v50, 0, v47, s[68:69]
    v_cndmask_b32 v51, 0, v47, s[70:71]
    v_mul_u32_u24 v46, {AST}, v45
    v_add_u32 v46, v46, v{SIDX}
    K_conv:
    """)
    st(5)
    poll_check("s", WS_FLG + 4096, FS)
    a("s_waitcnt vmcnt(0) lgkmcnt(0)\ns_barrier")
    rec_loads()
    a(f"""
    s_mov_b64 exec, 1
    buffer_store_dword v{ONE}, off, s[12:15], s97 sc1
    s_mov_b64 exec, -1
    """)
    st(6)
    PL = 156
    wa = [x for x in ca if x.startswith("ds_")]
    a(f"s_cmp_eq_u32 s{sSET}, 0\ns_cbranch_scc1 K_tab\ns_mov_b64 exec, s[92:93]")
    for t in range(4):
        a(f"ds_write_b128 v46, v[48:51] offset:{ATAB+128*t+64}")
    a("K_tab:\ns_mov_b64 exec, -1")
    a(f"""
    s_lshl_b32 s50, s{sTILE}, 7
    s_add_u32 s51, s50, {ATAB}
    v_add_u32 v{TC}, s51, v91
    v_lshlrev_b32 v90, 2, v84
    v_xor_b32 v90, v90, v2
    v_and_b32 v90, 7, v90
    v_lshl_add_u32 v{OF0}, v90, 4, s50
    v_add_u32 v{OF1}, 0x400, v{OF0}
    v_add_u32 v182, 0x800, v{OF0}
    v_add_u32 v207, 0xc00, v{OF0}
    v_bfe_u32 v90, v0, 2, 2
    v_lshlrev_b32 v90, 13, v90
    v_lshl_add_u32 v90, v94, 6, v90
    v_bfe_u32 v96, v0, 5, 2
    v_xor_b32 v96, v96, v87
    v_lshl_add_u32 v90, v96, 4, v90
    v_add_u32 v3, {RING + 32768}, v90
    ds_read_b128 {ar(AU,4)}, v3
    ds_read_b128 {ar(AU+4,4)}, v3 offset:2048
    s_lshr_b32 s51, s{sTILE}, 1
    v_xor_b32 v84, s51, v2
    v_and_b32 v84, 1, v84
    v_lshlrev_b32 v{EP+1}, 4, v84
    s_mov_b32 s{s512}, 512
    s_lshl_b32 s50, s{sSET}, 12
    s_add_u32 s93, s50, {ERING}
    s_lshl_b32 s51, s{sTILE}, 8
    s_add_u32 s{sEM0}, s93, s51
    """)
    list_ptrs()
    def consts2():
        a(f"""
        v_and_b32 v90, 5, v89
        v_bfe_u32 v96, v89, 3, 1
        v_lshl_add_u32 v90, v96, 1, v90
        v_lshrrev_b32 v96, 4, v89
        v_lshl_add_u32 v90, v96, 3, v90
        v_mul_u32_u24 v90, {AST}, v90
        v_lshl_add_u32 v3, v88, 4, v90
        ds_read_b128 {vr(SEL0,4)}, v3 offset:{ATAB + 64}
        v_lshrrev_b32 v90, 3, v89
        v_and_b32 v96, 1, v89
        v_lshl_add_u32 v90, v90, 1, v96
        v_and_b32 v96, 4, v89
        v_lshl_add_u32 v90, v96, 1, v90
        v_mul_u32_u24 v90, {AST}, v90
        v_lshl_add_u32 v3, v88, 4, v90
        ds_read_b128 {vr(PIND,4)}, v3 offset:{ATAB + 64}
        """)
    def consts3():
        a("s_mov_b32 s51, 0xffff0000")
        for j in range(4):
            a(f"""
            v_lshlrev_b32 v76, 16, v{WCR+j}
            v_and_b32 v77, s51, v{WCR+j}
            v_pk_mul_f32 v[76:77], v[76:77], s[94:95]
            v_cvt_pk_bf16_f32 v{WC+j}, v76, v77
            """)
        a(f"""
        v_lshl_add_u32 v90, v88, 9, s{sRING}
        v_lshl_add_u32 v{RA[1]}, v89, 1, v90
        v_add_u32 v90, v90, v91
        v_and_b32 v91, 12, v2
        v_lshl_add_u32 v90, v91, 5, v90
        v_and_b32 v91, 8, v2
        v_lshl_add_u32 v{RA[0]}, v91, 3, v90
        v_and_b32 v90, 2, v2
        v_mul_u32_u24 v90, 0x5555, v90
        v_add_u32 v{SIX}, 0x4444, v90
        v_xor_b32 v84, v97, v88
        v_lshlrev_b32 v84, 4, v84
        v_and_b32 v90, 0x13, v2
        v_lshl_add_u32 v84, v90, 5, v84
        v_and_b32 v90, 4, v2
        v_lshl_add_u32 v84, v90, 6, v84
        v_and_b32 v90, 8, v2
        v_lshl_add_u32 v84, v90, 4, v84
        v_add_u32 v{EA}, s93, v84
        """)

    def classes(ks, with_masks):
        a(f"s_movk_i32 s51, {63*32}\ns_movk_i32 s50, {cmask}")
        for k in ks:
            a(f"v_lshrrev_b32 v{CA+k}, 9, v{REC+k}")
            a(f"v_and_b32 v{CA+k}, s50, v{CA+k}")
            if with_masks:
                a(f"v_cmp_gt_u32 {sr(sM+2*k,2)}, s51, v{CA+k}")

    PW, SW = 7, 4
    def sort(first):
        tg = "a" if first else "b"
        a(f"""
        v_mov_b32 v{T+1}, 8
        v_lshlrev_b32 v{T}, 5, v2
        """)
        if first:
            a("s_waitcnt vmcnt(1)")
            st(7)
        else:
            a(f"""
            v_mov_b32 v{T+2}, 0
            s_waitcnt vmcnt(0) lgkmcnt(0)
            s_barrier
            s_mov_b64 exec, s[56:57]
            ds_write_b32 v{T+2}, v{T+1} offset:{62*32}
            s_mov_b64 exec, -1
            """)
        classes(range(8), first)
        for k in range(8):
            a(f"s_mov_b64 exec, {sr(sM+2*k,2)}")
            a(f"ds_add_rtn_u32 v{RK+k}, v{CA+k}, v{T+1}")
        a(f"s_mov_b64 exec, -1\ns_movk_i32 s50, {AST*4}")
        hi, lo, ew = [], [], []
        for k in range(8):
            e = EN + 2*k
            hi += [f"v_lshrrev_b32 v{e+1}, 20, v{REC+k}", f"v_add_lshl_u32 v{e+1}, v{e+1}, v{PB}, 5"]
            lo += [f"v_and_b32 v{e}, 0x3fff, v{REC+k}", f"v_and_b32 v3, 0xfc000, v{REC+k}", f"v_mad_u32_u24 v{e}, v3, s50, v{e}"]
            ew += [f"v_and_b32 v3, 28, v{CA+k}", f"v_cmp_gt_u32 vcc, s60, v3",
                   f"s_and_b64 exec, vcc, {sr(sM+2*k,2)}", f"buffer_load_dword v{SLEN}, v{e+1}, s[16:19], 0 offen",
                   "s_mov_b64 exec, -1"]
        if not (first and opt.get("ewarm", 2)):
            ew = []
        c, W1, U, n, I, X, L, Z = 116, 124, 132, 136, 140, 144, 148, 152
        Tt = lambda i: W1 + 2*i
        Dd = lambda i: W1 + 2*i + 1
        t0, t1, run = T+2, T+3, T+4
        e0 = 5 * opt.get('ew0', 4)
        emit(hi + ew[:e0])
        a(f"""
        s_cmp_eq_u32 s{sW}, {SW}
        s_waitcnt lgkmcnt(0)
        s_barrier
        s_cbranch_scc1 K_scan{tg}
        """)
        emit(ew[e0:])
        if first:
            a(f"s_cmp_lg_u32 s{sSET}, 0\ns_cbranch_scc1 K_noa")
            emit(wa[:4] + ["s_mov_b64 exec, s[90:91]"] + wa[4:])
            a("s_mov_b64 exec, -1\nK_noa:")
            consts2()
        emit(lo)
        if first and not opt.get("ppos", 0):
            a(f"""
            s_cmp_lg_u32 s{sW}, {PW}
            s_cbranch_scc1 K_scanned{tg}
            s_mov_b32 s50, {WS_FLG}
            buffer_load_dwordx4 {vr(PL,4)}, v{FS}, s[12:15], s50 offen sc1
            """)
        a(f"""
        s_branch K_scanned{tg}
        K_scan{tg}:
        ds_read_b128 {vr(c,4)}, v{T}
        ds_read_b128 {vr(c+4,4)}, v{T} offset:16
        s_setprio 1
        """)
        emit(lo)
        a(f"""
        s_mov_b32 s51, 0xffe0ffe0
        s_waitcnt lgkmcnt(0)
        v_readlane_b32 s{sMORE}, v{c}, 62
        v_writelane_b32 v{c}, 0, 62
        """)
        for r in range(1, 8):
            a(f"v_add_u32 v{c+r}, v{c+r-1}, v{c+r}")
        steps = [("row_shr:1", "0xf"), ("row_shr:2", "0xf"), ("row_shr:4", "0xf"), ("row_shr:8", "0xf"),
                 ("row_bcast:15", "0xa"), ("row_bcast:31", "0xc")]
        Q, CN, SF, U0, H0 = 60, 61, 62, 63, 64
        a(f"""
        v_add_u32 v{Q}, 15, v{c+7}
        v_and_b32 v{Q}, 0xffe0, v{Q}
        v_mov_b32 v{t0}, v{Q}
        v_cmp_lt_u32 s[88:89], v{Q}, v{c+7}
        """)
        pk_ = [f"v_lshl_or_b32 v{Dd(i)}, v{c+2*i+1}, 16, v{c+2*i}" for i in range(4)] + \
              [f"v_mbcnt_lo_u32_b32 v{CN}, s88, 0", f"v_mbcnt_hi_u32_b32 v{CN}, s89, v{CN}",
               f"v_sub_u32 v{H0}, v{c+7}, v{Q}", f"v_mov_b32 v{L}, {hex((LIST + 512) * 0x10001)}",
               f"v_mov_b32 v{L+1}, {hex((LIST + LSET + 512) * 0x10001)}"]
        if first:
            a(pk_.pop(0))
            for ctl, m_ in steps:
                a(f"v_add_u32_dpp v{t0}, v{t0}, v{t0} {ctl} row_mask:{m_} bank_mask:0xf")
                if pk_:
                    emit([pk_.pop(0), pk_.pop(0)])
                else:
                    a("s_nop 1")
            a(f"""
            v_readlane_b32 s50, v{t0}, 63
            v_sub_u32 v{t0}, v{t0}, v{Q}
            v_lshlrev_b32 v{t1}, 1, v{t0}
            v_cmp_gt_u32 vcc, s50, v{t1}
            v_sub_u32 v{t1}, s50, v{t0}
            v_add_u32 v{t0}, 0xff, v{t0}
            v_add_u32 v{t1}, 0xff, v{t1}
            s_bcnt1_i32_b64 s50, vcc
            v_lshrrev_b32 v{t0}, 8, v{t0}
            s_max_u32 s50, s50, 18
            v_lshrrev_b32 v{t1}, 8, v{t1}
            s_min_u32 s50, s50, 32
            v_lshl_add_u32 v{t0}, v{t0}, 1, -1
            v_lshlrev_b32 v{t1}, 1, v{t1}
            v_max_i32 v{t0}, v{t0}, v{t1}
            s_sub_u32 s58, s50, 1
            v_readlane_b32 s56, v{t0}, s50
            v_readlane_b32 s57, v{t0}, s58
            s_cmp_le_i32 s56, s57
            s_cselect_b32 s{sVS}, s50, s58
            """)
        else:
            emit(pk_)
        a(f"""
        v_readlane_b32 s56, v{CN}, s{sVS}
        v_cmp_le_u32 vcc, s{sVS}, v2
        s_nop 0
        v_subrev_u32 v{t0}, s56, v{CN}
        v_cndmask_b32 v{run}, v{L}, v{L+1}, vcc
        v_cndmask_b32 v{CN}, v{CN}, v{t0}, vcc
        v_cmp_gt_u32 s[56:57], {16 if opt.get("head", 1) else 0}, v{CN}
        s_and_b64 s[88:89], s[88:89], s[56:57]
        v_lshl_add_u32 v{CN}, v{CN}, 5, v{run}
        v_cndmask_b32 v{U0}, 0, 32, s[88:89]
        v_cndmask_b32 v{H0}, 0, v{H0}, s[88:89]
        v_sub_u32 v{SF}, v{U0}, v{H0}
        v_lshl_or_b32 v{SF}, v{SF}, 16, v{SF}
        """)
        for i in range(4):
            a(f"v_add_u32 v{Dd(i)}, v{SF}, v{Dd(i)}")
        for i in range(4):
            a(f"v_add_u32 v{U+i}, 0x001f001f, v{Dd(i)}")
        for i in range(4):
            a(f"v_and_b32 v{U+i}, s51, v{U+i}")
        for i in range(4):
            a(f"v_lshl_or_b32 v{n}, v{U}, 16, v{U0}" if i == 0 else f"v_alignbit_b32 v{n+i}, v{U+i}, v{U+i-1}, 16")
        for i in range(4):
            a(f"v_sub_u32 v{I+i}, v{U+i}, v{n+i}")
        for ctl, m_ in steps:
            for i in range(4):
                a(f"v_add_u32_dpp v{I+i}, v{I+i}, v{I+i} {ctl} row_mask:{m_} bank_mask:0xf")
        emit([f"v_sub_u32 v{n+i}, v{U+i}, v{n+i}" for i in range(4)] + [f"v_sub_u32 v{X+i}, v{I+i}, v{n+i}" for i in range(4)])
        for i in range(4):
            a(f"v_readlane_b32 s{84+i}, v{I+i}, 63")
        for i in range(4):
            a(f"v_readlane_b32 s{80+i}, v{X+i}, s{sVS}")
        for i in range(4):
            a(f"v_sub_u32 v{Dd(i)}, v{U+i}, v{Dd(i)}")
        for i in range(4):
            a(f"v_mov_b32 v{L+i}, s{80+i}")
        for i in range(4):
            a(f"v_sub_u32 v{Z+i}, s{84+i}, v{L+i}")
            a(f"v_cndmask_b32 v{U+i}, 0, v{L+i}, vcc")
        for i in range(4):
            a(f"v_cndmask_b32 v{L+i}, v{L+i}, v{Z+i}, vcc")
        a(f"v_add_u32 v{CN}, {-480 & 0xffffffff}, v{CN}\ns_mov_b32 s51, 0x03020302")
        for i in range(4):
            a(f"v_lshl_or_b32 v{Tt(0)}, v{Dd(0)}, 16, v{H0}" if i == 0 else f"v_alignbit_b32 v{Tt(i)}, v{Dd(i)}, v{Dd(i-1)}, 16")
            a(f"v_sub_u32 v{X+i}, v{X+i}, v{U+i}")
        a(f"ds_write_b128 v{T}, {vr(W1,4)} offset:{TW1}\nds_write_b128 v{T}, {vr(W1+4,4)} offset:{TW1+16}")
        for i in range(4):
            a(f"v_lshl_add_u32 v{t0}, v{L+i}, 16, v{run}")
            a(f"v_pk_min_u16 v{Z+i}, v{n+i}, 1 op_sel_hi:[1,0]")
            a(f"v_add_u32 v{t1}, v{t0}, v{L+i}")
            a(f"v_add_u32 v{X+i}, v{X+i}, v{t0}")
            a(f"v_perm_b32 v{run}, v{t1}, v{t1}, s51")
        for i in range(4):
            a(f"v_add_u32 v{I+i}, v{X+i}, v{n+i}")
            a(f"v_sub_u32 v{c+2*i}, v{X+i}, v{Tt(i)}")
        a(f"v_readlane_b32 s56, v{run}, 0\nv_readlane_b32 s57, v{run}, 63")
        for i in range(4):
            a(f"v_pk_mul_lo_u16 v{Z+i}, v{Z+i}, v{I+i}")
            a(f"v_lshrrev_b32 v{c+2*i+1}, 16, v{c+2*i}")
        a(f"v_and_b32 v{t0}, 0xffff, v{CN}\nv_cndmask_b32 v{t0}, 0, v{t0}, s[88:89]\ns_movk_i32 s51, {TRASH}")
        for r in range(8):
            a(f"v_sub_u16_sdwa v{c+r}, v{t0}, v{W1+r} dst_sel:WORD_1 dst_unused:UNUSED_PRESERVE src0_sel:WORD_0 src1_sel:WORD_0")
            if r < 7:
                a(f"v_max_u32_sdwa v{t0}, v{t0}, v{Z+r//2} {SDW} src0_sel:DWORD src1_sel:WORD_{r % 2}")
        a(f"""
        v_writelane_b32 v{c}, s51, 62
        ds_write_b128 v{T}, {vr(c,4)} offset:{TW0}
        ds_write_b128 v{T}, {vr(c+4,4)} offset:{TW0+16}
        """)
        a(f"""
        s_pack_hh_b32_b16 s50, s56, s57
        s_sub_u32 s50, s50, {hex((LIST - 255) + ((LIST + LSET - 255) << 16))}
        v_mov_b32 v{Z}, s50
        v_mov_b32 v{Z+1}, s{sVS}
        v_mov_b32 v{Z+2}, s{sMORE}
        ds_write_b96 v{T+1}, {vr(Z,3)} offset:{63*32 - 8}
        s_setprio 0
        s_waitcnt lgkmcnt(0)
        K_scanned{tg}:
        s_cmp_lg_u32 s{sW}, {SW}
        s_barrier
        ds_read_b96 {vr(Z,3)}, v{T+1} offset:{63*32 - 8}
        """)
        if first:
            st(8)
        for k in range(8):
            a(f"ds_read2st64_b32 {vr(BB+2*k,2)}, v{CA+k} offset0:{TW0//256} offset1:{TW1//256}")
        a(f"s_cbranch_scc1 K_rest{tg}")
        emit(ew[e0:])
        a(f"""
        K_rest{tg}:
        """)
        if first and opt.get("ppos", 0):
            a(f"""
            s_cmp_lg_u32 s{sW}, {PW}
            s_cbranch_scc1 K_nop2
            s_mov_b32 s50, {WS_FLG}
            buffer_load_dwordx4 {vr(PL,4)}, v{FS}, s[12:15], s50 offen sc1
            K_nop2:
            """)
        a(f"""
        s_waitcnt lgkmcnt(8)
        v_readfirstlane_b32 s50, v{Z}
        v_readfirstlane_b32 s{sVS}, v{Z+1}
        v_readfirstlane_b32 s{sMORE}, v{Z+2}
        s_bfe_u32 s56, s50, {hex(8 | 8 << 16)}
        s_lshr_b32 s57, s50, 24
        s_max_u32 s57, s57, 1
        s_max_u32 s58, s56, s57
        s_cmp_le_u32 s58, {LIMIT // 256}
        s_cbranch_scc0 K_over
        s_sub_u32 s59, s58, 1
        s_max_u32 s59, s59, s57
        s_add_u32 s56, s58, 1
        s_and_b32 s56, s56, -2
        s_cmp_lt_u32 s58, 9
        s_cselect_b32 s58, s56, s58
        s_cselect_b32 s59, s56, s59
        s_sub_u32 s{sXB}, s58, s59
        s_cmp_eq_u32 s{sSET}, 0
        s_cselect_b32 s{sS}, s58, s59
        """)
        for k0 in (0, 4):
            a(f"s_waitcnt lgkmcnt({4 - k0})")
            for k in range(k0, k0 + 4):
                a(f"v_cmp_lt_u32_sdwa {sr(80+2*(k % 4),2)}, v{RK+k}, v{BB+2*k+1} src0_sel:DWORD src1_sel:WORD_0")
                a(f"v_lshrrev_b32 v{BB+2*k+1}, 16, v{BB+2*k}")
            for k in range(k0, k0 + 4):
                a(f"v_cndmask_b32 v{BB+2*k}, v{BB+2*k}, v{BB+2*k+1}, {sr(80+2*(k % 4),2)}")
                a(f"v_add_u32_sdwa v{RK+k}, v{RK+k}, v{BB+2*k} {SDW} src0_sel:DWORD src1_sel:WORD_0")
        for k in range(8):
            a(f"s_mov_b64 exec, {sr(sM+2*k,2)}")
            a(f"ds_write_b64 v{RK+k}, {vr(EN+2*k,2)}")
        a("s_mov_b64 exec, -1")

    def idx_reads(blk, sub):
        o = 128*blk + 4*sub
        return [f"ds_read2_b32 {vr(RW,2)}, v{LI} offset0:{o} offset1:{o+16}",
                f"ds_read2_b32 {vr(RW+2,2)}, v{LI} offset0:{o+32} offset1:{o+48}"]
    mads = [f"v_mad_u32_u16 v{IX+t}, v{RW+t}, s{s512}, v{(207, 182, OF1, OF0)[t]}" for t in range(4)]
    def dma(slot, mid):
        o = [f"s_add_u32 m0, s{sRING}, {4096*slot}"]
        for t in range(4):
            o += mid[t] + [f"buffer_load_dwordx4 v{IX+t}, s[24:27], 0 offen offset:{1024*t} {tfl} lds"]
        return o
    def edma(step, src=EP):
        return [f"s_add_u32 m0, s{sEM0}, {1024*(step % 4)}", "s_mov_b64 exec, 0xffff", f"v_or_b32 v{src}, v{src}, v{EP+1}",
                f"buffer_load_dwordx4 v{src}, s[16:19], 0 offen {opt.get('eflag','')} lds", "s_mov_b64 exec, -1"]
    def eid_read(step, dst=None):
        return [f"ds_read_b32 v{dst or EP}, v{LE} offset:{512*(step // 2) + 16*(step % 2) + 4}"]
    def pn_read(blk):
        return [f"ds_read2_b32 {vr(TA0,2)}, v{LP} offset0:{128*blk} offset1:{128*blk+32}"]
    ta = [f"v_add_u32_sdwa v{x}, v{x}, v{TC} {SDW} src0_sel:WORD_1 src1_sel:DWORD" for x in (TA0, TA1)]
    def reads(step):
        s = step % 2
        o = [f"ds_read_b128 {vr(OE,4)}, v{EA} offset:{1024*(step % 4)}"]
        o += [f"ds_read_b64_tr_b16 {vr(OB+2*z,2)}, v{RA[0]} offset:{4096*s + 1024*z}" for z in range(4)]
        o += [f"ds_read_u16_d16_hi v{H[s]+r}, v{RA[1]} offset:{4096*s + 128*(8*(r//4) + r % 4) + (0 if r & 2 else 64)}"
              for r in range(16)]
        return o
    def tr_reads(blk):
        i = IND[blk % 2]
        return [f"ds_read_b64_tr_b16 {vr(OA,2)}, v{TA0}", f"ds_read_b64_tr_b16 {vr(OA+2,2)}, v{TA1}",
                f"ds_read_b64_tr_b16 {vr(i,2)}, v{TA0} offset:64", f"ds_read_b64_tr_b16 {vr(i+2,2)}, v{TA1} offset:64"]
    mct = f"{MF} {vr(CT,16)}, {vr(PIND,4)}, {vr(OA,4)}, 0"
    def mf_g(g):
        d = vr(g, 16)
        return [f"{MF} {d}, {vr(OE,4)}, {vr(WC,4)}, {vr(CT,16)}",
                f"v_smfmac_f32_32x32x32_bf16 {d}, {vr(SEL0,4)}, {vr(OB,8)}, v{SIX}"]
    def mf_red(i):
        return [f"{MF} {ar(ACD,16)}, {vr(IND[i],4)}, {vr(BD,4)}, {ar(ACD,16)}",
                f"{MF} {ar(ACN,16)}, {vr(IND[i],4)}, {vr(BN,4)}, {ar(ACN,16)}"]
    cvts = [f"v_cvt_pk_bf16_f32 v{BD+j}, v{AS+2*j}, v{AS+2*j+1}" for j in range(4)] + \
           [f"v_cvt_pk_bf16_f32 v{BN+j}, v{AM+2*j}, v{AM+2*j+1}" for j in range(4)]
    def pk(op, d, *s):
        return f"v_pk_{op}_f32 {vr(d,2)}, " + ", ".join(x if isinstance(x, str) else vr(x, 2) for x in s)
    def pk2(k):
        o = []
        for dst, src in ((AS, SS), (AM, MM)):
            for j in range(4):
                if k % 2 == 0:
                    o.append(pk("mul", dst+2*j, src+2*j, RR+2*j))
                else:
                    o.append(pk("fma", dst+2*j, src+2*j, RR+2*j, dst+2*j))
        return o
    RE = 183
    cut = opt.get("cut", 1)
    def load_seg(u):
        side = eid_read(u + 5, RE) + idx_reads(*[(1, 1), (0, 0), (0, 1), (1, 0)][u])
        if opt.get("bal", 0):
            side += tr_reads(u // 2)[2:] + pn_read(u // 2) if u % 2 == 0 else tr_reads(0)[:2]
        else:
            side += pn_read(u // 2) if u % 2 == 0 else tr_reads((u + 1) // 2)
        rd = reads(u + 1)
        va = mads + [f"v_or_b32 v{EP}, v{RE}, v{EP+1}"] + (ta if u % 2 == 0 else [])
        adv = {0: LI, 2: LP, 3: LE}.get(u)
        if adv:
            va = va + [f"v_add_u32 v{adv}, 0x400, v{adv}"]
        ed = [x for x in edma(u) if not x.startswith("v_or")]
        dd = dma(u % 2, [side[len(side)*t//4:len(side)*(t+1)//4] for t in range(4)])
        nf = opt.get("nf", 4)
        if nf == 4:
            o = dd + ed + ["s_waitcnt vmcnt(6)"] + rd
        else:
            n_ = -(-len(side) // nf)
            g_ = opt.get("gap", 4)
            mid = [side[n_*t:n_*t+n_] for t in range(nf)] + [rd[g_*t:g_*t+g_] for t in range(4 - nf)]
            mid[nf] = [f"s_waitcnt vmcnt({nf + 1})"] + mid[nf]
            o = dma(u % 2, mid) + ed + rd[g_*(4 - nf):]
        vp = opt.get("vpos", 0)
        if vp:
            o = o[:len(o)-vp] + [f"s_waitcnt lgkmcnt({min(15, 21 - vp)})"] + va + o[len(o)-vp:] + [f"s_sub_u32 s{sK}, s{sK}, 1"]
        else:
            o += ["s_waitcnt lgkmcnt(15)"] + va + [f"s_sub_u32 s{sK}, s{sK}, 1"]
        return o + ["s_setprio 0", "s_waitcnt lgkmcnt(0)", "s_barrier"]
    def comp_seg(u, first=False):
        g, gn, h = G[u % 2], G[(u + 1) % 2], H[u % 2]
        ex = [f"v_exp_f32 v{g+r}, v{g+r}" for r in range(16)]
        mg = mf_g(gn)
        if u % 2 == 0:
            mr = mf_red((u // 2 - 1) % 2)
            o = pk2(u - 1) + [mg[0]] + cvts[:6] + [mg[1]] + cvts[6:] + ex[:2] + [mr[0]] + ex[2:5] + [mr[1]] + ex[5:]
        else:
            o = ([] if first else pk2(u - 1)) + [mct] + ex[:3] + [mg[0]] + ex[3:6] + [mg[1]] + ex[6:]
        for j in range(4):
            b_ = g + 4*j
            o += [pk("fma", x, x, sr(sCC, 2), sr(sCC, 2)) + " clamp" for x in (b_, b_+2)]
        for j in range(4):
            b_, hh = g + 4*j, h + 4*j
            o += [pk("mul", RR+2*j, b_, b_+2), pk("mul", MM+2*j, hh, b_+2), f"v_rcp_f32 v{RR+2*j}, v{RR+2*j}",
                  pk("add", SS+2*j, b_, b_+2), f"v_rcp_f32 v{RR+2*j+1}, v{RR+2*j+1}", pk("fma", MM+2*j, hh+2, b_, MM+2*j)]
        if opt.get("rcend"):
            o = [x for x in o if "rcp" not in x] + [x for x in o if "rcp" in x]
        return o + ["s_setprio 1", "s_barrier"]

    peel = opt.get("peel", 0)
    one = lambda l: [[x] for x in l]
    def fill_a():
        a(f"s_sub_u32 s24, s4, 3072\ns_subb_u32 s25, s5, 0\ns_mov_b32 s26, s14")
        emit(eid_read(1) + eid_read(2, 1) + idx_reads(0, 1) + [f"ds_read2_b32 {vr(TA0,2)}, v{LP} offset0:6 offset1:38"])
        a("s_waitcnt lgkmcnt(0)")
        emit(edma(1) + edma(2, 1) + dma(1, one(mads)))
        emit(eid_read(3) + idx_reads(1, 0) + ta)
    def fill_b():
        a("s_waitcnt lgkmcnt(0)")
        emit(edma(3) + dma(0, one(mads)) + eid_read(4) + idx_reads(1, 1) + pn_read(1))
        a(f"v_add_u32 v{LP}, 0x200, v{LP}\nv_add_u32 v{LI}, 0x400, v{LI}\ns_sub_u32 s{sK}, s{sS}, 2")
    sort(True)
    a(f"K_sorted:\ns_cmp_lg_u32 s{sW}, {SW}\ns_cbranch_scc1 K_c2")
    consts2()
    a("K_c2:")
    if opt.get("c3", 0) == 2:
        consts3()
    poll_check("t", WS_FLG, FS, PW)
    a("s_waitcnt lgkmcnt(0)\ns_barrier")
    st(9)
    if opt.get("c3", 0) == 2:
        fill_a()
    elif opt.get("c3", 0):
        a(f"s_cmp_eq_u32 s{sSET}, 0\ns_cbranch_scc1 K_f0")
        consts3()
        a("K_f0:")
        fill_a()
        a(f"s_cmp_lg_u32 s{sSET}, 0\ns_cbranch_scc1 K_f1")
        consts3()
        a("K_f1:")
    else:
        fill_a()
        consts3()
    st(13)
    for i in range(4):
        a(f"v_mov_b32 v{108+i}, 0")
    a(f"""
    s_sub_u32 s51, {N*256}, s{sXO}
    s_min_u32 s34, s51, {SB*256}
    s_add_u32 s32, s10, s{sXO}
    s_addc_u32 s33, s11, 0
    {MF} {ar(ACD,16)}, v[108:111], v[108:111], 0
    s_mov_b32 s{sCC}, {hex(f32(2.0**-SHIFT))}
    s_mov_b32 s{sCC+1}, {hex(f32(2.0**-SHIFT))}
    {MF} {ar(ACN,16)}, v[108:111], v[108:111], 0
    K_fillb:
    """)
    a(f"""
    s_and_b32 s50, s{sS}, 1
    s_cmp_gt_u32 s50, s{sTILE}
    s_cbranch_scc0 K_nospread
    s_mul_i32 s50, s{sSET}, {LSET}
    s_lshl_b32 s51, s{sS}, 8
    s_add_u32 s50, s50, s51
    v_lshrrev_b32 v108, 1, v2
    v_bfi_b32 v108, 1, v2, v108
    v_lshl_add_u32 v108, v108, 3, s50
    v_and_b32 v109, 2, v2
    v_lshl_add_u32 v108, v109, 7, v108
    ds_read_b64 v[110:111], v108 offset:{LIST - 256}
    v_lshl_add_u32 v108, v2, 3, s50
    s_waitcnt lgkmcnt(0)
    ds_write_b64 v108, v[110:111] offset:{LIST - 256}
    K_nospread:
    """)
    emit(tr_reads(0))
    fill_b()
    a(f"{mct}\ns_waitcnt lgkmcnt(0)")
    emit(mads + ta + [f"v_mov_b32 v{x}, 0" for x in (list(range(AS, AS+16)) if peel else list(range(SS, SS+16)) + list(range(RR, RR+8)))])
    st(14)
    stag = opt.get("stag", 1)
    if stag:
        a(f"s_cmp_eq_u32 s{sSET}, 0\ns_cbranch_scc1 K_lead\ns_barrier\nK_lead:")
    a("s_waitcnt vmcnt(5)\ns_barrier")
    r0 = reads(1)
    emit(r0[:11] + edma(4) + r0[11:20])
    a("s_waitcnt lgkmcnt(15)")
    emit(mf_g(G[1]) + r0[20:] + eid_read(5))
    a(f"s_waitcnt lgkmcnt(0)\nv_or_b32 v{EP}, v{EP}, v{EP+1}")
    st(10)
    if stag:
        a("s_setprio 1\ns_barrier")
    else:
        a(f"""
        s_cmp_eq_u32 s{sSET}, 0
        s_barrier
        s_cbranch_scc1 K_lead
        s_barrier
        s_setprio 1
        K_lead:
        """)
    if peel:
        emit(load_seg(1) + comp_seg(1, first=True))
        a("s_cbranch_scc1 K_drain0\ns_branch K_loop1")
        a.l.append(".p2align 6")
        a("K_loop:")
        for u in range(4):
            if u == 2:
                a("K_loop1:")
            emit(load_seg(u) + comp_seg(u))
            a(f"s_cbranch_scc1 K_drain{0 if u < 2 else ''}" if u < 3 else "s_cbranch_scc0 K_loop")
        a("s_branch K_drain\nK_drain0:")
    else:
        a.l.append(f".p2align {opt.get('al', 6)}")
        a("K_loop:")
        for u in (1, 2, 3, 0):
            emit(load_seg(u) + comp_seg(u))
            a(f"s_cbranch_scc1 K_drain{0 if u < 2 else ''}" if u else "s_cbranch_scc0 K_loop")
        a("K_drain0:")
    emit([f"v_mov_b32 v{IND[1]+j}, v{IND[0]+j}" for j in range(4)])
    a(f"""
    K_drain:
    s_setprio 0
    s_cmp_lg_u32 s{sSET}, s{sXB}
    s_cbranch_scc1 K_done
    s_barrier
    K_done:
    s_bitcmp1_b32 s{sS}, 0
    s_cbranch_scc1 K_half
    """)
    emit(pk2(1))
    a("K_last:")
    emit(cvts + ["s_nop 1"] + mf_red(1))
    st(11)
    a(f"""
    s_cmp_lg_u32 s{sMORE}, 0
    s_cbranch_scc1 K_again
    v_and_b32 v41, 31, v2
    s_and_b32 s50, s{sW}, 1
    s_lshl_b32 s50, s50, 7
    s_add_u32 s50, s50, s{sRING}
    v_lshl_add_u32 v42, v41, 2, s50
    v_and_b32 v40, 32, v2
    v_lshl_add_u32 v42, v40, 5, v42
    s_mov_b32 s50, {hex(f32(1e-6 * 2.0**SHIFT))}
    s_mov_b32 s51, s50
    s_mov_b32 s56, 0xffff0000
    """)
    Dn, Nn, Uu = NV + ACD, NV + ACN, NV + AU
    un = []
    for k in range(8):
        un += [f"v_lshlrev_b32 v{64+2*k}, 16, v{XR+k}", f"v_and_b32 v{65+2*k}, s56, v{XR+k}",
               f"v_lshlrev_b32 v{96+2*k}, 16, v{Uu+k}", f"v_and_b32 v{97+2*k}, s56, v{Uu+k}"]
    emit(un[:8])
    for r in range(0, 16, 2):
        a(pk("add", Dn+r, Dn+r, "s[50:51]"))
    for r in range(16):
        a(f"v_rcp_f32 v{Dn+r}, v{Dn+r}")
    a("s_waitcnt vmcnt(0)")
    for r in range(0, 16, 2):
        a(pk("mul", Dn+r, Dn+r, Nn+r))
        row = 8*(r//4) + r % 4
        a(f"ds_write2st64_b32 v42, v{Dn+r}, v{Dn+r+1} offset0:{row} offset1:{row+1}")
    emit(un[8:])
    a(f"""
    v_lshrrev_b32 v44, 4, v0
    v_bfe_u32 v45, v0, 2, 2
    v_lshlrev_b32 v45, 13, v45
    v_lshl_add_u32 v45, v44, 8, v45
    v_and_b32 v46, 7, v0
    v_lshl_add_u32 v45, v46, 5, v45
    v_add_u32 v45, {RING}, v45
    v_add_u32 v46, 0x8000, v45
    v_cmp_gt_u32 vcc, s{sVS}, v44
    v_lshlrev_b32 v43, 4, v0
    s_movk_i32 s51, 8192
    v_cndmask_b32 v45, v46, v45, vcc
    s_waitcnt lgkmcnt(0)
    s_barrier
    ds_read_b128 v[48:51], v45
    ds_read_b128 v[52:55], v45 offset:16
    ds_read_b128 v[56:59], v46
    ds_read_b128 v[60:63], v46 offset:16
    """)
    for k in range(8):
        a(pk("add", 96+2*k, 96+2*k, 64+2*k))
    for i in range(2):
        a(f"s_waitcnt lgkmcnt({2-2*i})")
        for j in range(0, 8, 2):
            a(pk("add", 48+8*i+j, 48+8*i+j, 96+8*i+j))
        for j in range(8):
            a(f"v_max_f32 v{48+8*i+j}, v{64+8*i+j}, v{48+8*i+j}")
        for j in range(4):
            a(f"v_cvt_pk_bf16_f32 v{80+4*i+j}, v{48+8*i+2*j}, v{48+8*i+2*j+1}")
        a(f"buffer_store_dwordx4 {vr(80+4*i,4)}, v43, s[32:35], {'s51' if i else '0'} offen {opt.get('ost','sc1')}")
    if st.on:
        a("s_waitcnt vmcnt(0)")
        a(f"v_writelane_b32 v205, s{sS}, 15")
        a("s_getreg_b32 s50, hwreg(HW_REG_HW_ID)\nv_writelane_b32 v205, s50, 40\ns_getreg_b32 s50, hwreg(HW_REG_XCC_ID)\nv_writelane_b32 v205, s50, 41")
    st(12)
    st.flush()
    a("K_end:\ns_endpgm\nK_half:")
    emit(pk2(0))
    a("s_branch K_last")
    a(f"""
    K_clr:
    s_waitcnt lgkmcnt(0)
    s_mov_b32 s20, s52
    s_mov_b32 s21, s53
    s_mov_b32 s12, s78
    s_mov_b32 s13, s79
    s_mov_b32 s14, {WS_END}
    s_mov_b32 s15, 0x20000
    s_mov_b32 s28, s76
    s_mov_b32 s29, s77
    s_movk_i32 s30, 256
    s_mov_b32 s31, 0x20000
    v_mov_b32 v8, 0
    v_mov_b32 v9, 0
    v_mov_b32 v10, 0
    v_mov_b32 v11, 0
    v_lshlrev_b32 v4, 7, v2
    s_mov_b32 s50, {WS_FLG}
    buffer_store_dwordx4 v[8:11], v4, s[12:15], s50 offen sc1
    """)
    emit(xdma(XP, SB*256) + xdma(ERING, 0))
    a(f"""
    v_and_b32 v12, 4, v2
    v_cmp_eq_u32 vcc, 0, v12
    v_mov_b32 v13, 0x71807180
    v_and_b32 v5, 0x1f0, v1
    v_cndmask_b32 v12, 0, v13, vcc
    v_mov_b32 v13, v12
    v_mov_b32 v14, v12
    v_mov_b32 v15, v12
    s_mov_b32 s50, {DUMMY*512}
    buffer_store_dwordx4 v[12:15], v5, s[12:15], s50 offen sc1
    s_branch K_np1
    K_pub:
    s_mov_b64 exec, 1
    s_waitcnt vmcnt({5 + nw})
    buffer_store_dword v{ONE}, off, s[28:31], 0 sc1
    s_mov_b64 exec, -1
    s_waitcnt vmcnt({nw + 1})
    s_branch K_np2
    """)
    koff = sum(o << (8*i) for i, o in enumerate((40, 64, 32, 56, 48, 88, 8, 72)))
    a(f"""
    K_prod:
    s_lshl_b32 s50, s{sW}, 3
    s_mov_b32 s92, {hex(koff & 0xffffffff)}
    s_mov_b32 s93, {hex(koff >> 32)}
    s_lshr_b64 s[92:93], s[92:93], s50
    s_and_b32 s92, s92, 0xff
    s_load_dwordx2 s[96:97], s[0:1], s92
    s_mov_b32 s20, s52
    s_mov_b32 s21, s53
    v_lshlrev_b32 v4, 2, v0
    v_mov_b32 v62, 0
    ds_write_b32 v4, v62
    v_mov_b32 v40, -1
    v_mov_b32 v41, -1
    v_mov_b32 v42, -1
    v_mov_b32 v43, -1
    """)
    for i in range(4):
        a(f"ds_write_b128 v1, v[40:43] offset:{IMG + 8192*i}")
    a(f"""
    v_mov_b32 v5, 128
    v_writelane_b32 v5, 16, 4
    s_mov_b32 s50, {WS_END // 256}
    v_writelane_b32 v5, s50, 5
    s_mov_b32 s50, {E*32 // 256}
    v_writelane_b32 v5, s50, 6
    s_mov_b32 s50, {N}
    v_writelane_b32 v5, s50, 7
    s_and_b32 s93, s2, 0xf0
    v_readlane_b32 s50, v5, s{sW}
    v_add_u32 v4, s93, v85
    s_waitcnt lgkmcnt(0)
    v_mul_u32_u24 v4, s50, v4
    s_barrier
    """)
    wm = 0
    emit(xdma(ERING, 0))
    a(f"""
    s_mov_b64 exec, 0xffff
    global_load_dword v60, v4, s[96:97] sc1
    s_mov_b64 exec, -1
    s_sub_u32 s90, s82, s88
    v_add_u32 v4, 8192, v1
    v_cmp_gt_u32 s[92:93], s90, v4
    s_mov_b32 s91, {-SB & 0xffffffff}
    v_mov_b32 v6, 4
    v_lshlrev_b32 v7, 22, v0
    v_mov_b32 v36, 0
    v_mov_b32 v37, 0
    v_mov_b32 v38, 0
    v_mov_b32 v39, 0
    """)
    for k in range(8):
        a(f"v_add_u32 v{68+k}, {hex(((2048*(k//4) + k % 4) << 20) & 0xffffffff)}, v7")
    for g in range(2):
        a(f"s_waitcnt vmcnt({6 - g + wm})")
        if g == 0:
            st(1)
        for j in range(4):
            d, t = 8 + 4*g + j, 24 + 4*g + j
            a(f"v_mul_u32_u24 v{44+4*g+j}, 21400, v{d}")
            a(f"v_lshrrev_b32 v{44+4*g+j}, 20, v{44+4*g+j}")
            a(f"v_lshlrev_b32 v{t}, 2, v{44+4*g+j}")
        if g:
            a("s_mov_b64 exec, s[92:93]")
        for j in range(4):
            a(f"ds_add_rtn_u32 v{32+4*g+j}, v{24+4*g+j}, v6")
    a(f"""
    s_mov_b64 exec, -1
    s_lshl_b32 s56, s62, 7
    s_add_u32 s56, s56, {WS_SLOT}
    s_add_u32 s57, s56, {1 << 20}
    s_add_u32 s58, s56, {2 << 20}
    s_add_u32 s59, s56, {3 << 20}
    v_lshrrev_b32 v5, 3, v0
    v_and_b32 v61, 0x70, v1
    v_lshl_add_u32 v61, v5, 14, v61
    s_mov_b32 s4, s78
    s_mov_b32 s5, s79
    s_mov_b32 s12, s78
    s_mov_b32 s13, s79
    s_mov_b32 s14, {WS_END}
    s_mov_b32 s15, 0x20000
    s_waitcnt vmcnt(3)
    """)
    wp = wdma()
    for k in range(8):
        s_, d = 16 + k, 8 + k
        a(f"v_mad_i32_i24 v{d}, v{44+k}, s91, v{d}")
        a(f"v_and_b32 v4, 7, v{s_}")
        a(f"v_lshl_or_b32 v{d}, v{d}, 3, v4")
        a(f"v_lshrrev_b32 v{s_}, 3, v{s_}")
        a(f"v_lshl_or_b32 v{d}, v{d}, 11, v{68+k}")
        a(f"v_or_b32 v{s_}, v{d}, v{s_}")
    a("s_waitcnt lgkmcnt(0)")
    for k in range(8):
        if k == 4:
            a("s_mov_b64 exec, s[92:93]")
        a(f"v_add_u32 v4, v{32+k}, v{24+k}")
        a(f"v_and_b32 v4, 0x7f, v4")
        a(f"v_lshl_add_u32 v{44+k}, v{24+k}, 5, v4")
        a(f"ds_write_b32 v{44+k}, v{16+k} offset:{IMG}")
    a(f"""
    s_mov_b64 exec, -1
    v_or3_b32 v4, v32, v33, v34
    v_or3_b32 v5, v35, v36, v37
    v_or3_b32 v4, v4, v38, v39
    v_or_b32 v4, v4, v5
    v_cmp_lt_u32 vcc, 0x7f, v4
    s_mov_b64 exec, vcc
    ds_write_b32 v62, v6 offset:1024
    s_mov_b64 exec, -1
    s_waitcnt vmcnt(1) lgkmcnt(0)
    s_barrier
    ds_read_b32 v4, v62 offset:1024
    """)
    OUTR = [8, 12, 68, 72]
    def img_reads():
        for i in range(4):
            a(f"ds_read_b128 {vr(OUTR[i],4)}, v1 offset:{IMG + 8192*i}")
    img_reads()
    a(f"""
    s_waitcnt lgkmcnt(4)
    v_readfirstlane_b32 s50, v4
    s_cmp_lg_u32 s50, 0
    s_cbranch_scc1 K_slow
    K_out:
    """)
    for i in range(4):
        a(f"s_waitcnt lgkmcnt({3-i})")
        a(f"buffer_store_dwordx4 {vr(OUTR[i],4)}, v61, s[12:15], s{56+i} offen sc1")
    st(2)
    common(64)
    common2(a)
    wb = opt.get("wbefore", 2)
    emit([ready_load] + wcdma + wp[:3*wb])
    a(f"v_add_u32 v{FX}, {ERING}, v{FX}")
    for q in range(8):
        emit(xfrag(q))
    emit(misc[:3])
    a(f"s_add_u32 s96, s97, {WS_FLG + 4096}\ns_mov_b32 s97, {OOB}\ns_waitcnt vmcnt({wb + 1})")
    ready_check("rp")
    a(f"""
    s_mov_b64 exec, 1
    s_barrier
    buffer_store_dword v{ONE}, off, s[12:15], s96 sc1
    s_mov_b64 exec, -1
    """)
    st(3)
    emit(wp[3*wb:])
    if em2:
        emit(emw(em2, 0))
    lds_reset(True)
    if es:
        emit([f"s_waitcnt vmcnt({1 if em2 else 0})"] + misc[3:])
        for q in range(8):
            emit(wfrag(q))
        g2(8*(em2 + em3))
    else:
        left = lambda q: 7 - q + (1 if q < wb else 0) + (1 if em2 else 0)
        emit([f"s_waitcnt vmcnt({left(0)})"] + misc[3:] + wfrag(0))
        for q in range(8):
            if q < 7:
                emit([f"s_waitcnt vmcnt({left(q + 1)})"] + wfrag(q + 1))
            a(f"s_waitcnt lgkmcnt({2 if q < 7 else 0})")
            emit([gm(q, 0, D1), gm(q, 1, D1)])
    a("s_branch K_join")


    a("""
    K_slow:
    v_lshlrev_b32 v5, 4, v2
    s_waitcnt lgkmcnt(0)
    ds_read_b128 v[8:11], v5
    s_waitcnt lgkmcnt(0)
    v_add_u32 v13, v8, v9
    v_add_u32 v14, v13, v10
    v_add_u32 v15, v14, v11
    v_mov_b32 v4, v15
    """)
    scan64(a, [4])
    a("""
    v_sub_u32 v40, v4, v15
    v_add_u32 v41, v40, v8
    v_add_u32 v42, v40, v13
    v_add_u32 v43, v40, v14
    ds_write_b128 v5, v[40:43] offset:2048
    """)
    for k in range(8):
        a(f"ds_read_b32 v{24+k}, v{24+k} offset:2048")
    a("s_waitcnt lgkmcnt(0)")
    for k in range(8):
        a(f"s_mov_b64 exec, {'s[92:93]' if k >= 4 else '-1'}")
        a(f"v_add_u32 v{24+k}, v{24+k}, v{32+k}")
        a(f"ds_write_b32 v{24+k}, v{16+k} offset:{STG}")
        a(f"v_cmp_gt_u32 vcc, 0x80, v{32+k}")
        a("s_mov_b64 exec, vcc")
        a(f"ds_write_b32 v{44+k}, v{16+k} offset:{IMG}")
    a(f"""
    s_mov_b64 exec, -1
    s_waitcnt lgkmcnt(0)
    s_barrier
    v_mov_b32 v16, {62 << 14}
    """)
    for j in range(4):
        a(f"""
        v_add_u32 v12, {4*j}, v5
        v_add_u32 v13, 124, v12
        v_and_b32 v13, 0x7f, v13
        v_lshl_add_u32 v13, v12, 5, v13
        v_add_u32 v14, 120, v{40+j}
        v_lshl_or_b32 v14, v14, 18, v16
        v_add_u32 v15, -124, v{8+j}
        v_cmp_lt_u32 vcc, 0x80, v{8+j}
        s_mov_b64 exec, vcc
        ds_write_b32 v13, v14 offset:{IMG}
        ds_write_b32 v{40+j}, v15 offset:{STG + 120}
        s_mov_b64 exec, -1
        """)
    a(f"""
    ds_read_b128 v[16:19], v1 offset:{STG}
    ds_read_b128 v[20:23], v1 offset:{STG + 8192}
    s_add_u32 s50, s88, {WS_REC}
    s_add_u32 s80, s4, s50
    s_addc_u32 s81, s5, 0
    s_mov_b32 s82, s90
    s_movk_i32 s50, 8192
    s_waitcnt lgkmcnt(0)
    buffer_store_dwordx4 v[16:19], v1, s[80:83], 0 offen sc1
    buffer_store_dwordx4 v[20:23], v1, s[80:83], s50 offen sc1
    """)
    img_reads()
    a("s_branch K_out")

    zero_masks = lambda ks: [f"s_mov_b64 {sr(sM+2*k,2)}, 0" for k in ks]
    a("""
    K_again:
    s_waitcnt vmcnt(0) lgkmcnt(0)
    s_barrier
    """)
    lds_reset(True)
    a(f"""
    s_cmp_eq_u32 s{sMODE}, 3
    s_cbranch_scc1 K_next
    """)
    rec_loads()
    a(f"""
    s_waitcnt vmcnt(0)
    s_cmp_eq_u32 s{sMODE}, 1
    s_cbranch_scc0 K_marks
    s_mov_b32 s{sMODE}, 2
    s_mov_b64 s[56:57], 0
    """)
    classes(range(4, 8), True)
    emit(zero_masks(range(4)))
    a(f"""
    s_branch K_resort
    K_marks:
    s_mov_b32 s{sMODE}, 3
    v_mov_b32 v84, 0
    """)
    for k in range(8):
        a(f"""
        v_bfe_u32 v85, v{REC+k}, 14, 6
        v_cmp_eq_u32 vcc, 62, v85
        s_nop 1
        v_cndmask_b32 v84, v84, v{REC+k}, vcc
        """)
    a(f"""
    s_nop 1
    v_or_b32_dpp v84, v84, v84 quad_perm:[1,0,3,2] row_mask:0xf bank_mask:0xf
    s_nop 1
    v_or_b32_dpp v84, v84, v84 quad_perm:[2,3,0,1] row_mask:0xf bank_mask:0xf
    v_cmp_ne_u32 vcc, 0, v84
    v_lshrrev_b32 v84, 20, v84
    v_add_lshl_u32 v84, v84, v{PB}, 2
    s_mov_b32 s{sSTART}, {WS_REC}
    buffer_load_dword v{SLEN}, v84, s[12:15], s{sSTART} offen sc1
    v_add_u32 v{SEG}, v84, v{SIDX}
    s_mov_b32 s{sSTART}, {WS_REC + 4 - 64}
    s_waitcnt vmcnt(0)
    v_cndmask_b32 v{SLEN}, 0, v{SLEN}, vcc
    v_min_u32 v{SLEN}, {CH*4}, v{SLEN}
    v_add_u32 v{SLEN}, 64, v{SLEN}
    K_next:
    s_add_u32 s{sSTART}, s{sSTART}, 64
    v_add_u32 v{SLEN}, -64, v{SLEN}
    """)
    rec_loads(1)
    a(f"""
    v_cmp_lt_i32 s[56:57], 64, v{SLEN}
    v_sub_u32 v84, v{SLEN}, v{SIDX}
    """)
    for k in range(4):
        a(f"v_cmp_lt_i32 {sr(sM+2*k,2)}, {4*k}, v84")
    emit(zero_masks(range(4, 8)))
    a("K_resort:")
    list_ptrs()
    sort(False)
    a(f"""
    s_cmp_eq_u32 s{sMODE}, 2
    s_cselect_b32 s{sMORE}, s{sMARK}, s{sMORE}
    s_cmp_eq_u32 s{sMODE}, 1
    s_cselect_b32 s{sMORE}, 1, s{sMORE}
    s_cbranch_scc1 K_sorted
    s_waitcnt lgkmcnt(0)
    s_barrier
    """)
    fill_a()
    a(f"""
    s_branch K_fillb
    K_over:
    s_cmp_lg_u32 s{sMODE}, 0
    s_cbranch_scc1 K_end
    s_mov_b32 s{sMODE}, 1
    s_mov_b32 s{sMARK}, s{sMORE}
    s_mov_b64 s[56:57], 0
    s_waitcnt lgkmcnt(0)
    s_barrier
    """)
    lds_reset(False)
    emit(zero_masks(range(4, 8)))
    a("s_branch K_resort\nK_codeend:")
    d = desc(name, 256, 100, 256)
    ln = f"; @launch grid=(256,1,1) block=(512,1,1) lds={LDS}\n"
    if opt.get("probe"):
        import gen
        ln = f"; @launch kernel={name} grid=(256,1,1) block=(512,1,1) lds={LDS}\n; @launch kernel=probe_kernel grid=(1,1,1) block=(64,1,1) lds=0\n"
        d += gen.gen_probe(a, opt)
    hdr = """; GatedGCN layer in one launch: each workgroup builds the table rows of its 49 nodes, half of them also
; partition a chunk of edges by destination bin; after two counted hand-offs every workgroup sorts its bin
; and runs the gate / aggregation loop.
""" + ln + '.amdgcn_target "amdgcn-amd-amdhsa--gfx950"\n.text\n'
    return hdr + a.text() + d

if __name__ == "__main__":
    opt = {}
    out = f"cdna_kernels/{NAME}.s"
    for x in sys.argv[1:]:
        k, v = x.split("=", 1)
        if k == "out":
            out = v
        else:
            opt[k] = int(v) if v.lstrip("-").isdigit() else v
    open(out, "w").write(generate(opt))
    print("wrote", out)
```
